```python
import torch

def _softmax(x, axis=-1):
    return torch.softmax(x, dim=axis)

def _gelu(x):
    return torch.nn.functional.gelu(x, approximate='tanh')

def _silu(x):
    return torch.nn.functional.silu(x)

def _sigmoid(x):
    return torch.sigmoid(x)

def _layernorm(x, axis=-1, eps=1e-05):
    m = x.mean(dim=axis, keepdim=True)
    v = x.var(dim=axis, keepdim=True, unbiased=False)
    return (x - m) / torch.sqrt(v + eps)

def _scatter_add(tgt, idx, src, axis=0):
    return tgt.clone().index_add_(axis, idx, src)

def _segment_sum(src, seg, n):
    out = torch.zeros((n,) + src.shape[1:], dtype=src.dtype)
    return out.index_add_(0, seg, src)

def _pad(x, pw):
    flat = tuple((v for pair in reversed(pw) for v in pair))
    return torch.nn.functional.pad(x, flat)
kernel_name = 'parallel_sum__memory_aug_recurrent_mem_tr__mixer_channel_mlp__prompt'

def setup_inputs():

    _w = lambda a: (lambda t: t.to(torch.bfloat16) if t.is_floating_point() else t)(torch.as_tensor(a))

    def _A_setup():
        B, S, Dm = (1, 2048, 512)
        H, Dh = (32, 128)
        M, seg = (8, 32)
        seg = min(seg, S)
        S = S // seg * seg
        return {'x': _w((lambda *s: torch.randn(*s, dtype=torch.bfloat16) * 0.05)(B, S, Dm)), 'mem0': _w((lambda *s: torch.randn(*s, dtype=torch.bfloat16) * 0.2)(B, M, Dm)), 'Wq': _w((lambda *s: torch.randn(*s, dtype=torch.bfloat16) * 1.6)(Dm, H, Dh) * Dm ** (-0.5)), 'Wk': _w((lambda *s: torch.randn(*s, dtype=torch.bfloat16) * 1.6)(Dm, H, Dh) * Dm ** (-0.5)), 'Wv': _w((lambda *s: torch.randn(*s, dtype=torch.bfloat16) * 0.2)(Dm, H, Dh) * Dm ** (-0.5)), 'Wo': _w((lambda *s: torch.randn(*s, dtype=torch.bfloat16) * 0.2)(H, Dh, Dm) * (H * Dh) ** (-0.5)), 'seg_len': seg}
    _A_in = _A_setup()

    def _B_setup():
        B, S, D, F = (1, 2048, 512, 1792)
        return {'x': _w((lambda *s: torch.randn(*s, dtype=torch.bfloat16) * 0.05)(B, S, D)), 'w1': _w((lambda *s: torch.randn(*s, dtype=torch.bfloat16) * 0.8)(D, F) * D ** (-0.5)), 'b1': _w((lambda *s: torch.randn(*s, dtype=torch.bfloat16) * 0.4)(F)), 'w2': _w((lambda *s: torch.randn(*s, dtype=torch.bfloat16) * 0.05)(F, D) * F ** (-0.5)), 'b2': _w((lambda *s: torch.randn(*s, dtype=torch.bfloat16) * 0.05)(D))}
    _B_in = _B_setup()
    return {'A_x': _A_in['x'], 'A_mem0': _A_in['mem0'], 'A_Wq': _A_in['Wq'], 'A_Wk': _A_in['Wk'], 'A_Wv': _A_in['Wv'], 'A_Wo': _A_in['Wo'], 'A_seg_len': _A_in['seg_len'], 'B_x': _B_in['x'], 'B_w1': _B_in['w1'], 'B_b1': _B_in['b1'], 'B_w2': _B_in['w2'], 'B_b2': _B_in['b2']}

def reference(A_x, A_mem0, A_Wq, A_Wk, A_Wv, A_Wo, A_seg_len, B_x, B_w1, B_b1, B_w2, B_b2):

    def _A_ref(x, mem0, Wq, Wk, Wv, Wo, seg_len):
        B, S, Dm = x.shape
        H, Dh = (Wq.shape[1], Wq.shape[2])
        M = mem0.shape[1]
        scale = Dh ** (-0.5)
        n_seg = S // seg_len
        L = M + seg_len
        idx = torch.arange(L)
        mask = (idx[:, None] < M) | (idx[:, None] >= idx[None, :])
        mem = mem0
        outs = []
        for s in range(n_seg):
            xs = x[:, s * seg_len:(s + 1) * seg_len, :].clone()
            h = torch.concatenate([mem, xs], axis=1)
            q = torch.einsum('btd,dhe->bhte', h, Wq)
            k = torch.einsum('btd,dhe->bhte', h, Wk)
            v = torch.einsum('btd,dhe->bhte', h, Wv)
            scores = torch.einsum('bhqe,bhke->bhqk', q, k) * scale
            scores = torch.where(mask[None, None], scores, -1000000000.0)
            p = _softmax(scores, axis=-1)
            o = torch.einsum('bhqk,bhke->bhqe', p, v)
            o = torch.einsum('bhte,hed->btd', o, Wo)
            mem = o[:, :M, :].clone()
            outs.append(o[:, M:, :])
        return torch.concatenate(outs, axis=1)

    def _B_ref(x, w1, b1, w2, b2):
        y = _layernorm(x, axis=-1)
        h = _gelu(torch.einsum('bsd,df->bsf', y, w1) + b1)
        return torch.einsum('bsf,fd->bsd', h, w2) + b2
    x = A_x
    xn = _layernorm(x, axis=-1)
    return x + _A_ref(xn, A_mem0, A_Wq, A_Wk, A_Wv, A_Wo, A_seg_len) + _B_ref(xn, B_w1, B_b1, B_w2, B_b2)
```

```python
from asmlib import *
from layout import *
import math, struct
from gemm import f32bits

O_WS = 4
O_SRDW = 8
O_KC = 36; O_NC = 37; O_SEG = 38; O_STEP = 39; O_WV = 27
O_T0 = 40; O_T1 = 41; O_T2 = 42; O_C = 44
O_MSK = 46
O_HD = 54
LA_A = 0; LA_X = 32768
OV_L = 1; OV_QA = 2; OV_VA = 3; OV_KVA = 4; OV_XW = 5; OV_XR = 6; OV_AW = 7; OV_AR = 8; OV_PS = 9; OV_T = 10
OV_Q = 32; OV_K = 64; OV_V = 96; OV_KV = 128; OV_XF = 144; OV_S = 160
OV_P = 184
OV_ON = 200
OV_LD = 204
OV_AF = 212
OA_WO = 0; OA_O = 128; OA_OUT = 192

def ao_prologue(A, ptr_wo):
    from chain import srd
    L = OV_L; t0 = OV_T; t1 = OV_T + 1; t2 = OV_T + 2; t3 = OV_T + 3
    A(f"v_and_b32 v{L}, 63, v0")
    srd(A, O_SRDW, ptr_wo, 4194304)
    A(f"v_lshrrev_b32 v{t0}, 4, v{L}")
    A(f"v_bfe_u32 v{t1}, v{L}, 1, 3")
    A(f"v_xor_b32 v{t1}, v{t1}, v{t0}")
    A(f"v_and_b32 v{t2}, 1, v{L}")
    A(f"v_lshl_or_b32 v{t1}, v{t1}, 1, v{t2}")
    A(f"v_lshlrev_b32 v{t1}, 4, v{t1}")
    D = OV_T + 4
    A(f"v_lshl_or_b32 v{D}, v{t0}, 10, v{t1}")
    A(f"v_xor_b32 v{D+1}, 128, v{D}")
    A(f"s_lshl_b32 s{O_T0}, s{O_KC}, 19")
    A(f"s_lshl_b32 s{O_T1}, s{O_WV}, 17")
    A(f"s_add_u32 s{O_T0}, s{O_T0}, s{O_T1}")
    A(f"s_lshl_b32 s{O_T1}, s{O_NC}, 8")
    A(f"s_add_u32 s{O_T0}, s{O_T0}, s{O_T1}")
    A(f"s_lshl_b32 s{O_T1}, s{O_WV}, 15")
    for i in range(32):
        A(f"s_mov_b32 m0, s{O_T1}")
        A(f"buffer_load_dwordx4 v{D + ((i >> 1) & 1)}, s[{O_SRDW}:{O_SRDW+3}], s{O_T0} offen lds")
        A(f"s_add_u32 s{O_T0}, s{O_T0}, 4096")
        A(f"s_add_u32 s{O_T1}, s{O_T1}, 1024")
    A(f"v_lshrrev_b32 v{t0}, 4, v{L}")
    A(f"v_lshlrev_b32 v{t0}, 3, v{t0}")
    A(f"v_bfe_u32 v{t1}, v{L}, 2, 2")
    A(f"v_add_u32 v{t0}, v{t0}, v{t1}")
    A(f"v_lshlrev_b32 v{t0}, 8, v{t0}")
    A(f"v_bfe_u32 v{t2}, v{L}, 4, 1")
    A(f"v_lshl_or_b32 v{t1}, v{t2}, 2, v{t1}")
    A(f"s_lshl_b32 s{O_T0}, s{O_WV}, 1")
    A(f"v_xor_b32 v{t1}, s{O_T0}, v{t1}")
    A(f"v_lshl_or_b32 v{t0}, v{t1}, 5, v{t0}")
    A(f"v_and_b32 v{t2}, 3, v{L}")
    A(f"v_lshl_or_b32 v{t0}, v{t2}, 3, v{t0}")
    A(f"v_xor_b32 v{t3}, 32, v{t0}")
    TB = [OV_T + 6, OV_T + 7, OV_T + 8, OV_T + 9]
    A(f"v_mov_b32 v{TB[0]}, v{t0}"); A(f"v_mov_b32 v{TB[1]}, v{t3}")
    A(f"v_add_u32 v{TB[2]}, 0x10000, v{t0}"); A(f"v_add_u32 v{TB[3]}, 0x10000, v{t3}")
    A.wait(vm=0)
    A("s_barrier")
    for t in range(2):
        for ks in range(16):
            for hh in range(2):
                row = 32 * ks + 4 * hh
                b = TB[t + (2 if row >= 256 else 0)]
                r = OA_WO + (t * 16 + ks) * 4 + 2 * hh
                A(f"ds_read_b64_tr_b16 a[{r}:{r+1}], v{b} offset:{(row & 255) * 256}")
    A.wait(lg=0)
    A("s_barrier")
    A(f"s_lshl_b32 s{O_HD}, s{O_KC}, 2")
    A(f"s_add_u32 s{O_HD}, s{O_HD}, s{O_WV}")
    A(f"v_and_b32 v{t0}, 15, v{L}")
    A(f"v_lshlrev_b32 v{t0}, 13, v{t0}")
    A(f"v_lshrrev_b32 v{t1}, 4, v{L}")
    A(f"v_lshl_or_b32 v{t0}, v{t1}, 4, v{t0}")
    A(f"s_lshl_b32 s{O_T0}, s{O_HD}, 8")
    A(f"v_add_u32 v{OV_QA}, s{O_T0}, v{t0}")
    A(f"v_and_b32 v{t0}, 15, v{L}")
    A(f"v_lshlrev_b32 v{t0}, 6, v{t0}")
    A(f"v_lshl_or_b32 v{t0}, v{t1}, 4, v{t0}")
    A(f"s_lshl_b32 s{O_T0}, s{O_HD}, 13")
    A(f"v_add_u32 v{OV_VA}, s{O_T0}, v{t0}")
    A(f"v_lshlrev_b32 v{t0}, 4, v{L}")
    A(f"s_lshl_b32 s{O_T0}, s{O_HD}, 12")
    A(f"v_add_u32 v{OV_KVA}, s{O_T0}, v{t0}")
    A(f"v_and_b32 v{t0}, 15, v{L}")
    A(f"v_lshlrev_b32 v{t0}, 5, v{t0}")
    A(f"v_lshl_or_b32 v{t0}, v{t1}, 3, v{t0}")
    A(f"s_lshl_b32 s{O_T0}, s{O_WV}, 12")
    A(f"s_add_u32 s{O_T0}, s{O_T0}, {LA_X}")
    A(f"v_add_u32 v{OV_XW}, s{O_T0}, v{t0}")
    A(f"v_lshlrev_b32 v{t0}, 3, v{t1}")
    A(f"v_bfe_u32 v{t2}, v{L}, 2, 2")
    A(f"v_add_u32 v{t0}, v{t0}, v{t2}")
    A(f"v_lshlrev_b32 v{t0}, 5, v{t0}")
    A(f"v_and_b32 v{t2}, 3, v{L}")
    A(f"v_lshl_or_b32 v{t0}, v{t2}, 3, v{t0}")
    A(f"v_add_u32 v{OV_XR}, s{O_T0}, v{t0}")
    Z = OV_AF
    for i in range(4): A(f"v_mov_b32 v{Z+i}, 0")
    A(f"v_lshlrev_b32 v{t0}, 4, v{L}")
    A(f"v_add_u32 v{t0}, s{O_T0}, v{t0}")
    for i in range(4): A(f"ds_write_b128 v{t0}, v[{Z}:{Z+3}] offset:{i*1024}")
    A(f"v_and_b32 v{t0}, 15, v{L}")
    A(f"v_lshlrev_b32 v{OV_AW}, 10, v{t0}")
    A(f"v_bfe_u32 v{t2}, v{L}, 4, 1")
    A(f"v_lshl_or_b32 v{OV_AW}, v{t2}, 3, v{OV_AW}")
    A(f"s_lshl_b32 s{O_T0}, s{O_WV}, 8")
    A(f"v_add_u32 v{OV_AW}, s{O_T0}, v{OV_AW}")
    A(f"v_bfe_u32 v{t2}, v{L}, 5, 1")
    A(f"v_xor_b32 v{t0}, v{t0}, v{t2}")
    A(f"v_lshlrev_b32 v{20}, 4, v{t0}")
    A(f"v_and_b32 v{t0}, 15, v{L}")
    A(f"v_lshlrev_b32 v{OV_AR}, 10, v{t0}")
    A(f"v_xor_b32 v{t0}, v{t0}, v{t1}")
    A(f"v_lshlrev_b32 v{21}, 4, v{t0}")
    A(f"v_and_b32 v{t0}, 15, v{L}")
    A(f"v_lshlrev_b32 v{t0}, 9, v{t0}")
    A(f"v_lshl_or_b32 v{t0}, v{t1}, 4, v{t0}")
    A(f"s_lshl_b32 s{O_T0}, s{O_WV}, 7")
    A(f"v_add_u32 v{OV_PS}, s{O_T0}, v{t0}")
    A(f"v_and_b32 v{t0}, 15, v{L}")
    A(f"v_lshlrev_b32 v{t2}, 2, v{t1}")
    for r in range(4):
        A(f"v_add_u32 v{t3}, {r}, v{t2}")
        A(f"v_cmp_gt_u32 s[{O_MSK+2*r}:{O_MSK+2*r+1}], v{t3}, v{t0}")
    for i in range(4): A(f"v_mov_b32 v{OV_ON+i}, 0x3f803f80")
    c = (128 ** -0.5) * math.log2(math.e)
    A(f"s_mov_b32 s{O_C}, {f32bits(c)}"); A(f"s_mov_b32 s{O_C+1}, {f32bits(c)}")
    A.wait(lg=0)
    A.settle(); A.forget()

def ao_segment(A, sc1=True):
    WS = f"s[{O_WS}:{O_WS+3}]"; sc = " sc1" if sc1 else ""
    t0 = OV_T; t1 = OV_T + 1
    A(f"s_lshl_b32 s{O_T0}, s{O_SEG}, 18")
    A(f"s_add_u32 s{O_T1}, s{O_T0}, {WS_KX}")
    A(f"s_add_u32 s{O_T2}, s{O_T0}, {WS_QX}")
    A(f"s_lshl_b32 s{O_STEP}, s{O_SEG}, 17")
    A(f"s_add_u32 s{O_STEP}, s{O_STEP}, {WS_KVM}")
    for wp in range(4):
        A(f"buffer_load_dwordx4 v[{OV_KV+4*wp}:{OV_KV+4*wp+3}], v{OV_KVA}, {WS}, s{O_STEP} offen offset:{wp*1024}{sc}")
    for T in range(2):
        for ks in range(4):
            if T == 1 and ks == 0:
                A(f"s_add_u32 s{O_T1}, s{O_T1}, {16*8192}")
            r = OV_K + 4 * (4 * T + ks)
            A(f"buffer_load_dwordx4 v[{r}:{r+3}], v{OV_QA}, {WS}, s{O_T1} offen offset:{ks*64}{sc}")
    for T in range(2):
        for ks in range(4):
            if T == 1 and ks == 0:
                A(f"s_add_u32 s{O_T2}, s{O_T2}, {16*8192}")
            r = OV_Q + 4 * (4 * T + ks)
            A(f"buffer_load_dwordx4 v[{r}:{r+3}], v{OV_QA}, {WS}, s{O_T2} offen offset:{ks*64}{sc}")
    A(f"s_add_u32 s{O_T0}, s{O_T0}, {WS_VT}")
    for t in range(8):
        if t == 4: A(f"s_add_u32 s{O_T0}, s{O_T0}, 4096")
        r = OV_V + 4 * t
        A(f"buffer_load_dwordx4 v[{r}:{r+3}], v{OV_VA}, {WS}, s{O_T0} offen offset:{(t&3)*1024}{sc}")
    for wp in range(4):
        A(f"ds_write2_b32 v{OV_XW}, v{OV_KV+4*wp}, v{OV_KV+4*wp+1} offset0:1 offset1:129" if wp == 0 else
          f"v_add_u32 v{t0}, {wp*1024}, v{OV_XW}")
        if wp > 0:
            A(f"ds_write2_b32 v{t0}, v{OV_KV+4*wp}, v{OV_KV+4*wp+1} offset0:1 offset1:129")
    A.wait(lg=0)
    for ks in range(4):
        for hh in range(2):
            r = OV_XF + 4 * ks + 2 * hh
            A(f"ds_read_b64_tr_b16 v[{r}:{r+1}], v{OV_XR} offset:{ks*1024+hh*128}")
    def S(qt, T): return OV_S + 12 * qt + 4 * T
    def q(qt, ks): return vr(OV_Q + 4 * (4 * qt + ks), 4)
    def k(T, ks): return vr(OV_K + 4 * (4 * T + ks), 4)
    tiles = [(0, 1), (1, 1), (1, 2), (0, 0), (1, 0)]
    for (qt, T) in tiles:
        for ks in range(4):
            a_ = vr(OV_XF + 4 * ks, 4) if T == 0 else k(T - 1, ks)
            d = vr(S(qt, T), 4)
            A(f"v_mfma_f32_16x16x32_bf16 {d}, {a_}, {q(qt, ks)}, {'0' if ks == 0 else d}")
    NEG = OV_T + 2
    A(f"v_mov_b32 v{NEG}, 0xff800000")
    for (qt, T) in ((0, 1), (1, 2)):
        for r in range(4):
            A(f"v_cndmask_b32 v{S(qt,T)+r}, v{S(qt,T)+r}, v{NEG}, s[{O_MSK+2*r}:{O_MSK+2*r+1}]")
    for qt in range(2):
        vals = [S(qt, 0) + 2, S(qt, 0) + 3] + [S(qt, 1) + r for r in range(4)] + ([S(qt, 2) + r for r in range(4)] if qt == 1 else [])
        Mx = OV_T + 4; Tt = OV_T + 5
        A(f"v_max3_f32 v{Mx}, v{vals[0]}, v{vals[1]}, v{vals[2]}")
        i = 3
        while i + 1 < len(vals):
            A(f"v_max3_f32 v{Mx}, v{Mx}, v{vals[i]}, v{vals[i+1]}"); i += 2
        if i < len(vals): A(f"v_max_f32 v{Mx}, v{Mx}, v{vals[i]}")
        A(f"v_mov_b32 v{Tt}, v{Mx}")
        A(f"v_permlane16_swap_b32 v{Mx}, v{Tt}")
        A(f"v_max_f32 v{Mx}, v{Mx}, v{Tt}")
        A(f"v_mov_b32 v{Tt}, v{Mx}")
        A(f"v_permlane32_swap_b32 v{Mx}, v{Tt}")
        A(f"v_max_f32 v{Mx}, v{Mx}, v{Tt}")
        A(f"v_mul_f32 v{Mx}, s{O_C}, v{Mx}")
        for r in vals: A(f"v_fma_f32 v{r}, v{r}, s{O_C}, -v{Mx}")
        for r in vals: A(f"v_exp_f32 v{r}, v{r}")
        P12 = OV_P + 4 * qt; P0a = OV_P + 8 + 4 * qt; P0b = P0a + 2
        A(f"v_cvt_pk_bf16_f32 v{P12}, v{S(qt,1)}, v{S(qt,1)+1}")
        A(f"v_cvt_pk_bf16_f32 v{P12+1}, v{S(qt,1)+2}, v{S(qt,1)+3}")
        if qt == 1:
            A(f"v_cvt_pk_bf16_f32 v{P12+2}, v{S(qt,2)}, v{S(qt,2)+1}")
            A(f"v_cvt_pk_bf16_f32 v{P12+3}, v{S(qt,2)+2}, v{S(qt,2)+3}")
        else:
            A(f"v_mov_b32 v{P12+2}, 0"); A(f"v_mov_b32 v{P12+3}, 0")
        A(f"v_cvt_pk_bf16_f32 v{P0a}, v{S(qt,0)+2}, v{S(qt,0)+3}")
        A(f"v_mov_b32 v{P0a+1}, 0")
        A(f"v_mov_b32 v{P0b}, 0")
        A(f"v_mov_b32 v{P0b+1}, v{P0a}")
    for qt in range(2):
        P12 = OV_P + 4 * qt; P0a = OV_P + 8 + 4 * qt; P0b = P0a + 2
        ld = vr(OV_LD + 4 * qt, 4)
        A(f"v_mfma_f32_16x16x32_bf16 {ld}, {vr(OV_ON,4)}, {vr(P12,4)}, 0")
        for t in range(8):
            o = ar(OA_O + 32 * qt + 4 * t, 4)
            A(f"v_mfma_f32_16x16x32_bf16 {o}, {vr(OV_V+4*t,4)}, {vr(P12,4)}, 0")
        A(f"v_mfma_f32_16x16x16_bf16 {ld}, {vr(OV_ON,2)}, {vr(P0a,2)}, {ld}")
        for t in range(8):
            o = ar(OA_O + 32 * qt + 4 * t, 4)
            wp = t >> 1
            A(f"v_mfma_f32_16x16x16_bf16 {o}, {vr(OV_KV+4*wp+2,2)}, {vr(P0a if (t & 1) == 0 else P0b,2)}, {o}")
    A("s_barrier")
    for qt in range(2):
        Ls = OV_T + 4
        A(f"v_rcp_f32 v{Ls}, v{OV_LD+4*qt}")
        for t in range(8):
            X = OV_T + 6
            for r in range(4): A(f"v_accvgpr_read_b32 v{22+r}, a{OA_O+32*qt+4*t+r}")
            for r in range(4): A(f"v_mul_f32 v{22+r}, v{22+r}, v{Ls}")
            A(f"v_cvt_pk_bf16_f32 v{26}, v22, v23")
            A(f"v_cvt_pk_bf16_f32 v{27}, v24, v25")
            A(f"v_xor_b32 v{t0}, {2*t*16}, v20")
            A(f"v_add_u32 v{t0}, v{t0}, v{OV_AW}")
            A(f"ds_write_b64 v{t0}, v[26:27] offset:{qt*16*1024}")
    A.wait(lg=0)
    A("s_barrier")
    for i in range(16): A(f"v_accvgpr_write_b32 a{OA_OUT+i}, 0")
    AD = [28, 29, 30, 31]
    for kk in range(4):
        A(f"v_xor_b32 v{AD[kk]}, {4*kk*16}, v21")
        A(f"v_add_u32 v{AD[kk]}, v{AD[kk]}, v{OV_AR}")
    steps = [(ks, mt) for ks in range(16) for mt in range(2)]
    def aload(n):
        ks, mt = steps[n]; r = OV_AF + 4 * (n & 7)
        return f"ds_read_b128 v[{r}:{r+3}], v{AD[ks & 3]} offset:{mt*16*1024 + (ks >> 2)*256}"
    for n in range(6): A(aload(n))
    for n, (ks, mt) in enumerate(steps):
        r = OV_AF + 4 * (n & 7)
        for ct in range(2):
            acc = ar(OA_OUT + 4 * (2 * mt + ct), 4)
            wo = ar(OA_WO + (ct * 16 + ks) * 4, 4)
            A(f"v_mfma_f32_16x16x32_bf16 {acc}, {wo}, {vr(r,4)}, {acc}")
        if n + 6 < len(steps): A(aload(n + 6))
    A(f"s_lshl_b32 s{O_T0}, s{O_SEG}, 2")
    A(f"s_add_u32 s{O_T0}, s{O_T0}, s{O_NC}")
    A(f"s_lshl_b32 s{O_T0}, s{O_T0}, 3")
    A(f"s_add_u32 s{O_T0}, s{O_T0}, s{O_KC}")
    A(f"s_lshl_b32 s{O_T0}, s{O_T0}, 14")
    A(f"s_add_u32 s{O_T0}, s{O_T0}, {WS_PART}")
    A(f"s_add_u32 s{O_T1}, s{O_T0}, {16*512}")
    for mt in range(2):
        for ct in range(2):
            R = 22 + 4 * ((2 * mt + ct) & 1)
            for r in range(4): A(f"v_accvgpr_read_b32 v{R+r}, a{OA_OUT+4*(2*mt+ct)+r}")
            A(f"buffer_store_dwordx4 v[{R}:{R+3}], v{OV_PS}, {WS}, s{O_T0 if mt == 0 else O_T1} offen offset:{ct*64}{sc}")
```

```python
import re

def _expand(tok):
    tok = tok.strip()
    m = re.match(r'^(-|abs\()?([vas])\[(\d+):(\d+)\]', tok)
    if m:
        return [f"{m.group(2)}{i}" for i in range(int(m.group(3)), int(m.group(4)) + 1)]
    m = re.match(r'^-?\|?([vas])(\d+)\|?$', tok)
    if m:
        return [f"{m.group(1)}{m.group(2)}"]
    if tok in ('vcc', 'vcc_lo', 'vcc_hi'):
        return ['vcc']
    if tok in ('exec', 'exec_lo', 'exec_hi'):
        return ['exec']
    if tok == 'm0':
        return ['m0']
    return []

def _split_ops(s):
    ops, depth, cur = [], 0, ''
    for ch in s:
        if ch in '[(': depth += 1
        if ch in '])': depth -= 1
        if ch == ',' and depth == 0:
            ops.append(cur.strip()); cur = ''
        else:
            cur += ch
    if cur.strip(): ops.append(cur.strip())
    return ops

TRANS = ('v_exp_f32', 'v_log_f32', 'v_rcp_f32', 'v_rsq_f32', 'v_sqrt_f32', 'v_sin_f32', 'v_cos_f32')

class Ins:
    __slots__ = ('text', 'mn', 'kind', 'wr', 'rd', 'passes', 'dpp', 'perm', 'trans', 'wide_store', 'cregs', 'dregs', 'ws', 'rl', 'sdata')

def parse(text):
    I = Ins()
    I.text = text
    parts = text.split(None, 1)
    mn = parts[0]; rest = parts[1] if len(parts) > 1 else ''
    I.mn = mn; I.passes = 0; I.dpp = False; I.perm = False; I.trans = False; I.wide_store = False
    I.cregs = set(); I.dregs = set(); I.ws = 1; I.rl = False; I.sdata = set()
    ops = _split_ops(rest)
    toks = []
    mods = ''
    for i, o in enumerate(ops):
        sp = o.split(None, 1)
        toks.append(sp[0] if sp else '')
        if len(sp) > 1: mods += ' ' + sp[1]
    R = [_expand(t) for t in toks]
    wr, rd = set(), set()
    if mn.startswith('v_mfma') or mn.startswith('v_smfmac'):
        I.kind = 'mfma'; I.passes = 8 if '32x32' in mn else 4
        wr |= set(R[0]); I.dregs = set(R[0])
        rd |= set(R[1]) | set(R[2])
        if mn.startswith('v_smfmac'):
            rd |= set(R[0]) | set(R[3]); I.cregs = set(R[0])
        else:
            rd |= set(R[3]); I.cregs = set(R[3])
    elif mn.startswith('v_'):
        I.kind = 'valu'
        if 'row_' in mods or 'quad_perm' in mods or mn.endswith('_dpp'): I.dpp = True
        if mn.startswith(TRANS): I.trans = True
        if mn.startswith('v_permlane') and 'swap' in mn:
            I.perm = True
            wr |= set(R[0]) | set(R[1]); rd |= set(R[0]) | set(R[1])
        elif mn.startswith('v_cmp'):
            wr |= set(R[0])
            for r in R[1:]: rd |= set(r)
        elif mn.startswith('v_readfirstlane') or mn.startswith('v_readlane'):
            I.rl = True
            wr |= set(R[0])
            for r in R[1:]: rd |= set(r)
        else:
            wr |= set(R[0])
            for r in R[1:]: rd |= set(r)
            if mn.startswith(('v_fmac', 'v_dot2c', 'v_pk_fmac', 'v_writelane')): rd |= set(R[0])
            if mn.startswith('v_cndmask') and len(R) == 3: rd.add('vcc')
            if I.dpp: rd |= set(R[0])
    elif mn.startswith('ds_'):
        I.kind = 'ds'
        if mn.startswith(('ds_read', 'ds_bpermute', 'ds_permute', 'ds_swizzle')):
            wr |= set(R[0])
            for r in R[1:]: rd |= set(r)
        else:
            for r in R: rd |= set(r)
            for r in R[1:]: I.sdata |= set(r)
    elif mn.startswith('buffer_') or mn.startswith('global_'):
        I.kind = 'vmem'
        islds = bool(re.search(r'\blds\b', mods)) or 'load_lds' in mn
        if mn in ('buffer_inv', 'buffer_wbl2'):
            pass
        elif '_load' in mn and not islds:
            wr |= set(R[0])
            for r in R[1:]: rd |= set(r)
        elif '_load' in mn and islds:
            for r in R: rd |= set(r)
            rd.add('m0')
        elif '_atomic' in mn:
            ret = bool(re.search(r'\bsc0\b', mods))
            for r in R: rd |= set(r)
            if ret: wr |= set(R[0])
            if ret and mn.startswith('global_'):
                rd -= set(R[0]) - set().union(*[set(x) for x in R[1:]])
        else:
            for r in R: rd |= set(r)
            d = R[0] if mn.startswith('buffer_') else R[1]
            I.sdata = set(d)
            if 'x4' in mn or 'x3' in mn: I.wide_store = True
    elif mn.startswith('s_'):
        I.kind = 'salu'
        if mn == 's_nop':
            I.ws = int(toks[0], 0) + 1
        elif mn.startswith(('s_cmp', 's_cbranch', 's_branch', 's_waitcnt', 's_barrier', 's_endpgm', 's_sleep', 's_setprio', 's_bitcmp')):
            for r in R: rd |= set(r)
        elif mn.startswith('s_load') or mn.startswith('s_memtime') or mn.startswith('s_memrealtime') or mn.startswith('s_buffer_load'):
            I.kind = 'smem'
            wr |= set(R[0])
            for r in R[1:]: rd |= set(r)
        else:
            wr |= set(R[0])
            for r in R[1:]: rd |= set(r)
            if 'saveexec' in mn: wr.add('exec'); rd.add('exec')
    else:
        raise ValueError("unknown instr " + text)
    I.wr, I.rd = wr, rd
    return I

def is_sgpr(r): return r.startswith('s') or r in ('vcc', 'm0', 'exec')

def need_ws(p, c):
    n = 0
    if p.kind == 'mfma':
        long = 8 if p.passes == 4 else 12
        if c.kind == 'mfma':
            ab = c.rd - c.cregs
            if p.dregs & ab: n = max(n, long)
            if p.dregs & c.cregs:
                if not (p.dregs == c.cregs and p.mn == c.mn):
                    n = max(n, 6 if p.passes == 4 else 10)
            if (p.dregs & c.dregs) and not (p.dregs & c.cregs):
                n = max(n, long)
        elif c.kind in ('valu',):
            if p.dregs & (c.rd | c.wr): n = max(n, long)
            if p.cregs & c.wr: n = max(n, 3 if p.passes == 4 else 7)
        elif c.kind in ('ds', 'vmem'):
            if p.dregs & (c.rd | c.wr): n = max(n, long)
    elif p.kind == 'valu':
        vw = {r for r in p.wr if not is_sgpr(r)}
        sw = {r for r in p.wr if is_sgpr(r)}
        if c.kind == 'mfma' and (vw & c.rd): n = max(n, 2)
        if c.kind == 'valu':
            if c.perm and (vw & c.rd): n = max(n, 2)
            if c.dpp and (vw & c.rd): n = max(n, 2)
            if c.rl and (vw & c.rd): n = max(n, 1)
            if p.trans and (vw & c.rd): n = max(n, 1)
            if sw & c.rd: n = max(n, 4 if c.rl else 2)
            if 'exec' in sw: n = max(n, 5)
        if c.kind == 'vmem' and (sw & c.rd): n = max(n, 5)
        if c.kind in ('salu', 'smem') and (sw & c.rd): n = max(n, 2)
    elif p.kind == 'vmem':
        if p.wide_store and (p.sdata & c.wr): n = max(n, 2)
    elif p.kind == 'salu':
        if 'm0' in p.wr and c.kind == 'vmem' and 'm0' in c.rd: n = max(n, 1)
    return n

class Asm:
    def __init__(self):
        self.out = []
        self.recent = []
        self.lgkm = []
        self.vm = []
        self.nlab = 0
        self.auto = True
        self.count = 0
        self.nwr = 0

    def raw(self, s): self.out.append(s)
    def comment(self, s): self.out.append("    ; " + s)

    def _age(self, ws):
        self.recent = [(i, a + ws) for (i, a) in self.recent if a + ws < 24]

    def _emit(self, text):
        I = parse(text)
        self.out.append("    " + text)
        self._age(I.ws)
        if I.mn != 's_nop':
            self.recent.append((I, 0))
        self.count += 1
        return I

    def _wait(self, vm=None, lg=None):
        parts = []
        if vm is not None:
            vm = min(vm, 63); parts.append(f"vmcnt({vm})")
            while len(self.vm) > vm: self.vm.pop(0)
        if lg is not None:
            lg = min(lg, 15); parts.append(f"lgkmcnt({lg})")
            while len(self.lgkm) > lg: self.lgkm.pop(0)
        self._emit("s_waitcnt " + " ".join(parts))

    def wait(self, vm=None, lg=None):
        self._wait(vm, lg)

    def __call__(self, text):
        text = text.strip()
        if text == '@wait_writes':
            self.wait_writes(); return
        I = parse(text)
        if I.mn == 's_waitcnt':
            m = re.search(r'vmcnt\((\d+)\)', text); vm = int(m.group(1)) if m else None
            m = re.search(r'lgkmcnt\((\d+)\)', text); lg = int(m.group(1)) if m else None
            self._wait(vm, lg); return
        touched = I.rd | I.wr
        if not self.auto: touched = set()
        needl = needv = None
        for idx, s in enumerate(self.lgkm):
            if s & touched: needl = len(self.lgkm) - 1 - idx
        for idx, s in enumerate(self.vm):
            if s & touched: needv = len(self.vm) - 1 - idx
        if needl is not None or needv is not None:
            self._wait(needv, needl)
        need = 0
        for (p, age) in self.recent:
            n = need_ws(p, I)
            if n - age > need: need = n - age
        while need > 0:
            k = min(need, 16)
            self._emit(f"s_nop {k-1}")
            need -= k
        if I.kind == 'ds' and len(self.lgkm) >= 15:
            self._wait(None, 14)
        if I.kind == 'vmem' and len(self.vm) >= 63:
            self._wait(62, None)
        self._emit(text)
        if I.kind == 'ds':
            w = set(I.wr)
            if I.mn.startswith('ds_write'):
                self.nwr += 1; w.add(f'*w{self.nwr}*')
            self.lgkm.append(w)
        elif I.kind == 'vmem' and I.mn not in ('buffer_inv', 'buffer_wbl2'):
            self.vm.append(set(I.wr))
        elif I.kind == 'smem':
            self.lgkm.append(set(I.wr) | {'*smem*'})

    def wait_writes(self):
        last = None
        for idx, st in enumerate(self.lgkm):
            if any(isinstance(x, str) and x.startswith('*w') for x in st): last = idx
        if last is not None:
            self._wait(None, len(self.lgkm) - 1 - last)

    def label(self, name):
        self.out.append(name + ":")

    def newlabel(self, base='L'):
        self.nlab += 1
        return f"{base}_{self.nlab}"

    def settle(self, n=12):
        worst = 0
        for (p, age) in self.recent:
            if p.kind == 'mfma': worst = max(worst, (8 if p.passes == 4 else 12) - age)
            elif p.kind == 'valu': worst = max(worst, 5 - age if any(is_sgpr(r) for r in p.wr) else 2 - age)
            elif p.kind == 'vmem' and p.wide_store: worst = max(worst, 2 - age)
        while worst > 0:
            k = min(worst, 16); self._emit(f"s_nop {k-1}"); worst -= k

    def forget(self):
        self.lgkm = []; self.vm = []

    def text(self): return "\n".join(self.out) + "\n"

def vr(a, n=1): return f"v{a}" if n == 1 else f"v[{a}:{a+n-1}]"
def ar(a, n=1): return f"a{a}" if n == 1 else f"a[{a}:{a+n-1}]"
def sr(a, n=1): return f"s{a}" if n == 1 else f"s[{a}:{a+n-1}]"
```

```python
from asmlib import *
from layout import *
import math, struct

L_WL   = 0
L_MEMB = 131072
L_KXB  = L_MEMB + 8192
L_X    = L_MEMB + 24576
L_OB   = L_X + 4096
L_CA   = L_OB + 2048
L_DUM  = L_CA + 1024
LDS_TOTAL = 163840
PSLOT = 262144

S_WS = 4; S_W = 8; S_DBG = 12
S_PW = 16
S_H = 26; S_WV = 27; S_STEP = 28; S_T0 = 29; S_T1 = 30; S_T2 = 31
S_C = 32
S_PAR = 34
S_PST0 = 35; S_PST1 = 36; S_PLD = 37; S_POI = 38; S_MSL = 39; S_MPO = 40
S_KXA = 41; S_KXB = 42; S_M0A = 43; S_M0B = 44; S_VT = 45; S_KM = 46; S_VM = 47
S_TO = 48
S_R0 = 8; S_R1 = 9; S_R2 = 10
S_EX = 50
S_TM = 52
S_TACC = 54
S_STAMP = 72

V_IDX, V_WL0, V_WL1, V_MEM, V_XW, V_XR, V_OW, V_PS, V_PL, V_MS, V_MW, V_KXG, V_VVT, V_KMS, V_VMS = range(1, 16)
V_T = 16
V_MK = 20
V_SB = 52
V_AQ = 68; V_AK = 76; V_AV = 84
V_XF = 92
V_S = 108
V_VX = 120

def wreg(X, c, f):
    idx = X * 12 + c * 4 + f
    return ar(8 * idx, 8) if idx < 32 else vr(128 + 8 * (idx - 32), 8)
def wreg_part(X, c, f, p):
    idx = X * 12 + c * 4 + f
    return ar(8 * idx + 2 * p, 2) if idx < 32 else vr(128 + 8 * (idx - 32) + 2 * p, 2)

def srd(A, s, ptr, size):
    A(f"s_mov_b32 s{s}, s{ptr}")
    A(f"s_and_b32 s{s+1}, s{ptr+1}, 0xffff")
    A(f"s_mov_b32 s{s+2}, {size}")
    A(f"s_mov_b32 s{s+3}, 0x20000")

WSR = f"s[{S_WS}:{S_WS+3}]"

def poll_with_shadow(A, poll, name, regs, loadfn, pre_ok, shadow):
    orig = A.wait
    state = {'done': False}
    def w(vm=None, lg=None):
        if not state['done']:
            state['done'] = True
            shadow()
        orig(vm, lg)
    A.wait = w
    try:
        poll(name, regs, loadfn, pre_ok)
    finally:
        A.wait = orig

def emit_chain(A, timing=False, nsteps=64, opt=(), d1=0, d2=0, hodelay=8, kxpos=(14, 22), g1=12, g2=12):
    extra_delay = ["s_nop 0"] * d1
    extra_delay2 = ["s_nop 0"] * d2
    lane = 17; t0 = 18; t1 = 19
    def pst(k):
        if 'pro' in opt: A.raw(f"    s_memrealtime s[{72+2*k}:{73+2*k}]")
    pst(1)
    A(f"v_and_b32 v{lane}, 63, v0")
    DQ = V_MK
    DO = V_MK + 2
    TRA = V_MK + 6
    TRO = V_MK + 8
    TMP = V_SB
    a = V_MK + 12; b = V_MK + 13; c_ = V_MK + 14; d_ = V_MK + 15
    A(f"v_lshrrev_b32 v{a}, 4, v{lane}")
    A(f"v_bfe_u32 v{b}, v{lane}, 1, 3")
    A(f"v_xor_b32 v{c_}, v{b}, v{a}")
    A(f"v_and_b32 v{d_}, 1, v{lane}")
    A(f"v_lshl_or_b32 v{c_}, v{c_}, 1, v{d_}")
    A(f"v_lshlrev_b32 v{c_}, 4, v{c_}")
    A(f"v_lshl_or_b32 v{DQ}, v{a}, 13, v{c_}")
    A(f"v_xor_b32 v{DQ+1}, 128, v{DQ}")
    A(f"v_and_b32 v{c_}, 1, v{a}")
    A(f"v_xor_b32 v{c_}, v{b}, v{c_}")
    A(f"v_lshl_or_b32 v{c_}, v{c_}, 1, v{d_}")
    A(f"v_lshrrev_b32 v{b}, 2, v{c_}")
    A(f"v_lshlrev_b32 v{b}, 8, v{b}")
    A(f"v_and_b32 v{c_}, 3, v{c_}")
    A(f"v_lshl_or_b32 v{b}, v{c_}, 5, v{b}")
    A(f"v_lshl_or_b32 v{DO}, v{a}, 10, v{b}")
    A(f"v_xor_b32 v{DO+1}, 256, v{DO}")
    A(f"v_xor_b32 v{DO+2}, 512, v{DO}")
    A(f"v_xor_b32 v{DO+3}, 768, v{DO}")
    A(f"v_bfe_u32 v{b}, v{lane}, 4, 1")
    A(f"v_bfe_u32 v{c_}, v{lane}, 3, 1")
    A(f"v_lshl_or_b32 v{b}, v{c_}, 1, v{b}")
    A(f"v_bfe_u32 v{c_}, v{lane}, 2, 1")
    A(f"v_lshl_or_b32 v{b}, v{c_}, 2, v{b}")
    A(f"v_bfe_u32 v{c_}, v{lane}, 5, 1")
    A(f"v_lshl_or_b32 v{c_}, v{c_}, 4, v{b}")
    A(f"v_lshlrev_b32 v{c_}, 8, v{c_}")
    A(f"v_and_b32 v{d_}, 3, v{lane}")
    A(f"v_lshl_or_b32 v{c_}, v{d_}, 3, v{c_}")
    A(f"s_lshl_b32 s{S_T0}, s{S_WV}, 1")
    A(f"v_xor_b32 v{b}, s{S_T0}, v{b}")
    A(f"v_lshl_or_b32 v{TRA}, v{b}, 5, v{c_}")
    A(f"v_xor_b32 v{TRA+1}, 32, v{TRA}")
    A(f"v_bfe_u32 v{b}, v{lane}, 5, 1")
    A(f"v_lshlrev_b32 v{b}, 4, v{b}")
    A(f"v_bfe_u32 v{c_}, v{lane}, 4, 1")
    A(f"v_lshl_or_b32 v{b}, v{c_}, 2, v{b}")
    A(f"v_lshlrev_b32 v{t0}, 1, v{c_}")
    A(f"v_bfe_u32 v{c_}, v{lane}, 2, 1")
    A(f"v_or_b32 v{b}, v{b}, v{c_}")
    A(f"v_or_b32 v{t0}, v{t0}, v{c_}")
    A(f"v_bfe_u32 v{c_}, v{lane}, 3, 1")
    A(f"v_lshl_or_b32 v{b}, v{c_}, 3, v{b}")
    A(f"v_lshl_or_b32 v{t0}, v{c_}, 2, v{t0}")
    A(f"v_lshlrev_b32 v{b}, 8, v{b}")
    A(f"v_and_b32 v{c_}, 1, v{lane}")
    A(f"v_lshl_or_b32 v{b}, v{c_}, 4, v{b}")
    A(f"v_bfe_u32 v{c_}, v{lane}, 1, 1")
    A(f"v_or_b32 v{c_}, s{S_T0}, v{c_}")
    A(f"v_xor_b32 v{c_}, v{c_}, v{t0}")
    A(f"v_lshl_or_b32 v{TRO}, v{c_}, 5, v{b}")
    A(f"v_add_u32 v{TRO+1}, 8, v{TRO}")

    P = V_XF
    for i in range(4): A(f"v_mov_b32 v{P+i}, -1")
    A(f"v_lshlrev_b32 v{t0}, 4, v0")
    A(f"s_lshl_b32 s{S_T0}, s{S_H}, 13")
    A(f"s_add_u32 s{S_T0}, s{S_T0}, {WS_PBUF}")
    for slot in range(3):
        for i in range(2):
            A(f"s_add_u32 s{S_T1}, s{S_T0}, {slot*PSLOT + i*4096}")
            A(f"buffer_store_dwordx4 v[{P}:{P+3}], v{t0}, {WSR}, s{S_T1} offen")
    A(f"v_cmp_gt_u32 vcc, 16, v0")
    A(f"s_and_saveexec_b64 s[{S_EX}:{S_EX+1}], vcc")
    A(f"s_cbranch_execz L_nomp")
    A(f"s_lshl_b32 s{S_T0}, s{S_H}, 8")
    A(f"s_add_u32 s{S_T0}, s{S_T0}, {WS_MBUF}")
    for sl in (1, 2):
        for cp in range(4):
            A(f"s_add_u32 s{S_T1}, s{S_T0}, {sl*32768 + cp*8192}")
            A(f"buffer_store_dwordx4 v[{P}:{P+3}], v{t0}, {WSR}, s{S_T1} offen")
    A.label("L_nomp")
    A(f"s_mov_b64 exec, s[{S_EX}:{S_EX+1}]")
    A.vm = []

    order = [(X, c) for X in range(4) for c in range(3)] + [(X, 3) for X in range(4)]
    slot_of = {}
    for i, (X, c) in enumerate(order[:12]): slot_of[(X, c)] = i % 5
    for X in range(4): slot_of[(X, 3)] = X
    def issue(X, c):
        srd(A, S_W, S_PW + 2 * X, 4194304)
        slot = slot_of[(X, c)]
        if X < 3:
            A(f"s_lshl_b32 s{S_T0}, s{S_WV}, 18")
            A(f"s_lshl_b32 s{S_T1}, s{S_H}, 8")
            A(f"s_add_u32 s{S_T0}, s{S_T0}, s{S_T1}")
            A(f"s_add_u32 s{S_T0}, s{S_T0}, {128*c*8192}")
            step = 4 * 8192
        else:
            A(f"s_lshl_b32 s{S_T0}, s{S_WV}, 15")
            A(f"s_lshl_b32 s{S_T1}, s{S_H}, 17")
            A(f"s_add_u32 s{S_T0}, s{S_T0}, s{S_T1}")
            A(f"s_add_u32 s{S_T0}, s{S_T0}, {(c >> 1) * 128 + (c & 1) * 16}")
            step = 4 * 1024
        A(f"s_lshl_b32 s{S_T1}, s{S_WV}, 13")
        A(f"s_add_u32 s{S_T1}, s{S_T1}, {slot*32768}")
        for i in range(8):
            D = DQ + (i & 1) if X < 3 else DO + (i & 3)
            A(f"s_mov_b32 m0, s{S_T1}")
            A(f"buffer_load_dwordx4 v{D}, s[{S_W}:{S_W+3}], s{S_T0} offen lds")
            if i < 7:
                A(f"s_add_u32 s{S_T0}, s{S_T0}, {step}")
                A(f"s_add_u32 s{S_T1}, s{S_T1}, 1024")
    pst(2)
    issued = []
    for k in range(5):
        issue(*order[k]); issued.append(order[k])
    follow = {0: order[5], 1: order[6], 2: order[7], 3: order[8], 4: order[9], 5: order[10], 6: order[11],
              7: (2, 3), 8: (3, 3), 10: (0, 3), 11: (1, 3)}
    def trreads(X, slot, f, dst_fn):
        t = f & 1; ksp = f >> 1
        base = slot * 32768
        TR = TRA if X < 3 else TRO
        breg = TR + t
        if base >= 32768:
            A(f"v_add_u32 v{t1}, {base}, v{TR+t}")
            breg = t1
        for tp in range(4):
            if X < 3: imm = (64 * ksp + 32 * (tp >> 1) + 8 * (tp & 1)) * 256
            else: imm = (64 * ksp + 32 * (tp >> 1) + 2 * (tp & 1)) * 256
            A(f"ds_read_b64_tr_b16 {dst_fn(tp)}, v{breg} offset:{imm}")
    def consume_wait(ch):
        pos = issued.index(ch)
        n_after = len(issued) - 1 - pos
        A.wait(vm=8 * n_after)
        A("s_barrier")
    for i, (X, c) in enumerate(order[:12]):
        consume_wait((X, c))
        if i == 0: pst(3)
        if i == 4: pst(4)
        if i == 8: pst(5)
        for f in range(4):
            trreads(X, slot_of[(X, c)], f, lambda tp: wreg_part(X, c, f, tp))
        A.wait(lg=0)
        A("s_barrier")
        if i in follow:
            issue(*follow[i]); issued.append(follow[i])
    pst(6)
    def S(x): A(x)
    S(f"v_bfe_u32 v{t0}, v{lane}, 1, 1")
    S(f"v_mov_b32 v{V_IDX}, 0x4444")
    S(f"v_mov_b32 v{t1}, 0xeeee")
    S(f"v_cmp_ne_u32 vcc, 0, v{t0}")
    S(f"v_cndmask_b32 v{V_IDX}, v{V_IDX}, v{t1}, vcc")
    S(f"s_lshl_b32 s{S_T0}, s{S_WV}, 13")
    S(f"v_lshlrev_b32 v{t0}, 4, v{lane}")
    S(f"v_add_u32 v{V_WL0}, s{S_T0}, v{t0}")
    S(f"v_add_u32 v{V_WL1}, 0x10000, v{V_WL0}")
    S(f"v_add_u32 v{V_MEM}, {L_MEMB}, v{t0}")
    S(f"s_lshl_b32 s{S_T0}, s{S_WV}, 11")
    S(f"v_add_u32 v{V_MW}, s{S_T0}, v{V_MEM}")
    S(f"s_lshl_b32 s{S_T1}, s{S_H}, 13")
    S(f"s_add_u32 s{S_T0}, s{S_T0}, s{S_T1}")
    S(f"v_add_u32 v{V_PL}, s{S_T0}, v{t0}")
    S(f"v_and_b32 v{t0}, 15, v{lane}")
    S(f"v_lshlrev_b32 v{t0}, 5, v{t0}")
    S(f"v_lshrrev_b32 v{t1}, 4, v{lane}")
    S(f"v_lshl_or_b32 v{t0}, v{t1}, 3, v{t0}")
    S(f"v_bfe_u32 v{t1}, v{lane}, 3, 1")
    S(f"v_lshlrev_b32 v{t1}, 7, v{t1}")
    S(f"v_xor_b32 v{t0}, v{t0}, v{t1}")
    S(f"s_lshl_b32 s{S_T0}, s{S_WV}, 10")
    S(f"s_add_u32 s{S_T0}, s{S_T0}, {L_X}")
    S(f"v_add_u32 v{V_XW}, s{S_T0}, v{t0}")
    S(f"v_lshrrev_b32 v{t0}, 4, v{lane}")
    S(f"v_lshlrev_b32 v{t0}, 3, v{t0}")
    S(f"v_bfe_u32 v{t1}, v{lane}, 2, 2")
    S(f"v_or_b32 v{t0}, v{t0}, v{t1}")
    S(f"v_lshlrev_b32 v{t0}, 5, v{t0}")
    S(f"v_and_b32 v{t1}, 3, v{lane}")
    S(f"v_lshl_or_b32 v{t0}, v{t1}, 3, v{t0}")
    S(f"v_bfe_u32 v{t1}, v{lane}, 4, 1")
    S(f"v_lshlrev_b32 v{t1}, 7, v{t1}")
    S(f"v_xor_b32 v{t0}, v{t0}, v{t1}")
    S(f"v_add_u32 v{V_XR}, {L_X}, v{t0}")
    S(f"v_xor_b32 v{V_KMS}, 128, v{t0}")
    S(f"v_add_u32 v{V_KMS}, {L_X}, v{V_KMS}")
    S(f"v_and_b32 v{t0}, 13, v{lane}")
    S(f"v_bfe_u32 v{t1}, v{lane}, 5, 1")
    S(f"v_lshl_or_b32 v{t0}, v{t1}, 1, v{t0}")
    S(f"v_lshlrev_b32 v{t0}, 4, v{t0}")
    S(f"v_bfe_u32 v{t1}, v{lane}, 4, 1")
    S(f"v_lshl_or_b32 v{t0}, v{t1}, 3, v{t0}")
    S(f"s_lshl_b32 s{S_T0}, s{S_WV}, 9")
    S(f"s_add_u32 s{S_T0}, s{S_T0}, {L_OB}")
    S(f"v_add_u32 v{V_OW}, s{S_T0}, v{t0}")
    S(f"v_mov_b32 v{t0}, {L_DUM}")
    S(f"v_and_b32 v{t1}, 2, v{lane}")
    S(f"v_cmp_ne_u32 vcc, 0, v{t1}")
    S(f"v_cndmask_b32 v{V_OW}, v{V_OW}, v{t0}, vcc")
    S(f"v_bfe_u32 v{t0}, v{lane}, 2, 2")
    S(f"v_lshlrev_b32 v{t0}, 13, v{t0}")
    S(f"v_lshrrev_b32 v{t1}, 4, v{lane}")
    S(f"v_lshl_or_b32 v{t0}, v{t1}, 11, v{t0}")
    S(f"v_and_b32 v{t1}, 3, v{lane}")
    S(f"v_lshl_or_b32 v{t0}, v{t1}, 4, v{t0}")
    S(f"s_lshl_b32 s{S_T0}, s{S_H}, 6")
    S(f"v_add_u32 v{V_PS}, s{S_T0}, v{t0}")
    S(f"v_bfe_u32 v{t0}, v{lane}, 1, 1")
    S(f"v_lshlrev_b32 v{t0}, 1, v{t0}")
    S(f"v_lshrrev_b32 v{t1}, 4, v{lane}")
    S(f"v_add_u32 v{t0}, v{t0}, v{t1}")
    S(f"v_lshlrev_b32 v{t0}, 4, v{t0}")
    S(f"v_and_b32 v{t1}, 1, v{lane}")
    S(f"v_lshl_or_b32 v{t0}, v{t1}, 3, v{t0}")
    S(f"s_lshl_b32 s{S_T0}, s{S_H}, 8")
    S(f"s_lshl_b32 s{S_T1}, s{S_WV}, 6")
    S(f"s_add_u32 s{S_T0}, s{S_T0}, s{S_T1}")
    S(f"v_bfe_u32 v{t1}, v{lane}, 2, 2")
    S(f"v_lshl_or_b32 v{t0}, v{t1}, 13, v{t0}")
    S(f"v_add_u32 v{V_MS}, s{S_T0}, v{t0}")
    S(f"v_and_b32 v{t0}, 15, v{lane}")
    S(f"v_lshlrev_b32 v{t0}, 13, v{t0}")
    S(f"v_lshrrev_b32 v{t1}, 4, v{lane}")
    S(f"v_lshl_or_b32 v{t0}, v{t1}, 4, v{t0}")
    S(f"s_lshl_b32 s{S_T0}, s{S_H}, 8")
    S(f"s_lshr_b32 s{S_T1}, s{S_WV}, 1")
    S(f"s_lshl_b32 s{S_T1}, s{S_T1}, 17")
    S(f"s_add_u32 s{S_T0}, s{S_T0}, s{S_T1}")
    S(f"s_and_b32 s{S_T1}, s{S_WV}, 1")
    S(f"s_lshl_b32 s{S_T1}, s{S_T1}, 7")
    S(f"s_add_u32 s{S_T0}, s{S_T0}, s{S_T1}")
    S(f"v_add_u32 v{V_KXG}, s{S_T0}, v{t0}")
    S(f"v_and_b32 v{t0}, 15, v{lane}")
    S(f"v_lshlrev_b32 v{t0}, 6, v{t0}")
    S(f"v_lshrrev_b32 v{t1}, 4, v{lane}")
    S(f"v_lshl_or_b32 v{t0}, v{t1}, 4, v{t0}")
    S(f"s_lshl_b32 s{S_T0}, s{S_H}, 13")
    S(f"s_lshl_b32 s{S_T1}, s{S_WV}, 11")
    S(f"s_add_u32 s{S_T0}, s{S_T0}, s{S_T1}")
    S(f"v_add_u32 v{V_VVT}, s{S_T0}, v{t0}")
    S(f"v_lshlrev_b32 v{t0}, 4, v{lane}")
    S(f"s_lshl_b32 s{S_T0}, s{S_H}, 12")
    S(f"s_lshl_b32 s{S_T1}, s{S_WV}, 10")
    S(f"s_add_u32 s{S_T0}, s{S_T0}, s{S_T1}")
    S(f"v_add_u32 v{V_VMS}, s{S_T0}, v{t0}")
    c = (128 ** -0.5) * math.log2(math.e)
    cbits = hex(struct.unpack('<I', struct.pack('<f', c))[0])
    S(f"s_mov_b32 s{S_C}, {cbits}")
    S(f"s_mov_b32 s{S_C+1}, {cbits}")

    srd(A, S_W, S_PW + 8, 8192)
    A(f"v_lshrrev_b32 v{t0}, 4, v{lane}")
    A(f"v_and_b32 v{t0}, 1, v{t0}")
    A(f"v_lshlrev_b32 v{t0}, 10, v{t0}")
    A(f"v_and_b32 v{t1}, 3, v{lane}")
    A(f"v_lshl_or_b32 v{t0}, v{t1}, 1, v{t0}")
    A(f"s_lshl_b32 s{S_T0}, s{S_WV}, 11")
    A(f"s_lshl_b32 s{S_T1}, s{S_H}, 5")
    A(f"s_add_u32 s{S_T0}, s{S_T0}, s{S_T1}")
    M0R = V_AQ
    MT = V_SB
    for j in range(4):
        A(f"buffer_load_ushort v{MT+j}, v{t0}, s[{S_W}:{S_W+3}], s{S_T0} offen offset:{8*j}")
    A(f"v_lshl_or_b32 v{M0R}, v{MT+1}, 16, v{MT}")
    A(f"v_lshl_or_b32 v{M0R+1}, v{MT+3}, 16, v{MT+2}")
    A(f"s_mov_b32 s{S_T0}, {WS_MBUF}")
    A(f"s_mov_b64 exec, 0xffffffff")
    A(f"buffer_store_dwordx2 v[{M0R}:{M0R+1}], v{V_MS}, {WSR}, s{S_T0} offen")
    A(f"s_mov_b64 exec, -1")
    CA = V_AK
    A(f"v_and_b32 v{a}, 15, v{lane}")
    A(f"v_mov_b32 v{b}, 0x3f80")
    A(f"v_mov_b32 v{c_}, 0x3f800000")
    A(f"v_cmp_gt_u32 vcc, 4, v{a}")
    A(f"v_cndmask_b32 v{b}, v{c_}, v{b}, vcc")
    A(f"v_cmp_gt_u32 vcc, 8, v{a}")
    A(f"v_cndmask_b32 v{b}, 0, v{b}, vcc")
    A(f"v_and_b32 v{a}, 3, v{a}")
    for i in range(4):
        A(f"v_cmp_eq_u32 vcc, {i}, v{a}")
        A(f"v_cndmask_b32 v{CA+i}, 0, v{b}, vcc")
    A(f"s_lshl_b32 s{S_M0A}, s{S_WV}, 11")
    A(f"s_add_u32 s{S_M0A}, s{S_M0A}, {L_KXB}")
    A(f"s_mov_b32 s{S_KXA}, {WS_KX}")
    A(f"s_mov_b32 m0, s{S_M0A}")
    A(f"buffer_load_dwordx4 v{V_KXG}, {WSR}, s{S_KXA} offen sc1 lds")
    A(f"s_add_u32 s{S_T0}, s{S_M0A}, 1024")
    A(f"s_add_u32 s{S_T1}, s{S_KXA}, 64")
    A(f"s_mov_b32 m0, s{S_T0}")
    A(f"buffer_load_dwordx4 v{V_KXG}, {WSR}, s{S_T1} offen sc1 lds")
    A.wait(vm=0)
    A.vm = []
    A(f"ds_write_b128 v{V_MEM}, v[{CA}:{CA+3}] offset:{L_CA-L_MEMB}")
    A.wait(lg=0)
    A("s_barrier")
    pst(7)
    for X in range(4):
        for f in range(4):
            trreads(X, X, f, lambda tp: vr(TMP + 8 * f + 2 * tp, 2))
        A.wait(lg=0)
        A("s_barrier")
        base = V_WL0 if X < 2 else V_WL1
        for f in range(4):
            for hh in range(2):
                A(f"ds_write_b128 v{base}, v[{TMP+8*f+4*hh}:{TMP+8*f+4*hh+3}] offset:{(X&1)*32768 + f*2048 + hh*1024}")
        A.wait(lg=0)
    A("s_barrier")
    pst(8)
    A(f"s_cmp_lg_u32 s{S_WV}, 0")
    A(f"s_cbranch_scc1 L_rdy_skip")
    A(f"v_mov_b32 v{t0}, 36")
    A(f"v_mov_b32 v{t1}, 1")
    A(f"s_mov_b64 exec, 1")
    A(f"buffer_atomic_add v{t1}, v{t0}, s[{S_DBG}:{S_DBG+3}], 0 offen")
    A(f"s_mov_b64 exec, -1")
    A.label("L_rdy_skip")
    A(f"s_mov_b32 s{S_TO}, 0")
    A(f"v_mov_b32 v{t0}, 36")
    A.label("L_rdy_poll")
    A(f"buffer_load_dword v{t1}, v{t0}, s[{S_DBG}:{S_DBG+3}], 0 offen sc1")
    A(f"s_add_u32 s{S_TO}, s{S_TO}, 1")
    A(f"s_cmp_gt_u32 s{S_TO}, 0x40000")
    A(f"s_cbranch_scc1 L_bail")
    A.wait(vm=0)
    A(f"v_cmp_gt_u32 vcc, 32, v{t1}")
    A(f"s_cbranch_vccnz L_rdy_poll")
    A.forget()


    pst(9)
    if 'pro' in opt:
        A.raw("    s_waitcnt lgkmcnt(0)")
        A(f"s_lshl_b32 s{S_T0}, s{S_H}, 2")
        A(f"s_add_u32 s{S_T0}, s{S_T0}, s{S_WV}")
        A(f"s_lshl_b32 s{S_T0}, s{S_T0}, 7")
        A(f"s_add_u32 s{S_T0}, s{S_T0}, {WS_TIME}")
        A(f"s_mov_b64 exec, 1")
        for k in range(10):
            A(f"v_mov_b32 v{V_T+1}, s{72+2*k}")
            A(f"v_mov_b32 v{V_T}, {4*k}")
            A(f"buffer_store_dword v{V_T+1}, v{V_T}, {WSR}, s{S_T0} offen")
        A(f"s_mov_b64 exec, -1")
        A.wait(vm=0)
    S_MA = 16; S_MB = 18; S_MT = 20
    S_PUB = 22; S_MPZ = 23; S_KEEP = 24; S_B0 = 11; S_B1 = 25; S_B2 = 49; S_HC = 46
    A(f"s_mov_b32 s{S_STEP}, 0")
    A(f"s_mov_b32 s{S_PAR}, 0")
    A(f"s_mov_b32 s{S_VT}, {WS_VT - 32*8192}")
    A(f"s_and_b32 s{S_HC}, s{S_H}, 3")
    A(f"s_lshl_b32 s{S_HC}, s{S_HC}, 13")
    A(f"s_sub_u32 s{S_HC}, s{S_HC}, {L_MEMB}")
    A(f"s_mov_b32 s{S_B0}, {WS_MBUF}")
    A(f"s_mov_b32 s{S_B1}, {WS_MBUF + 32768}")
    A(f"s_mov_b32 s{S_B2}, {WS_MBUF + 65536}")
    A(f"s_mov_b32 s{S_VM}, {WS_KVM}")
    A(f"s_mov_b32 s{S_EX+1}, {WS_KVM + 64*32*4096}")
    A(f"s_mov_b32 s{S_R0}, {WS_PBUF}")
    A(f"s_mov_b32 s{S_R1}, {WS_PBUF + PSLOT}")
    A(f"s_mov_b32 s{S_R2}, {WS_PBUF + 2*PSLOT}")
    def zero(r, n): return [f"v_mov_b64 v[{r+i}:{r+i+1}], 0" for i in range(0, n, 2)]
    def step_scalars():
        o = []
        o.append(f"s_mov_b32 s{S_PLD}, s{S_R0}")
        o.append(f"s_mov_b32 s{S_POI}, s{S_R2}")
        o.append(f"s_lshl_b32 s{S_T1}, s{S_WV}, 16")
        o.append(f"s_add_u32 s{S_PST0}, s{S_PLD}, s{S_T1}")
        o.append(f"s_add_u32 s{S_PST1}, s{S_PST0}, 32768")
        o.append(f"s_add_u32 s{S_MSL}, s{S_B0}, s{S_HC}")
        o.append(f"s_add_u32 s{S_MPO}, s{S_MSL}, 1024")
        o.append(f"s_add_u32 s{S_VT}, s{S_VT}, {32*8192}")
        o.append(f"s_add_u32 s{S_KXA}, s{S_KXA}, {32*8192}")
        o.append(f"s_add_u32 s{S_KXB}, s{S_KXA}, 64")
        o.append(f"s_xor_b32 s{S_M0A}, s{S_M0A}, {L_KXB ^ (L_KXB + 8192)}")
        o.append(f"s_add_u32 s{S_M0B}, s{S_M0A}, 1024")
        o.append(f"v_add_u32 v0, s{S_PAR}, v{V_MEM}")
        return o
    for x in zero(V_AQ, 24): A(x)
    for x in step_scalars(): A(x)
    A(f"buffer_load_dwordx4 v[{V_S+4}:{V_S+7}], v{V_MW}, {WSR}, s{S_MSL} offen sc1")
    A(f"buffer_load_dwordx4 v[{V_S+8}:{V_S+11}], v{V_MW}, {WSR}, s{S_MPO} offen sc1")
    A(f"ds_write_b128 v{V_MW}, v[{V_S+4}:{V_S+7}]")
    A(f"ds_write_b128 v{V_MW}, v[{V_S+8}:{V_S+11}] offset:1024")
    A.wait(lg=0)
    A("s_barrier")
    def sbload(buf, X, f):
        base = V_WL0 if X < 2 else V_WL1
        r = V_SB + 8 * buf
        return [f"ds_read_b128 v[{r}:{r+3}], v{base} offset:{(X&1)*32768 + f*2048}",
                f"ds_read_b128 v[{r+4}:{r+7}], v{base} offset:{(X&1)*32768 + f*2048 + 1024}"]
    for s_ in sbload(0, 0, 0) + sbload(1, 0, 1): A(s_)
    if timing:
        for i in range(18): A(f"s_mov_b32 s{S_TACC+i}, 0")
    A.wait(lg=0)
    A.settle()
    A.forget()

    NST = 15
    def stamp(k):
        if timing: A.raw(f"    {'s_memrealtime' if ('abs' in opt and 'absm' not in opt) else 's_memtime'} s[{S_STAMP+2*k}:{S_STAMP+2*k+1}]")
    def stamp_acc():
        if timing and 'abs' in opt:
            A.raw("    s_waitcnt lgkmcnt(0)")
            lb = A.newlabel("L_abs")
            A(f"s_cmp_lg_u32 s{S_STEP}, 31")
            A(f"s_cbranch_scc1 {lb}")
            for k in range(NST):
                A(f"s_mov_b32 s{S_TACC+k}, s{S_STAMP+2*k}")
            A.label(lb)
            return
        if timing:
            A.raw("    s_waitcnt lgkmcnt(0)")
            A(f"s_sub_u32 s{S_T2}, s{S_STAMP}, s{S_TM}")
            A(f"s_add_u32 s{S_TACC}, s{S_TACC}, s{S_T2}")
            for k in range(1, NST):
                A(f"s_sub_u32 s{S_T2}, s{S_STAMP+2*k}, s{S_STAMP+2*(k-1)}")
                A(f"s_add_u32 s{S_TACC+k}, s{S_TACC+k}, s{S_T2}")
            A(f"s_mov_b32 s{S_TM}, s{S_STAMP+2*(NST-1)}")
    def M(ks): return vr(V_MK + 4 * ks, 4)
    def mload(ks, sc=""):
        return f"ds_read_b128 {M(ks)}, v{V_MEM} offset:{ks*1024}"
    def pack(acc, t, dst):
        return [f"v_pk_add_f32 v[{acc+4*t}:{acc+4*t+1}], v[{acc+4*t}:{acc+4*t+1}], v[{acc+4*t+2}:{acc+4*t+3}]",
                f"v_cvt_pk_bf16_f32 v{dst}, v{acc+4*t}, v{acc+4*t+1}"]

    pre_barrier = []
    sfx = ['']
    if 'rt' in opt:
        A.raw("    s_memtime s[56:57]")
        A.raw("    s_memrealtime s[58:59]")
        A.raw("    s_waitcnt lgkmcnt(0)")
        A("s_mov_b32 s64, 0"); A("s_mov_b32 s65, 0")
    if timing:
        A(f"s_memtime s[{S_TM}:{S_TM+1}]")
        A.wait(lg=0)
    A.label("L_step")
    if 'steps' in opt:
        A.raw("    s_memtime s[56:57]")
    stamp(0)
    morder = [6, 0, 1, 2, 7, 3, 4, 5]
    npre = 8
    for ks in morder: A(mload(ks))
    if 'noload' not in opt and 'novt' not in opt:
        A(f"buffer_load_dwordx4 v[{V_VX}:{V_VX+3}], v{V_VVT}, {WSR}, s{S_VT} offen sc1")
        A(f"buffer_load_dwordx4 v[{V_VX+4}:{V_VX+7}], v{V_VVT}, {WSR}, s{S_VT} offen offset:1024 sc1")
    A(f"buffer_store_dwordx4 v[{V_AV}:{V_AV+3}], v{V_VMS}, {WSR}, s{S_EX+1} offen" + ("" if 'nopub' in opt else " sc1"))
    late_zero = zero(V_AV, 8)
    SL = [(0,0),(0,1),(1,0),(1,1),(0,2),(0,3),(1,2),(1,3),(2,0),(2,1),(2,2),(2,3)]
    RL = [(X, t, ks) for ks in range(6) for X in (0, 1) for t in (0, 1)]
    ACC = {0: V_AQ, 1: V_AK, 2: V_AV}
    CHK = V_T + 1
    qk = []
    ri = 0
    for pos in range(32):
        if pos % 4 == 0:
            X, f = SL[pos // 4]; qk.append(('S', X, f & 1, 6 + (f >> 1), pos // 4))
        else:
            X, t, ks = RL[ri]; ri += 1; qk.append(('R', X, t, ks, None))
    def mf(e):
        kind, X, t, ks, si = e
        d = vr(ACC[X] + 4 * t, 4)
        bsrc = vr(V_SB + 8 * (si & 1), 8) if kind == 'S' else wreg(X, ks >> 1, (ks & 1) * 2 + t)
        return f"v_smfmac_f32_16x16x64_bf16 {d}, {M(ks)}, {bsrc}, v{V_IDX}"
    def qk_pass(loads):
        fill = {p: [] for p in range(32)}
        for p in range(0, 32, 4):
            si = p // 4
            fill[p] += sbload(si & 1, *SL[si + 2])
        first_use = {}
        for p, e in enumerate(qk):
            first_use.setdefault(e[3], p)
        if loads:
            rem = morder[npre:]
            for i, ks in enumerate(rem): fill[1 + 5 * i].append(mload(ks))
        for i, x in enumerate(late_zero): fill[9 + 4 * i].append(x)
        if 'noload' not in opt and 'nokx' not in opt:
            pa, pb = kxpos
            fill[pa - 1] += [f"s_mov_b32 m0, s{S_M0A}"]
            fill[pa] += [f"buffer_load_dwordx4 v{V_KXG}, {WSR}, s{S_KXA} offen sc1 lds"]
            fill[pb - 1] += [f"s_mov_b32 m0, s{S_M0B}"]
            fill[pb] += [f"buffer_load_dwordx4 v{V_KXG}, {WSR}, s{S_KXB} offen sc1 lds"]
        for p in range(32):
            A(mf(qk[p]))
            if p == 0 and loads: stamp(1)
            for x in fill[p]: A(x)
    qk_pass(True)
    A.label("L_v")
    stamp(2)
    seq = []
    seqR = [(0,0),(1,0),(0,1),(1,1),(0,2),(1,2),(0,3),(1,3),(0,4),(1,4),(0,5),(1,5)]
    ri = 0
    for pos in range(16):
        if pos % 4 == 0:
            f = pos // 4; seq.append(('S', 2, f & 1, 6 + (f >> 1), 8 + f))
        else:
            t, ks = seqR[ri]; ri += 1; seq.append(('R', 2, t, ks, None))
    fill = {p: [] for p in range(16)}
    fill[0] += sbload(0, *SL[10]); fill[4] += sbload(1, *SL[11])
    fill[1] += pack(V_AQ, 0, V_AQ + 2)[:1] + pack(V_AQ, 1, V_AQ + 6)[:1]
    fill[2] += pack(V_AQ, 0, V_AQ + 2)[1:] + pack(V_AQ, 1, V_AQ + 6)[1:] + [f"ds_write2_b32 v{V_XW}, v{V_AQ+2}, v{V_AQ+6} offset0:0 offset1:128"]
    fill[3] += pack(V_AK, 0, V_AK + 2)[:1] + pack(V_AK, 1, V_AK + 6)[:1]
    fill[4] += pack(V_AK, 0, V_AK + 2)[1:] + pack(V_AK, 1, V_AK + 6)[1:] + [f"ds_write2_b32 v{V_XW}, v{V_AK+2}, v{V_AK+6} offset0:1 offset1:129"]
    fill[5] += [f"v_mov_b32 v{V_T}, v{V_AK+2}", f"v_mov_b32 v{V_T+1}, v{V_AK+6}"]
    fill[7] += ["@wait_writes", "s_barrier"]
    xf = []
    for ks in range(4):
        for hh in range(2):
            xf.append(f"ds_read_b64_tr_b16 v[{V_XF+4*ks+2*hh}:{V_XF+4*ks+2*hh+1}], v{V_XR if hh == 0 else V_KMS} offset:{ks*1024}")
    last = {}
    for p, e in enumerate(seq): last[e[3]] = p
    free_order = sorted(last, key=lambda k: last[k])
    kxr = {}
    kxr[(0, 0)] = vr(V_AQ, 4); kxr[(0, 1)] = vr(V_AQ + 4, 4); kxr[(0, 2)] = vr(V_AK, 4); kxr[(0, 3)] = vr(V_AK + 4, 4)
    for kk in range(4): kxr[(1, kk)] = M(free_order[kk])
    def kxload(T, kk): return f"ds_read_b128 {kxr[(T, kk)]}, v0 offset:{8192 + (T*4+kk)*1024}"
    fill[7] += xf[0:2]; fill[8] += xf[2:4]; fill[9] += xf[4:6]; fill[10] += xf[6:8]
    fill[11] += [kxload(0, 0), kxload(0, 1)]; fill[13] += [kxload(0, 2)]; fill[14] += [kxload(0, 3)]
    assert last[free_order[3]] <= 13
    for p in range(16):
        A(mf(seq[p]))
        for x in fill[p]:
            if x == "s_barrier" and 'vdet' in opt: stamp(8)
            if x == "@wait_writes" and 'vdet' in opt: stamp(11)
            A(x)
            if x == "s_barrier" and 'vdet' in opt: stamp(9)
        if p == 11 and 'vdet' in opt: stamp(12)
    stamp(3)
    A.raw(f"    s_waitcnt vmcnt({(1 if 'noload' in opt else 3 if ('novt' in opt or 'nokx' in opt) else 5) + (1 if 'steps' in opt else 0)})")
    S0, S1, S2 = V_S, V_S + 4, V_S + 8
    def tm(dst, a_, ks, first):
        cc = "0" if first else vr(dst, 4)
        return f"v_mfma_f32_16x16x32_bf16 {vr(dst,4)}, {a_}, {vr(V_XF+4*ks,4)}, {cc}"
    seqT = [(S0, None, k) for k in range(4)] + [(S1, 0, k) for k in range(4)] + [(S2, 1, k) for k in range(4)]
    fill = {p: [] for p in range(12)}
    ONr = V_MK + 4 * free_order[4]
    LD = V_MK + 4 * free_order[5]
    fill[0] += [kxload(1, 0), kxload(1, 1)]; fill[1] += [kxload(1, 2), kxload(1, 3)]
    fill[7] += [f"v_mov_b32 v{ONr}, 0x3f803f80", f"v_mov_b32 v{ONr+1}, 0x3f803f80"]
    fill[8] += [f"v_mov_b32 v{ONr+2}, 0x3f803f80", f"v_mov_b32 v{ONr+3}, 0x3f803f80"]
    fill[2] += pack(V_AV, 0, V_AV + 2)[:1] + pack(V_AV, 1, V_AV + 6)[:1]
    fill[3] += pack(V_AV, 0, V_AV + 2)[1:] + pack(V_AV, 1, V_AV + 6)[1:]
    fill[4] += [f"v_mov_b32 v{V_AV+3}, 0", f"v_mov_b32 v{V_AV+7}, 0"]
    fill[5] += [f"v_mov_b32 v{V_AV}, v{V_T}", f"v_mov_b32 v{V_AV+1}, v{V_T+1}"]
    Tt = V_T + 1; Ls = V_T + 2; Mx = V_T + 3
    fill[9] += [f"v_max3_f32 v{Mx}, v{S0+2}, v{S0+3}, v{S1}"]
    fill[10] += [f"v_max3_f32 v{Mx}, v{Mx}, v{S1+1}, v{S1+2}"]
    fill[11] += [f"v_max_f32 v{Mx}, v{Mx}, v{S1+3}"]
    for p, (dst, T, kk) in enumerate(seqT):
        a_ = vr(V_XF + 4 * kk, 4) if T is None else kxr[(T, kk)]
        A(tm(dst, a_, kk, kk == 0))
        for x in fill[p]: A(x)
    stamp(4)
    A(f"s_cmp_eq_u32 s{S_STEP}, {nsteps-1}")
    A(f"s_cbranch_scc1 L_last")
    A(f"v_max3_f32 v{Mx}, v{Mx}, v{S2}, v{S2+1}")
    A(f"v_max3_f32 v{Tt}, v{Mx}, v{S2+2}, v{S2+3}")
    A(f"v_max3_f32 v{Mx}, v{Mx}, v{S2+2}, v{S2+3}")
    sbo = sbload(0, 3, 0) + sbload(1, 3, 1)
    A(sbo[0])
    A(f"v_permlane16_swap_b32 v{Mx}, v{Tt}")
    A(sbo[1])
    A(f"v_max_f32 v{Ls}, v{Mx}, v{Tt}")
    A(f"v_max_f32 v{Mx}, v{Mx}, v{Tt}")
    A(sbo[2])
    A(sbo[3])
    A(f"v_permlane32_swap_b32 v{Mx}, v{Ls}")
    A(f"v_max_f32 v{Mx}, v{Mx}, v{Ls}")
    A(f"v_mul_f32 v{Mx}, s{S_C}, v{Mx}")
    def pkf(r): return f"v_pk_fma_f32 v[{r}:{r+1}], v[{r}:{r+1}], s[{S_C}:{S_C+1}], v[{Mx-1}:{Mx}] op_sel:[0,0,1] op_sel_hi:[1,1,1] neg_lo:[0,0,1] neg_hi:[0,0,1]"
    for r in (S1, S1 + 2, S2, S2 + 2, S0 + 2): A(pkf(r))
    P12 = V_AQ; P0 = V_AQ + 4; OT = V_AK
    for r in range(S1, S1 + 4): A(f"v_exp_f32 v{r}, v{r}")
    A(f"v_exp_f32 v{S2}, v{S2}")
    A(f"v_exp_f32 v{S2+1}, v{S2+1}")
    A(f"v_cvt_pk_bf16_f32 v{P12}, v{S1}, v{S1+1}")
    A(f"v_exp_f32 v{S2+2}, v{S2+2}")
    A(f"v_cvt_pk_bf16_f32 v{P12+1}, v{S1+2}, v{S1+3}")
    A(f"v_exp_f32 v{S2+3}, v{S2+3}")
    A(f"v_cvt_pk_bf16_f32 v{P12+2}, v{S2}, v{S2+1}")
    A(f"v_exp_f32 v{S0+2}, v{S0+2}")
    A(f"v_cvt_pk_bf16_f32 v{P12+3}, v{S2+2}, v{S2+3}")
    A(f"v_exp_f32 v{S0+3}, v{S0+3}")
    A(f"v_mov_b32 v{P0+1}, 0")
    A(f"v_mfma_f32_16x16x32_bf16 {vr(LD,4)}, {vr(ONr,4)}, {vr(P12,4)}, 0")
    A(f"v_cvt_pk_bf16_f32 v{P0}, v{S0+2}, v{S0+3}")
    for t in range(2):
        A(f"v_mfma_f32_16x16x32_bf16 {vr(OT+4*t,4)}, {vr(V_VX+4*t,4)}, {vr(P12,4)}, 0")
    PO2 = V_S + 4
    for i in range(0, 4, 2): A(f"v_mov_b64 v[{PO2+i}:{PO2+i+1}], -1")
    A(f"v_mfma_f32_16x16x16_bf16 {vr(LD,4)}, {vr(ONr,2)}, {vr(P0,2)}, {vr(LD,4)}")
    for t in range(2):
        A(f"v_mfma_f32_16x16x16_bf16 {vr(OT+4*t,4)}, {vr(V_AV+4*t+2,2)}, {vr(P0,2)}, {vr(OT+4*t,4)}")
    A(f"v_mov_b32 v{V_AV+3}, v{V_AV+6}")
    A(f"v_rcp_f32 v{Ls}, v{LD}")
    for r in range(0, 8, 2):
        A(f"v_pk_mul_f32 v[{OT+r}:{OT+r+1}], v[{OT+r}:{OT+r+1}], v[{Ls}:{Ls+1}] op_sel_hi:[1,0]")
    for t in range(2):
        A(f"v_cvt_pk_bf16_f32 v{OT+4*t}, v{OT+4*t}, v{OT+4*t+1}")
        A(f"v_cvt_pk_bf16_f32 v{OT+4*t+1}, v{OT+4*t+2}, v{OT+4*t+3}")
        A(f"ds_write_b64 v{V_OW}, v[{OT+4*t}:{OT+4*t+1}] offset:{t*256}")
    A("@wait_writes")
    stamp(5)
    A("s_barrier")
    OF = V_VX
    A(f"ds_read_b128 {vr(OF,4)}, v{V_MEM} offset:{L_OB-L_MEMB}")
    A(f"ds_read_b128 {vr(OF+4,4)}, v{V_MEM} offset:{L_OB-L_MEMB+1024}")
    A(f"buffer_store_dwordx4 v[{PO2}:{PO2+3}], v{V_PL}, {WSR}, s{S_POI} offen")
    A(f"buffer_store_dwordx4 v[{PO2}:{PO2+3}], v{V_PL}, {WSR}, s{S_POI} offen offset:1024")
    for x in zero(V_MK, 32): A(x)
    stamp(6)
    oseq = [('S',6,0,0),('R',0,0),('R',0,1),('R',1,0),('S',7,0,1),('R',1,1),('R',2,0),('R',2,1),
            ('S',6,1,2),('R',3,0),('R',3,1),('R',4,0),('S',7,1,3),('R',4,1),('R',5,0),('R',5,1)]
    PQ = V_AQ
    def ppack(tile):
        a0 = V_MK + 4 * tile
        return [f"v_pk_add_f32 v[{a0}:{a0+1}], v[{a0}:{a0+1}], v[{a0+2}:{a0+3}]",
                f"v_cvt_pk_bf16_f32 v{PQ+tile}, v{a0}, v{a0+1}"]
    fill = {p: [] for p in range(16)}
    fill[0] += sbload(0, 3, 2); fill[4] += sbload(1, 3, 3); fill[8] += sbload(0, 0, 0); fill[12] += sbload(1, 0, 1)
    CAR = V_S
    fill[1] += [f"ds_read_b128 {vr(CAR,4)}, v{V_MEM} offset:{L_CA-L_MEMB}"]
    fill[6] += ppack(0); fill[9] += ppack(1); fill[11] += ppack(2); fill[13] += ppack(3)
    fill[14] += [f"buffer_store_dwordx4 v[{PQ}:{PQ+3}], v{V_PS}, {WSR}, s{S_PST0} offen"]
    fill[15] += ppack(6)
    for p, e in enumerate(oseq):
        tile, ks = e[1], e[2]
        bsrc = vr(V_SB + 8 * (e[3] & 1), 8) if e[0] == 'S' else wreg(3, tile >> 1, ks * 2 + (tile & 1))
        A(f"v_smfmac_f32_16x16x64_bf16 {vr(V_MK+4*tile,4)}, {vr(OF+4*ks,4)}, {bsrc}, v{V_IDX}")
        for x in fill[p]: A(x)
    for tl in (7, 4, 5):
        for x in ppack(tl): A(x)
    A(f"buffer_store_dwordx4 v[{PQ+4}:{PQ+7}], v{V_PS}, {WSR}, s{S_PST1} offen")
    stamp(7)
    ta = V_T + 1; tb = V_T + 2
    def poll2(name, regs, loadfn, mid=None, cnt=None, st=None, gap=()):
        def check():
            A(f"v_max3_u32 v{ta}, v{regs}, v{regs+1}, v{regs+2}")
            A(f"v_max3_u32 v{tb}, v{regs+4}, v{regs+5}, v{regs+6}")
            A(f"v_max_u32 v{ta}, v{ta}, v{regs+3}")
            if mid: mid(0)
            A(f"v_max_u32 v{tb}, v{tb}, v{regs+7}")
            if mid: mid(1)
            A(f"v_cmp_eq_u32 s[{S_MA}:{S_MA+1}], -1, v{ta}")
            A(f"v_cmp_eq_u32 s[{S_MB}:{S_MB+1}], -1, v{tb}")
            A(f"s_or_b64 s[{S_MT}:{S_MT+1}], s[{S_MA}:{S_MA+1}], s[{S_MB}:{S_MB+1}]")
            A(f"s_cbranch_scc0 L_{name}ok")
        def round_():
            A(f"s_or_b32 s{S_MA}, s{S_MA}, 1")
            A(f"s_or_b32 s{S_MB}, s{S_MB}, 1")
            A.auto = False
            A(f"s_mov_b64 exec, s[{S_MA}:{S_MA+1}]")
            loadfn(0)
            A(f"s_mov_b64 exec, s[{S_MB}:{S_MB+1}]")
            loadfn(1)
            A(f"s_mov_b64 exec, -1")
            A.auto = True
        A(f"s_mov_b32 s{S_TO}, 0")
        for x in gap: A(x)
        A.auto = False
        loadfn(0); loadfn(1)
        A.auto = True
        A(f"s_waitcnt vmcnt(2)")
        if st is not None: stamp(st)
        A.forget()
        check()
        A.label(f"L_{name}loop")
        round_()
        A(f"s_add_u32 s{S_TO}, s{S_TO}, 1")
        A(f"s_cmp_gt_u32 s{S_TO}, 0x40000")
        A(f"s_cbranch_scc1 L_bail")
        A(f"s_waitcnt vmcnt(2)")
        A.forget()
        check()
        A(f"s_branch L_{name}loop")
        A.label(f"L_{name}ok")
        A.forget()
        if cnt: cnt()
    PB = V_AK; RD = V_VX
    A(f"s_mov_b32 s{S_KEEP}, s{S_PLD}")
    A(f"s_mov_b32 s{S_EX}, s{S_POI}")
    A(f"s_mov_b32 s{S_EX+1}, s{S_VM}")
    A(f"s_mov_b32 s{S_PUB}, s{S_B1}")
    A(f"s_mov_b32 s{S_MPZ}, s{S_B2}")
    A(f"s_mov_b32 s{S_B2}, s{S_B0}")
    A(f"s_mov_b32 s{S_B0}, s{S_PUB}")
    A(f"s_mov_b32 s{S_B1}, s{S_MPZ}")
    A(f"s_xor_b32 s{S_PAR}, s{S_PAR}, 8192")
    A(f"s_add_u32 s{S_STEP}, s{S_STEP}, 1")
    A(f"s_add_u32 s{S_VM}, s{S_VM}, {32*4096}")
    A(f"s_mov_b32 s{S_T0}, s{S_R0}")
    A(f"s_mov_b32 s{S_R0}, s{S_R1}")
    A(f"s_mov_b32 s{S_R1}, s{S_R2}")
    A(f"s_mov_b32 s{S_R2}, s{S_T0}")
    for x in step_scalars(): A(x)
    for x in zero(V_AQ, 8): A(x)
    for x in extra_delay: A(x)
    def h1load(q):
        A(f"buffer_load_dwordx4 v[{PB+4*q}:{PB+4*q+3}], v{V_PL}, {WSR}, s{S_KEEP} offen offset:{1024*q} sc1")
    if 'vdet' not in opt: stamp(8)
    h1load(0); h1load(1)
    def h1mid(i):
        if i == 0: A(f"v_mfma_f32_16x16x32_bf16 {vr(RD,4)}, {vr(CAR,4)}, {vr(PB,4)}, 0")
        else: A(f"v_mfma_f32_16x16x32_bf16 {vr(RD,4)}, {vr(CAR,4)}, {vr(PB+4,4)}, {vr(RD,4)}")
    poll2("h1", PB, h1load, mid=h1mid, st=(None if "vdet" in opt else 9), gap=["s_nop 0"] * g1)
    A("s_nop 2")
    if timing: A(f"s_add_u32 s{S_TACC+16}, s{S_TACC+16}, s{S_TO}")
    if 'rt' in opt: A(f"s_add_u32 s64, s64, s{S_TO}")
    stamp(10)
    for ror in (4, 8):
        for r in range(4):
            A(f"v_add_f32_dpp v{RD+r}, v{RD+r}, v{RD+r} row_ror:{ror} row_mask:0xf bank_mask:0xf")
    A(f"v_cvt_pk_bf16_f32 v{RD}, v{RD}, v{RD+1}")
    A(f"v_cvt_pk_bf16_f32 v{RD+1}, v{RD+2}, v{RD+3}")
    A(f"v_min_u32 v{RD}, -2, v{RD}")
    A(f"v_min_u32 v{RD+1}, -2, v{RD+1}")
    A(f"s_mov_b64 exec, 0xffffffff")
    A(f"buffer_store_dwordx2 v[{RD}:{RD+1}], v{V_MS}, {WSR}, s{S_PUB} offen")
    A(f"v_mov_b64 v[{RD+2}:{RD+3}], -1")
    A(f"buffer_store_dwordx2 v[{RD+2}:{RD+3}], v{V_MS}, {WSR}, s{S_MPZ} offen")
    A(f"s_mov_b64 exec, -1")
    for x in extra_delay2: A(x)
    def stage_mem():
        ML = V_S + 4
        def h2load(q):
            so = S_MSL if q == 0 else S_MPO
            A(f"buffer_load_dwordx4 v[{ML+4*q}:{ML+4*q+3}], v{V_MW}, {WSR}, s{so} offen sc1")
        if 'vdet' not in opt: stamp(11)
        h2load(0); h2load(1)
        poll2("h2", ML, h2load, st=(None if "vdet" in opt else 12), gap=["s_nop 0"] * g2)
        if timing: A(f"s_add_u32 s{S_TACC+17}, s{S_TACC+17}, s{S_TO}")
        if 'rt' in opt: A(f"s_add_u32 s65, s65, s{S_TO}")
        stamp(13)
        A(f"ds_write_b128 v{V_MW}, v[{ML}:{ML+3}]")
        A(f"ds_write_b128 v{V_MW}, v[{ML+4}:{ML+7}] offset:1024")
    stage_mem()
    for x in zero(V_AK, 8): A(x)
    A("@wait_writes")
    if 'steps' in opt:
        A(f"s_lshl_b32 s58, s{S_H}, 2")
        A(f"s_add_u32 s58, s58, s{S_WV}")
        A(f"s_lshl_b32 s58, s58, 6")
        A(f"s_add_u32 s58, s58, s{S_STEP}")
        A(f"s_lshl_b32 s58, s58, 2")
        A(f"s_add_u32 s58, s58, {WS_TIME - 4}")
        A(f"v_mov_b32 v{V_T}, s56")
        A(f"v_mov_b32 v{V_T+1}, 0")
        A(f"s_mov_b64 exec, 1")
        A(f"buffer_store_dword v{V_T}, v{V_T+1}, {WSR}, s58 offen")
        A(f"s_mov_b64 exec, -1")
    stamp(14)
    stamp_acc()
    A("s_barrier")
    A.settle()
    A.forget()
    A("s_branch L_step")
    A.label("L_last")
    A.settle()
    A(f"v_mov_b32 v{V_AV+3}, v{V_AV+6}")
    A(f"buffer_store_dwordx4 v[{V_AV}:{V_AV+3}], v{V_VMS}, {WSR}, s{S_VM} offen sc1")
    if 'rt' in opt:
        A.raw("    s_memtime s[60:61]")
        A.raw("    s_memrealtime s[62:63]")
        A.raw("    s_waitcnt lgkmcnt(0)")
        A(f"s_sub_u32 s56, s60, s56")
        A(f"s_sub_u32 s58, s62, s58")
        A(f"s_lshl_b32 s{S_T0}, s{S_H}, 2")
        A(f"s_add_u32 s{S_T0}, s{S_T0}, s{S_WV}")
        A(f"s_lshl_b32 s{S_T0}, s{S_T0}, 7")
        A(f"s_add_u32 s{S_T0}, s{S_T0}, {WS_TIME}")
        A(f"s_mov_b64 exec, 1")
        for k, r in enumerate((56, 58, 64, 65)):
            A(f"v_mov_b32 v{V_MK+1}, s{r}")
            A(f"v_mov_b32 v{V_MK}, {4*k}")
            A(f"buffer_store_dword v{V_MK+1}, v{V_MK}, {WSR}, s{S_T0} offen")
        A(f"s_mov_b64 exec, -1")
    A.wait(vm=0)
    if timing:
        A(f"s_lshl_b32 s{S_T0}, s{S_H}, 2")
        A(f"s_add_u32 s{S_T0}, s{S_T0}, s{S_WV}")
        A(f"s_lshl_b32 s{S_T0}, s{S_T0}, 7")
        A(f"s_add_u32 s{S_T0}, s{S_T0}, {WS_TIME}")
        A(f"s_mov_b64 exec, 1")
        for k in range(18):
            A(f"v_mov_b32 v{V_T+1}, s{S_TACC+k}")
            A(f"v_mov_b32 v{V_T}, {4*k}")
            A(f"buffer_store_dword v{V_T+1}, v{V_T}, {WSR}, s{S_T0} offen")
        A.wait(vm=0)
    A("s_branch L_end")
    A.label("L_bail")
    A(f"s_mov_b64 exec, 1")
    A(f"v_mov_b32 v{V_T}, 60")
    A(f"v_mov_b32 v{V_T+1}, 0xdead")
    A(f"buffer_store_dword v{V_T+1}, v{V_T}, s[{S_DBG}:{S_DBG+3}], 0 offen")
    A.wait(vm=0)
    A.label("L_end")
```

```python
from asmlib import *
from layout import *
import struct

G_SRDA = 8
G_SRDB = 36
G_SRDC = 40
G_LDA = 44; G_LDB = 45; G_LDC = 46
G_AOFF = 47
G_BOFF = 48
G_COFF = 49
G_NST = 50
G_ST = 51
G_SA = 52; G_SB = 53
G_M0 = 54
G_T0 = 55; G_T1 = 56; G_T2 = 57
G_WM = 58; G_WN = 59
G_AUX = 60
G_WV = 27
G_SZA = 66; G_SZB = 67
G_SRDX = 68

GV_LANE = 1
GV_AR = 2
GV_BR = 6
GV_DA = 10
GV_DB = 12
GV_T = 14
GV_FA = 64
GV_FB = 96

def f32bits(x): return hex(struct.unpack('<I', struct.pack('<f', x))[0])

def gemm_setup_lane(A):
    L = GV_LANE; t0 = GV_T; t1 = GV_T + 1; t2 = GV_T + 2
    A(f"v_and_b32 v{L}, 63, v0")
    A(f"s_lshr_b32 s{G_WM}, s{G_WV}, 1")
    A(f"s_and_b32 s{G_WN}, s{G_WV}, 1")

def gemm_task_addr(A, xrow_is_A_lds=True):
    L = GV_LANE; t0 = GV_T; t1 = GV_T + 1; t2 = GV_T + 2
    A(f"v_and_b32 v{t0}, 31, v{L}")
    A(f"v_bfe_u32 v{t1}, v{L}, 1, 3")
    A(f"v_lshrrev_b32 v{t2}, 5, v{L}")
    A(f"v_xor_b32 v{t1}, v{t1}, v{t2}")
    A(f"v_lshlrev_b32 v{t0}, 7, v{t0}")
    A(f"s_lshl_b32 s{G_T0}, s{G_WM}, 14")
    A(f"v_add_u32 v{t0}, s{G_T0}, v{t0}")
    for ks in range(4):
        A(f"v_xor_b32 v{t2}, {2*ks}, v{t1}")
        A(f"v_lshl_add_u32 v{GV_AR+ks}, v{t2}, 4, v{t0}")
    A(f"v_lshrrev_b32 v{t0}, 5, v{L}")
    A(f"v_lshlrev_b32 v{t0}, 3, v{t0}")
    A(f"v_bfe_u32 v{t1}, v{L}, 2, 2")
    A(f"v_add_u32 v{t0}, v{t0}, v{t1}")
    A(f"v_lshlrev_b32 v{t0}, 9, v{t0}")
    A(f"v_bfe_u32 v{t2}, v{L}, 4, 1")
    A(f"v_lshl_or_b32 v{t0}, v{t2}, 5, v{t0}")
    A(f"v_bfe_u32 v{t2}, v{L}, 1, 1")
    A(f"v_lshl_or_b32 v{t0}, v{t2}, 4, v{t0}")
    A(f"v_and_b32 v{t2}, 1, v{L}")
    A(f"v_lshl_or_b32 v{t0}, v{t2}, 3, v{t0}")
    A(f"s_lshl_b32 s{G_T0}, s{G_WN}, 8")
    A(f"s_add_u32 s{G_T0}, s{G_T0}, 32768")
    A(f"v_add_u32 v{t0}, s{G_T0}, v{t0}")
    for j in range(4):
        A(f"v_xor_b32 v{t2}, {j}, v{t1}")
        A(f"v_lshl_add_u32 v{GV_BR+j}, v{t2}, 6, v{t0}")
    A(f"v_lshrrev_b32 v{t0}, 3, v{L}")
    A(f"v_mul_lo_u32 v{t0}, v{t0}, s{G_LDA}")
    A(f"v_and_b32 v{t1}, 7, v{L}")
    A(f"v_bfe_u32 v{t2}, v{L}, 4, 2")
    A(f"v_xor_b32 v{t1}, v{t1}, v{t2}")
    A(f"v_lshl_add_u32 v{GV_DA}, v{t1}, 4, v{t0}")
    A(f"v_xor_b32 v{t1}, 4, v{t1}")
    A(f"v_lshl_add_u32 v{GV_DA+1}, v{t1}, 4, v{t0}")
    A(f"v_lshrrev_b32 v{t2}, 5, v{L}")
    A(f"v_mul_lo_u32 v{t0}, v{t2}, s{G_LDB}")
    A(f"v_and_b32 v{t1}, 31, v{L}")
    A(f"v_lshlrev_b32 v{t2}, 2, v{t2}")
    A(f"v_xor_b32 v{t1}, v{t1}, v{t2}")
    A(f"v_lshl_add_u32 v{GV_DB}, v{t1}, 4, v{t0}")
    A(f"v_xor_b32 v{t1}, 8, v{t1}")
    A(f"v_lshl_add_u32 v{GV_DB+1}, v{t1}, 4, v{t0}")

def dma_list(sc1A):
    g = []
    for i in range(8):
        grp = [f"s_add_u32 m0, s{G_M0}, {i*1024}",
               f"buffer_load_dwordx4 v{GV_DA+(i&1)}, s[{G_SRDA}:{G_SRDA+3}], s{G_T0} offen{' sc1' if sc1A else ''} lds"]
        pre = [f"s_mov_b32 s{G_T0}, s{G_SA}"] if i == 0 else [f"s_add_u32 s{G_T0}, s{G_T0}, s{G_T2}"]
        g.append(pre + grp)
    for i in range(8):
        grp = [f"s_add_u32 m0, s{G_M0}, {32768 + i*1024}",
               f"buffer_load_dwordx4 v{GV_DB+(i&1)}, s[{G_SRDB}:{G_SRDB+3}], s{G_T1} offen lds"]
        pre = [f"s_mov_b32 s{G_T1}, s{G_SB}"] if i == 0 else [f"s_add_u32 s{G_T1}, s{G_T1}, s{G_AUX+1}"]
        g.append(pre + grp)
    return g

def gemm_start(A, sc1A=False):
    A(f"s_mov_b32 s{G_SRDA+2}, s{G_SZA}")
    A(f"s_mov_b32 s{G_SRDB+2}, s{G_SZB}")
    A(f"s_lshl_b32 s{G_T2}, s{G_LDA}, 3")
    A(f"s_lshl_b32 s{G_AUX+1}, s{G_LDB}, 1")
    A(f"s_mul_i32 s{G_SA}, s{G_LDA}, s{G_WV}")
    A(f"s_lshl_b32 s{G_SA}, s{G_SA}, 6")
    A(f"s_add_u32 s{G_SA}, s{G_SA}, s{G_AOFF}")
    A(f"s_mul_i32 s{G_SB}, s{G_LDB}, s{G_WV}")
    A(f"s_lshl_b32 s{G_SB}, s{G_SB}, 4")
    A(f"s_add_u32 s{G_SB}, s{G_SB}, s{G_BOFF}")
    A(f"s_lshl_b32 s{G_M0}, s{G_WV}, 13")
    for grp in dma_list(sc1A):
        for x in grp: A(x)
    adv(A)

def adv(A):
    A(f"s_add_u32 s{G_SA}, s{G_SA}, 128")
    A(f"s_lshl_b32 s{G_AUX+2}, s{G_LDB}, 6")
    A(f"s_add_u32 s{G_SB}, s{G_SB}, s{G_AUX+2}")
    A(f"s_xor_b32 s{G_M0}, s{G_M0}, 0x10000")

def gemm_main(A, tag, wT, sc1A=False):
    for r in range(256): A(f"v_accvgpr_write_b32 a{r}, 0")
    A(f"s_mov_b32 s{G_ST}, 0")
    A.settle(); A.forget()
    A.label(f"L_g{tag}")
    A("s_waitcnt vmcnt(0)")
    A("s_barrier")
    def fa(buf, i): return GV_FA + 16 * buf + 4 * i
    def fb(buf, j): return GV_FB + 16 * buf + 4 * j
    def loads(ks, buf):
        o = []
        for i in range(4):
            o.append(f"ds_read_b128 v[{fa(buf,i)}:{fa(buf,i)+3}], v{GV_AR+ks} offset:{i*4096}")
        for j in range(4):
            for hh in range(2):
                o.append(f"ds_read_b64_tr_b16 v[{fb(buf,j)+2*hh}:{fb(buf,j)+2*hh+1}], v{GV_BR+j} offset:{(16*ks+4*hh)*512}")
        return o
    def ordered(ks, buf):
        l = loads(ks, buf)
        a = l[:4]; b = [l[4+2*j:6+2*j] for j in range(4)]
        return [a[0]] + b[0] + b[1] + [a[1]] + b[2] + b[3] + [a[2], a[3]]
    for x in ordered(0, 0): A(x)
    A(f"s_add_u32 s{G_T0}, s{G_ST}, 1")
    A(f"s_cmp_ge_u32 s{G_T0}, s{G_NST}")
    A(f"s_cselect_b32 s{G_SRDA+2}, 0, s{G_SZA}")
    A(f"s_cselect_b32 s{G_SRDB+2}, 0, s{G_SZB}")
    dl = dma_list(sc1A)
    di = 0
    for ks in range(4):
        buf = ks & 1
        nxt = ordered(ks + 1, buf ^ 1) if ks < 3 else []
        mf = []
        for i in range(4):
            for j in range(4):
                acc = f"a[{16*(4*i+j)}:{16*(4*i+j)+15}]"
                xa = f"v[{fa(buf,i)}:{fa(buf,i)+3}]"; wb = f"v[{fb(buf,j)}:{fb(buf,j)+3}]"
                mf.append(f"v_mfma_f32_32x32x16_bf16 {acc}, {wb if wT else xa}, {xa if wT else wb}, {acc}")
        order = [(0,0),(0,1),(1,0),(1,1),(0,2),(0,3),(1,2),(1,3),(2,0),(2,1),(2,2),(2,3),(3,0),(3,1),(3,2),(3,3)]
        for n, (i, j) in enumerate(order):
            A(mf[4*i+j])
            if n < len(nxt): A(nxt[n])
            if n % 4 == 3 and di < 16:
                for x in dl[di]: A(x)
                di += 1
    adv(A)
    for r in list(range(GV_AR, GV_AR+4)) + list(range(GV_BR, GV_BR+4)):
        A(f"v_xor_b32 v{r}, 0x10000, v{r}")
    A(f"s_add_u32 s{G_ST}, s{G_ST}, 1")
    A(f"s_cmp_lt_u32 s{G_ST}, s{G_NST}")
    A.wait(lg=0)
    A.forget()
    A(f"s_cbranch_scc1 L_g{tag}")
    A.settle()

def store_pairs(A, vals_fn, addr_reg, imm, srd, soff, sc1):
    pass


EPI_BASE = 65536
def epi_lds_base(A, dst):
    A(f"s_mul_i32 s{G_T0}, s{G_WV}, 24576")
    A(f"s_add_u32 s{G_T0}, s{G_T0}, {EPI_BASE}")

def gelu4(A, X, tb, br):
    A(f"v_lshlrev_b32 v{tb}, 16, v{br}")
    A(f"v_and_b32 v{tb+1}, 0xffff0000, v{br}")
    A(f"v_lshlrev_b32 v{tb+2}, 16, v{br+1}")
    A(f"v_and_b32 v{tb+3}, 0xffff0000, v{br+1}")
    A(f"v_pk_add_f32 v[{X}:{X+1}], v[{X}:{X+1}], v[{tb}:{tb+1}]")
    A(f"v_pk_add_f32 v[{X+2}:{X+3}], v[{X+2}:{X+3}], v[{tb+2}:{tb+3}]")
    y = tb + 4
    A(f"v_pk_mul_f32 v[{y}:{y+1}], v[{X}:{X+1}], v[{X}:{X+1}]")
    A(f"v_pk_mul_f32 v[{y+2}:{y+3}], v[{X+2}:{X+3}], v[{X+2}:{X+3}]")
    A(f"v_pk_fma_f32 v[{y}:{y+1}], v[{y}:{y+1}], s[{G_AUX+4}:{G_AUX+5}], v[{GV_T+4}:{GV_T+5}]")
    A(f"v_pk_fma_f32 v[{y+2}:{y+3}], v[{y+2}:{y+3}], s[{G_AUX+4}:{G_AUX+5}], v[{GV_T+4}:{GV_T+5}]")
    A(f"v_pk_mul_f32 v[{y}:{y+1}], v[{y}:{y+1}], v[{X}:{X+1}]")
    A(f"v_pk_mul_f32 v[{y+2}:{y+3}], v[{y+2}:{y+3}], v[{X+2}:{X+3}]")
    for e in range(4): A(f"v_exp_f32 v{y+e}, -v{y+e}")
    A(f"v_pk_add_f32 v[{y}:{y+1}], v[{y}:{y+1}], 1.0 op_sel_hi:[1,0]")
    A(f"v_pk_add_f32 v[{y+2}:{y+3}], v[{y+2}:{y+3}], 1.0 op_sel_hi:[1,0]")
    for e in range(4): A(f"v_rcp_f32 v{y+e}, v{y+e}")
    A(f"v_pk_mul_f32 v[{X}:{X+1}], v[{X}:{X+1}], v[{y}:{y+1}]")
    A(f"v_pk_mul_f32 v[{X+2}:{X+3}], v[{X+2}:{X+3}], v[{y+2}:{y+3}]")

def epi_rowmajor(A, gelu=False, sc1=True):
    L = GV_LANE; t0 = GV_T; t1 = GV_T + 1
    VW = GV_T + 2; VR = GV_T + 3; VG = GV_T + 6
    X = 32
    A("s_barrier")
    epi_lds_base(A, None)
    A(f"v_and_b32 v{t0}, 31, v{L}")
    A(f"v_lshlrev_b32 v{VW}, 8, v{t0}")
    A(f"v_lshrrev_b32 v{t1}, 5, v{L}")
    A(f"v_lshl_or_b32 v{VW}, v{t1}, 3, v{VW}")
    A(f"v_add_u32 v{VW}, s{G_T0}, v{VW}")
    A(f"v_and_b32 v{t0}, 15, v{L}")
    A(f"v_lshlrev_b32 v{GV_T+7}, 4, v{t0}")
    A(f"v_lshrrev_b32 v{t1}, 4, v{L}")
    A(f"v_xor_b32 v{t0}, v{t0}, v{t1}")
    A(f"v_lshlrev_b32 v{t0}, 4, v{t0}")
    A(f"v_lshl_or_b32 v{VR}, v{t1}, 8, v{t0}")
    A(f"v_add_u32 v{VR}, s{G_T0}, v{VR}")
    A(f"s_lshl_b32 s{G_T1}, s{G_WM}, 7")
    A(f"v_add_u32 v{t1}, s{G_T1}, v{t1}")
    A(f"v_mul_lo_u32 v{t1}, v{t1}, s{G_LDC}")
    A(f"v_and_b32 v{t0}, 15, v{L}")
    A(f"v_lshlrev_b32 v{t0}, 4, v{t0}")
    A(f"s_lshl_b32 s{G_T1}, s{G_WN}, 8")
    A(f"v_add3_u32 v{VG}, v{t0}, v{t1}, s{G_T1}")
    A(f"s_lshl_b32 s{G_T2}, s{G_LDC}, 2")
    A(f"s_mov_b32 s{G_T1}, s{G_COFF}")
    if gelu:
        A(f"v_lshrrev_b32 v{t1}, 5, v{L}")
        A(f"v_lshlrev_b32 v{t1}, 3, v{t1}")
        A(f"s_lshl_b32 s{G_T0}, s{G_WN}, 8")
        A(f"s_add_u32 s{G_T0}, s{G_T0}, s{G_AUX}")
        for j in range(4):
            for iq in range(4):
                r = GV_FA + 2 * (4 * j + iq)
                A(f"buffer_load_dwordx2 v[{r}:{r+1}], v{t1}, s[{G_SRDX}:{G_SRDX+3}], s{G_T0} offen offset:{j*64+iq*16}")
        k = 0.7978845608028654 * 2 * 1.4426950408889634
        A(f"v_mov_b32 v{GV_T+4}, {f32bits(k)}")
        A(f"v_mov_b32 v{GV_T+5}, {f32bits(k)}")
        A(f"s_mov_b32 s{G_AUX+4}, {f32bits(k*0.044715)}")
        A(f"s_mov_b32 s{G_AUX+5}, {f32bits(k*0.044715)}")
    for half in range(2):
        for i2 in range(2):
            i = 2 * half + i2
            for j in range(4):
                base = 16 * (4 * i + j)
                for r in range(16): A(f"v_accvgpr_read_b32 v{X+r}, a{base+r}")
                for iq in range(4):
                    if gelu: gelu4(A, X + 4 * iq, X + 16, GV_FA + 2 * (4 * j + iq))
                    P = X + 24 + 2 * (iq & 1)
                    A(f"v_cvt_pk_bf16_f32 v{P}, v{X+4*iq}, v{X+4*iq+1}")
                    A(f"v_cvt_pk_bf16_f32 v{P+1}, v{X+4*iq+2}, v{X+4*iq+3}")
                    Ta = X + 28 + (iq & 1)
                    A(f"v_xor_b32 v{Ta}, {(4*j+iq)*16}, v{GV_T+7}")
                    A(f"v_add_u32 v{Ta}, v{Ta}, v{VW}")
                    A(f"ds_write_b64 v{Ta}, v[{P}:{P+1}] offset:{i2*32*256}")
        A.wait(lg=0)
        for it in range(16):
            R = GV_FB + 4 * (it & 7)
            Ta = X + 30 + (it & 1)
            A(f"v_xor_b32 v{Ta}, {(4*(it&3))*16}, v{VR}")
            A(f"ds_read_b128 v[{R}:{R+3}], v{Ta} offset:{it*1024}")
            if it >= 3 and False: pass
            if it % 8 == 7:
                for k2 in range(it - 7, it + 1):
                    R2 = GV_FB + 4 * (k2 & 7)
                    A(f"buffer_store_dwordx4 v[{R2}:{R2+3}], v{VG}, s[{G_SRDC}:{G_SRDC+3}], s{G_T1} offen" + (" sc1" if sc1 else ""))
                    A(f"s_add_u32 s{G_T1}, s{G_T1}, s{G_T2}")
        A.wait(lg=0)

def epi_vt(A, sc1=True):
    L = GV_LANE; t0 = GV_T; t1 = GV_T + 1
    VW = GV_T + 2; VR = GV_T + 3; VG = GV_T + 6; X = 32
    A("s_barrier")
    epi_lds_base(A, None)
    A(f"v_and_b32 v{t0}, 31, v{L}")
    A(f"v_lshlrev_b32 v{VW}, 6, v{t0}")
    A(f"v_add_u32 v{VW}, s{G_T0}, v{VW}")
    A(f"v_bfe_u32 v{t0}, v{L}, 1, 2")
    A(f"v_lshrrev_b32 v{t1}, 5, v{L}")
    A(f"v_xor_b32 v{t0}, v{t0}, v{t1}")
    A(f"v_lshlrev_b32 v{GV_T+7}, 4, v{t0}")
    A(f"v_add_u32 v{GV_T+8}, v{GV_T+7}, v{VW}")
    A(f"v_xor_b32 v{GV_T+7}, 32, v{GV_T+7}")
    A(f"v_add_u32 v{GV_T+7}, v{GV_T+7}, v{VW}")
    A(f"v_lshlrev_b32 v{VR}, 4, v{L}")
    A(f"v_add_u32 v{VR}, s{G_T0}, v{VR}")
    A(f"v_lshrrev_b32 v{t0}, 2, v{L}")
    A(f"v_lshlrev_b32 v{t0}, 6, v{t0}")
    A(f"v_and_b32 v{t1}, 3, v{L}")
    A(f"v_bfe_u32 v{VG}, v{L}, 3, 2")
    A(f"v_xor_b32 v{t1}, v{t1}, v{VG}")
    A(f"v_lshl_or_b32 v{t0}, v{t1}, 4, v{t0}")
    A(f"s_lshl_b32 s{G_T0}, s{G_WM}, 20")
    A(f"s_lshl_b32 s{G_T1}, s{G_WN}, 13")
    A(f"s_add_u32 s{G_T0}, s{G_T0}, s{G_T1}")
    A(f"v_add_u32 v{VG}, s{G_T0}, v{t0}")
    A(f"s_mov_b32 s{G_T1}, s{G_COFF}")
    for half in range(2):
        for i2 in range(2):
            i = 2 * half + i2
            for j in range(4):
                base = 16 * (4 * i + j)
                for r in range(16): A(f"v_accvgpr_read_b32 v{X+r}, a{base+r}")
                for pr in range(2):
                    a = X + 16 + 4 * pr
                    for k, iq in enumerate((pr, pr + 2)):
                        A(f"v_cvt_pk_bf16_f32 v{a+2*k}, v{X+4*iq}, v{X+4*iq+1}")
                        A(f"v_cvt_pk_bf16_f32 v{a+2*k+1}, v{X+4*iq+2}, v{X+4*iq+3}")
                    A(f"ds_write_b128 v{GV_T+8 if pr == 0 else GV_T+7}, v[{a}:{a+3}] offset:{i2*8192 + j*2048}")
        A.wait(lg=0)
        for i2 in range(2):
            for it in range(8):
                R = GV_FB + 4 * it
                A(f"ds_read_b128 v[{R}:{R+3}], v{VR} offset:{i2*8192 + it*1024}")
            for it in range(8):
                R = GV_FB + 4 * it
                if it % 4 == 0: A(f"s_add_u32 s{G_T0}, s{G_T1}, {(it//4)*4096}")
                A(f"buffer_store_dwordx4 v[{R}:{R+3}], v{VG}, s[{G_SRDC}:{G_SRDC+3}], s{G_T0} offen offset:{(it%4)*1024}" + (" sc1" if sc1 else ""))
            A(f"s_add_u32 s{G_T1}, s{G_T1}, 262144")
        A.wait(lg=0)

def epi_f32(A, sc1=True):
    L = GV_LANE; t0 = GV_T; t1 = GV_T + 1
    VW = GV_T + 2; VR = GV_T + 3; VG = GV_T + 6; X = 32
    A("s_barrier")
    epi_lds_base(A, None)
    A(f"v_and_b32 v{t0}, 31, v{L}")
    A(f"v_lshlrev_b32 v{VW}, 9, v{t0}")
    A(f"v_add_u32 v{VW}, s{G_T0}, v{VW}")
    A(f"v_and_b32 v{t0}, 7, v{L}")
    A(f"v_lshrrev_b32 v{t1}, 5, v{L}")
    A(f"v_xor_b32 v{t0}, v{t0}, v{t1}")
    A(f"v_lshlrev_b32 v{GV_T+7}, 4, v{t0}")
    A(f"v_lshrrev_b32 v{t1}, 5, v{L}")
    A(f"v_and_b32 v{t0}, 31, v{L}")
    A(f"v_xor_b32 v{t0}, v{t0}, v{t1}")
    A(f"v_lshlrev_b32 v{t0}, 4, v{t0}")
    A(f"v_lshl_or_b32 v{VR}, v{t1}, 9, v{t0}")
    A(f"v_add_u32 v{VR}, s{G_T0}, v{VR}")
    A(f"s_lshl_b32 s{G_T1}, s{G_WM}, 7")
    A(f"v_add_u32 v{t1}, s{G_T1}, v{t1}")
    A(f"v_mul_lo_u32 v{t1}, v{t1}, s{G_LDC}")
    A(f"v_and_b32 v{t0}, 31, v{L}")
    A(f"v_lshlrev_b32 v{t0}, 4, v{t0}")
    A(f"s_lshl_b32 s{G_T1}, s{G_WN}, 9")
    A(f"v_add3_u32 v{VG}, v{t0}, v{t1}, s{G_T1}")
    A(f"s_lshl_b32 s{G_T2}, s{G_LDC}, 1")
    A(f"s_mov_b32 s{G_T1}, s{G_COFF}")
    for i in range(4):
        for j in range(4):
            base = 16 * (4 * i + j)
            Xr = X + 16 * (j & 1)
            for r in range(16): A(f"v_accvgpr_read_b32 v{Xr+r}, a{base+r}")
            for iq in range(4):
                Ta = GV_T + 8 + (iq & 1)
                A(f"v_xor_b32 v{Ta}, {(8*j+2*iq)*16}, v{GV_T+7}")
                A(f"v_add_u32 v{Ta}, v{Ta}, v{VW}")
                A(f"ds_write_b128 v{Ta}, v[{Xr+4*iq}:{Xr+4*iq+3}]")
        A.wait(lg=0)
        for it in range(16):
            R = GV_FB + 4 * (it & 7)
            Ta = GV_T + 8 + (it & 1)
            A(f"v_xor_b32 v{Ta}, {((2*it)&7)*16}, v{VR}")
            A(f"ds_read_b128 v[{R}:{R+3}], v{Ta} offset:{it*1024}")
            if it % 8 == 7:
                for k2 in range(it - 7, it + 1):
                    R2 = GV_FB + 4 * (k2 & 7)
                    A(f"buffer_store_dwordx4 v[{R2}:{R2+3}], v{VG}, s[{G_SRDC}:{G_SRDC+3}], s{G_T1} offen" + (" sc1" if sc1 else ""))
                    A(f"s_add_u32 s{G_T1}, s{G_T1}, s{G_T2}")
        A.wait(lg=0)
```

```python
import sys
from asmlib import *
from layout import *
import chain
from chain import *

def header(name, grid=256, lds=163840):
    return f"""; @launch kernel={name} grid=({grid},1,1) block=(256,1,1) lds={lds}
.amdgcn_target "amdgcn-amd-amdhsa--gfx950"
.text
.globl {name}
.p2align 8
.type {name},@function
{name}:
"""
def footer(name):
    return f"""    s_endpgm
.section .rodata,"a"
.p2align 6
.amdhsa_kernel {name}
  .amdhsa_next_free_vgpr 512
  .amdhsa_next_free_sgpr 102
  .amdhsa_accum_offset 256
  .amdhsa_group_segment_fixed_size 0
  .amdhsa_kernarg_size 120
  .amdhsa_user_sgpr_count 2
  .amdhsa_user_sgpr_kernarg_segment_ptr 1
  .amdhsa_system_sgpr_workgroup_id_x 1
.end_amdhsa_kernel
"""

def entry(A):
    A.raw("    s_memrealtime s[72:73]")
    A("s_cmp_ge_u32 s2, 256")
    A("s_cbranch_scc1 L_end")
    A(f"s_load_dwordx2 s[{S_PW}:{S_PW+1}], s[0:1], {KA_WQ}")
    A(f"s_load_dwordx2 s[{S_PW+2}:{S_PW+3}], s[0:1], {KA_WK}")
    A(f"s_load_dwordx2 s[{S_PW+4}:{S_PW+5}], s[0:1], {KA_WV}")
    A(f"s_load_dwordx2 s[{S_PW+6}:{S_PW+7}], s[0:1], {KA_WO}")
    A(f"s_load_dwordx2 s[{S_PW+8}:{S_PW+9}], s[0:1], {KA_MEM0}")
    A(f"s_load_dwordx2 s[52:53], s[0:1], {KA_DBG}")
    A(f"s_load_dwordx2 s[54:55], s[0:1], {KA_WS}")
    A(f"s_getreg_b32 s{S_T2}, hwreg(HW_REG_XCC_ID)")
    A(f"v_lshrrev_b32 v1, 6, v0")
    A(f"v_readfirstlane_b32 s{S_WV}, v1")
    A.wait(lg=0)
    srd(A, S_WS, 54, WS_SIZE)
    srd(A, S_DBG, 52, 256)
    A(f"s_and_b32 s{S_T2}, s{S_T2}, 15")
    A(f"s_cmp_lg_u32 s{S_T2}, 0")
    A("s_cbranch_scc1 L_end")
    A(f"s_cmp_lg_u32 s{S_WV}, 0")
    A("s_cbranch_scc1 L_tk_skip")
    A("v_mov_b32 v1, 0")
    A("v_mov_b32 v2, 1")
    A("s_mov_b64 exec, 1")
    A(f"buffer_atomic_add v2, v1, s[{S_DBG}:{S_DBG+3}], 0 offen sc0")
    A.wait(vm=0)
    A(f"v_mov_b32 v1, {L_X}")
    A("ds_write_b32 v1, v2")
    A.wait(lg=0)
    A("s_mov_b64 exec, -1")
    A.label("L_tk_skip")
    A("s_barrier")
    A(f"v_mov_b32 v1, {L_X}")
    A("ds_read_b32 v2, v1")
    A.wait(lg=0)
    A(f"v_readfirstlane_b32 s{S_H}, v2")
    A("s_barrier")
    A(f"s_cmp_ge_u32 s{S_H}, 32")
    A("s_cbranch_scc1 L_end")

if __name__ == "__main__":
    timing = 'timing' in sys.argv[2:]
    A = Asm()
    entry(A)
    d1 = d2 = 0; ns = 64; g1 = g2 = 12; t0_ = 7; ta_ = 3
    for a in sys.argv[2:]:
        if a.startswith('d1='): d1 = int(a[3:])
        if a.startswith('d2='): d2 = int(a[3:])
        if a.startswith('nsteps='): ns = int(a[7:])
        if a.startswith('g1='): g1 = int(a[3:])
        if a.startswith('g2='): g2 = int(a[3:])
        if a.startswith('touch0='): t0_ = int(a[7:])
        if a.startswith('tahead='): ta_ = int(a[7:])
    emit_chain(A, timing=timing, opt=tuple(sys.argv[2:]), d1=d1, d2=d2, nsteps=ns, g1=g1, g2=g2)
    open(sys.argv[1], 'w').write(header("chain_kernel") + A.text() + footer("chain_kernel"))
    print("instructions:", A.count)
```

```python
import sys
from asmlib import *
from layout import *
from gemm import *
from ln import *
from gen_chain_test import footer
from chain import srd

def khead(name):
    return f""".globl {name}
.p2align 8
.type {name},@function
{name}:
"""
def kdesc(name, vgpr=512, acc=256):
    return f""".amdhsa_kernel {name}
  .amdhsa_next_free_vgpr {vgpr}
  .amdhsa_next_free_sgpr 102
  .amdhsa_accum_offset {acc}
  .amdhsa_group_segment_fixed_size 0
  .amdhsa_kernarg_size 120
  .amdhsa_user_sgpr_count 2
  .amdhsa_user_sgpr_kernarg_segment_ptr 1
  .amdhsa_system_sgpr_workgroup_id_x 1
.end_amdhsa_kernel
"""

def ln_kernel():
    A = Asm()
    A("s_cmp_ge_u32 s2, 256")
    A("s_cbranch_scc1 L_ln_end")
    A(f"s_load_dwordx2 s[16:17], s[0:1], {KA_X}")
    A(f"s_load_dwordx2 s[18:19], s[0:1], {KA_WS}")
    A("v_lshrrev_b32 v1, 6, v0")
    A("v_readfirstlane_b32 s27, v1")
    A("v_and_b32 v1, 63, v0")
    A.wait(lg=0)
    srd(A, 8, 16, 2048*512*2)
    srd(A, 4, 18, WS_SIZE)
    A("s_lshl_b32 s30, s2, 3")
    A("s_lshl_b32 s31, s27, 1")
    A("s_add_u32 s30, s30, s31")
    emit_ln_rows(A, 8, 4, 30, 2, 1)
    A.wait(vm=0)
    A.label("L_ln_end")
    A("s_endpgm")
    return A.text()

def decode_phase1(A, S_TASK):
    t = S_TASK
    A(f"s_mov_b32 s{G_LDA}, 1024")
    A(f"s_mov_b32 s{G_NST}, 8")
    A(f"s_mov_b32 s{G_SZA}, {WS_SIZE}")
    A(f"s_mov_b32 s{G_SRDA}, s4"); A(f"s_mov_b32 s{G_SRDA+1}, s5"); A(f"s_mov_b32 s{G_SRDA+3}, 0x20000")
    A(f"s_mov_b32 s{G_SRDC}, s4"); A(f"s_mov_b32 s{G_SRDC+1}, s5"); A(f"s_mov_b32 s{G_SRDC+2}, {WS_SIZE}"); A(f"s_mov_b32 s{G_SRDC+3}, 0x20000")
    A(f"s_mov_b32 s{G_SRDB+3}, 0x20000")
    A(f"s_cmp_ge_u32 s{t}, 384")
    A(f"s_cbranch_scc1 L_dec_h")
    A(f"s_and_b32 s{G_T1}, s{t}, 15")
    A(f"s_mov_b32 s{G_LDB}, 8192")
    A(f"s_mov_b32 s{G_SZB}, 4194304")
    A(f"s_lshl_b32 s{G_BOFF}, s{G_T1}, 9")
    A(f"s_mov_b32 s{G_LDC}, 8192")
    A(f"s_cmp_ge_u32 s{t}, 256")
    A(f"s_cbranch_scc1 L_dec_q")
    A(f"s_lshr_b32 s{G_T0}, s{t}, 5")
    A(f"s_lshl_b32 s{G_AOFF}, s{G_T0}, 18")
    A(f"s_add_u32 s{G_AOFF}, s{G_AOFF}, {WS_XN}")
    A(f"s_bitcmp1_b32 s{t}, 4")
    A(f"s_cbranch_scc1 L_dec_v")
    A(f"s_mov_b32 s{G_SRDB}, s18"); A(f"s_and_b32 s{G_SRDB+1}, s19, 0xffff")
    A(f"s_lshl_b32 s{G_COFF}, s{G_T0}, 21")
    A(f"s_add_u32 s{G_COFF}, s{G_COFF}, s{G_BOFF}")
    A(f"s_add_u32 s{G_COFF}, s{G_COFF}, {WS_KX}")
    A("s_branch L_task_k")
    A.label("L_dec_v")
    A(f"s_mov_b32 s{G_SRDB}, s20"); A(f"s_and_b32 s{G_SRDB+1}, s21, 0xffff")
    A(f"s_lshl_b32 s{G_COFF}, s{G_T0}, 21")
    A(f"s_lshl_b32 s{G_T2}, s{G_T1}, 14")
    A(f"s_add_u32 s{G_COFF}, s{G_COFF}, s{G_T2}")
    A(f"s_add_u32 s{G_COFF}, s{G_COFF}, {WS_VT}")
    A("s_branch L_task_v")
    A.label("L_dec_q")
    A(f"s_sub_u32 s{G_T0}, s{t}, 256")
    A(f"s_lshr_b32 s{G_T0}, s{G_T0}, 4")
    A(f"s_lshl_b32 s{G_AOFF}, s{G_T0}, 18")
    A(f"s_add_u32 s{G_AOFF}, s{G_AOFF}, {WS_XN}")
    A(f"s_mov_b32 s{G_SRDB}, s16"); A(f"s_and_b32 s{G_SRDB+1}, s17, 0xffff")
    A(f"s_lshl_b32 s{G_COFF}, s{G_T0}, 21")
    A(f"s_add_u32 s{G_COFF}, s{G_COFF}, s{G_BOFF}")
    A(f"s_add_u32 s{G_COFF}, s{G_COFF}, {WS_QX}")
    A("s_branch L_task_k")
    A.label("L_dec_h")
    A(f"s_sub_u32 s{G_T1}, s{t}, 384")
    A(f"s_mul_i32 s{G_T0}, s{G_T1}, 37")
    A(f"s_lshr_b32 s{G_T0}, s{G_T0}, 8")
    A(f"s_mul_i32 s{G_T2}, s{G_T0}, 7")
    A(f"s_sub_u32 s{G_T1}, s{G_T1}, s{G_T2}")
    A(f"s_lshl_b32 s{G_AOFF}, s{G_T0}, 18")
    A(f"s_add_u32 s{G_AOFF}, s{G_AOFF}, {WS_XN}")
    A(f"s_mov_b32 s{G_LDB}, 3584")
    A(f"s_mov_b32 s{G_SZB}, {512*1792*2}")
    A(f"s_lshl_b32 s{G_BOFF}, s{G_T1}, 9")
    A(f"s_mov_b32 s{G_AUX}, s{G_BOFF}")
    A(f"s_mov_b32 s{G_SRDB}, s22"); A(f"s_and_b32 s{G_SRDB+1}, s23, 0xffff")
    A(f"s_mov_b32 s{G_LDC}, 3584")
    A(f"s_mul_i32 s{G_COFF}, s{G_T0}, {256*3584}")
    A(f"s_add_u32 s{G_COFF}, s{G_COFF}, s{G_BOFF}")
    A(f"s_add_u32 s{G_COFF}, s{G_COFF}, {WS_HB}")
    A("s_branch L_task_h")

def tout(A):
    A("s_sub_u32 s78, s78, s76"); A("s_sub_u32 s76, s76, s74"); A("s_sub_u32 s74, s74, s72")
    A("s_lshl_b32 s72, s2, 6"); A(f"s_add_u32 s72, s72, {WS_TIME}")
    A("s_mov_b64 exec, 1")
    for k, r in enumerate((74, 76, 78)):
        A(f"v_mov_b32 v30, s{r}"); A(f"v_mov_b32 v31, {4*k}")
        A("buffer_store_dword v30, v31, s[4:7], s72 offen")
    A("s_mov_b64 exec, -1")

def gemm1_kernel(ntasks=440, sc1=True, noepi=False, timing=False):
    A = Asm()
    S_TASK = 28
    A("s_cmp_ge_u32 s2, 256")
    A("s_cbranch_scc1 L_g1_end")
    A(f"s_load_dwordx2 s[16:17], s[0:1], {KA_WQ}")
    A(f"s_load_dwordx2 s[18:19], s[0:1], {KA_WK}")
    A(f"s_load_dwordx2 s[20:21], s[0:1], {KA_WV}")
    A(f"s_load_dwordx2 s[22:23], s[0:1], {KA_W1}")
    A(f"s_load_dwordx2 s[24:25], s[0:1], {KA_B1}")
    A(f"s_load_dwordx2 s[30:31], s[0:1], {KA_WS}")
    A("v_lshrrev_b32 v1, 6, v0")
    A(f"v_readfirstlane_b32 s{G_WV}, v1")
    A.wait(lg=0)
    srd(A, 4, 30, WS_SIZE)
    srd(A, G_SRDX, 24, 1792*2)
    gemm_setup_lane(A)
    A(f"s_mov_b32 s{S_TASK}, s2")
    A.label("L_g1_next")
    A(f"s_cmp_ge_u32 s{S_TASK}, {ntasks}")
    A("s_cbranch_scc1 L_g1_end")
    decode_phase1(A, S_TASK)
    for tag, wT, epi in (("k", True, lambda: epi_rowmajor(A, sc1=sc1)), ("v", False, lambda: epi_vt(A, sc1=sc1)), ("h", True, lambda: epi_rowmajor(A, gelu=True, sc1=sc1))):
        A.label(f"L_task_{tag}")
        A.forget()
        if timing and tag == 'k': A.raw('    s_memtime s[72:73]')
        gemm_task_addr(A)
        A("s_barrier")
        gemm_start(A)
        if timing and tag == 'k': A.raw('    s_memtime s[74:75]')
        gemm_main(A, tag, wT)
        if timing and tag == 'k': A.raw('    s_memtime s[76:77]')
        if not noepi: epi()
        if timing and tag == 'k':
            A.raw('    s_memtime s[78:79]')
            A.raw('    s_waitcnt lgkmcnt(0)')
            tout(A)
        A(f"s_add_u32 s{S_TASK}, s{S_TASK}, 256")
        A.settle(); A.forget()
        A("s_branch L_g1_next")
    A.label("L_g1_end")
    A("s_waitcnt vmcnt(0)")
    A("s_endpgm")
    return A.text()

if __name__ == "__main__":
    txt = "; @launch kernel=ln_kernel grid=(256,1,1) block=(256,1,1) lds=0\n; @launch kernel=gemm1_kernel grid=(256,1,1) block=(256,1,1) lds=163840\n"
    txt += '.amdgcn_target "amdgcn-amd-amdhsa--gfx950"\n.text\n'
    txt += khead("ln_kernel") + ln_kernel()
    kw = {}
    for a in sys.argv[2:]:
        if a.startswith('ntasks='): kw['ntasks'] = int(a[7:])
        if a == 'nosc1': kw['sc1'] = False
        if a == 'noepi': kw['noepi'] = True
        if a == 'timing': kw['timing'] = True
        if a == 'regstage':
            import gemm; gemm.REGSTAGE = True
    txt += khead("gemm1_kernel") + gemm1_kernel(**kw)
    txt += '.section .rodata,"a"\n.p2align 6\n' + kdesc("ln_kernel", 128, 128) + ".p2align 6\n" + kdesc("gemm1_kernel")
    open(sys.argv[1], "w").write(txt)
```

```python
MB = 1 << 20
WS_XN   = 0
WS_KX   = 2 * MB
WS_VT   = 18 * MB
WS_QX   = 34 * MB
WS_OX   = 50 * MB
WS_HB   = 66 * MB
WS_KVM  = 74 * MB
WS_PBUF = 83 * MB
WS_MBUF = 84 * MB
WS_FLAG = 87 * MB
WS_PART = 88 * MB
WS_Y    = 128 * MB
WS_TIME = 200 * MB
WS_SIZE = 256 * MB
KA_X, KA_MEM0, KA_WQ, KA_WK, KA_WV, KA_WO, KA_SEG, KA_BX, KA_W1, KA_B1, KA_W2, KA_B2, KA_OUT, KA_DBG, KA_WS = [8 * i for i in range(15)]
```

```python
from asmlib import *
from layout import *
from gemm import f32bits

def allreduce_add(A, v, t):
    for r in (1, 2, 4, 8):
        A(f"v_add_f32_dpp v{v}, v{v}, v{v} row_ror:{r} row_mask:0xf bank_mask:0xf")
    A(f"v_mov_b32 v{t}, v{v}")
    A(f"v_permlane16_swap_b32 v{v}, v{t}")
    A(f"v_add_f32 v{v}, v{v}, v{t}")
    A(f"v_mov_b32 v{t}, v{v}")
    A(f"v_permlane32_swap_b32 v{v}, v{t}")
    A(f"v_add_f32 v{v}, v{v}, v{t}")

def rbf(A, v, t):
    A(f"v_cvt_pk_bf16_f32 v{v}, v{v}, v{v}")
    A(f"v_lshlrev_b32 v{v}, 16, v{v}")

def emit_ln_rows(A, srd_x, srd_ws, s_row0, nrows, lane, sc1=True, VB=32):
    off = VB; X = VB + 2
    A(f"v_lshlrev_b32 v{off}, 4, v{lane}")
    A(f"s_lshl_b32 s55, s{s_row0}, 10")
    for r in range(nrows):
        A(f"buffer_load_dwordx4 v[{X+4*r}:{X+4*r+3}], v{off}, s[{srd_x}:{srd_x+3}], s55 offen offset:{r*1024}")
    F = X + 4 * nrows
    S = F + 8; T = S + 1; Q = S + 2; M = S + 3
    A(f"s_add_u32 s56, s55, {WS_XN}")
    for r in range(nrows):
        x = X + 4 * r
        for i in range(4):
            A(f"v_lshlrev_b32 v{F+2*i}, 16, v{x+i}")
            A(f"v_and_b32 v{F+2*i+1}, 0xffff0000, v{x+i}")
        A(f"v_add_f32 v{S}, v{F}, v{F+1}")
        for i in range(2, 8): A(f"v_add_f32 v{S}, v{S}, v{F+i}")
        allreduce_add(A, S, T)
        A(f"v_mul_f32 v{S}, {f32bits(1.0/512)}, v{S}")
        A(f"v_sub_f32 v{T}, v{F}, v{S}")
        A(f"v_mul_f32 v{Q}, v{T}, v{T}")
        for i in range(1, 8):
            A(f"v_sub_f32 v{T}, v{F+i}, v{S}")
            A(f"v_fmac_f32 v{Q}, v{T}, v{T}")
        allreduce_add(A, Q, T)
        A(f"v_mul_f32 v{Q}, {f32bits(1.0/512)}, v{Q}")
        rbf(A, Q, T)
        A(f"v_add_f32 v{Q}, {f32bits(1e-5)}, v{Q}")
        rbf(A, Q, T)
        A(f"v_sqrt_f32 v{Q}, v{Q}")
        rbf(A, Q, T)
        A(f"v_rcp_f32 v{Q}, v{Q}")
        A(f"v_mov_b32 v{M}, v{S}")
        rbf(A, M, T)
        for i in range(8): A(f"v_sub_f32 v{F+i}, v{F+i}, v{M}")
        for i in range(4):
            A(f"v_cvt_pk_bf16_f32 v{x+i}, v{F+2*i}, v{F+2*i+1}")
        for i in range(4):
            A(f"v_lshlrev_b32 v{F+2*i}, 16, v{x+i}")
            A(f"v_and_b32 v{F+2*i+1}, 0xffff0000, v{x+i}")
        for i in range(8): A(f"v_mul_f32 v{F+i}, v{F+i}, v{Q}")
        for i in range(4):
            A(f"v_cvt_pk_bf16_f32 v{x+i}, v{F+2*i}, v{F+2*i+1}")
        A(f"buffer_store_dwordx4 v[{x}:{x+3}], v{off}, s[{srd_ws}:{srd_ws+3}], s56 offen offset:{r*1024}" + (" sc1" if sc1 else ""))
```

```python
import sys
from asmlib import *
from layout import *
from gemm import *
from ln import *
from ao import *
import chain
from chain import srd, emit_chain, S_PW, S_WS, S_DBG, S_H, S_WV, S_T2, L_X
from gen_gemm_test import khead, kdesc, ln_kernel, gemm1_kernel

def decode_mlp2(A, t):
    A(f"s_mov_b32 s{G_LDA}, 3584")
    A(f"s_mov_b32 s{G_NST}, 14")
    A(f"s_mov_b32 s{G_SZA}, {WS_SIZE}")
    A(f"s_mov_b32 s{G_SRDA}, s4"); A(f"s_mov_b32 s{G_SRDA+1}, s5"); A(f"s_mov_b32 s{G_SRDA+3}, 0x20000")
    A(f"s_mov_b32 s{G_SRDC}, s4"); A(f"s_mov_b32 s{G_SRDC+1}, s5"); A(f"s_mov_b32 s{G_SRDC+2}, {WS_SIZE}"); A(f"s_mov_b32 s{G_SRDC+3}, 0x20000")
    A(f"s_mov_b32 s{G_SRDB}, s24"); A(f"s_and_b32 s{G_SRDB+1}, s25, 0xffff"); A(f"s_mov_b32 s{G_SRDB+3}, 0x20000")
    A(f"s_mov_b32 s{G_LDB}, 1024")
    A(f"s_mov_b32 s{G_SZB}, {1792*512*2}")
    A(f"s_mov_b32 s{G_LDC}, 2048")
    A(f"s_and_b32 s{G_T0}, s{t}, 1")
    A(f"s_bfe_u32 s{G_T1}, s{t}, 0x10001")
    A(f"s_lshr_b32 s{G_T2}, s{t}, 2")
    A(f"s_mul_i32 s{G_AOFF}, s{G_T2}, {256*3584}")
    A(f"s_mul_i32 s{G_AUX}, s{G_T0}, 1792")
    A(f"s_add_u32 s{G_AOFF}, s{G_AOFF}, s{G_AUX}")
    A(f"s_add_u32 s{G_AOFF}, s{G_AOFF}, {WS_HB}")
    A(f"s_mul_i32 s{G_BOFF}, s{G_T0}, {896*1024}")
    A(f"s_lshl_b32 s{G_AUX}, s{G_T1}, 9")
    A(f"s_add_u32 s{G_BOFF}, s{G_BOFF}, s{G_AUX}")
    A(f"s_lshl_b32 s{G_COFF}, s{G_T0}, 22")
    A(f"s_lshl_b32 s{G_AUX}, s{G_T2}, 19")
    A(f"s_add_u32 s{G_COFF}, s{G_COFF}, s{G_AUX}")
    A(f"s_lshl_b32 s{G_AUX}, s{G_T1}, 10")
    A(f"s_add_u32 s{G_COFF}, s{G_COFF}, s{G_AUX}")
    A(f"s_add_u32 s{G_COFF}, s{G_COFF}, {WS_Y}")

def chain_kernel(d1, d2, g1, g2):
    A = Asm()
    A("s_cmp_ge_u32 s2, 256")
    A("s_cbranch_scc1 L_end")
    A(f"s_load_dwordx2 s[{S_PW}:{S_PW+1}], s[0:1], {KA_WQ}")
    A(f"s_load_dwordx2 s[{S_PW+2}:{S_PW+3}], s[0:1], {KA_WK}")
    A(f"s_load_dwordx2 s[{S_PW+4}:{S_PW+5}], s[0:1], {KA_WV}")
    A(f"s_load_dwordx2 s[{S_PW+6}:{S_PW+7}], s[0:1], {KA_WO}")
    A(f"s_load_dwordx2 s[{S_PW+8}:{S_PW+9}], s[0:1], {KA_MEM0}")
    A(f"s_load_dwordx2 s[52:53], s[0:1], {KA_DBG}")
    A(f"s_load_dwordx2 s[54:55], s[0:1], {KA_WS}")
    A(f"s_load_dwordx2 s[56:57], s[0:1], {KA_W2}")
    A(f"s_getreg_b32 s{S_T2}, hwreg(HW_REG_XCC_ID)")
    A(f"v_lshrrev_b32 v1, 6, v0")
    A(f"v_readfirstlane_b32 s{S_WV}, v1")
    A.wait(lg=0)
    srd(A, S_WS, 54, WS_SIZE)
    srd(A, S_DBG, 52, 256)
    A(f"s_and_b32 s{S_T2}, s{S_T2}, 15")
    A(f"s_cmp_eq_u32 s{S_T2}, 0")
    A(f"s_cselect_b32 s29, 0, 64")
    A(f"s_cmp_lg_u32 s{S_WV}, 0")
    A("s_cbranch_scc1 L_tk_skip")
    A("v_mov_b32 v1, s29")
    A("v_mov_b32 v2, 1")
    A("s_mov_b64 exec, 1")
    A(f"buffer_atomic_add v2, v1, s[{S_DBG}:{S_DBG+3}], 0 offen sc0")
    A.wait(vm=0)
    A(f"v_mov_b32 v1, {L_X}")
    A("ds_write_b32 v1, v2")
    A.wait(lg=0)
    A("s_mov_b64 exec, -1")
    A.label("L_tk_skip")
    A("s_barrier")
    A(f"v_mov_b32 v1, {L_X}")
    A("ds_read_b32 v2, v1")
    A.wait(lg=0)
    A(f"v_readfirstlane_b32 s{S_H}, v2")
    A("s_barrier")
    A(f"s_cmp_lg_u32 s{S_T2}, 0")
    A("s_cbranch_scc1 L_worker")
    A(f"s_cmp_ge_u32 s{S_H}, 32")
    A("s_cbranch_scc1 L_end")
    emit_chain(A, d1=d1, d2=d2, g1=g1, g2=g2)
    A("s_endpgm")
    A.label("L_worker")
    A.forget()
    A(f"s_cmp_ge_u32 s{S_H}, 32")
    A("s_cbranch_scc1 L_wend")
    A("s_mov_b32 s24, s56"); A("s_mov_b32 s25, s57")
    gemm_setup_lane(A)
    decode_mlp2(A, S_H)
    gemm_task_addr(A)
    gemm_start(A)
    gemm_main(A, "m2", True)
    epi_f32(A)
    A("s_waitcnt vmcnt(0)")
    A.label("L_wend")
    A("s_endpgm")
    return A.text()

def ao_kernel(P=8):
    A = Asm()
    A("s_cmp_ge_u32 s2, 256")
    A("s_cbranch_scc1 L_ao_end")
    A(f"s_load_dwordx2 s[16:17], s[0:1], {KA_WO}")
    A(f"s_load_dwordx2 s[18:19], s[0:1], {KA_WS}")
    A("v_lshrrev_b32 v1, 6, v0")
    A(f"v_readfirstlane_b32 s{O_WV}, v1")
    A.wait(lg=0)
    srd(A, O_WS, 18, WS_SIZE)
    A(f"s_and_b32 s{O_KC}, s2, 7")
    A(f"s_bfe_u32 s{O_NC}, s2, 0x20003")
    A(f"s_lshr_b32 s{O_SEG}, s2, 5")
    ao_prologue(A, 16)
    A.label("L_ao_loop")
    ao_segment(A)
    A(f"s_add_u32 s{O_SEG}, s{O_SEG}, {P}")
    A(f"s_cmp_lt_u32 s{O_SEG}, 64")
    A.settle(); A.forget()
    A("s_cbranch_scc1 L_ao_loop")
    A("s_waitcnt vmcnt(0)")
    A.label("L_ao_end")
    A("s_endpgm")
    return A.text()

def fin_kernel():
    A = Asm()
    A("s_cmp_ge_u32 s2, 512")
    A("s_cbranch_scc1 L_fin_end")
    A(f"s_load_dwordx2 s[16:17], s[0:1], {KA_X}")
    A(f"s_load_dwordx2 s[18:19], s[0:1], {KA_WS}")
    A(f"s_load_dwordx2 s[20:21], s[0:1], {KA_B2}")
    A(f"s_load_dwordx2 s[22:23], s[0:1], {KA_OUT}")
    A.wait(lg=0)
    srd(A, 4, 18, WS_SIZE); srd(A, 8, 16, 2048*512*2); srd(A, 12, 20, 1024); srd(A, 24, 22, 2048*512*2)
    A("v_lshrrev_b32 v1, 6, v0")
    A("s_lshl_b32 s30, s2, 2")
    A("v_add_u32 v1, s30, v1")
    A("v_and_b32 v2, 63, v0")
    A("v_lshlrev_b32 v3, 10, v1")
    A("v_lshl_or_b32 v3, v2, 4, v3")
    A("v_lshlrev_b32 v4, 4, v2")
    A("v_lshlrev_b32 v5, 11, v1")
    A("v_lshl_or_b32 v5, v2, 5, v5")
    A("v_lshrrev_b32 v6, 5, v1")
    A("v_lshlrev_b32 v6, 2, v6")
    A("v_lshrrev_b32 v7, 4, v2")
    A("v_add_u32 v6, v6, v7")
    A("v_lshlrev_b32 v6, 17, v6")
    A("v_and_b32 v7, 31, v1")
    A("v_lshl_or_b32 v6, v7, 9, v6")
    A("v_and_b32 v7, 15, v2")
    A("v_lshl_or_b32 v6, v7, 5, v6")
    A("buffer_load_dwordx4 v[8:11], v3, s[8:11], 0 offen")
    A("buffer_load_dwordx4 v[12:15], v4, s[12:15], 0 offen")
    A(f"s_mov_b32 s30, {WS_Y}"); A(f"s_mov_b32 s31, {WS_Y + 4*MB}")
    A("buffer_load_dwordx4 v[16:19], v5, s[4:7], s30 offen"); A("buffer_load_dwordx4 v[20:23], v5, s[4:7], s30 offen offset:16")
    A("buffer_load_dwordx4 v[24:27], v5, s[4:7], s31 offen"); A("buffer_load_dwordx4 v[28:31], v5, s[4:7], s31 offen offset:16")
    for kc in range(8):
        A(f"s_mov_b32 s{32+kc}, {WS_PART + kc*16384}")
        A(f"buffer_load_dwordx4 v[{32+8*kc}:{35+8*kc}], v6, s[4:7], s{32+kc} offen")
        A(f"buffer_load_dwordx4 v[{36+8*kc}:{39+8*kc}], v6, s[4:7], s{32+kc} offen offset:16")
    for i in range(8):
        A(f"v_add_f32 v{16+i}, v{16+i}, v{24+i}")
        for kc in range(8): A(f"v_add_f32 v{16+i}, v{16+i}, v{32+8*kc+i}")
    for i in range(4):
        for (src) in (8, 12):
            A(f"v_lshlrev_b32 v100, 16, v{src+i}")
            A(f"v_and_b32 v101, 0xffff0000, v{src+i}")
            A(f"v_add_f32 v{16+2*i}, v{16+2*i}, v100")
            A(f"v_add_f32 v{17+2*i}, v{17+2*i}, v101")
    for i in range(4): A(f"v_cvt_pk_bf16_f32 v{8+i}, v{16+2*i}, v{17+2*i}")
    A("buffer_store_dwordx4 v[8:11], v3, s[24:27], 0 offen")
    A.wait(vm=0)
    A.label("L_fin_end")
    A("s_endpgm")
    return A.text()

if __name__ == "__main__":
    hdr = open('parallel_sum__memory_aug_recurrent_mem_tr__mixer_channel_mlp__prompt.s.ref').read().split('; Override launch')[0]
    txt = hdr
    txt += "; @launch kernel=ln_kernel grid=(256,1,1) block=(256,1,1) lds=0\n"
    txt += "; @launch kernel=gemm1_kernel grid=(256,1,1) block=(256,1,1) lds=163840\n"
    txt += "; @launch kernel=chain_kernel grid=(256,1,1) block=(256,1,1) lds=163840\n"
    txt += "; @launch kernel=ao_kernel grid=(256,1,1) block=(256,1,1) lds=163840\n"
    txt += "; @launch kernel=fin_kernel grid=(512,1,1) block=(256,1,1) lds=0\n"
    txt += '.amdgcn_target "amdgcn-amd-amdhsa--gfx950"\n.text\n'
    txt += khead("ln_kernel") + ln_kernel()
    txt += khead("gemm1_kernel") + gemm1_kernel()
    txt += khead("chain_kernel") + chain_kernel(40, 45, 20, 20)
    txt += khead("ao_kernel") + ao_kernel()
    txt += khead("fin_kernel") + fin_kernel()
    txt += '.section .rodata,"a"\n'
    for n, v, a in (("ln_kernel", 128, 128), ("gemm1_kernel", 512, 256), ("chain_kernel", 512, 256), ("ao_kernel", 512, 256), ("fin_kernel", 128, 128)):
        txt += ".p2align 6\n" + kdesc(n, v, a)
    open(sys.argv[1], "w").write(txt)
```

```python
from asmlib import *
from layout import *
import math, struct
from gemm import f32bits

O_WS = 4
O_SRDW = 8
O_KC = 36; O_NC = 37; O_SEG = 38; O_STEP = 39; O_WV = 27
O_T0 = 40; O_T1 = 41; O_T2 = 42; O_C = 44
O_MSK = 46
O_HD = 54
LA_A = 0; LA_X = 32768
OV_L = 1; OV_QA = 2; OV_VA = 3; OV_KVA = 4; OV_XW = 5; OV_XR = 6; OV_AW = 7; OV_AR = 8; OV_PS = 9; OV_T = 10
OV_Q = 32; OV_K = 64; OV_V = 96; OV_KV = 128; OV_XF = 144; OV_S = 160
OV_P = 184
OV_ON = 200
OV_LD = 204
OV_AF = 212
OA_WO = 0; OA_O = 128; OA_OUT = 192

def ao_prologue(A, ptr_wo):
    from chain import srd
    L = OV_L; t0 = OV_T; t1 = OV_T + 1; t2 = OV_T + 2; t3 = OV_T + 3
    A(f"v_and_b32 v{L}, 63, v0")
    srd(A, O_SRDW, ptr_wo, 4194304)
    A(f"v_lshrrev_b32 v{t0}, 4, v{L}")
    A(f"v_bfe_u32 v{t1}, v{L}, 1, 3")
    A(f"v_xor_b32 v{t1}, v{t1}, v{t0}")
    A(f"v_and_b32 v{t2}, 1, v{L}")
    A(f"v_lshl_or_b32 v{t1}, v{t1}, 1, v{t2}")
    A(f"v_lshlrev_b32 v{t1}, 4, v{t1}")
    D = OV_T + 4
    A(f"v_lshl_or_b32 v{D}, v{t0}, 10, v{t1}")
    A(f"v_xor_b32 v{D+1}, 128, v{D}")
    A(f"s_lshl_b32 s{O_T0}, s{O_KC}, 19")
    A(f"s_lshl_b32 s{O_T1}, s{O_WV}, 17")
    A(f"s_add_u32 s{O_T0}, s{O_T0}, s{O_T1}")
    A(f"s_lshl_b32 s{O_T1}, s{O_NC}, 8")
    A(f"s_add_u32 s{O_T0}, s{O_T0}, s{O_T1}")
    A(f"s_lshl_b32 s{O_T1}, s{O_WV}, 15")
    for i in range(32):
        A(f"s_mov_b32 m0, s{O_T1}")
        A(f"buffer_load_dwordx4 v{D + ((i >> 1) & 1)}, s[{O_SRDW}:{O_SRDW+3}], s{O_T0} offen lds")
        A(f"s_add_u32 s{O_T0}, s{O_T0}, 4096")
        A(f"s_add_u32 s{O_T1}, s{O_T1}, 1024")
    A(f"v_lshrrev_b32 v{t0}, 4, v{L}")
    A(f"v_lshlrev_b32 v{t0}, 3, v{t0}")
    A(f"v_bfe_u32 v{t1}, v{L}, 2, 2")
    A(f"v_add_u32 v{t0}, v{t0}, v{t1}")
    A(f"v_lshlrev_b32 v{t0}, 8, v{t0}")
    A(f"v_bfe_u32 v{t2}, v{L}, 4, 1")
    A(f"v_lshl_or_b32 v{t1}, v{t2}, 2, v{t1}")
    A(f"s_lshl_b32 s{O_T0}, s{O_WV}, 1")
    A(f"v_xor_b32 v{t1}, s{O_T0}, v{t1}")
    A(f"v_lshl_or_b32 v{t0}, v{t1}, 5, v{t0}")
    A(f"v_and_b32 v{t2}, 3, v{L}")
    A(f"v_lshl_or_b32 v{t0}, v{t2}, 3, v{t0}")
    A(f"v_xor_b32 v{t3}, 32, v{t0}")
    TB = [OV_T + 6, OV_T + 7, OV_T + 8, OV_T + 9]
    A(f"v_mov_b32 v{TB[0]}, v{t0}"); A(f"v_mov_b32 v{TB[1]}, v{t3}")
    A(f"v_add_u32 v{TB[2]}, 0x10000, v{t0}"); A(f"v_add_u32 v{TB[3]}, 0x10000, v{t3}")
    A.wait(vm=0)
    A("s_barrier")
    for t in range(2):
        for ks in range(16):
            for hh in range(2):
                row = 32 * ks + 4 * hh
                b = TB[t + (2 if row >= 256 else 0)]
                r = OA_WO + (t * 16 + ks) * 4 + 2 * hh
                A(f"ds_read_b64_tr_b16 a[{r}:{r+1}], v{b} offset:{(row & 255) * 256}")
    A.wait(lg=0)
    A("s_barrier")
    A(f"s_lshl_b32 s{O_HD}, s{O_KC}, 2")
    A(f"s_add_u32 s{O_HD}, s{O_HD}, s{O_WV}")
    A(f"v_and_b32 v{t0}, 15, v{L}")
    A(f"v_lshlrev_b32 v{t0}, 13, v{t0}")
    A(f"v_lshrrev_b32 v{t1}, 4, v{L}")
    A(f"v_lshl_or_b32 v{t0}, v{t1}, 4, v{t0}")
    A(f"s_lshl_b32 s{O_T0}, s{O_HD}, 8")
    A(f"v_add_u32 v{OV_QA}, s{O_T0}, v{t0}")
    A(f"v_and_b32 v{t0}, 15, v{L}")
    A(f"v_lshlrev_b32 v{t0}, 6, v{t0}")
    A(f"v_lshl_or_b32 v{t0}, v{t1}, 4, v{t0}")
    A(f"s_lshl_b32 s{O_T0}, s{O_HD}, 13")
    A(f"v_add_u32 v{OV_VA}, s{O_T0}, v{t0}")
    A(f"v_lshlrev_b32 v{t0}, 4, v{L}")
    A(f"s_lshl_b32 s{O_T0}, s{O_HD}, 12")
    A(f"v_add_u32 v{OV_KVA}, s{O_T0}, v{t0}")
    A(f"v_and_b32 v{t0}, 15, v{L}")
    A(f"v_lshlrev_b32 v{t0}, 5, v{t0}")
    A(f"v_lshl_or_b32 v{t0}, v{t1}, 3, v{t0}")
    A(f"s_lshl_b32 s{O_T0}, s{O_WV}, 12")
    A(f"s_add_u32 s{O_T0}, s{O_T0}, {LA_X}")
    A(f"v_add_u32 v{OV_XW}, s{O_T0}, v{t0}")
    A(f"v_lshlrev_b32 v{t0}, 3, v{t1}")
    A(f"v_bfe_u32 v{t2}, v{L}, 2, 2")
    A(f"v_add_u32 v{t0}, v{t0}, v{t2}")
    A(f"v_lshlrev_b32 v{t0}, 5, v{t0}")
    A(f"v_and_b32 v{t2}, 3, v{L}")
    A(f"v_lshl_or_b32 v{t0}, v{t2}, 3, v{t0}")
    A(f"v_add_u32 v{OV_XR}, s{O_T0}, v{t0}")
    Z = OV_AF
    for i in range(4): A(f"v_mov_b32 v{Z+i}, 0")
    A(f"v_lshlrev_b32 v{t0}, 4, v{L}")
    A(f"v_add_u32 v{t0}, s{O_T0}, v{t0}")
    for i in range(4): A(f"ds_write_b128 v{t0}, v[{Z}:{Z+3}] offset:{i*1024}")
    A(f"v_and_b32 v{t0}, 15, v{L}")
    A(f"v_lshlrev_b32 v{OV_AW}, 10, v{t0}")
    A(f"v_bfe_u32 v{t2}, v{L}, 4, 1")
    A(f"v_lshl_or_b32 v{OV_AW}, v{t2}, 3, v{OV_AW}")
    A(f"s_lshl_b32 s{O_T0}, s{O_WV}, 8")
    A(f"v_add_u32 v{OV_AW}, s{O_T0}, v{OV_AW}")
    A(f"v_bfe_u32 v{t2}, v{L}, 5, 1")
    A(f"v_xor_b32 v{t0}, v{t0}, v{t2}")
    A(f"v_lshlrev_b32 v{20}, 4, v{t0}")
    A(f"v_and_b32 v{t0}, 15, v{L}")
    A(f"v_lshlrev_b32 v{OV_AR}, 10, v{t0}")
    A(f"v_xor_b32 v{t0}, v{t0}, v{t1}")
    A(f"v_lshlrev_b32 v{21}, 4, v{t0}")
    A(f"v_and_b32 v{t0}, 15, v{L}")
    A(f"v_lshlrev_b32 v{t0}, 9, v{t0}")
    A(f"v_lshl_or_b32 v{t0}, v{t1}, 4, v{t0}")
    A(f"s_lshl_b32 s{O_T0}, s{O_WV}, 7")
    A(f"v_add_u32 v{OV_PS}, s{O_T0}, v{t0}")
    A(f"v_and_b32 v{t0}, 15, v{L}")
    A(f"v_lshlrev_b32 v{t2}, 2, v{t1}")
    for r in range(4):
        A(f"v_add_u32 v{t3}, {r}, v{t2}")
        A(f"v_cmp_gt_u32 s[{O_MSK+2*r}:{O_MSK+2*r+1}], v{t3}, v{t0}")
    for i in range(4): A(f"v_mov_b32 v{OV_ON+i}, 0x3f803f80")
    c = (128 ** -0.5) * math.log2(math.e)
    A(f"s_mov_b32 s{O_C}, {f32bits(c)}"); A(f"s_mov_b32 s{O_C+1}, {f32bits(c)}")
    A.wait(lg=0)
    A.settle(); A.forget()

def ao_segment(A, sc1=True, prog_wait=None):
    WS = f"s[{O_WS}:{O_WS+3}]"; sc = " sc1" if sc1 else ""
    t0 = OV_T; t1 = OV_T + 1
    A(f"s_lshl_b32 s{O_T0}, s{O_SEG}, 18")
    A(f"s_add_u32 s{O_T1}, s{O_T0}, {WS_KX}")
    A(f"s_add_u32 s{O_T2}, s{O_T0}, {WS_QX}")
    for T in range(2):
        for ks in range(4):
            if T == 1 and ks == 0:
                A(f"s_add_u32 s{O_T1}, s{O_T1}, {16*8192}")
            r = OV_K + 4 * (4 * T + ks)
            A(f"buffer_load_dwordx4 v[{r}:{r+3}], v{OV_QA}, {WS}, s{O_T1} offen offset:{ks*64}{sc}")
    for T in range(2):
        for ks in range(4):
            if T == 1 and ks == 0:
                A(f"s_add_u32 s{O_T2}, s{O_T2}, {16*8192}")
            r = OV_Q + 4 * (4 * T + ks)
            A(f"buffer_load_dwordx4 v[{r}:{r+3}], v{OV_QA}, {WS}, s{O_T2} offen offset:{ks*64}{sc}")
    A(f"s_add_u32 s{O_T0}, s{O_T0}, {WS_VT}")
    for t in range(8):
        if t == 4: A(f"s_add_u32 s{O_T0}, s{O_T0}, 4096")
        r = OV_V + 4 * t
        A(f"buffer_load_dwordx4 v[{r}:{r+3}], v{OV_VA}, {WS}, s{O_T0} offen offset:{(t&3)*1024}{sc}")
    if prog_wait: prog_wait()
    A(f"s_lshl_b32 s{O_STEP}, s{O_SEG}, 17")
    A(f"s_add_u32 s{O_STEP}, s{O_STEP}, {WS_KVM}")
    for wp in range(4):
        A(f"buffer_load_dwordx4 v[{OV_KV+4*wp}:{OV_KV+4*wp+3}], v{OV_KVA}, {WS}, s{O_STEP} offen offset:{wp*1024}{sc}")
    pre_tiles = True
    for wp in range(4):
        A(f"ds_write2_b32 v{OV_XW}, v{OV_KV+4*wp}, v{OV_KV+4*wp+1} offset0:1 offset1:129" if wp == 0 else
          f"v_add_u32 v{t0}, {wp*1024}, v{OV_XW}")
        if wp > 0:
            A(f"ds_write2_b32 v{t0}, v{OV_KV+4*wp}, v{OV_KV+4*wp+1} offset0:1 offset1:129")
    A.wait(lg=0)
    for ks in range(4):
        for hh in range(2):
            r = OV_XF + 4 * ks + 2 * hh
            A(f"ds_read_b64_tr_b16 v[{r}:{r+1}], v{OV_XR} offset:{ks*1024+hh*128}")
    def S(qt, T): return OV_S + 12 * qt + 4 * T
    def q(qt, ks): return vr(OV_Q + 4 * (4 * qt + ks), 4)
    def k(T, ks): return vr(OV_K + 4 * (4 * T + ks), 4)
    tiles = [(0, 1), (1, 1), (1, 2), (0, 0), (1, 0)]
    for (qt, T) in tiles:
        for ks in range(4):
            a_ = vr(OV_XF + 4 * ks, 4) if T == 0 else k(T - 1, ks)
            d = vr(S(qt, T), 4)
            A(f"v_mfma_f32_16x16x32_bf16 {d}, {a_}, {q(qt, ks)}, {'0' if ks == 0 else d}")
    NEG = OV_T + 2
    A(f"v_mov_b32 v{NEG}, 0xff800000")
    for (qt, T) in ((0, 1), (1, 2)):
        for r in range(4):
            A(f"v_cndmask_b32 v{S(qt,T)+r}, v{S(qt,T)+r}, v{NEG}, s[{O_MSK+2*r}:{O_MSK+2*r+1}]")
    for qt in range(2):
        vals = [S(qt, 0) + 2, S(qt, 0) + 3] + [S(qt, 1) + r for r in range(4)] + ([S(qt, 2) + r for r in range(4)] if qt == 1 else [])
        Mx = OV_T + 4; Tt = OV_T + 5
        A(f"v_max3_f32 v{Mx}, v{vals[0]}, v{vals[1]}, v{vals[2]}")
        i = 3
        while i + 1 < len(vals):
            A(f"v_max3_f32 v{Mx}, v{Mx}, v{vals[i]}, v{vals[i+1]}"); i += 2
        if i < len(vals): A(f"v_max_f32 v{Mx}, v{Mx}, v{vals[i]}")
        A(f"v_mov_b32 v{Tt}, v{Mx}")
        A(f"v_permlane16_swap_b32 v{Mx}, v{Tt}")
        A(f"v_max_f32 v{Mx}, v{Mx}, v{Tt}")
        A(f"v_mov_b32 v{Tt}, v{Mx}")
        A(f"v_permlane32_swap_b32 v{Mx}, v{Tt}")
        A(f"v_max_f32 v{Mx}, v{Mx}, v{Tt}")
        A(f"v_mul_f32 v{Mx}, s{O_C}, v{Mx}")
        for r in vals: A(f"v_fma_f32 v{r}, v{r}, s{O_C}, -v{Mx}")
        for r in vals: A(f"v_exp_f32 v{r}, v{r}")
        P12 = OV_P + 4 * qt; P0a = OV_P + 8 + 4 * qt; P0b = P0a + 2
        A(f"v_cvt_pk_bf16_f32 v{P12}, v{S(qt,1)}, v{S(qt,1)+1}")
        A(f"v_cvt_pk_bf16_f32 v{P12+1}, v{S(qt,1)+2}, v{S(qt,1)+3}")
        if qt == 1:
            A(f"v_cvt_pk_bf16_f32 v{P12+2}, v{S(qt,2)}, v{S(qt,2)+1}")
            A(f"v_cvt_pk_bf16_f32 v{P12+3}, v{S(qt,2)+2}, v{S(qt,2)+3}")
        else:
            A(f"v_mov_b32 v{P12+2}, 0"); A(f"v_mov_b32 v{P12+3}, 0")
        A(f"v_cvt_pk_bf16_f32 v{P0a}, v{S(qt,0)+2}, v{S(qt,0)+3}")
        A(f"v_mov_b32 v{P0a+1}, 0")
        A(f"v_mov_b32 v{P0b}, 0")
        A(f"v_mov_b32 v{P0b+1}, v{P0a}")
    for qt in range(2):
        P12 = OV_P + 4 * qt; P0a = OV_P + 8 + 4 * qt; P0b = P0a + 2
        ld = vr(OV_LD + 4 * qt, 4)
        A(f"v_mfma_f32_16x16x32_bf16 {ld}, {vr(OV_ON,4)}, {vr(P12,4)}, 0")
        for t in range(8):
            o = ar(OA_O + 32 * qt + 4 * t, 4)
            A(f"v_mfma_f32_16x16x32_bf16 {o}, {vr(OV_V+4*t,4)}, {vr(P12,4)}, 0")
        A(f"v_mfma_f32_16x16x16_bf16 {ld}, {vr(OV_ON,2)}, {vr(P0a,2)}, {ld}")
        for t in range(8):
            o = ar(OA_O + 32 * qt + 4 * t, 4)
            wp = t >> 1
            A(f"v_mfma_f32_16x16x16_bf16 {o}, {vr(OV_KV+4*wp+2,2)}, {vr(P0a if (t & 1) == 0 else P0b,2)}, {o}")
    A("s_barrier")
    for qt in range(2):
        Ls = OV_T + 4
        A(f"v_rcp_f32 v{Ls}, v{OV_LD+4*qt}")
        for t in range(8):
            X = OV_T + 6
            for r in range(4): A(f"v_accvgpr_read_b32 v{22+r}, a{OA_O+32*qt+4*t+r}")
            for r in range(4): A(f"v_mul_f32 v{22+r}, v{22+r}, v{Ls}")
            A(f"v_cvt_pk_bf16_f32 v{26}, v22, v23")
            A(f"v_cvt_pk_bf16_f32 v{27}, v24, v25")
            A(f"v_xor_b32 v{t0}, {2*t*16}, v20")
            A(f"v_add_u32 v{t0}, v{t0}, v{OV_AW}")
            A(f"ds_write_b64 v{t0}, v[26:27] offset:{qt*16*1024}")
    A.wait(lg=0)
    A("s_barrier")
    for i in range(16): A(f"v_accvgpr_write_b32 a{OA_OUT+i}, 0")
    AD = [28, 29, 30, 31]
    for kk in range(4):
        A(f"v_xor_b32 v{AD[kk]}, {4*kk*16}, v21")
        A(f"v_add_u32 v{AD[kk]}, v{AD[kk]}, v{OV_AR}")
    steps = [(ks, mt) for ks in range(16) for mt in range(2)]
    def aload(n):
        ks, mt = steps[n]; r = OV_AF + 4 * (n & 7)
        return f"ds_read_b128 v[{r}:{r+3}], v{AD[ks & 3]} offset:{mt*16*1024 + (ks >> 2)*256}"
    for n in range(6): A(aload(n))
    for n, (ks, mt) in enumerate(steps):
        r = OV_AF + 4 * (n & 7)
        for ct in range(2):
            acc = ar(OA_OUT + 4 * (2 * mt + ct), 4)
            wo = ar(OA_WO + (ct * 16 + ks) * 4, 4)
            A(f"v_mfma_f32_16x16x32_bf16 {acc}, {wo}, {vr(r,4)}, {acc}")
        if n + 6 < len(steps): A(aload(n + 6))
    A(f"s_lshl_b32 s{O_T0}, s{O_SEG}, 2")
    A(f"s_add_u32 s{O_T0}, s{O_T0}, s{O_NC}")
    A(f"s_lshl_b32 s{O_T0}, s{O_T0}, 3")
    A(f"s_add_u32 s{O_T0}, s{O_T0}, s{O_KC}")
    A(f"s_lshl_b32 s{O_T0}, s{O_T0}, 14")
    A(f"s_add_u32 s{O_T0}, s{O_T0}, {WS_PART}")
    A(f"s_add_u32 s{O_T1}, s{O_T0}, {16*512}")
    for mt in range(2):
        for ct in range(2):
            R = 22 + 4 * ((2 * mt + ct) & 1)
            for r in range(4): A(f"v_accvgpr_read_b32 v{R+r}, a{OA_OUT+4*(2*mt+ct)+r}")
            A(f"buffer_store_dwordx4 v[{R}:{R+3}], v{OV_PS}, {WS}, s{O_T0 if mt == 0 else O_T1} offen offset:{ct*64}{sc}")
```

```python
from asmlib import *
from layout import *
import math, struct

L_WL   = 0
L_MEMB = 131072
L_KXB  = L_MEMB + 8192
L_X    = L_MEMB + 24576
L_OB   = L_X + 4096
L_CA   = L_OB + 2048
L_DUM  = L_CA + 1024
LDS_TOTAL = 163840
PSLOT = 262144

S_WS = 4; S_W = 8; S_DBG = 12
S_PW = 16
S_H = 26; S_WV = 27; S_STEP = 28; S_T0 = 29; S_T1 = 30; S_T2 = 31
S_C = 32
S_PAR = 34
S_PST0 = 35; S_PST1 = 36; S_PLD = 37; S_POI = 38; S_MSL = 39; S_MPO = 40
S_KXA = 41; S_KXB = 42; S_M0A = 43; S_M0B = 44; S_VT = 45; S_KM = 46; S_VM = 47
S_TO = 48
S_R0 = 8; S_R1 = 9; S_R2 = 10
S_EX = 50
S_TM = 52
S_TACC = 54
S_STAMP = 72

V_IDX, V_WL0, V_WL1, V_MEM, V_XW, V_XR, V_OW, V_PS, V_PL, V_MS, V_MW, V_KXG, V_VVT, V_KMS, V_VMS = range(1, 16)
V_T = 16
V_MK = 20
V_SB = 52
V_AQ = 68; V_AK = 76; V_AV = 84
V_XF = 92
V_S = 108
V_VX = 120

def wreg(X, c, f):
    idx = X * 12 + c * 4 + f
    return ar(8 * idx, 8) if idx < 32 else vr(128 + 8 * (idx - 32), 8)
def wreg_part(X, c, f, p):
    idx = X * 12 + c * 4 + f
    return ar(8 * idx + 2 * p, 2) if idx < 32 else vr(128 + 8 * (idx - 32) + 2 * p, 2)

def srd(A, s, ptr, size):
    A(f"s_mov_b32 s{s}, s{ptr}")
    A(f"s_and_b32 s{s+1}, s{ptr+1}, 0xffff")
    A(f"s_mov_b32 s{s+2}, {size}")
    A(f"s_mov_b32 s{s+3}, 0x20000")

WSR = f"s[{S_WS}:{S_WS+3}]"

def poll_with_shadow(A, poll, name, regs, loadfn, pre_ok, shadow):
    orig = A.wait
    state = {'done': False}
    def w(vm=None, lg=None):
        if not state['done']:
            state['done'] = True
            shadow()
        orig(vm, lg)
    A.wait = w
    try:
        poll(name, regs, loadfn, pre_ok)
    finally:
        A.wait = orig

def emit_chain(A, timing=False, nsteps=64, opt=(), d1=0, d2=0, hodelay=8, kxpos=(14, 22), g1=12, g2=12, dstamp=None):
    extra_delay = ["s_nop 0"] * d1
    extra_delay2 = ["s_nop 0"] * d2
    lane = 17; t0 = 18; t1 = 19
    def pst(k):
        if 'pro' in opt: A.raw(f"    s_memrealtime s[{72+2*k}:{73+2*k}]")
    pst(1)
    A(f"v_and_b32 v{lane}, 63, v0")
    DQ = V_MK
    DO = V_MK + 2
    TRA = V_MK + 6
    TRO = V_MK + 8
    TMP = V_SB
    a = V_MK + 12; b = V_MK + 13; c_ = V_MK + 14; d_ = V_MK + 15
    A(f"v_lshrrev_b32 v{a}, 4, v{lane}")
    A(f"v_bfe_u32 v{b}, v{lane}, 1, 3")
    A(f"v_xor_b32 v{c_}, v{b}, v{a}")
    A(f"v_and_b32 v{d_}, 1, v{lane}")
    A(f"v_lshl_or_b32 v{c_}, v{c_}, 1, v{d_}")
    A(f"v_lshlrev_b32 v{c_}, 4, v{c_}")
    A(f"v_lshl_or_b32 v{DQ}, v{a}, 13, v{c_}")
    A(f"v_xor_b32 v{DQ+1}, 128, v{DQ}")
    A(f"v_and_b32 v{c_}, 1, v{a}")
    A(f"v_xor_b32 v{c_}, v{b}, v{c_}")
    A(f"v_lshl_or_b32 v{c_}, v{c_}, 1, v{d_}")
    A(f"v_lshrrev_b32 v{b}, 2, v{c_}")
    A(f"v_lshlrev_b32 v{b}, 8, v{b}")
    A(f"v_and_b32 v{c_}, 3, v{c_}")
    A(f"v_lshl_or_b32 v{b}, v{c_}, 5, v{b}")
    A(f"v_lshl_or_b32 v{DO}, v{a}, 10, v{b}")
    A(f"v_xor_b32 v{DO+1}, 256, v{DO}")
    A(f"v_xor_b32 v{DO+2}, 512, v{DO}")
    A(f"v_xor_b32 v{DO+3}, 768, v{DO}")
    A(f"v_bfe_u32 v{b}, v{lane}, 4, 1")
    A(f"v_bfe_u32 v{c_}, v{lane}, 3, 1")
    A(f"v_lshl_or_b32 v{b}, v{c_}, 1, v{b}")
    A(f"v_bfe_u32 v{c_}, v{lane}, 2, 1")
    A(f"v_lshl_or_b32 v{b}, v{c_}, 2, v{b}")
    A(f"v_bfe_u32 v{c_}, v{lane}, 5, 1")
    A(f"v_lshl_or_b32 v{c_}, v{c_}, 4, v{b}")
    A(f"v_lshlrev_b32 v{c_}, 8, v{c_}")
    A(f"v_and_b32 v{d_}, 3, v{lane}")
    A(f"v_lshl_or_b32 v{c_}, v{d_}, 3, v{c_}")
    A(f"s_lshl_b32 s{S_T0}, s{S_WV}, 1")
    A(f"v_xor_b32 v{b}, s{S_T0}, v{b}")
    A(f"v_lshl_or_b32 v{TRA}, v{b}, 5, v{c_}")
    A(f"v_xor_b32 v{TRA+1}, 32, v{TRA}")
    A(f"v_bfe_u32 v{b}, v{lane}, 5, 1")
    A(f"v_lshlrev_b32 v{b}, 4, v{b}")
    A(f"v_bfe_u32 v{c_}, v{lane}, 4, 1")
    A(f"v_lshl_or_b32 v{b}, v{c_}, 2, v{b}")
    A(f"v_lshlrev_b32 v{t0}, 1, v{c_}")
    A(f"v_bfe_u32 v{c_}, v{lane}, 2, 1")
    A(f"v_or_b32 v{b}, v{b}, v{c_}")
    A(f"v_or_b32 v{t0}, v{t0}, v{c_}")
    A(f"v_bfe_u32 v{c_}, v{lane}, 3, 1")
    A(f"v_lshl_or_b32 v{b}, v{c_}, 3, v{b}")
    A(f"v_lshl_or_b32 v{t0}, v{c_}, 2, v{t0}")
    A(f"v_lshlrev_b32 v{b}, 8, v{b}")
    A(f"v_and_b32 v{c_}, 1, v{lane}")
    A(f"v_lshl_or_b32 v{b}, v{c_}, 4, v{b}")
    A(f"v_bfe_u32 v{c_}, v{lane}, 1, 1")
    A(f"v_or_b32 v{c_}, s{S_T0}, v{c_}")
    A(f"v_xor_b32 v{c_}, v{c_}, v{t0}")
    A(f"v_lshl_or_b32 v{TRO}, v{c_}, 5, v{b}")
    A(f"v_add_u32 v{TRO+1}, 8, v{TRO}")

    P = V_XF
    for i in range(4): A(f"v_mov_b32 v{P+i}, -1")
    A(f"v_lshlrev_b32 v{t0}, 4, v0")
    A(f"s_lshl_b32 s{S_T0}, s{S_H}, 13")
    A(f"s_add_u32 s{S_T0}, s{S_T0}, {WS_PBUF}")
    for slot in range(3):
        for i in range(2):
            A(f"s_add_u32 s{S_T1}, s{S_T0}, {slot*PSLOT + i*4096}")
            A(f"buffer_store_dwordx4 v[{P}:{P+3}], v{t0}, {WSR}, s{S_T1} offen")
    A(f"v_cmp_gt_u32 vcc, 16, v0")
    A(f"s_and_saveexec_b64 s[{S_EX}:{S_EX+1}], vcc")
    A(f"s_cbranch_execz L_nomp")
    A(f"s_lshl_b32 s{S_T0}, s{S_H}, 8")
    A(f"s_add_u32 s{S_T0}, s{S_T0}, {WS_MBUF}")
    for sl in (1, 2):
        for cp in range(4):
            A(f"s_add_u32 s{S_T1}, s{S_T0}, {sl*32768 + cp*8192}")
            A(f"buffer_store_dwordx4 v[{P}:{P+3}], v{t0}, {WSR}, s{S_T1} offen")
    A.label("L_nomp")
    A(f"s_mov_b64 exec, s[{S_EX}:{S_EX+1}]")
    A.vm = []

    order = [(X, c) for X in range(4) for c in range(3)] + [(X, 3) for X in range(4)]
    slot_of = {}
    for i, (X, c) in enumerate(order[:12]): slot_of[(X, c)] = i % 5
    for X in range(4): slot_of[(X, 3)] = X
    def issue(X, c):
        srd(A, S_W, S_PW + 2 * X, 4194304)
        slot = slot_of[(X, c)]
        if X < 3:
            A(f"s_lshl_b32 s{S_T0}, s{S_WV}, 18")
            A(f"s_lshl_b32 s{S_T1}, s{S_H}, 8")
            A(f"s_add_u32 s{S_T0}, s{S_T0}, s{S_T1}")
            A(f"s_add_u32 s{S_T0}, s{S_T0}, {128*c*8192}")
            step = 4 * 8192
        else:
            A(f"s_lshl_b32 s{S_T0}, s{S_WV}, 15")
            A(f"s_lshl_b32 s{S_T1}, s{S_H}, 17")
            A(f"s_add_u32 s{S_T0}, s{S_T0}, s{S_T1}")
            A(f"s_add_u32 s{S_T0}, s{S_T0}, {(c >> 1) * 128 + (c & 1) * 16}")
            step = 4 * 1024
        A(f"s_lshl_b32 s{S_T1}, s{S_WV}, 13")
        A(f"s_add_u32 s{S_T1}, s{S_T1}, {slot*32768}")
        for i in range(8):
            D = DQ + (i & 1) if X < 3 else DO + (i & 3)
            A(f"s_mov_b32 m0, s{S_T1}")
            A(f"buffer_load_dwordx4 v{D}, s[{S_W}:{S_W+3}], s{S_T0} offen lds")
            if i < 7:
                A(f"s_add_u32 s{S_T0}, s{S_T0}, {step}")
                A(f"s_add_u32 s{S_T1}, s{S_T1}, 1024")
    pst(2)
    issued = []
    for k in range(5):
        issue(*order[k]); issued.append(order[k])
    follow = {0: order[5], 1: order[6], 2: order[7], 3: order[8], 4: order[9], 5: order[10], 6: order[11],
              7: (2, 3), 8: (3, 3), 10: (0, 3), 11: (1, 3)}
    def trreads(X, slot, f, dst_fn):
        t = f & 1; ksp = f >> 1
        base = slot * 32768
        TR = TRA if X < 3 else TRO
        breg = TR + t
        if base >= 32768:
            A(f"v_add_u32 v{t1}, {base}, v{TR+t}")
            breg = t1
        for tp in range(4):
            if X < 3: imm = (64 * ksp + 32 * (tp >> 1) + 8 * (tp & 1)) * 256
            else: imm = (64 * ksp + 32 * (tp >> 1) + 2 * (tp & 1)) * 256
            A(f"ds_read_b64_tr_b16 {dst_fn(tp)}, v{breg} offset:{imm}")
    def consume_wait(ch):
        pos = issued.index(ch)
        n_after = len(issued) - 1 - pos
        A.wait(vm=8 * n_after)
        A("s_barrier")
    for i, (X, c) in enumerate(order[:12]):
        consume_wait((X, c))
        if i == 0: pst(3)
        if i == 4: pst(4)
        if i == 8: pst(5)
        for f in range(4):
            trreads(X, slot_of[(X, c)], f, lambda tp: wreg_part(X, c, f, tp))
        A.wait(lg=0)
        A("s_barrier")
        if i in follow:
            issue(*follow[i]); issued.append(follow[i])
    pst(6)
    def S(x): A(x)
    S(f"v_bfe_u32 v{t0}, v{lane}, 1, 1")
    S(f"v_mov_b32 v{V_IDX}, 0x4444")
    S(f"v_mov_b32 v{t1}, 0xeeee")
    S(f"v_cmp_ne_u32 vcc, 0, v{t0}")
    S(f"v_cndmask_b32 v{V_IDX}, v{V_IDX}, v{t1}, vcc")
    S(f"s_lshl_b32 s{S_T0}, s{S_WV}, 13")
    S(f"v_lshlrev_b32 v{t0}, 4, v{lane}")
    S(f"v_add_u32 v{V_WL0}, s{S_T0}, v{t0}")
    S(f"v_add_u32 v{V_WL1}, 0x10000, v{V_WL0}")
    S(f"v_add_u32 v{V_MEM}, {L_MEMB}, v{t0}")
    S(f"s_lshl_b32 s{S_T0}, s{S_WV}, 11")
    S(f"v_add_u32 v{V_MW}, s{S_T0}, v{V_MEM}")
    S(f"s_lshl_b32 s{S_T1}, s{S_H}, 13")
    S(f"s_add_u32 s{S_T0}, s{S_T0}, s{S_T1}")
    S(f"v_add_u32 v{V_PL}, s{S_T0}, v{t0}")
    S(f"v_and_b32 v{t0}, 15, v{lane}")
    S(f"v_lshlrev_b32 v{t0}, 5, v{t0}")
    S(f"v_lshrrev_b32 v{t1}, 4, v{lane}")
    S(f"v_lshl_or_b32 v{t0}, v{t1}, 3, v{t0}")
    S(f"v_bfe_u32 v{t1}, v{lane}, 3, 1")
    S(f"v_lshlrev_b32 v{t1}, 7, v{t1}")
    S(f"v_xor_b32 v{t0}, v{t0}, v{t1}")
    S(f"s_lshl_b32 s{S_T0}, s{S_WV}, 10")
    S(f"s_add_u32 s{S_T0}, s{S_T0}, {L_X}")
    S(f"v_add_u32 v{V_XW}, s{S_T0}, v{t0}")
    S(f"v_lshrrev_b32 v{t0}, 4, v{lane}")
    S(f"v_lshlrev_b32 v{t0}, 3, v{t0}")
    S(f"v_bfe_u32 v{t1}, v{lane}, 2, 2")
    S(f"v_or_b32 v{t0}, v{t0}, v{t1}")
    S(f"v_lshlrev_b32 v{t0}, 5, v{t0}")
    S(f"v_and_b32 v{t1}, 3, v{lane}")
    S(f"v_lshl_or_b32 v{t0}, v{t1}, 3, v{t0}")
    S(f"v_bfe_u32 v{t1}, v{lane}, 4, 1")
    S(f"v_lshlrev_b32 v{t1}, 7, v{t1}")
    S(f"v_xor_b32 v{t0}, v{t0}, v{t1}")
    S(f"v_add_u32 v{V_XR}, {L_X}, v{t0}")
    S(f"v_xor_b32 v{V_KMS}, 128, v{t0}")
    S(f"v_add_u32 v{V_KMS}, {L_X}, v{V_KMS}")
    S(f"v_and_b32 v{t0}, 13, v{lane}")
    S(f"v_bfe_u32 v{t1}, v{lane}, 5, 1")
    S(f"v_lshl_or_b32 v{t0}, v{t1}, 1, v{t0}")
    S(f"v_lshlrev_b32 v{t0}, 4, v{t0}")
    S(f"v_bfe_u32 v{t1}, v{lane}, 4, 1")
    S(f"v_lshl_or_b32 v{t0}, v{t1}, 3, v{t0}")
    S(f"s_lshl_b32 s{S_T0}, s{S_WV}, 9")
    S(f"s_add_u32 s{S_T0}, s{S_T0}, {L_OB}")
    S(f"v_add_u32 v{V_OW}, s{S_T0}, v{t0}")
    S(f"v_mov_b32 v{t0}, {L_DUM}")
    S(f"v_and_b32 v{t1}, 2, v{lane}")
    S(f"v_cmp_ne_u32 vcc, 0, v{t1}")
    S(f"v_cndmask_b32 v{V_OW}, v{V_OW}, v{t0}, vcc")
    S(f"v_bfe_u32 v{t0}, v{lane}, 2, 2")
    S(f"v_lshlrev_b32 v{t0}, 13, v{t0}")
    S(f"v_lshrrev_b32 v{t1}, 4, v{lane}")
    S(f"v_lshl_or_b32 v{t0}, v{t1}, 11, v{t0}")
    S(f"v_and_b32 v{t1}, 3, v{lane}")
    S(f"v_lshl_or_b32 v{t0}, v{t1}, 4, v{t0}")
    S(f"s_lshl_b32 s{S_T0}, s{S_H}, 6")
    S(f"v_add_u32 v{V_PS}, s{S_T0}, v{t0}")
    S(f"v_bfe_u32 v{t0}, v{lane}, 1, 1")
    S(f"v_lshlrev_b32 v{t0}, 1, v{t0}")
    S(f"v_lshrrev_b32 v{t1}, 4, v{lane}")
    S(f"v_add_u32 v{t0}, v{t0}, v{t1}")
    S(f"v_lshlrev_b32 v{t0}, 4, v{t0}")
    S(f"v_and_b32 v{t1}, 1, v{lane}")
    S(f"v_lshl_or_b32 v{t0}, v{t1}, 3, v{t0}")
    S(f"s_lshl_b32 s{S_T0}, s{S_H}, 8")
    S(f"s_lshl_b32 s{S_T1}, s{S_WV}, 6")
    S(f"s_add_u32 s{S_T0}, s{S_T0}, s{S_T1}")
    S(f"v_bfe_u32 v{t1}, v{lane}, 2, 2")
    S(f"v_lshl_or_b32 v{t0}, v{t1}, 13, v{t0}")
    S(f"v_add_u32 v{V_MS}, s{S_T0}, v{t0}")
    S(f"v_and_b32 v{t0}, 15, v{lane}")
    S(f"v_lshlrev_b32 v{t0}, 13, v{t0}")
    S(f"v_lshrrev_b32 v{t1}, 4, v{lane}")
    S(f"v_lshl_or_b32 v{t0}, v{t1}, 4, v{t0}")
    S(f"s_lshl_b32 s{S_T0}, s{S_H}, 8")
    S(f"s_lshr_b32 s{S_T1}, s{S_WV}, 1")
    S(f"s_lshl_b32 s{S_T1}, s{S_T1}, 17")
    S(f"s_add_u32 s{S_T0}, s{S_T0}, s{S_T1}")
    S(f"s_and_b32 s{S_T1}, s{S_WV}, 1")
    S(f"s_lshl_b32 s{S_T1}, s{S_T1}, 7")
    S(f"s_add_u32 s{S_T0}, s{S_T0}, s{S_T1}")
    S(f"v_add_u32 v{V_KXG}, s{S_T0}, v{t0}")
    S(f"v_and_b32 v{t0}, 15, v{lane}")
    S(f"v_lshlrev_b32 v{t0}, 6, v{t0}")
    S(f"v_lshrrev_b32 v{t1}, 4, v{lane}")
    S(f"v_lshl_or_b32 v{t0}, v{t1}, 4, v{t0}")
    S(f"s_lshl_b32 s{S_T0}, s{S_H}, 13")
    S(f"s_lshl_b32 s{S_T1}, s{S_WV}, 11")
    S(f"s_add_u32 s{S_T0}, s{S_T0}, s{S_T1}")
    S(f"v_add_u32 v{V_VVT}, s{S_T0}, v{t0}")
    S(f"v_lshlrev_b32 v{t0}, 4, v{lane}")
    S(f"s_lshl_b32 s{S_T0}, s{S_H}, 12")
    S(f"s_lshl_b32 s{S_T1}, s{S_WV}, 10")
    S(f"s_add_u32 s{S_T0}, s{S_T0}, s{S_T1}")
    S(f"v_add_u32 v{V_VMS}, s{S_T0}, v{t0}")
    c = (128 ** -0.5) * math.log2(math.e)
    cbits = hex(struct.unpack('<I', struct.pack('<f', c))[0])
    S(f"s_mov_b32 s{S_C}, {cbits}")
    S(f"s_mov_b32 s{S_C+1}, {cbits}")

    srd(A, S_W, S_PW + 8, 8192)
    A(f"v_lshrrev_b32 v{t0}, 4, v{lane}")
    A(f"v_and_b32 v{t0}, 1, v{t0}")
    A(f"v_lshlrev_b32 v{t0}, 10, v{t0}")
    A(f"v_and_b32 v{t1}, 3, v{lane}")
    A(f"v_lshl_or_b32 v{t0}, v{t1}, 1, v{t0}")
    A(f"s_lshl_b32 s{S_T0}, s{S_WV}, 11")
    A(f"s_lshl_b32 s{S_T1}, s{S_H}, 5")
    A(f"s_add_u32 s{S_T0}, s{S_T0}, s{S_T1}")
    M0R = V_AQ
    MT = V_SB
    for j in range(4):
        A(f"buffer_load_ushort v{MT+j}, v{t0}, s[{S_W}:{S_W+3}], s{S_T0} offen offset:{8*j}")
    A(f"v_lshl_or_b32 v{M0R}, v{MT+1}, 16, v{MT}")
    A(f"v_lshl_or_b32 v{M0R+1}, v{MT+3}, 16, v{MT+2}")
    A(f"s_mov_b32 s{S_T0}, {WS_MBUF}")
    A(f"s_mov_b64 exec, 0xffffffff")
    A(f"buffer_store_dwordx2 v[{M0R}:{M0R+1}], v{V_MS}, {WSR}, s{S_T0} offen")
    A(f"s_mov_b64 exec, -1")
    CA = V_AK
    A(f"v_and_b32 v{a}, 15, v{lane}")
    A(f"v_mov_b32 v{b}, 0x3f80")
    A(f"v_mov_b32 v{c_}, 0x3f800000")
    A(f"v_cmp_gt_u32 vcc, 4, v{a}")
    A(f"v_cndmask_b32 v{b}, v{c_}, v{b}, vcc")
    A(f"v_cmp_gt_u32 vcc, 8, v{a}")
    A(f"v_cndmask_b32 v{b}, 0, v{b}, vcc")
    A(f"v_and_b32 v{a}, 3, v{a}")
    for i in range(4):
        A(f"v_cmp_eq_u32 vcc, {i}, v{a}")
        A(f"v_cndmask_b32 v{CA+i}, 0, v{b}, vcc")
    A(f"s_lshl_b32 s{S_M0A}, s{S_WV}, 11")
    A(f"s_add_u32 s{S_M0A}, s{S_M0A}, {L_KXB}")
    A(f"s_mov_b32 s{S_KXA}, {WS_KX}")
    def kx0():
        A(f"s_mov_b32 m0, s{S_M0A}")
        A(f"buffer_load_dwordx4 v{V_KXG}, {WSR}, s{S_KXA} offen sc1 lds")
        A(f"s_add_u32 s{S_T0}, s{S_M0A}, 1024")
        A(f"s_add_u32 s{S_T1}, s{S_KXA}, 64")
        A(f"s_mov_b32 m0, s{S_T0}")
        A(f"buffer_load_dwordx4 v{V_KXG}, {WSR}, s{S_T1} offen sc1 lds")
    if 'merged' not in opt: kx0()
    A.wait(vm=0)
    A.vm = []
    A(f"ds_write_b128 v{V_MEM}, v[{CA}:{CA+3}] offset:{L_CA-L_MEMB}")
    A.wait(lg=0)
    A("s_barrier")
    pst(7)
    for X in range(4):
        for f in range(4):
            trreads(X, X, f, lambda tp: vr(TMP + 8 * f + 2 * tp, 2))
        A.wait(lg=0)
        A("s_barrier")
        base = V_WL0 if X < 2 else V_WL1
        for f in range(4):
            for hh in range(2):
                A(f"ds_write_b128 v{base}, v[{TMP+8*f+4*hh}:{TMP+8*f+4*hh+3}] offset:{(X&1)*32768 + f*2048 + hh*1024}")
        A.wait(lg=0)
    A("s_barrier")
    pst(8)
    if 'diag' in opt: dstamp(A, 5, True)
    A(f"s_cmp_lg_u32 s{S_WV}, 0")
    A(f"s_cbranch_scc1 L_rdy_skip")
    A(f"v_mov_b32 v{t0}, 36")
    A(f"v_mov_b32 v{t1}, 1")
    A(f"s_mov_b64 exec, 1")
    A(f"buffer_atomic_add v{t1}, v{t0}, s[{S_DBG}:{S_DBG+3}], 0 offen")
    A(f"s_mov_b64 exec, -1")
    A.label("L_rdy_skip")
    A(f"s_mov_b32 s{S_TO}, 0")
    A(f"v_mov_b32 v{t0}, 36")
    A.label("L_rdy_poll")
    A(f"buffer_load_dword v{t1}, v{t0}, s[{S_DBG}:{S_DBG+3}], 0 offen sc1")
    A(f"s_add_u32 s{S_TO}, s{S_TO}, 1")
    A(f"s_cmp_gt_u32 s{S_TO}, 0x40000")
    A(f"s_cbranch_scc1 L_bail")
    A.wait(vm=0)
    A(f"v_cmp_gt_u32 vcc, 32, v{t1}")
    A(f"s_cbranch_vccnz L_rdy_poll")
    A.forget()
    if 'merged' in opt:
        A(f"s_mov_b32 s{S_TO}, 0")
        A.label("L_ci_poll")
        A(f"buffer_load_dword v{t1}, off, s[{S_DBG}:{S_DBG+3}], 0 offset:{D_INIT} sc1")
        A(f"s_add_u32 s{S_TO}, s{S_TO}, 1")
        A(f"s_cmp_gt_u32 s{S_TO}, 0x100000")
        A(f"s_cbranch_scc1 L_bail")
        A.wait(vm=0)
        A(f"v_cmp_eq_u32 vcc, 0, v{t1}")
        A(f"s_cbranch_vccnz L_ci_poll")
        A.forget()
        A(f"s_mov_b32 s{S_T0}, {F_KV}")
        A.label("L_ck_poll")
        A(f"buffer_load_dword v{t1}, off, {WSR}, s{S_T0} sc1")
        A(f"s_add_u32 s{S_TO}, s{S_TO}, 1")
        A(f"s_cmp_gt_u32 s{S_TO}, 0x100000")
        A(f"s_cbranch_scc1 L_bail")
        A.wait(vm=0)
        A(f"v_cmp_gt_u32 vcc, 32, v{t1}")
        A(f"s_cbranch_vccnz L_ck_poll")
        A.forget()
        kx0()
        A.wait(vm=0)
        A("s_barrier")


    pst(9)
    if 'pro' in opt:
        A.raw("    s_waitcnt lgkmcnt(0)")
        A(f"s_lshl_b32 s{S_T0}, s{S_H}, 2")
        A(f"s_add_u32 s{S_T0}, s{S_T0}, s{S_WV}")
        A(f"s_lshl_b32 s{S_T0}, s{S_T0}, 7")
        A(f"s_add_u32 s{S_T0}, s{S_T0}, {WS_TIME}")
        A(f"s_mov_b64 exec, 1")
        for k in range(10):
            A(f"v_mov_b32 v{V_T+1}, s{72+2*k}")
            A(f"v_mov_b32 v{V_T}, {4*k}")
            A(f"buffer_store_dword v{V_T+1}, v{V_T}, {WSR}, s{S_T0} offen")
        A(f"s_mov_b64 exec, -1")
        A.wait(vm=0)
    S_MA = 16; S_MB = 18; S_MT = 20
    S_PUB = 22; S_MPZ = 23; S_KEEP = 24; S_B0 = 11; S_B1 = 25; S_B2 = 49; S_HC = 46
    A(f"s_mov_b32 s{S_STEP}, 0")
    A(f"s_mov_b32 s{S_PAR}, 0")
    A(f"s_mov_b32 s{S_VT}, {WS_VT - 32*8192}")
    A(f"s_and_b32 s{S_HC}, s{S_H}, 3")
    A(f"s_lshl_b32 s{S_HC}, s{S_HC}, 13")
    A(f"s_sub_u32 s{S_HC}, s{S_HC}, {L_MEMB}")
    A(f"s_mov_b32 s{S_B0}, {WS_MBUF}")
    A(f"s_mov_b32 s{S_B1}, {WS_MBUF + 32768}")
    A(f"s_mov_b32 s{S_B2}, {WS_MBUF + 65536}")
    A(f"s_mov_b32 s{S_VM}, {WS_KVM}")
    S_FLG = 53; S_FOFF = 52; S_POFF = 54
    if 'merged' in opt:
        A(f"s_mov_b32 s{S_FOFF}, {F_KV}")
        A(f"s_lshl_b32 s{S_POFF}, s{S_H}, 7")
        A(f"s_add_u32 s{S_POFF}, s{S_POFF}, {F_PROG}")
    A(f"s_mov_b32 s{S_EX+1}, {WS_KVM + 64*32*4096}")
    A(f"s_mov_b32 s{S_R0}, {WS_PBUF}")
    A(f"s_mov_b32 s{S_R1}, {WS_PBUF + PSLOT}")
    A(f"s_mov_b32 s{S_R2}, {WS_PBUF + 2*PSLOT}")
    def zero(r, n): return [f"v_mov_b64 v[{r+i}:{r+i+1}], 0" for i in range(0, n, 2)]
    def step_scalars():
        o = []
        o.append(f"s_mov_b32 s{S_PLD}, s{S_R0}")
        o.append(f"s_mov_b32 s{S_POI}, s{S_R2}")
        o.append(f"s_lshl_b32 s{S_T1}, s{S_WV}, 16")
        o.append(f"s_add_u32 s{S_PST0}, s{S_PLD}, s{S_T1}")
        o.append(f"s_add_u32 s{S_PST1}, s{S_PST0}, 32768")
        o.append(f"s_add_u32 s{S_MSL}, s{S_B0}, s{S_HC}")
        o.append(f"s_add_u32 s{S_MPO}, s{S_MSL}, 1024")
        o.append(f"s_add_u32 s{S_VT}, s{S_VT}, {32*8192}")
        o.append(f"s_add_u32 s{S_KXA}, s{S_KXA}, {32*8192}")
        o.append(f"s_add_u32 s{S_KXB}, s{S_KXA}, 64")
        o.append(f"s_xor_b32 s{S_M0A}, s{S_M0A}, {L_KXB ^ (L_KXB + 8192)}")
        o.append(f"s_add_u32 s{S_M0B}, s{S_M0A}, 1024")
        o.append(f"v_add_u32 v0, s{S_PAR}, v{V_MEM}")
        return o
    for x in zero(V_AQ, 24): A(x)
    for x in step_scalars(): A(x)
    A(f"buffer_load_dwordx4 v[{V_S+4}:{V_S+7}], v{V_MW}, {WSR}, s{S_MSL} offen sc1")
    A(f"buffer_load_dwordx4 v[{V_S+8}:{V_S+11}], v{V_MW}, {WSR}, s{S_MPO} offen sc1")
    A(f"ds_write_b128 v{V_MW}, v[{V_S+4}:{V_S+7}]")
    A(f"ds_write_b128 v{V_MW}, v[{V_S+8}:{V_S+11}] offset:1024")
    A.wait(lg=0)
    A("s_barrier")
    def sbload(buf, X, f):
        base = V_WL0 if X < 2 else V_WL1
        r = V_SB + 8 * buf
        return [f"ds_read_b128 v[{r}:{r+3}], v{base} offset:{(X&1)*32768 + f*2048}",
                f"ds_read_b128 v[{r+4}:{r+7}], v{base} offset:{(X&1)*32768 + f*2048 + 1024}"]
    for s_ in sbload(0, 0, 0) + sbload(1, 0, 1): A(s_)
    if timing:
        for i in range(18): A(f"s_mov_b32 s{S_TACC+i}, 0")
    A.wait(lg=0)
    A.settle()
    A.forget()

    NST = 15
    def stamp(k):
        if timing: A.raw(f"    {'s_memrealtime' if ('abs' in opt and 'absm' not in opt) else 's_memtime'} s[{S_STAMP+2*k}:{S_STAMP+2*k+1}]")
    def stamp_acc():
        if timing and 'abs' in opt:
            A.raw("    s_waitcnt lgkmcnt(0)")
            lb = A.newlabel("L_abs")
            A(f"s_cmp_lg_u32 s{S_STEP}, 31")
            A(f"s_cbranch_scc1 {lb}")
            for k in range(NST):
                A(f"s_mov_b32 s{S_TACC+k}, s{S_STAMP+2*k}")
            A.label(lb)
            return
        if timing:
            A.raw("    s_waitcnt lgkmcnt(0)")
            A(f"s_sub_u32 s{S_T2}, s{S_STAMP}, s{S_TM}")
            A(f"s_add_u32 s{S_TACC}, s{S_TACC}, s{S_T2}")
            for k in range(1, NST):
                A(f"s_sub_u32 s{S_T2}, s{S_STAMP+2*k}, s{S_STAMP+2*(k-1)}")
                A(f"s_add_u32 s{S_TACC+k}, s{S_TACC+k}, s{S_T2}")
            A(f"s_mov_b32 s{S_TM}, s{S_STAMP+2*(NST-1)}")
    def M(ks): return vr(V_MK + 4 * ks, 4)
    def mload(ks, sc=""):
        return f"ds_read_b128 {M(ks)}, v{V_MEM} offset:{ks*1024}"
    def pack(acc, t, dst):
        return [f"v_pk_add_f32 v[{acc+4*t}:{acc+4*t+1}], v[{acc+4*t}:{acc+4*t+1}], v[{acc+4*t+2}:{acc+4*t+3}]",
                f"v_cvt_pk_bf16_f32 v{dst}, v{acc+4*t}, v{acc+4*t+1}"]

    if 'diag' in opt: dstamp(A, 6, True)
    pre_barrier = []
    sfx = ['']
    if 'rt' in opt:
        A.raw("    s_memtime s[56:57]")
        A.raw("    s_memrealtime s[58:59]")
        A.raw("    s_waitcnt lgkmcnt(0)")
        A("s_mov_b32 s64, 0"); A("s_mov_b32 s65, 0")
    if timing:
        A(f"s_memtime s[{S_TM}:{S_TM+1}]")
        A.wait(lg=0)
    A.label("L_step")
    if 'diag' in opt: dstamp(A, 16, True, S_STEP)
    if 'steps' in opt:
        A.raw("    s_memtime s[56:57]")
    stamp(0)
    morder = [6, 0, 1, 2, 7, 3, 4, 5]
    npre = 8
    for ks in morder: A(mload(ks))
    if 'merged' in opt:
        A(f"buffer_load_dword v{V_S}, off, {WSR}, s{S_FOFF} sc1")
    if 'noload' not in opt and 'novt' not in opt:
        A(f"buffer_load_dwordx4 v[{V_VX}:{V_VX+3}], v{V_VVT}, {WSR}, s{S_VT} offen sc1")
        A(f"buffer_load_dwordx4 v[{V_VX+4}:{V_VX+7}], v{V_VVT}, {WSR}, s{S_VT} offen offset:1024 sc1")
    A(f"buffer_store_dwordx4 v[{V_AV}:{V_AV+3}], v{V_VMS}, {WSR}, s{S_EX+1} offen" + ("" if 'nopub' in opt else " sc1"))
    if 'merged' in opt:
        A(f"s_cmp_lg_u32 s{S_WV}, 0")
        A(f"s_cbranch_scc1 L_noprog")
        A(f"s_sub_u32 s{S_T0}, s{S_STEP}, 1")
        A(f"s_max_i32 s{S_T0}, s{S_T0}, 0")
        A(f"v_mov_b32 v{V_T+1}, s{S_T0}")
        A(f"s_mov_b64 exec, 1")
        A(f"buffer_store_dword v{V_T+1}, off, {WSR}, s{S_POFF} sc1")
        A(f"s_mov_b64 exec, -1")
        A.vm.pop()
        A.label("L_noprog")
    late_zero = zero(V_AV, 8)
    SL = [(0,0),(0,1),(1,0),(1,1),(0,2),(0,3),(1,2),(1,3),(2,0),(2,1),(2,2),(2,3)]
    RL = [(X, t, ks) for ks in range(6) for X in (0, 1) for t in (0, 1)]
    ACC = {0: V_AQ, 1: V_AK, 2: V_AV}
    CHK = V_T + 1
    qk = []
    ri = 0
    for pos in range(32):
        if pos % 4 == 0:
            X, f = SL[pos // 4]; qk.append(('S', X, f & 1, 6 + (f >> 1), pos // 4))
        else:
            X, t, ks = RL[ri]; ri += 1; qk.append(('R', X, t, ks, None))
    def mf(e):
        kind, X, t, ks, si = e
        d = vr(ACC[X] + 4 * t, 4)
        bsrc = vr(V_SB + 8 * (si & 1), 8) if kind == 'S' else wreg(X, ks >> 1, (ks & 1) * 2 + t)
        return f"v_smfmac_f32_16x16x64_bf16 {d}, {M(ks)}, {bsrc}, v{V_IDX}"
    def qk_pass(loads):
        fill = {p: [] for p in range(32)}
        for p in range(0, 32, 4):
            si = p // 4
            fill[p] += sbload(si & 1, *SL[si + 2])
        first_use = {}
        for p, e in enumerate(qk):
            first_use.setdefault(e[3], p)
        if loads:
            rem = morder[npre:]
            for i, ks in enumerate(rem): fill[1 + 5 * i].append(mload(ks))
        for i, x in enumerate(late_zero): fill[9 + 4 * i].append(x)
        if 'noload' not in opt and 'nokx' not in opt:
            pa, pb = kxpos
            fill[pa - 1] += [f"s_mov_b32 m0, s{S_M0A}"]
            fill[pa] += [f"buffer_load_dwordx4 v{V_KXG}, {WSR}, s{S_KXA} offen sc1 lds"]
            fill[pb - 1] += [f"s_mov_b32 m0, s{S_M0B}"]
            fill[pb] += [f"buffer_load_dwordx4 v{V_KXG}, {WSR}, s{S_KXB} offen sc1 lds"]
        for p in range(32):
            A(mf(qk[p]))
            if p == 0 and loads: stamp(1)
            for x in fill[p]: A(x)
    qk_pass(True)
    A.label("L_v")
    stamp(2)
    seq = []
    seqR = [(0,0),(1,0),(0,1),(1,1),(0,2),(1,2),(0,3),(1,3),(0,4),(1,4),(0,5),(1,5)]
    ri = 0
    for pos in range(16):
        if pos % 4 == 0:
            f = pos // 4; seq.append(('S', 2, f & 1, 6 + (f >> 1), 8 + f))
        else:
            t, ks = seqR[ri]; ri += 1; seq.append(('R', 2, t, ks, None))
    fill = {p: [] for p in range(16)}
    fill[0] += sbload(0, *SL[10]); fill[4] += sbload(1, *SL[11])
    fill[1] += pack(V_AQ, 0, V_AQ + 2)[:1] + pack(V_AQ, 1, V_AQ + 6)[:1]
    fill[2] += pack(V_AQ, 0, V_AQ + 2)[1:] + pack(V_AQ, 1, V_AQ + 6)[1:] + [f"ds_write2_b32 v{V_XW}, v{V_AQ+2}, v{V_AQ+6} offset0:0 offset1:128"]
    fill[3] += pack(V_AK, 0, V_AK + 2)[:1] + pack(V_AK, 1, V_AK + 6)[:1]
    fill[4] += pack(V_AK, 0, V_AK + 2)[1:] + pack(V_AK, 1, V_AK + 6)[1:] + [f"ds_write2_b32 v{V_XW}, v{V_AK+2}, v{V_AK+6} offset0:1 offset1:129"]
    fill[5] += [f"v_mov_b32 v{V_T}, v{V_AK+2}", f"v_mov_b32 v{V_T+1}, v{V_AK+6}"]
    fill[7] += ["@wait_writes", "s_barrier"]
    xf = []
    for ks in range(4):
        for hh in range(2):
            xf.append(f"ds_read_b64_tr_b16 v[{V_XF+4*ks+2*hh}:{V_XF+4*ks+2*hh+1}], v{V_XR if hh == 0 else V_KMS} offset:{ks*1024}")
    last = {}
    for p, e in enumerate(seq): last[e[3]] = p
    free_order = sorted(last, key=lambda k: last[k])
    kxr = {}
    kxr[(0, 0)] = vr(V_AQ, 4); kxr[(0, 1)] = vr(V_AQ + 4, 4); kxr[(0, 2)] = vr(V_AK, 4); kxr[(0, 3)] = vr(V_AK + 4, 4)
    for kk in range(4): kxr[(1, kk)] = M(free_order[kk])
    def kxload(T, kk): return f"ds_read_b128 {kxr[(T, kk)]}, v0 offset:{8192 + (T*4+kk)*1024}"
    fill[7] += xf[0:2]; fill[8] += xf[2:4]; fill[9] += xf[4:6]; fill[10] += xf[6:8]
    fill[11] += [kxload(0, 0), kxload(0, 1)]; fill[13] += [kxload(0, 2)]; fill[14] += [kxload(0, 3)]
    assert last[free_order[3]] <= 13
    for p in range(16):
        A(mf(seq[p]))
        for x in fill[p]:
            if x == "s_barrier" and 'vdet' in opt: stamp(8)
            if x == "@wait_writes" and 'vdet' in opt: stamp(11)
            A(x)
            if x == "s_barrier" and 'vdet' in opt: stamp(9)
        if p == 11 and 'vdet' in opt: stamp(12)
    stamp(3)
    A.raw(f"    s_waitcnt vmcnt({(1 if 'noload' in opt else 3 if ('novt' in opt or 'nokx' in opt) else 5) + (1 if 'steps' in opt else 0)})")
    if 'merged' in opt:
        A(f"v_readfirstlane_b32 s{S_FLG}, v{V_S}")
    S0, S1, S2 = V_S, V_S + 4, V_S + 8
    def tm(dst, a_, ks, first):
        cc = "0" if first else vr(dst, 4)
        return f"v_mfma_f32_16x16x32_bf16 {vr(dst,4)}, {a_}, {vr(V_XF+4*ks,4)}, {cc}"
    seqT = [(S0, None, k) for k in range(4)] + [(S1, 0, k) for k in range(4)] + [(S2, 1, k) for k in range(4)]
    fill = {p: [] for p in range(12)}
    ONr = V_MK + 4 * free_order[4]
    LD = V_MK + 4 * free_order[5]
    fill[0] += [kxload(1, 0), kxload(1, 1)]; fill[1] += [kxload(1, 2), kxload(1, 3)]
    fill[7] += [f"v_mov_b32 v{ONr}, 0x3f803f80", f"v_mov_b32 v{ONr+1}, 0x3f803f80"]
    fill[8] += [f"v_mov_b32 v{ONr+2}, 0x3f803f80", f"v_mov_b32 v{ONr+3}, 0x3f803f80"]
    fill[2] += pack(V_AV, 0, V_AV + 2)[:1] + pack(V_AV, 1, V_AV + 6)[:1]
    fill[3] += pack(V_AV, 0, V_AV + 2)[1:] + pack(V_AV, 1, V_AV + 6)[1:]
    fill[4] += [f"v_mov_b32 v{V_AV+3}, 0", f"v_mov_b32 v{V_AV+7}, 0"]
    fill[5] += [f"v_mov_b32 v{V_AV}, v{V_T}", f"v_mov_b32 v{V_AV+1}, v{V_T+1}"]
    Tt = V_T + 1; Ls = V_T + 2; Mx = V_T + 3
    fill[9] += [f"v_max3_f32 v{Mx}, v{S0+2}, v{S0+3}, v{S1}"]
    fill[10] += [f"v_max3_f32 v{Mx}, v{Mx}, v{S1+1}, v{S1+2}"]
    fill[11] += [f"v_max_f32 v{Mx}, v{Mx}, v{S1+3}"]
    for p, (dst, T, kk) in enumerate(seqT):
        a_ = vr(V_XF + 4 * kk, 4) if T is None else kxr[(T, kk)]
        A(tm(dst, a_, kk, kk == 0))
        for x in fill[p]: A(x)
    stamp(4)
    A(f"s_cmp_eq_u32 s{S_STEP}, {nsteps-1}")
    A(f"s_cbranch_scc1 L_last")
    A(f"v_max3_f32 v{Mx}, v{Mx}, v{S2}, v{S2+1}")
    A(f"v_max3_f32 v{Tt}, v{Mx}, v{S2+2}, v{S2+3}")
    A(f"v_max3_f32 v{Mx}, v{Mx}, v{S2+2}, v{S2+3}")
    sbo = sbload(0, 3, 0) + sbload(1, 3, 1)
    A(sbo[0])
    A(f"v_permlane16_swap_b32 v{Mx}, v{Tt}")
    A(sbo[1])
    A(f"v_max_f32 v{Ls}, v{Mx}, v{Tt}")
    A(f"v_max_f32 v{Mx}, v{Mx}, v{Tt}")
    A(sbo[2])
    A(sbo[3])
    A(f"v_permlane32_swap_b32 v{Mx}, v{Ls}")
    A(f"v_max_f32 v{Mx}, v{Mx}, v{Ls}")
    A(f"v_mul_f32 v{Mx}, s{S_C}, v{Mx}")
    def pkf(r): return f"v_pk_fma_f32 v[{r}:{r+1}], v[{r}:{r+1}], s[{S_C}:{S_C+1}], v[{Mx-1}:{Mx}] op_sel:[0,0,1] op_sel_hi:[1,1,1] neg_lo:[0,0,1] neg_hi:[0,0,1]"
    for r in (S1, S1 + 2, S2, S2 + 2, S0 + 2): A(pkf(r))
    P12 = V_AQ; P0 = V_AQ + 4; OT = V_AK
    for r in range(S1, S1 + 4): A(f"v_exp_f32 v{r}, v{r}")
    A(f"v_exp_f32 v{S2}, v{S2}")
    A(f"v_exp_f32 v{S2+1}, v{S2+1}")
    A(f"v_cvt_pk_bf16_f32 v{P12}, v{S1}, v{S1+1}")
    A(f"v_exp_f32 v{S2+2}, v{S2+2}")
    A(f"v_cvt_pk_bf16_f32 v{P12+1}, v{S1+2}, v{S1+3}")
    A(f"v_exp_f32 v{S2+3}, v{S2+3}")
    A(f"v_cvt_pk_bf16_f32 v{P12+2}, v{S2}, v{S2+1}")
    A(f"v_exp_f32 v{S0+2}, v{S0+2}")
    A(f"v_cvt_pk_bf16_f32 v{P12+3}, v{S2+2}, v{S2+3}")
    A(f"v_exp_f32 v{S0+3}, v{S0+3}")
    A(f"v_mov_b32 v{P0+1}, 0")
    A(f"v_mfma_f32_16x16x32_bf16 {vr(LD,4)}, {vr(ONr,4)}, {vr(P12,4)}, 0")
    A(f"v_cvt_pk_bf16_f32 v{P0}, v{S0+2}, v{S0+3}")
    for t in range(2):
        A(f"v_mfma_f32_16x16x32_bf16 {vr(OT+4*t,4)}, {vr(V_VX+4*t,4)}, {vr(P12,4)}, 0")
    PO2 = V_S + 4
    for i in range(0, 4, 2): A(f"v_mov_b64 v[{PO2+i}:{PO2+i+1}], -1")
    A(f"v_mfma_f32_16x16x16_bf16 {vr(LD,4)}, {vr(ONr,2)}, {vr(P0,2)}, {vr(LD,4)}")
    for t in range(2):
        A(f"v_mfma_f32_16x16x16_bf16 {vr(OT+4*t,4)}, {vr(V_AV+4*t+2,2)}, {vr(P0,2)}, {vr(OT+4*t,4)}")
    A(f"v_mov_b32 v{V_AV+3}, v{V_AV+6}")
    A(f"v_rcp_f32 v{Ls}, v{LD}")
    for r in range(0, 8, 2):
        A(f"v_pk_mul_f32 v[{OT+r}:{OT+r+1}], v[{OT+r}:{OT+r+1}], v[{Ls}:{Ls+1}] op_sel_hi:[1,0]")
    for t in range(2):
        A(f"v_cvt_pk_bf16_f32 v{OT+4*t}, v{OT+4*t}, v{OT+4*t+1}")
        A(f"v_cvt_pk_bf16_f32 v{OT+4*t+1}, v{OT+4*t+2}, v{OT+4*t+3}")
        A(f"ds_write_b64 v{V_OW}, v[{OT+4*t}:{OT+4*t+1}] offset:{t*256}")
    A("@wait_writes")
    stamp(5)
    A("s_barrier")
    OF = V_VX
    A(f"ds_read_b128 {vr(OF,4)}, v{V_MEM} offset:{L_OB-L_MEMB}")
    A(f"ds_read_b128 {vr(OF+4,4)}, v{V_MEM} offset:{L_OB-L_MEMB+1024}")
    A(f"buffer_store_dwordx4 v[{PO2}:{PO2+3}], v{V_PL}, {WSR}, s{S_POI} offen")
    A(f"buffer_store_dwordx4 v[{PO2}:{PO2+3}], v{V_PL}, {WSR}, s{S_POI} offen offset:1024")
    for x in zero(V_MK, 32): A(x)
    stamp(6)
    oseq = [('S',6,0,0),('R',0,0),('R',0,1),('R',1,0),('S',7,0,1),('R',1,1),('R',2,0),('R',2,1),
            ('S',6,1,2),('R',3,0),('R',3,1),('R',4,0),('S',7,1,3),('R',4,1),('R',5,0),('R',5,1)]
    PQ = V_AQ
    def ppack(tile):
        a0 = V_MK + 4 * tile
        return [f"v_pk_add_f32 v[{a0}:{a0+1}], v[{a0}:{a0+1}], v[{a0+2}:{a0+3}]",
                f"v_cvt_pk_bf16_f32 v{PQ+tile}, v{a0}, v{a0+1}"]
    fill = {p: [] for p in range(16)}
    fill[0] += sbload(0, 3, 2); fill[4] += sbload(1, 3, 3); fill[8] += sbload(0, 0, 0); fill[12] += sbload(1, 0, 1)
    CAR = V_S
    fill[1] += [f"ds_read_b128 {vr(CAR,4)}, v{V_MEM} offset:{L_CA-L_MEMB}"]
    fill[6] += ppack(0); fill[9] += ppack(1); fill[11] += ppack(2); fill[13] += ppack(3)
    fill[14] += [f"buffer_store_dwordx4 v[{PQ}:{PQ+3}], v{V_PS}, {WSR}, s{S_PST0} offen"]
    fill[15] += ppack(6)
    for p, e in enumerate(oseq):
        tile, ks = e[1], e[2]
        bsrc = vr(V_SB + 8 * (e[3] & 1), 8) if e[0] == 'S' else wreg(3, tile >> 1, ks * 2 + (tile & 1))
        A(f"v_smfmac_f32_16x16x64_bf16 {vr(V_MK+4*tile,4)}, {vr(OF+4*ks,4)}, {bsrc}, v{V_IDX}")
        for x in fill[p]: A(x)
    for tl in (7, 4, 5):
        for x in ppack(tl): A(x)
    A(f"buffer_store_dwordx4 v[{PQ+4}:{PQ+7}], v{V_PS}, {WSR}, s{S_PST1} offen")
    stamp(7)
    ta = V_T + 1; tb = V_T + 2
    def poll2(name, regs, loadfn, mid=None, cnt=None, st=None, gap=()):
        def check():
            A(f"v_max3_u32 v{ta}, v{regs}, v{regs+1}, v{regs+2}")
            A(f"v_max3_u32 v{tb}, v{regs+4}, v{regs+5}, v{regs+6}")
            A(f"v_max_u32 v{ta}, v{ta}, v{regs+3}")
            if mid: mid(0)
            A(f"v_max_u32 v{tb}, v{tb}, v{regs+7}")
            if mid: mid(1)
            A(f"v_cmp_eq_u32 s[{S_MA}:{S_MA+1}], -1, v{ta}")
            A(f"v_cmp_eq_u32 s[{S_MB}:{S_MB+1}], -1, v{tb}")
            A(f"s_or_b64 s[{S_MT}:{S_MT+1}], s[{S_MA}:{S_MA+1}], s[{S_MB}:{S_MB+1}]")
            A(f"s_cbranch_scc0 L_{name}ok")
        def round_():
            A(f"s_or_b32 s{S_MA}, s{S_MA}, 1")
            A(f"s_or_b32 s{S_MB}, s{S_MB}, 1")
            A.auto = False
            A(f"s_mov_b64 exec, s[{S_MA}:{S_MA+1}]")
            loadfn(0)
            A(f"s_mov_b64 exec, s[{S_MB}:{S_MB+1}]")
            loadfn(1)
            A(f"s_mov_b64 exec, -1")
            A.auto = True
        A(f"s_mov_b32 s{S_TO}, 0")
        for x in gap: A(x)
        A.auto = False
        loadfn(0); loadfn(1)
        A.auto = True
        A(f"s_waitcnt vmcnt(2)")
        if st is not None: stamp(st)
        A.forget()
        check()
        A.label(f"L_{name}loop")
        round_()
        A(f"s_add_u32 s{S_TO}, s{S_TO}, 1")
        A(f"s_cmp_gt_u32 s{S_TO}, 0x40000")
        A(f"s_cbranch_scc1 L_bail")
        A(f"s_waitcnt vmcnt(2)")
        A.forget()
        check()
        A(f"s_branch L_{name}loop")
        A.label(f"L_{name}ok")
        A.forget()
        if cnt: cnt()
    PB = V_AK; RD = V_VX
    A(f"s_mov_b32 s{S_KEEP}, s{S_PLD}")
    A(f"s_mov_b32 s{S_EX}, s{S_POI}")
    A(f"s_mov_b32 s{S_EX+1}, s{S_VM}")
    A(f"s_mov_b32 s{S_PUB}, s{S_B1}")
    A(f"s_mov_b32 s{S_MPZ}, s{S_B2}")
    A(f"s_mov_b32 s{S_B2}, s{S_B0}")
    A(f"s_mov_b32 s{S_B0}, s{S_PUB}")
    A(f"s_mov_b32 s{S_B1}, s{S_MPZ}")
    A(f"s_xor_b32 s{S_PAR}, s{S_PAR}, 8192")
    A(f"s_add_u32 s{S_STEP}, s{S_STEP}, 1")
    A(f"s_add_u32 s{S_VM}, s{S_VM}, {32*4096}")
    A(f"s_mov_b32 s{S_T0}, s{S_R0}")
    A(f"s_mov_b32 s{S_R0}, s{S_R1}")
    A(f"s_mov_b32 s{S_R1}, s{S_R2}")
    A(f"s_mov_b32 s{S_R2}, s{S_T0}")
    for x in step_scalars(): A(x)
    if 'merged' in opt:
        A(f"s_cmp_ge_u32 s{S_FLG}, 32")
        A(f"s_cbranch_scc0 L_kvslow")
        A.label("L_kvok")
        A(f"s_add_u32 s{S_T0}, s{S_STEP}, 2")
        A(f"s_lshr_b32 s{S_T0}, s{S_T0}, 3")
        A(f"s_min_u32 s{S_T0}, s{S_T0}, 7")
        A(f"s_lshl_b32 s{S_T0}, s{S_T0}, 7")
        A(f"s_add_u32 s{S_FOFF}, s{S_T0}, {F_KV}")
    for x in zero(V_AQ, 8): A(x)
    for x in extra_delay: A(x)
    def h1load(q):
        A(f"buffer_load_dwordx4 v[{PB+4*q}:{PB+4*q+3}], v{V_PL}, {WSR}, s{S_KEEP} offen offset:{1024*q} sc1")
    if 'vdet' not in opt: stamp(8)
    h1load(0); h1load(1)
    def h1mid(i):
        if i == 0: A(f"v_mfma_f32_16x16x32_bf16 {vr(RD,4)}, {vr(CAR,4)}, {vr(PB,4)}, 0")
        else: A(f"v_mfma_f32_16x16x32_bf16 {vr(RD,4)}, {vr(CAR,4)}, {vr(PB+4,4)}, {vr(RD,4)}")
    poll2("h1", PB, h1load, mid=h1mid, st=(None if "vdet" in opt else 9), gap=["s_nop 0"] * g1)
    A("s_nop 2")
    if timing: A(f"s_add_u32 s{S_TACC+16}, s{S_TACC+16}, s{S_TO}")
    if 'rt' in opt: A(f"s_add_u32 s64, s64, s{S_TO}")
    stamp(10)
    for ror in (4, 8):
        for r in range(4):
            A(f"v_add_f32_dpp v{RD+r}, v{RD+r}, v{RD+r} row_ror:{ror} row_mask:0xf bank_mask:0xf")
    A(f"v_cvt_pk_bf16_f32 v{RD}, v{RD}, v{RD+1}")
    A(f"v_cvt_pk_bf16_f32 v{RD+1}, v{RD+2}, v{RD+3}")
    A(f"v_min_u32 v{RD}, -2, v{RD}")
    A(f"v_min_u32 v{RD+1}, -2, v{RD+1}")
    A(f"s_mov_b64 exec, 0xffffffff")
    A(f"buffer_store_dwordx2 v[{RD}:{RD+1}], v{V_MS}, {WSR}, s{S_PUB} offen")
    A(f"v_mov_b64 v[{RD+2}:{RD+3}], -1")
    A(f"buffer_store_dwordx2 v[{RD+2}:{RD+3}], v{V_MS}, {WSR}, s{S_MPZ} offen")
    A(f"s_mov_b64 exec, -1")
    for x in extra_delay2: A(x)
    def stage_mem():
        ML = V_S + 4
        def h2load(q):
            so = S_MSL if q == 0 else S_MPO
            A(f"buffer_load_dwordx4 v[{ML+4*q}:{ML+4*q+3}], v{V_MW}, {WSR}, s{so} offen sc1")
        if 'vdet' not in opt: stamp(11)
        h2load(0); h2load(1)
        poll2("h2", ML, h2load, st=(None if "vdet" in opt else 12), gap=["s_nop 0"] * g2)
        if timing: A(f"s_add_u32 s{S_TACC+17}, s{S_TACC+17}, s{S_TO}")
        if 'rt' in opt: A(f"s_add_u32 s65, s65, s{S_TO}")
        stamp(13)
        A(f"ds_write_b128 v{V_MW}, v[{ML}:{ML+3}]")
        A(f"ds_write_b128 v{V_MW}, v[{ML+4}:{ML+7}] offset:1024")
    stage_mem()
    for x in zero(V_AK, 8): A(x)
    A("@wait_writes")
    if 'steps' in opt:
        A(f"s_lshl_b32 s58, s{S_H}, 2")
        A(f"s_add_u32 s58, s58, s{S_WV}")
        A(f"s_lshl_b32 s58, s58, 6")
        A(f"s_add_u32 s58, s58, s{S_STEP}")
        A(f"s_lshl_b32 s58, s58, 2")
        A(f"s_add_u32 s58, s58, {WS_TIME - 4}")
        A(f"v_mov_b32 v{V_T}, s56")
        A(f"v_mov_b32 v{V_T+1}, 0")
        A(f"s_mov_b64 exec, 1")
        A(f"buffer_store_dword v{V_T}, v{V_T+1}, {WSR}, s58 offen")
        A(f"s_mov_b64 exec, -1")
    stamp(14)
    stamp_acc()
    A("s_barrier")
    A.settle()
    A.forget()
    A("s_branch L_step")
    if 'merged' in opt:
        A.label("L_kvslow")
        A(f"s_mov_b32 s{S_TO}, 0")
        A.label("L_kvslow2")
        A(f"buffer_load_dword v{V_T+1}, off, {WSR}, s{S_FOFF} sc1")
        A(f"s_add_u32 s{S_TO}, s{S_TO}, 1")
        A(f"s_cmp_gt_u32 s{S_TO}, 0x100000")
        A(f"s_cbranch_scc1 L_bail")
        A("s_waitcnt vmcnt(0)")
        A(f"v_cmp_gt_u32 vcc, 32, v{V_T+1}")
        A(f"s_cbranch_vccnz L_kvslow2")
        A.forget()
        A("s_branch L_kvok")
    A.label("L_last")
    if 'diag' in opt: dstamp(A, 7, True)
    A.settle()
    A(f"v_mov_b32 v{V_AV+3}, v{V_AV+6}")
    A(f"buffer_store_dwordx4 v[{V_AV}:{V_AV+3}], v{V_VMS}, {WSR}, s{S_VM} offen sc1")
    if 'rt' in opt:
        A.raw("    s_memtime s[60:61]")
        A.raw("    s_memrealtime s[62:63]")
        A.raw("    s_waitcnt lgkmcnt(0)")
        A(f"s_sub_u32 s56, s60, s56")
        A(f"s_sub_u32 s58, s62, s58")
        A(f"s_lshl_b32 s{S_T0}, s{S_H}, 2")
        A(f"s_add_u32 s{S_T0}, s{S_T0}, s{S_WV}")
        A(f"s_lshl_b32 s{S_T0}, s{S_T0}, 7")
        A(f"s_add_u32 s{S_T0}, s{S_T0}, {WS_TIME}")
        A(f"s_mov_b64 exec, 1")
        for k, r in enumerate((56, 58, 64, 65)):
            A(f"v_mov_b32 v{V_MK+1}, s{r}")
            A(f"v_mov_b32 v{V_MK}, {4*k}")
            A(f"buffer_store_dword v{V_MK+1}, v{V_MK}, {WSR}, s{S_T0} offen")
        A(f"s_mov_b64 exec, -1")
    A.wait(vm=0)
    if 'merged' in opt:
        A("s_barrier")
        A(f"s_cmp_lg_u32 s{S_WV}, 0")
        A(f"s_cbranch_scc1 L_end")
        A(f"v_mov_b32 v{V_T+1}, 64")
        A(f"s_mov_b64 exec, 1")
        A(f"buffer_store_dword v{V_T+1}, off, {WSR}, s{S_POFF} sc1")
        A.wait(vm=0)
    if timing:
        A(f"s_lshl_b32 s{S_T0}, s{S_H}, 2")
        A(f"s_add_u32 s{S_T0}, s{S_T0}, s{S_WV}")
        A(f"s_lshl_b32 s{S_T0}, s{S_T0}, 7")
        A(f"s_add_u32 s{S_T0}, s{S_T0}, {WS_TIME}")
        A(f"s_mov_b64 exec, 1")
        for k in range(18):
            A(f"v_mov_b32 v{V_T+1}, s{S_TACC+k}")
            A(f"v_mov_b32 v{V_T}, {4*k}")
            A(f"buffer_store_dword v{V_T+1}, v{V_T}, {WSR}, s{S_T0} offen")
        A.wait(vm=0)
    A("s_branch L_end")
    A.label("L_bail")
    A(f"s_mov_b64 exec, 1")
    A(f"v_mov_b32 v{V_T}, 60")
    A(f"v_mov_b32 v{V_T+1}, 0xdead")
    A(f"buffer_store_dword v{V_T+1}, v{V_T}, s[{S_DBG}:{S_DBG+3}], 0 offen")
    A.wait(vm=0)
    A.label("L_end")
```

```python
MB = 1 << 20
WS_XN   = 0
WS_KX   = 2 * MB
WS_VT   = 18 * MB
WS_QX   = 34 * MB
WS_OX   = 50 * MB
WS_HB   = 66 * MB
WS_KVM  = 74 * MB
WS_PBUF = 83 * MB
WS_MBUF = 84 * MB
WS_FLAG = 87 * MB
WS_PART = 88 * MB
WS_Y    = 128 * MB
WS_TIME = 200 * MB
WS_SIZE = 256 * MB
KA_X, KA_MEM0, KA_WQ, KA_WK, KA_WV, KA_WO, KA_SEG, KA_BX, KA_W1, KA_B1, KA_W2, KA_B2, KA_OUT, KA_DBG, KA_WS = [8 * i for i in range(15)]

F_KV = WS_FLAG
F_Q = WS_FLAG + 1024
F_H = WS_FLAG + 2048
F_Y = WS_FLAG + 3072
F_PROG = WS_FLAG + 4096
F_R = WS_FLAG + 8192
F_LN = WS_FLAG + 8192 + 256 * 128
FLAG_BYTES = 45056
D_CTK = 0; D_RDY = 36; D_BAIL = 60; D_WTK = 64; D_LN = 96; D_INIT = 128; D_AO = 160
TAIL_SEG = 58
```

```python
import sys
from asmlib import *
from layout import *
from gemm import *
from ln import *
import ao
from ao import *
import chain
from chain import srd, emit_chain, S_PW, S_WS, S_DBG, S_H, S_WV, S_T2, L_X
from gen_gemm_test import khead, kdesc, decode_phase1
from gen_base import decode_mlp2

KNAME = "parallel_sum__memory_aug_recurrent_mem_tr__mixer_channel_mlp__prompt_kernel"
NT1 = 440
NT2 = NT1 + 32
P_X = 72; P_B2 = 74; P_OUT = 76; P_W2 = 78; P_WO = 80
W_TASK = 28; W_NEXT = 29; W_TO = 82; W_T = 83; W_T2 = 84; W_SIG = 85; W_PAR = 86; W_PREV = 87; W_NP = 88
WSR = "s[4:7]"; DBG = "s[12:15]"
LDS_BC = 163840 - 16

def spin(A, name, load, cmp_fail, limit=0x200000):
    A(f"s_cmp_lg_u32 s{G_WV}, 0")
    A(f"s_cbranch_scc1 L_{name}_j")
    A(f"s_mov_b32 s{W_TO}, 0")
    A.label(f"L_{name}_p")
    A(load)
    A(f"s_add_u32 s{W_TO}, s{W_TO}, 1")
    A(f"s_cmp_gt_u32 s{W_TO}, {limit}")
    A(f"s_cbranch_scc1 L_wbail")
    A("s_waitcnt vmcnt(0)")
    A(cmp_fail)
    A(f"s_cbranch_vccz L_{name}_j")
    A("s_sleep 2")
    A(f"s_branch L_{name}_p")
    A.label(f"L_{name}_j")
    A.forget()
    A("s_barrier")

def wait_ws_ge(A, name, soff, val):
    spin(A, name, f"buffer_load_dword v31, off, {WSR}, s{soff} sc1", f"v_cmp_gt_u32 vcc, {val}, v31")

def signal_ws(A, name, soff):
    A("s_waitcnt vmcnt(0)")
    A.forget()
    A("s_barrier")
    A(f"s_cmp_lg_u32 s{G_WV}, 0")
    A(f"s_cbranch_scc1 L_{name}_s")
    A("v_mov_b32 v31, 1")
    A("s_mov_b64 exec, 1")
    A(f"buffer_atomic_add v31, off, {WSR}, s{soff}")
    A("s_mov_b64 exec, -1")
    A.label(f"L_{name}_s")
    A.forget()

def fetch_ticket(A, name, dbg_off, dst):
    A(f"s_cmp_lg_u32 s{G_WV}, 0")
    A(f"s_cbranch_scc1 L_{name}_t")
    A("v_mov_b32 v31, 1")
    A("s_mov_b64 exec, 1")
    A(f"buffer_atomic_add v31, off, {DBG}, 0 offset:{dbg_off} sc0")
    A("s_waitcnt vmcnt(0)")
    A(f"v_mov_b32 v30, {LDS_BC}")
    A("ds_write_b32 v30, v31")
    A("s_waitcnt lgkmcnt(0)")
    A("s_mov_b64 exec, -1")
    A.label(f"L_{name}_t")
    A.forget()
    A("s_barrier")
    A(f"v_mov_b32 v30, {LDS_BC}")
    A("ds_read_b32 v31, v30")
    A.wait(lg=0)
    A(f"v_readfirstlane_b32 s{dst}, v31")
    A("s_barrier")

def prog_wait(A):
    saved = [set(x) for x in A.vm]; savedl = [set(x) for x in A.lgkm]
    A(f"s_cmp_lg_u32 s{G_WV}, 0")
    A("s_cbranch_scc1 L_ap_j")
    A(f"s_lshl_b32 s{W_T2}, s{O_KC}, 9")
    A(f"s_add_u32 s{W_T2}, s{W_T2}, {F_PROG}")
    A(f"v_and_b32 v30, 3, v{OV_L}")
    A("v_lshlrev_b32 v30, 7, v30")
    A(f"s_mov_b32 s{W_TO}, 0")
    A.label("L_ap_p")
    A.auto = False
    A(f"buffer_load_dword v31, v30, {WSR}, s{W_T2} offen sc1")
    A.auto = True
    A(f"s_add_u32 s{W_TO}, s{W_TO}, 1")
    A(f"s_cmp_gt_u32 s{W_TO}, 0x400000")
    A("s_cbranch_scc1 L_wbail")
    A("s_waitcnt vmcnt(0)")
    A(f"v_cmp_ge_u32 vcc, s{O_SEG}, v31")
    A("s_cbranch_vccz L_ap_j")
    A("s_sleep 2")
    A("s_branch L_ap_p")
    A.label("L_ap_j")
    A.vm = saved; A.lgkm = savedl
    A("s_barrier")

def red_flag_addrs(A, seg_sreg):
    A(f"s_lshl_b32 s{W_T}, s{seg_sreg}, 2")
    A(f"s_add_u32 s{W_T}, s{W_T}, s{O_NC}")
    A(f"s_lshl_b32 s{W_T}, s{W_T}, 7")
    A(f"s_add_u32 s{W_T}, s{W_T}, {F_R}")
    A(f"s_lshr_b32 s{W_T2}, s{seg_sreg}, 3")
    A(f"s_lshl_b32 s{W_T2}, s{W_T2}, 7")
    A(f"s_add_u32 s{W_T2}, s{W_T2}, {F_Y}")
    A(f"v_and_b32 v28, 1, v{OV_L}")
    A("v_cmp_eq_u32 vcc, 0, v28")
    A(f"v_mov_b32 v30, s{W_T2}")
    A(f"v_mov_b32 v29, s{W_T}")
    A("v_cndmask_b32 v30, v30, v29, vcc")
    A("v_mov_b32 v29, 4")
    A("v_mov_b32 v28, 8")
    A("v_cndmask_b32 v29, v29, v28, vcc")

def ao_reduce(A, seg_sreg, tag, wait=True):
    t0 = OV_T; t1 = OV_T + 1
    if wait:
        red_flag_addrs(A, seg_sreg)
        A(f"s_mov_b32 s{W_TO}, 0")
        A.label(f"L_rw{tag}")
        A(f"buffer_load_dword v31, v30, {WSR}, 0 offen sc1")
        A(f"s_add_u32 s{W_TO}, s{W_TO}, 1")
        A(f"s_cmp_gt_u32 s{W_TO}, 0x400000")
        A("s_cbranch_scc1 L_wbail")
        A("s_waitcnt vmcnt(0)")
        A("v_cmp_gt_u32 vcc, v29, v31")
        A.forget()
        A(f"s_cbranch_vccnz L_rw{tag}")
    A(f"s_lshl_b32 s{W_T}, s{seg_sreg}, 2")
    A(f"s_add_u32 s{W_T}, s{W_T}, s{O_NC}")
    A(f"s_lshl_b32 s{W_T}, s{W_T}, 17")
    A(f"s_add_u32 s{W_T}, s{W_T}, {WS_PART}")
    A(f"s_lshl_b32 s{O_T0}, s{O_KC}, 2")
    A(f"s_add_u32 s{O_T0}, s{O_T0}, s{O_WV}")
    A(f"s_lshl_b32 s{O_T1}, s{O_T0}, 9")
    A(f"s_add_u32 s{W_T}, s{W_T}, s{O_T1}")
    A(f"v_lshlrev_b32 v{t0}, 3, v{OV_L}")
    R = OV_Q
    for kc in range(8):
        A(f"s_add_u32 s{O_T1}, s{W_T}, {kc*16384}")
        A(f"buffer_load_dwordx2 v[{R+2*kc}:{R+2*kc+1}], v{t0}, {WSR}, s{O_T1} offen sc1")
    A(f"s_lshl_b32 s{O_T1}, s{seg_sreg}, 5")
    A(f"s_add_u32 s{O_T0}, s{O_T0}, s{O_T1}")
    A(f"s_lshl_b32 s{O_T1}, s{O_T0}, 11")
    A(f"s_lshl_b32 s{O_T2}, s{O_NC}, 9")
    A(f"s_add_u32 s{O_T1}, s{O_T1}, s{O_T2}")
    A(f"s_add_u32 s{O_T1}, s{O_T1}, {WS_Y}")
    A(f"buffer_load_dwordx2 v[{R+16}:{R+17}], v{t0}, {WSR}, s{O_T1} offen sc1")
    A(f"s_add_u32 s{O_T1}, s{O_T1}, {4*MB}")
    A(f"buffer_load_dwordx2 v[{R+18}:{R+19}], v{t0}, {WSR}, s{O_T1} offen sc1")
    A(f"v_lshlrev_b32 v{t1}, 2, v{OV_L}")
    A(f"s_lshl_b32 s{O_T1}, s{O_T0}, 10")
    A(f"s_lshl_b32 s{O_T2}, s{O_NC}, 8")
    A(f"s_add_u32 s{O_T1}, s{O_T1}, s{O_T2}")
    A(f"buffer_load_dword v{R+20}, v{t1}, s[56:59], s{O_T1} offen")
    A(f"buffer_load_dword v{R+21}, v{t1}, s[60:63], s{O_T2} offen")
    A(f"v_pk_add_f32 v[{R}:{R+1}], v[{R}:{R+1}], v[{R+2}:{R+3}]")
    for k in range(2, 10):
        A(f"v_pk_add_f32 v[{R}:{R+1}], v[{R}:{R+1}], v[{R+2*k}:{R+2*k+1}]")
    for src in (R + 20, R + 21):
        A(f"v_lshlrev_b32 v{R+22}, 16, v{src}")
        A(f"v_and_b32 v{R+23}, 0xffff0000, v{src}")
        A(f"v_pk_add_f32 v[{R}:{R+1}], v[{R}:{R+1}], v[{R+22}:{R+23}]")
    A(f"v_cvt_pk_bf16_f32 v{R}, v{R}, v{R+1}")
    A(f"buffer_store_dword v{R}, v{t1}, s[64:67], s{O_T1} offen")

def dstamp(A, idx, diag, sreg_idx=None):
    if not diag: return
    lb = A.newlabel("L_ds")
    A.raw("    s_memrealtime s[98:99]")
    A.raw("    s_waitcnt lgkmcnt(0)")
    A(f"s_cmp_lg_u32 s27, 0")
    A(f"s_cbranch_scc1 {lb}")
    A(f"s_lshl_b32 s100, s2, 9")
    if sreg_idx is not None:
        A(f"s_lshl_b32 s101, s{sreg_idx}, 2")
        A(f"s_add_u32 s100, s100, s101")
    A(f"s_add_u32 s100, s100, {WS_TIME + 4*idx}")
    A("v_mov_b32 v30, s98")
    A("s_mov_b64 exec, 1")
    A(f"buffer_store_dword v30, off, s[4:7], s100")
    A("s_mov_b64 exec, -1")
    A.vm.pop()
    A.label(lb)

def main_kernel(d1, d2, g1, g2, NPAR=6, diag=0):
    A = Asm()
    A("s_cmp_ge_u32 s2, 256")
    A("s_cbranch_scc1 L_end")
    A(f"s_load_dwordx2 s[{S_PW}:{S_PW+1}], s[0:1], {KA_WQ}")
    A(f"s_load_dwordx2 s[{S_PW+2}:{S_PW+3}], s[0:1], {KA_WK}")
    A(f"s_load_dwordx2 s[{S_PW+4}:{S_PW+5}], s[0:1], {KA_WV}")
    A(f"s_load_dwordx2 s[{S_PW+6}:{S_PW+7}], s[0:1], {KA_WO}")
    A(f"s_load_dwordx2 s[{S_PW+8}:{S_PW+9}], s[0:1], {KA_MEM0}")
    A(f"s_load_dwordx2 s[52:53], s[0:1], {KA_DBG}")
    A(f"s_load_dwordx2 s[54:55], s[0:1], {KA_WS}")
    A(f"s_getreg_b32 s{S_T2}, hwreg(HW_REG_XCC_ID)")
    A(f"v_lshrrev_b32 v1, 6, v0")
    A(f"v_readfirstlane_b32 s{S_WV}, v1")
    A.wait(lg=0)
    srd(A, S_WS, 54, WS_SIZE)
    srd(A, S_DBG, 52, 256)
    A(f"s_and_b32 s{S_T2}, s{S_T2}, 15")
    dstamp(A, 0, diag)
    A(f"s_cmp_lg_u32 s{S_T2}, 0")
    A("s_cbranch_scc1 L_worker")
    fetch_ticket(A, "ctk", D_CTK, S_H)
    A(f"s_cmp_ge_u32 s{S_H}, 32")
    A("s_cbranch_scc1 L_worker")
    emit_chain(A, d1=d1, d2=d2, g1=g1, g2=g2, opt=('merged',) + (('diag',) if diag else ()), dstamp=dstamp)
    A("s_endpgm")

    A.label("L_worker")
    A.forget()
    A(f"s_mov_b32 s{P_WO}, s{S_PW+6}"); A(f"s_mov_b32 s{P_WO+1}, s{S_PW+7}")
    A(f"s_load_dwordx2 s[22:23], s[0:1], {KA_W1}")
    A(f"s_load_dwordx2 s[24:25], s[0:1], {KA_B1}")
    A(f"s_load_dwordx2 s[{P_X}:{P_X+1}], s[0:1], {KA_X}")
    A(f"s_load_dwordx2 s[{P_B2}:{P_B2+1}], s[0:1], {KA_B2}")
    A(f"s_load_dwordx2 s[{P_OUT}:{P_OUT+1}], s[0:1], {KA_OUT}")
    A(f"s_load_dwordx2 s[{P_W2}:{P_W2+1}], s[0:1], {KA_W2}")
    fetch_ticket(A, "wtk", D_WTK, W_TASK)
    A.wait(lg=0)
    srd(A, G_SRDX, 24, 1792 * 2)
    gemm_setup_lane(A)
    A(f"s_cmp_lg_u32 s{W_TASK}, 0")
    A("s_cbranch_scc1 L_noinit")
    for i in range(4): A(f"v_mov_b32 v{32+i}, 0")
    A("v_lshlrev_b32 v36, 4, v0")
    for i in range(FLAG_BYTES // 4096):
        A(f"s_mov_b32 s{W_T}, {WS_FLAG + i*4096}")
        A(f"buffer_store_dwordx4 v[32:35], v36, {WSR}, s{W_T} offen sc1")
    A("s_waitcnt vmcnt(0)")
    A.forget()
    A("s_barrier")
    A(f"s_cmp_lg_u32 s{G_WV}, 0")
    A("s_cbranch_scc1 L_noinit")
    A("v_mov_b32 v31, 1")
    A("s_mov_b64 exec, 1")
    A(f"buffer_store_dword v31, off, {DBG}, 0 offset:{D_INIT} sc1")
    A("s_mov_b64 exec, -1")
    A.label("L_noinit")
    A.forget()
    A(f"s_cmp_ge_u32 s{W_TASK}, 128")
    A("s_cbranch_scc1 L_noln")
    srd(A, 8, P_X, 2048 * 512 * 2)
    A(f"s_lshl_b32 s30, s{W_TASK}, 4")
    A(f"s_lshl_b32 s31, s{G_WV}, 2")
    A("s_add_u32 s30, s30, s31")
    emit_ln_rows(A, 8, 4, 30, 4, GV_LANE)
    A("s_waitcnt vmcnt(0)")
    A.forget()
    A("s_barrier")
    A(f"s_cmp_lg_u32 s{G_WV}, 0")
    A("s_cbranch_scc1 L_noln")
    A(f"s_lshr_b32 s30, s{W_TASK}, 4")
    A("s_and_b32 s31, s30, 3")
    A("s_lshl_b32 s31, s31, 3")
    A("s_lshl_b32 s31, 1, s31")
    A("s_lshr_b32 s30, s30, 2")
    A("s_lshl_b32 s30, s30, 2")
    A("v_mov_b32 v31, s31")
    A("s_mov_b64 exec, 1")
    A(f"buffer_atomic_add v31, off, {DBG}, s30 offset:{D_LN}")
    A("s_mov_b64 exec, -1")
    A.label("L_noln")
    A.forget()
    spin(A, "ini", f"buffer_load_dword v31, off, {DBG}, 0 offset:{D_INIT} sc1", "v_cmp_eq_u32 vcc, 0, v31")
    dstamp(A, 1, diag)
    A(f"s_mov_b32 s89, 0")
    A.label("L_g1_next")
    A(f"s_cmp_ge_u32 s{W_TASK}, {NT2}")
    A("s_cbranch_scc1 L_ao_role")
    A(f"s_cmp_ge_u32 s{W_TASK}, {NT1}")
    A("s_cbranch_scc1 L_m2")
    A(f"s_lshr_b32 s{W_T}, s{W_TASK}, 5")
    A(f"s_sub_u32 s{W_T2}, s{W_TASK}, 256")
    A(f"s_lshr_b32 s{W_T2}, s{W_T2}, 4")
    A(f"s_cmp_ge_u32 s{W_TASK}, 256")
    A(f"s_cselect_b32 s{W_T}, s{W_T2}, s{W_T}")
    A(f"s_sub_u32 s{W_T2}, s{W_TASK}, 384")
    A(f"s_mul_i32 s{W_T2}, s{W_T2}, 37")
    A(f"s_lshr_b32 s{W_T2}, s{W_T2}, 8")
    A(f"s_cmp_ge_u32 s{W_TASK}, 384")
    A(f"s_cselect_b32 s{W_T}, s{W_T2}, s{W_T}")
    A(f"s_mov_b32 s{W_SIG}, {F_KV}")
    A(f"s_cmp_ge_u32 s{W_TASK}, 256")
    A(f"s_cselect_b32 s{W_SIG}, {F_Q}, s{W_SIG}")
    A(f"s_cmp_ge_u32 s{W_TASK}, 384")
    A(f"s_cselect_b32 s{W_SIG}, {F_H}, s{W_SIG}")
    A(f"s_lshl_b32 s{W_T2}, s{W_T}, 7")
    A(f"s_add_u32 s{W_SIG}, s{W_SIG}, s{W_T2}")
    A(f"s_lshr_b32 s30, s{W_T}, 2")
    A("s_lshl_b32 s30, s30, 2")
    A(f"s_and_b32 s31, s{W_T}, 3")
    A("s_lshl_b32 s31, s31, 3")
    A(f"s_cmp_lg_u32 s{G_WV}, 0")
    A("s_cbranch_scc1 L_lnw_j")
    A(f"s_mov_b32 s{W_TO}, 0")
    A.label("L_lnw_p")
    A(f"buffer_load_dword v31, off, {DBG}, s30 offset:{D_LN} sc1")
    A(f"s_add_u32 s{W_TO}, s{W_TO}, 1")
    A(f"s_cmp_gt_u32 s{W_TO}, 0x200000")
    A("s_cbranch_scc1 L_wbail")
    A("s_waitcnt vmcnt(0)")
    A("v_lshrrev_b32 v31, s31, v31")
    A("v_and_b32 v31, 0xff, v31")
    A("v_cmp_gt_u32 vcc, 16, v31")
    A("s_cbranch_vccz L_lnw_j")
    A("s_sleep 1")
    A("s_branch L_lnw_p")
    A.label("L_lnw_j")
    A.forget()
    A("s_barrier")
    decode_phase1(A, W_TASK)
    def run(tag, wT, epi):
        A.label(f"L_task_{tag}")
        A.forget()
        gemm_task_addr(A)
        gemm_start(A, sc1A=True)
        gemm_main(A, tag, wT, sc1A=True)
        epi()
        signal_ws(A, f"sg{tag}", W_SIG)
        dstamp(A, 80, diag, 89)
        A("s_add_u32 s89, s89, 1")
        A("s_branch L_fetch")
    run("k", True, lambda: epi_rowmajor(A))
    run("v", False, lambda: epi_vt(A))
    run("h", True, lambda: epi_rowmajor(A, gelu=True))
    A.label("L_m2")
    A.forget()
    A(f"s_sub_u32 s{W_T}, s{W_TASK}, {NT1}")
    A(f"s_lshr_b32 s{W_T2}, s{W_T}, 2")
    A(f"s_lshl_b32 s{W_T2}, s{W_T2}, 7")
    A(f"s_add_u32 s{W_SIG}, s{W_T2}, {F_Y}")
    A(f"s_add_u32 s{W_T2}, s{W_T2}, {F_H}")
    wait_ws_ge(A, "hw", W_T2, 7)
    A(f"s_mov_b32 s24, s{P_W2}"); A(f"s_mov_b32 s25, s{P_W2+1}")
    decode_mlp2(A, W_T)
    run("m2", True, lambda: epi_f32(A))
    A.label("L_fetch")
    A.forget()
    fetch_ticket(A, "nxt", D_WTK, W_TASK)
    A("s_branch L_g1_next")

    A.label("L_ao_role")
    A.forget()
    fetch_ticket(A, "aot", D_AO, W_TASK)
    A(f"s_cmp_ge_u32 s{W_TASK}, {32*NPAR}")
    A("s_cbranch_scc1 L_end")
    A(f"s_and_b32 s{O_KC}, s{W_TASK}, 7")
    A(f"s_bfe_u32 s{O_NC}, s{W_TASK}, 0x20003")
    A(f"s_lshr_b32 s{O_SEG}, s{W_TASK}, 5")
    srd(A, 56, P_X, 2048 * 512 * 2); srd(A, 60, P_B2, 1024); srd(A, 64, P_OUT, 2048 * 512 * 2)
    dstamp(A, 10, diag)
    ao_prologue(A, P_WO)
    dstamp(A, 11, diag)
    A(f"s_mov_b32 s{W_PREV}, s{O_SEG}")
    A(f"s_mov_b32 s{W_NP}, -1")
    A.label("L_ao_loop")
    A.forget()
    A(f"s_lshr_b32 s{W_T}, s{O_SEG}, 3")
    A(f"s_cmp_eq_u32 s{W_T}, s{W_NP}")
    A("s_cbranch_scc1 L_ao_rbok")
    A(f"s_mov_b32 s{W_NP}, s{W_T}")
    A(f"s_lshl_b32 s{W_T}, s{W_T}, 7")
    A(f"s_add_u32 s{W_T2}, s{W_T}, {F_Q}")
    wait_ws_ge(A, "aq", W_T2, 16)
    A(f"s_add_u32 s{W_T2}, s{W_T}, {F_KV}")
    wait_ws_ge(A, "ak", W_T2, 32)
    A.label("L_ao_rbok")
    A.forget()
    ao_segment(A, prog_wait=lambda: prog_wait(A))
    A(f"s_lshl_b32 s{W_T}, s{O_SEG}, 2")
    A(f"s_add_u32 s{W_T}, s{W_T}, s{O_NC}")
    A(f"s_lshl_b32 s{W_T}, s{W_T}, 7")
    A(f"s_add_u32 s{W_SIG}, s{W_T}, {F_R}")
    signal_ws(A, "sgr", W_SIG)
    dstamp(A, 16, diag, O_SEG)
    A(f"s_add_u32 s{O_SEG}, s{O_SEG}, {NPAR}")
    A.label("L_ao_red")
    A.forget()
    A(f"s_add_u32 s{W_T}, s{W_PREV}, {NPAR}")
    A(f"s_cmp_ge_u32 s{W_T}, s{O_SEG}")
    A("s_cbranch_scc1 L_ao_rdone")
    red_flag_addrs(A, W_PREV)
    A(f"buffer_load_dword v31, v30, {WSR}, 0 offen sc1")
    A("s_waitcnt vmcnt(0)")
    A(f"v_cmp_gt_u32 vcc, v29, v31")
    A.forget()
    A("s_cbranch_vccnz L_ao_rdone")
    ao_reduce(A, W_PREV, "a", wait=False)
    A(f"s_add_u32 s{W_PREV}, s{W_PREV}, {NPAR}")
    A.settle()
    A("s_branch L_ao_red")
    A.label("L_ao_rdone")
    A.forget()
    A(f"s_cmp_lt_u32 s{O_SEG}, 64")
    A.settle()
    A("s_cbranch_scc1 L_ao_loop")
    A.label("L_ao_fin")
    A.forget()
    A(f"s_cmp_ge_u32 s{W_PREV}, 64")
    A("s_cbranch_scc1 L_ao_end")
    ao_reduce(A, W_PREV, "b", wait=True)
    A(f"s_add_u32 s{W_PREV}, s{W_PREV}, {NPAR}")
    A.settle()
    A("s_branch L_ao_fin")
    A.label("L_ao_end")
    A("s_waitcnt vmcnt(0)")
    dstamp(A, 12, diag)
    A("s_endpgm")
    A.label("L_wbail")
    A("s_mov_b64 exec, 1")
    A("v_mov_b32 v31, 0xbeef")
    A(f"buffer_store_dword v31, off, {DBG}, 0 offset:56")
    A("s_waitcnt vmcnt(0)")
    A("s_endpgm")
    return A.text()

if __name__ == "__main__":
    kw = dict(d1=40, d2=45, g1=20, g2=20)
    for a in sys.argv[2:]:
        k, v = a.split('='); kw[k] = int(v)
    hdr = open('parallel_sum__memory_aug_recurrent_mem_tr__mixer_channel_mlp__prompt.s.ref').read().split('; Override launch')[0]
    txt = hdr + f"; @launch kernel={KNAME} grid=(256,1,1) block=(256,1,1) lds=163840\n"
    txt += '.amdgcn_target "amdgcn-amd-amdhsa--gfx950"\n.text\n'
    txt += khead(KNAME) + main_kernel(**kw)
    txt += '.section .rodata,"a"\n.p2align 6\n' + kdesc(KNAME)
    open(sys.argv[1], "w").write(txt)
```

```python
from asmlib import *
from layout import *
import math, struct

L_WL   = 0
L_MEMB = 131072
L_KXB  = L_MEMB + 8192
L_X    = L_MEMB + 24576
L_OB   = L_X + 4096
L_CA   = L_OB + 2048
L_DUM  = L_CA + 1024
LDS_TOTAL = 163840
PSLOT = 262144

S_WS = 4; S_W = 8; S_DBG = 12
S_PW = 16
S_H = 26; S_WV = 27; S_STEP = 28; S_T0 = 29; S_T1 = 30; S_T2 = 31
S_C = 32
S_PAR = 34
S_PST0 = 35; S_PST1 = 36; S_PLD = 37; S_POI = 38; S_MSL = 39; S_MPO = 40
S_KXA = 41; S_KXB = 42; S_M0A = 43; S_M0B = 44; S_VT = 45; S_KM = 46; S_VM = 47
S_TO = 48
S_R0 = 8; S_R1 = 9; S_R2 = 10
S_EX = 50
S_TM = 52
S_TACC = 54
S_STAMP = 72

V_IDX, V_WL0, V_WL1, V_MEM, V_XW, V_XR, V_OW, V_PS, V_PL, V_MS, V_MW, V_KXG, V_VVT, V_KMS, V_VMS = range(1, 16)
V_T = 16
V_MK = 20
V_SB = 52
V_AQ = 68; V_AK = 76; V_AV = 84
V_XF = 92
V_S = 108
V_VX = 120

def wreg(X, c, f):
    idx = X * 12 + c * 4 + f
    return ar(8 * idx, 8) if idx < 32 else vr(128 + 8 * (idx - 32), 8)
def wreg_part(X, c, f, p):
    idx = X * 12 + c * 4 + f
    return ar(8 * idx + 2 * p, 2) if idx < 32 else vr(128 + 8 * (idx - 32) + 2 * p, 2)

def srd(A, s, ptr, size):
    A(f"s_mov_b32 s{s}, s{ptr}")
    A(f"s_and_b32 s{s+1}, s{ptr+1}, 0xffff")
    A(f"s_mov_b32 s{s+2}, {size}")
    A(f"s_mov_b32 s{s+3}, 0x20000")

WSR = f"s[{S_WS}:{S_WS+3}]"

def poll_with_shadow(A, poll, name, regs, loadfn, pre_ok, shadow):
    orig = A.wait
    state = {'done': False}
    def w(vm=None, lg=None):
        if not state['done']:
            state['done'] = True
            shadow()
        orig(vm, lg)
    A.wait = w
    try:
        poll(name, regs, loadfn, pre_ok)
    finally:
        A.wait = orig

def emit_chain(A, timing=False, nsteps=64, opt=(), d1=0, d2=0, hodelay=8, kxpos=(14, 22), g1=12, g2=12, dstamp=None):
    extra_delay = ["s_nop 0"] * d1
    extra_delay2 = ["s_nop 0"] * d2
    lane = 17; t0 = 18; t1 = 19
    def pst(k):
        if 'pro' in opt: A.raw(f"    s_memrealtime s[{72+2*k}:{73+2*k}]")
    pst(1)
    A(f"v_and_b32 v{lane}, 63, v0")
    DQ = V_MK
    DO = V_MK + 2
    TRA = V_MK + 6
    TRO = V_MK + 8
    TMP = V_SB
    a = V_MK + 12; b = V_MK + 13; c_ = V_MK + 14; d_ = V_MK + 15
    A(f"v_lshrrev_b32 v{a}, 4, v{lane}")
    A(f"v_bfe_u32 v{b}, v{lane}, 1, 3")
    A(f"v_xor_b32 v{c_}, v{b}, v{a}")
    A(f"v_and_b32 v{d_}, 1, v{lane}")
    A(f"v_lshl_or_b32 v{c_}, v{c_}, 1, v{d_}")
    A(f"v_lshlrev_b32 v{c_}, 4, v{c_}")
    A(f"v_lshl_or_b32 v{DQ}, v{a}, 13, v{c_}")
    A(f"v_xor_b32 v{DQ+1}, 128, v{DQ}")
    A(f"v_and_b32 v{c_}, 1, v{a}")
    A(f"v_xor_b32 v{c_}, v{b}, v{c_}")
    A(f"v_lshl_or_b32 v{c_}, v{c_}, 1, v{d_}")
    A(f"v_lshrrev_b32 v{b}, 2, v{c_}")
    A(f"v_lshlrev_b32 v{b}, 8, v{b}")
    A(f"v_and_b32 v{c_}, 3, v{c_}")
    A(f"v_lshl_or_b32 v{b}, v{c_}, 5, v{b}")
    A(f"v_lshl_or_b32 v{DO}, v{a}, 10, v{b}")
    A(f"v_xor_b32 v{DO+1}, 256, v{DO}")
    A(f"v_xor_b32 v{DO+2}, 512, v{DO}")
    A(f"v_xor_b32 v{DO+3}, 768, v{DO}")
    A(f"v_bfe_u32 v{b}, v{lane}, 4, 1")
    A(f"v_bfe_u32 v{c_}, v{lane}, 3, 1")
    A(f"v_lshl_or_b32 v{b}, v{c_}, 1, v{b}")
    A(f"v_bfe_u32 v{c_}, v{lane}, 2, 1")
    A(f"v_lshl_or_b32 v{b}, v{c_}, 2, v{b}")
    A(f"v_bfe_u32 v{c_}, v{lane}, 5, 1")
    A(f"v_lshl_or_b32 v{c_}, v{c_}, 4, v{b}")
    A(f"v_lshlrev_b32 v{c_}, 8, v{c_}")
    A(f"v_and_b32 v{d_}, 3, v{lane}")
    A(f"v_lshl_or_b32 v{c_}, v{d_}, 3, v{c_}")
    A(f"s_lshl_b32 s{S_T0}, s{S_WV}, 1")
    A(f"v_xor_b32 v{b}, s{S_T0}, v{b}")
    A(f"v_lshl_or_b32 v{TRA}, v{b}, 5, v{c_}")
    A(f"v_xor_b32 v{TRA+1}, 32, v{TRA}")
    A(f"v_bfe_u32 v{b}, v{lane}, 5, 1")
    A(f"v_lshlrev_b32 v{b}, 4, v{b}")
    A(f"v_bfe_u32 v{c_}, v{lane}, 4, 1")
    A(f"v_lshl_or_b32 v{b}, v{c_}, 2, v{b}")
    A(f"v_lshlrev_b32 v{t0}, 1, v{c_}")
    A(f"v_bfe_u32 v{c_}, v{lane}, 2, 1")
    A(f"v_or_b32 v{b}, v{b}, v{c_}")
    A(f"v_or_b32 v{t0}, v{t0}, v{c_}")
    A(f"v_bfe_u32 v{c_}, v{lane}, 3, 1")
    A(f"v_lshl_or_b32 v{b}, v{c_}, 3, v{b}")
    A(f"v_lshl_or_b32 v{t0}, v{c_}, 2, v{t0}")
    A(f"v_lshlrev_b32 v{b}, 8, v{b}")
    A(f"v_and_b32 v{c_}, 1, v{lane}")
    A(f"v_lshl_or_b32 v{b}, v{c_}, 4, v{b}")
    A(f"v_bfe_u32 v{c_}, v{lane}, 1, 1")
    A(f"v_or_b32 v{c_}, s{S_T0}, v{c_}")
    A(f"v_xor_b32 v{c_}, v{c_}, v{t0}")
    A(f"v_lshl_or_b32 v{TRO}, v{c_}, 5, v{b}")
    A(f"v_add_u32 v{TRO+1}, 8, v{TRO}")

    A(f"v_bfe_u32 v{t0}, v{lane}, 1, 1")
    A(f"v_lshlrev_b32 v{t0}, 1, v{t0}")
    A(f"v_lshrrev_b32 v{t1}, 4, v{lane}")
    A(f"v_add_u32 v{t0}, v{t0}, v{t1}")
    A(f"v_lshlrev_b32 v{t0}, 4, v{t0}")
    A(f"v_and_b32 v{t1}, 1, v{lane}")
    A(f"v_lshl_or_b32 v{t0}, v{t1}, 3, v{t0}")
    A(f"s_lshl_b32 s{S_T0}, s{S_H}, 8")
    A(f"s_lshl_b32 s{S_T1}, s{S_WV}, 6")
    A(f"s_add_u32 s{S_T0}, s{S_T0}, s{S_T1}")
    A(f"v_bfe_u32 v{t1}, v{lane}, 2, 2")
    A(f"v_lshl_or_b32 v{t0}, v{t1}, 13, v{t0}")
    A(f"v_add_u32 v{V_MS}, s{S_T0}, v{t0}")
    srd(A, S_W, S_PW + 8, 8192)
    A(f"v_lshrrev_b32 v{t0}, 4, v{lane}")
    A(f"v_and_b32 v{t0}, 1, v{t0}")
    A(f"v_lshlrev_b32 v{t0}, 10, v{t0}")
    A(f"v_and_b32 v{t1}, 3, v{lane}")
    A(f"v_lshl_or_b32 v{t0}, v{t1}, 1, v{t0}")
    A(f"s_lshl_b32 s{S_T0}, s{S_WV}, 11")
    A(f"s_lshl_b32 s{S_T1}, s{S_H}, 5")
    A(f"s_add_u32 s{S_T0}, s{S_T0}, s{S_T1}")
    M0R = V_S + 4
    MT = V_S
    for j in range(4):
        A(f"buffer_load_ushort v{MT+j}, v{t0}, s[{S_W}:{S_W+3}], s{S_T0} offen offset:{8*j}")
    P = V_XF
    for i in range(4): A(f"v_mov_b32 v{P+i}, -1")
    A(f"v_lshlrev_b32 v{t0}, 4, v0")
    A(f"s_lshl_b32 s{S_T0}, s{S_H}, 13")
    A(f"s_add_u32 s{S_T0}, s{S_T0}, {WS_PBUF}")
    for slot in range(3):
        for i in range(2):
            A(f"s_add_u32 s{S_T1}, s{S_T0}, {slot*PSLOT + i*4096}")
            A(f"buffer_store_dwordx4 v[{P}:{P+3}], v{t0}, {WSR}, s{S_T1} offen")
    A(f"v_cmp_gt_u32 vcc, 16, v0")
    A(f"s_and_saveexec_b64 s[{S_EX}:{S_EX+1}], vcc")
    A(f"s_cbranch_execz L_nomp")
    A(f"s_lshl_b32 s{S_T0}, s{S_H}, 8")
    A(f"s_add_u32 s{S_T0}, s{S_T0}, {WS_MBUF}")
    for sl in (1, 2):
        for cp in range(4):
            A(f"s_add_u32 s{S_T1}, s{S_T0}, {sl*32768 + cp*8192}")
            A(f"buffer_store_dwordx4 v[{P}:{P+3}], v{t0}, {WSR}, s{S_T1} offen")
    A.label("L_nomp")
    A(f"s_mov_b64 exec, s[{S_EX}:{S_EX+1}]")
    A.vm = []

    order = [(X, c) for X in range(4) for c in range(3)] + [(X, 3) for X in range(4)]
    slot_of = {}
    for i, (X, c) in enumerate(order[:12]): slot_of[(X, c)] = i % 5
    for X in range(4): slot_of[(X, 3)] = X
    def issue(X, c):
        srd(A, S_W, S_PW + 2 * X, 4194304)
        slot = slot_of[(X, c)]
        if X < 3:
            A(f"s_lshl_b32 s{S_T0}, s{S_WV}, 18")
            A(f"s_lshl_b32 s{S_T1}, s{S_H}, 8")
            A(f"s_add_u32 s{S_T0}, s{S_T0}, s{S_T1}")
            A(f"s_add_u32 s{S_T0}, s{S_T0}, {128*c*8192}")
            step = 4 * 8192
        else:
            A(f"s_lshl_b32 s{S_T0}, s{S_WV}, 15")
            A(f"s_lshl_b32 s{S_T1}, s{S_H}, 17")
            A(f"s_add_u32 s{S_T0}, s{S_T0}, s{S_T1}")
            A(f"s_add_u32 s{S_T0}, s{S_T0}, {(c >> 1) * 128 + (c & 1) * 16}")
            step = 4 * 1024
        A(f"s_lshl_b32 s{S_T1}, s{S_WV}, 13")
        A(f"s_add_u32 s{S_T1}, s{S_T1}, {slot*32768}")
        for i in range(8):
            D = DQ + (i & 1) if X < 3 else DO + (i & 3)
            A(f"s_mov_b32 m0, s{S_T1}")
            A(f"buffer_load_dwordx4 v{D}, s[{S_W}:{S_W+3}], s{S_T0} offen lds")
            if i < 7:
                A(f"s_add_u32 s{S_T0}, s{S_T0}, {step}")
                A(f"s_add_u32 s{S_T1}, s{S_T1}, 1024")
    pst(2)
    if 'diag' in opt: dstamp(A, 14, True)
    issued = []
    for k in range(5):
        issue(*order[k]); issued.append(order[k])
    A.raw("    s_waitcnt vmcnt(40)")
    _sv = A.vm; A.vm = []
    A(f"v_lshl_or_b32 v{M0R}, v{MT+1}, 16, v{MT}")
    A(f"v_lshl_or_b32 v{M0R+1}, v{MT+3}, 16, v{MT+2}")
    A(f"s_mov_b32 s{S_T0}, {WS_MBUF}")
    A(f"s_mov_b64 exec, 0xffffffff")
    A(f"buffer_store_dwordx2 v[{M0R}:{M0R+1}], v{V_MS}, {WSR}, s{S_T0} offen")
    A(f"s_mov_b64 exec, -1")
    A.vm = _sv
    follow = {0: order[5], 1: order[6], 2: order[7], 3: order[8], 4: order[9], 5: order[10], 6: order[11],
              7: (2, 3), 8: (3, 3), 10: (0, 3), 11: (1, 3)}
    def trreads(X, slot, f, dst_fn):
        t = f & 1; ksp = f >> 1
        base = slot * 32768
        TR = TRA if X < 3 else TRO
        breg = TR + t
        if base >= 32768:
            A(f"v_add_u32 v{t1}, {base}, v{TR+t}")
            breg = t1
        for tp in range(4):
            if X < 3: imm = (64 * ksp + 32 * (tp >> 1) + 8 * (tp & 1)) * 256
            else: imm = (64 * ksp + 32 * (tp >> 1) + 2 * (tp & 1)) * 256
            A(f"ds_read_b64_tr_b16 {dst_fn(tp)}, v{breg} offset:{imm}")
    def consume_wait(ch):
        pos = issued.index(ch)
        n_after = len(issued) - 1 - pos
        A.wait(vm=8 * n_after)
        A("s_barrier")
    for i, (X, c) in enumerate(order[:12]):
        consume_wait((X, c))
        if i == 0: pst(3)
        if i == 4: pst(4)
        if i == 8: pst(5)
        if i == 5:
            A(f"s_cmp_lg_u32 s{S_WV}, 0")
            A(f"s_cbranch_scc1 L_rdy_skip")
            A(f"v_mov_b32 v{t1}, 1")
            A(f"s_mov_b64 exec, 1")
            A(f"buffer_atomic_add v{t1}, off, s[{S_DBG}:{S_DBG+3}], 0 offset:36")
            A(f"s_mov_b64 exec, -1")
            A.vm.pop()
            A.label("L_rdy_skip")
        for f in range(4):
            trreads(X, slot_of[(X, c)], f, lambda tp: wreg_part(X, c, f, tp))
        A.wait(lg=0)
        A("s_barrier")
        if i in follow:
            issue(*follow[i]); issued.append(follow[i])
    pst(6)
    if 'diag' in opt: dstamp(A, 10, True)
    def S(x): A(x)
    S(f"v_bfe_u32 v{t0}, v{lane}, 1, 1")
    S(f"v_mov_b32 v{V_IDX}, 0x4444")
    S(f"v_mov_b32 v{t1}, 0xeeee")
    S(f"v_cmp_ne_u32 vcc, 0, v{t0}")
    S(f"v_cndmask_b32 v{V_IDX}, v{V_IDX}, v{t1}, vcc")
    S(f"s_lshl_b32 s{S_T0}, s{S_WV}, 13")
    S(f"v_lshlrev_b32 v{t0}, 4, v{lane}")
    S(f"v_add_u32 v{V_WL0}, s{S_T0}, v{t0}")
    S(f"v_add_u32 v{V_WL1}, 0x10000, v{V_WL0}")
    S(f"v_add_u32 v{V_MEM}, {L_MEMB}, v{t0}")
    S(f"s_lshl_b32 s{S_T0}, s{S_WV}, 11")
    S(f"v_add_u32 v{V_MW}, s{S_T0}, v{V_MEM}")
    S(f"s_lshl_b32 s{S_T1}, s{S_H}, 13")
    S(f"s_add_u32 s{S_T0}, s{S_T0}, s{S_T1}")
    S(f"v_add_u32 v{V_PL}, s{S_T0}, v{t0}")
    S(f"v_and_b32 v{t0}, 15, v{lane}")
    S(f"v_lshlrev_b32 v{t0}, 5, v{t0}")
    S(f"v_lshrrev_b32 v{t1}, 4, v{lane}")
    S(f"v_lshl_or_b32 v{t0}, v{t1}, 3, v{t0}")
    S(f"v_bfe_u32 v{t1}, v{lane}, 3, 1")
    S(f"v_lshlrev_b32 v{t1}, 7, v{t1}")
    S(f"v_xor_b32 v{t0}, v{t0}, v{t1}")
    S(f"s_lshl_b32 s{S_T0}, s{S_WV}, 10")
    S(f"s_add_u32 s{S_T0}, s{S_T0}, {L_X}")
    S(f"v_add_u32 v{V_XW}, s{S_T0}, v{t0}")
    S(f"v_lshrrev_b32 v{t0}, 4, v{lane}")
    S(f"v_lshlrev_b32 v{t0}, 3, v{t0}")
    S(f"v_bfe_u32 v{t1}, v{lane}, 2, 2")
    S(f"v_or_b32 v{t0}, v{t0}, v{t1}")
    S(f"v_lshlrev_b32 v{t0}, 5, v{t0}")
    S(f"v_and_b32 v{t1}, 3, v{lane}")
    S(f"v_lshl_or_b32 v{t0}, v{t1}, 3, v{t0}")
    S(f"v_bfe_u32 v{t1}, v{lane}, 4, 1")
    S(f"v_lshlrev_b32 v{t1}, 7, v{t1}")
    S(f"v_xor_b32 v{t0}, v{t0}, v{t1}")
    S(f"v_add_u32 v{V_XR}, {L_X}, v{t0}")
    S(f"v_xor_b32 v{V_KMS}, 128, v{t0}")
    S(f"v_add_u32 v{V_KMS}, {L_X}, v{V_KMS}")
    S(f"v_and_b32 v{t0}, 13, v{lane}")
    S(f"v_bfe_u32 v{t1}, v{lane}, 5, 1")
    S(f"v_lshl_or_b32 v{t0}, v{t1}, 1, v{t0}")
    S(f"v_lshlrev_b32 v{t0}, 4, v{t0}")
    S(f"v_bfe_u32 v{t1}, v{lane}, 4, 1")
    S(f"v_lshl_or_b32 v{t0}, v{t1}, 3, v{t0}")
    S(f"s_lshl_b32 s{S_T0}, s{S_WV}, 9")
    S(f"s_add_u32 s{S_T0}, s{S_T0}, {L_OB}")
    S(f"v_add_u32 v{V_OW}, s{S_T0}, v{t0}")
    S(f"v_mov_b32 v{t0}, {L_DUM}")
    S(f"v_and_b32 v{t1}, 2, v{lane}")
    S(f"v_cmp_ne_u32 vcc, 0, v{t1}")
    S(f"v_cndmask_b32 v{V_OW}, v{V_OW}, v{t0}, vcc")
    S(f"v_bfe_u32 v{t0}, v{lane}, 2, 2")
    S(f"v_lshlrev_b32 v{t0}, 13, v{t0}")
    S(f"v_lshrrev_b32 v{t1}, 4, v{lane}")
    S(f"v_lshl_or_b32 v{t0}, v{t1}, 11, v{t0}")
    S(f"v_and_b32 v{t1}, 3, v{lane}")
    S(f"v_lshl_or_b32 v{t0}, v{t1}, 4, v{t0}")
    S(f"s_lshl_b32 s{S_T0}, s{S_H}, 6")
    S(f"v_add_u32 v{V_PS}, s{S_T0}, v{t0}")
    S(f"v_and_b32 v{t0}, 15, v{lane}")
    S(f"v_lshlrev_b32 v{t0}, 13, v{t0}")
    S(f"v_lshrrev_b32 v{t1}, 4, v{lane}")
    S(f"v_lshl_or_b32 v{t0}, v{t1}, 4, v{t0}")
    S(f"s_lshl_b32 s{S_T0}, s{S_H}, 8")
    S(f"s_lshr_b32 s{S_T1}, s{S_WV}, 1")
    S(f"s_lshl_b32 s{S_T1}, s{S_T1}, 17")
    S(f"s_add_u32 s{S_T0}, s{S_T0}, s{S_T1}")
    S(f"s_and_b32 s{S_T1}, s{S_WV}, 1")
    S(f"s_lshl_b32 s{S_T1}, s{S_T1}, 7")
    S(f"s_add_u32 s{S_T0}, s{S_T0}, s{S_T1}")
    S(f"v_add_u32 v{V_KXG}, s{S_T0}, v{t0}")
    S(f"v_and_b32 v{t0}, 15, v{lane}")
    S(f"v_lshlrev_b32 v{t0}, 6, v{t0}")
    S(f"v_lshrrev_b32 v{t1}, 4, v{lane}")
    S(f"v_lshl_or_b32 v{t0}, v{t1}, 4, v{t0}")
    S(f"s_lshl_b32 s{S_T0}, s{S_H}, 13")
    S(f"s_lshl_b32 s{S_T1}, s{S_WV}, 11")
    S(f"s_add_u32 s{S_T0}, s{S_T0}, s{S_T1}")
    S(f"v_add_u32 v{V_VVT}, s{S_T0}, v{t0}")
    S(f"v_lshlrev_b32 v{t0}, 4, v{lane}")
    S(f"s_lshl_b32 s{S_T0}, s{S_H}, 12")
    S(f"s_lshl_b32 s{S_T1}, s{S_WV}, 10")
    S(f"s_add_u32 s{S_T0}, s{S_T0}, s{S_T1}")
    S(f"v_add_u32 v{V_VMS}, s{S_T0}, v{t0}")
    c = (128 ** -0.5) * math.log2(math.e)
    cbits = hex(struct.unpack('<I', struct.pack('<f', c))[0])
    S(f"s_mov_b32 s{S_C}, {cbits}")
    S(f"s_mov_b32 s{S_C+1}, {cbits}")

    CA = V_AK
    A(f"v_and_b32 v{a}, 15, v{lane}")
    A(f"v_mov_b32 v{b}, 0x3f80")
    A(f"v_mov_b32 v{c_}, 0x3f800000")
    A(f"v_cmp_gt_u32 vcc, 4, v{a}")
    A(f"v_cndmask_b32 v{b}, v{c_}, v{b}, vcc")
    A(f"v_cmp_gt_u32 vcc, 8, v{a}")
    A(f"v_cndmask_b32 v{b}, 0, v{b}, vcc")
    A(f"v_and_b32 v{a}, 3, v{a}")
    for i in range(4):
        A(f"v_cmp_eq_u32 vcc, {i}, v{a}")
        A(f"v_cndmask_b32 v{CA+i}, 0, v{b}, vcc")
    A(f"s_lshl_b32 s{S_M0A}, s{S_WV}, 11")
    A(f"s_add_u32 s{S_M0A}, s{S_M0A}, {L_KXB}")
    A(f"s_mov_b32 s{S_KXA}, {WS_KX}")
    def kx0():
        A(f"s_mov_b32 m0, s{S_M0A}")
        A(f"buffer_load_dwordx4 v{V_KXG}, {WSR}, s{S_KXA} offen sc1 lds")
        A(f"s_add_u32 s{S_T0}, s{S_M0A}, 1024")
        A(f"s_add_u32 s{S_T1}, s{S_KXA}, 64")
        A(f"s_mov_b32 m0, s{S_T0}")
        A(f"buffer_load_dwordx4 v{V_KXG}, {WSR}, s{S_T1} offen sc1 lds")
    if 'merged' not in opt: kx0()
    A.wait(vm=0)
    A.vm = []
    A(f"ds_write_b128 v{V_MEM}, v[{CA}:{CA+3}] offset:{L_CA-L_MEMB}")
    A.wait(lg=0)
    A("s_barrier")
    A(f"s_mov_b32 s{S_TO}, 0")
    A(f"v_mov_b32 v{t0}, 36")
    A.label("L_rdy_poll")
    A(f"buffer_load_dword v{t1}, v{t0}, s[{S_DBG}:{S_DBG+3}], 0 offen sc1")
    A(f"s_add_u32 s{S_TO}, s{S_TO}, 1")
    A(f"s_cmp_gt_u32 s{S_TO}, 0x40000")
    A(f"s_cbranch_scc1 L_bail")
    A.wait(vm=0)
    A(f"v_cmp_gt_u32 vcc, 32, v{t1}")
    A(f"s_cbranch_vccnz L_rdy_poll")
    A.forget()
    if 'merged' in opt:
        A(f"s_mov_b32 s{S_TO}, 0")
        A.label("L_ci_poll")
        A(f"buffer_load_dword v{t1}, off, s[{S_DBG}:{S_DBG+3}], 0 offset:{D_INIT} sc1")
        A(f"s_add_u32 s{S_TO}, s{S_TO}, 1")
        A(f"s_cmp_gt_u32 s{S_TO}, 0x100000")
        A(f"s_cbranch_scc1 L_bail")
        A.wait(vm=0)
        A(f"v_cmp_eq_u32 vcc, 0, v{t1}")
        A(f"s_cbranch_vccnz L_ci_poll")
        A.forget()
    pst(7)
    if 'diag' in opt: dstamp(A, 11, True)
    for X in range(4):
        for f in range(4):
            trreads(X, X, f, lambda tp: vr(TMP + 8 * f + 2 * tp, 2))
        A.wait(lg=0)
        A("s_barrier")
        base = V_WL0 if X < 2 else V_WL1
        for f in range(4):
            for hh in range(2):
                A(f"ds_write_b128 v{base}, v[{TMP+8*f+4*hh}:{TMP+8*f+4*hh+3}] offset:{(X&1)*32768 + f*2048 + hh*1024}")
        A.wait(lg=0)
    if 'diag' in opt: dstamp(A, 12, True)
    if 'merged' in opt:
        A(f"s_mov_b32 s{S_T0}, {F_KV}")
        A.label("L_ck_poll")
        A(f"buffer_load_dword v{t1}, off, {WSR}, s{S_T0} sc1")
        A(f"s_add_u32 s{S_TO}, s{S_TO}, 1")
        A(f"s_cmp_gt_u32 s{S_TO}, 0x100000")
        A(f"s_cbranch_scc1 L_bail")
        A.wait(vm=0)
        A(f"v_cmp_gt_u32 vcc, 128, v{t1}")
        A(f"s_cbranch_vccnz L_ck_poll")
        A.forget()
        if 'diag' in opt: dstamp(A, 13, True)
        kx0()


    A("s_waitcnt vmcnt(0)")
    A("s_barrier")
    pst(8)
    if 'diag' in opt: dstamp(A, 5, True)
    pst(9)
    if 'pro' in opt:
        A.raw("    s_waitcnt lgkmcnt(0)")
        A(f"s_lshl_b32 s{S_T0}, s{S_H}, 2")
        A(f"s_add_u32 s{S_T0}, s{S_T0}, s{S_WV}")
        A(f"s_lshl_b32 s{S_T0}, s{S_T0}, 7")
        A(f"s_add_u32 s{S_T0}, s{S_T0}, {WS_TIME}")
        A(f"s_mov_b64 exec, 1")
        for k in range(10):
            A(f"v_mov_b32 v{V_T+1}, s{72+2*k}")
            A(f"v_mov_b32 v{V_T}, {4*k}")
            A(f"buffer_store_dword v{V_T+1}, v{V_T}, {WSR}, s{S_T0} offen")
        A(f"s_mov_b64 exec, -1")
        A.wait(vm=0)
    S_MA = 16; S_MB = 18; S_MT = 20
    S_PUB = 22; S_MPZ = 23; S_KEEP = 24; S_B0 = 11; S_B1 = 25; S_B2 = 49; S_HC = 46
    A(f"s_mov_b32 s{S_STEP}, 0")
    A(f"s_mov_b32 s{S_PAR}, 0")
    A(f"s_mov_b32 s{S_VT}, {WS_VT - 32*8192}")
    A(f"s_and_b32 s{S_HC}, s{S_H}, 3")
    A(f"s_lshl_b32 s{S_HC}, s{S_HC}, 13")
    A(f"s_sub_u32 s{S_HC}, s{S_HC}, {L_MEMB}")
    A(f"s_mov_b32 s{S_B0}, {WS_MBUF}")
    A(f"s_mov_b32 s{S_B1}, {WS_MBUF + 32768}")
    A(f"s_mov_b32 s{S_B2}, {WS_MBUF + 65536}")
    A(f"s_mov_b32 s{S_VM}, {WS_KVM}")
    S_FLG = 53; S_FOFF = 52; S_POFF = 54
    if 'merged' in opt:
        A(f"s_mov_b32 s{S_FOFF}, {F_KV}")
        A(f"s_lshl_b32 s{S_POFF}, s{S_H}, 7")
        A(f"s_add_u32 s{S_POFF}, s{S_POFF}, {F_PROG}")
    A(f"s_mov_b32 s{S_EX+1}, {WS_KVM + 64*32*4096}")
    A(f"s_mov_b32 s{S_R0}, {WS_PBUF}")
    A(f"s_mov_b32 s{S_R1}, {WS_PBUF + PSLOT}")
    A(f"s_mov_b32 s{S_R2}, {WS_PBUF + 2*PSLOT}")
    def zero(r, n): return [f"v_mov_b64 v[{r+i}:{r+i+1}], 0" for i in range(0, n, 2)]
    def step_scalars():
        o = []
        o.append(f"s_mov_b32 s{S_PLD}, s{S_R0}")
        o.append(f"s_mov_b32 s{S_POI}, s{S_R2}")
        o.append(f"s_lshl_b32 s{S_T1}, s{S_WV}, 16")
        o.append(f"s_add_u32 s{S_PST0}, s{S_PLD}, s{S_T1}")
        o.append(f"s_add_u32 s{S_PST1}, s{S_PST0}, 32768")
        o.append(f"s_add_u32 s{S_MSL}, s{S_B0}, s{S_HC}")
        o.append(f"s_add_u32 s{S_MPO}, s{S_MSL}, 1024")
        o.append(f"s_add_u32 s{S_VT}, s{S_VT}, {32*8192}")
        o.append(f"s_add_u32 s{S_KXA}, s{S_KXA}, {32*8192}")
        o.append(f"s_add_u32 s{S_KXB}, s{S_KXA}, 64")
        o.append(f"s_xor_b32 s{S_M0A}, s{S_M0A}, {L_KXB ^ (L_KXB + 8192)}")
        o.append(f"s_add_u32 s{S_M0B}, s{S_M0A}, 1024")
        o.append(f"v_add_u32 v0, s{S_PAR}, v{V_MEM}")
        return o
    for x in zero(V_AQ, 24): A(x)
    for x in step_scalars(): A(x)
    A(f"buffer_load_dwordx4 v[{V_S+4}:{V_S+7}], v{V_MW}, {WSR}, s{S_MSL} offen sc1")
    A(f"buffer_load_dwordx4 v[{V_S+8}:{V_S+11}], v{V_MW}, {WSR}, s{S_MPO} offen sc1")
    A(f"ds_write_b128 v{V_MW}, v[{V_S+4}:{V_S+7}]")
    A(f"ds_write_b128 v{V_MW}, v[{V_S+8}:{V_S+11}] offset:1024")
    A.wait(lg=0)
    A("s_barrier")
    def sbload(buf, X, f):
        base = V_WL0 if X < 2 else V_WL1
        r = V_SB + 8 * buf
        return [f"ds_read_b128 v[{r}:{r+3}], v{base} offset:{(X&1)*32768 + f*2048}",
                f"ds_read_b128 v[{r+4}:{r+7}], v{base} offset:{(X&1)*32768 + f*2048 + 1024}"]
    for s_ in sbload(0, 0, 0) + sbload(1, 0, 1): A(s_)
    if timing:
        for i in range(18): A(f"s_mov_b32 s{S_TACC+i}, 0")
    A.wait(lg=0)
    A.settle()
    A.forget()

    NST = 15
    def stamp(k):
        if timing: A.raw(f"    {'s_memrealtime' if ('abs' in opt and 'absm' not in opt) else 's_memtime'} s[{S_STAMP+2*k}:{S_STAMP+2*k+1}]")
    def stamp_acc():
        if timing and 'abs' in opt:
            A.raw("    s_waitcnt lgkmcnt(0)")
            lb = A.newlabel("L_abs")
            A(f"s_cmp_lg_u32 s{S_STEP}, 31")
            A(f"s_cbranch_scc1 {lb}")
            for k in range(NST):
                A(f"s_mov_b32 s{S_TACC+k}, s{S_STAMP+2*k}")
            A.label(lb)
            return
        if timing:
            A.raw("    s_waitcnt lgkmcnt(0)")
            A(f"s_sub_u32 s{S_T2}, s{S_STAMP}, s{S_TM}")
            A(f"s_add_u32 s{S_TACC}, s{S_TACC}, s{S_T2}")
            for k in range(1, NST):
                A(f"s_sub_u32 s{S_T2}, s{S_STAMP+2*k}, s{S_STAMP+2*(k-1)}")
                A(f"s_add_u32 s{S_TACC+k}, s{S_TACC+k}, s{S_T2}")
            A(f"s_mov_b32 s{S_TM}, s{S_STAMP+2*(NST-1)}")
    def M(ks): return vr(V_MK + 4 * ks, 4)
    def mload(ks, sc=""):
        return f"ds_read_b128 {M(ks)}, v{V_MEM} offset:{ks*1024}"
    def pack(acc, t, dst):
        return [f"v_pk_add_f32 v[{acc+4*t}:{acc+4*t+1}], v[{acc+4*t}:{acc+4*t+1}], v[{acc+4*t+2}:{acc+4*t+3}]",
                f"v_cvt_pk_bf16_f32 v{dst}, v{acc+4*t}, v{acc+4*t+1}"]

    if 'diag' in opt: dstamp(A, 6, True)
    pre_barrier = []
    sfx = ['']
    if 'rt' in opt:
        A.raw("    s_memtime s[56:57]")
        A.raw("    s_memrealtime s[58:59]")
        A.raw("    s_waitcnt lgkmcnt(0)")
        A("s_mov_b32 s64, 0"); A("s_mov_b32 s65, 0")
    if timing:
        A(f"s_memtime s[{S_TM}:{S_TM+1}]")
        A.wait(lg=0)
    A.label("L_step")
    if 'diag' in opt: dstamp(A, 16, True, S_STEP)
    if 'steps' in opt:
        A.raw("    s_memtime s[56:57]")
    stamp(0)
    morder = [6, 0, 1, 2, 7, 3, 4, 5]
    npre = 8
    for ks in morder: A(mload(ks))
    if 'merged' in opt:
        A(f"buffer_load_dword v{V_S}, off, {WSR}, s{S_FOFF} sc1")
    if 'noload' not in opt and 'novt' not in opt:
        A(f"buffer_load_dwordx4 v[{V_VX}:{V_VX+3}], v{V_VVT}, {WSR}, s{S_VT} offen sc1")
        A(f"buffer_load_dwordx4 v[{V_VX+4}:{V_VX+7}], v{V_VVT}, {WSR}, s{S_VT} offen offset:1024 sc1")
    A(f"buffer_store_dwordx4 v[{V_AV}:{V_AV+3}], v{V_VMS}, {WSR}, s{S_EX+1} offen" + ("" if 'nopub' in opt else " sc1"))
    if 'merged' in opt:
        A(f"s_cmp_lg_u32 s{S_WV}, 0")
        A(f"s_cbranch_scc1 L_noprog")
        A(f"s_sub_u32 s{S_T0}, s{S_STEP}, 1")
        A(f"s_max_i32 s{S_T0}, s{S_T0}, 0")
        A(f"v_mov_b32 v{V_T+1}, s{S_T0}")
        A(f"s_mov_b64 exec, 1")
        A(f"buffer_store_dword v{V_T+1}, off, {WSR}, s{S_POFF} sc1")
        A(f"s_mov_b64 exec, -1")
        A.vm.pop()
        A.label("L_noprog")
    late_zero = zero(V_AV, 8)
    SL = [(0,0),(0,1),(1,0),(1,1),(0,2),(0,3),(1,2),(1,3),(2,0),(2,1),(2,2),(2,3)]
    RL = [(X, t, ks) for ks in range(6) for X in (0, 1) for t in (0, 1)]
    ACC = {0: V_AQ, 1: V_AK, 2: V_AV}
    CHK = V_T + 1
    qk = []
    ri = 0
    for pos in range(32):
        if pos % 4 == 0:
            X, f = SL[pos // 4]; qk.append(('S', X, f & 1, 6 + (f >> 1), pos // 4))
        else:
            X, t, ks = RL[ri]; ri += 1; qk.append(('R', X, t, ks, None))
    def mf(e):
        kind, X, t, ks, si = e
        d = vr(ACC[X] + 4 * t, 4)
        bsrc = vr(V_SB + 8 * (si & 1), 8) if kind == 'S' else wreg(X, ks >> 1, (ks & 1) * 2 + t)
        return f"v_smfmac_f32_16x16x64_bf16 {d}, {M(ks)}, {bsrc}, v{V_IDX}"
    def qk_pass(loads):
        fill = {p: [] for p in range(32)}
        for p in range(0, 32, 4):
            si = p // 4
            fill[p] += sbload(si & 1, *SL[si + 2])
        first_use = {}
        for p, e in enumerate(qk):
            first_use.setdefault(e[3], p)
        if loads:
            rem = morder[npre:]
            for i, ks in enumerate(rem): fill[1 + 5 * i].append(mload(ks))
        for i, x in enumerate(late_zero): fill[9 + 4 * i].append(x)
        if 'noload' not in opt and 'nokx' not in opt:
            pa, pb = kxpos
            fill[pa - 1] += [f"s_mov_b32 m0, s{S_M0A}"]
            fill[pa] += [f"buffer_load_dwordx4 v{V_KXG}, {WSR}, s{S_KXA} offen sc1 lds"]
            fill[pb - 1] += [f"s_mov_b32 m0, s{S_M0B}"]
            fill[pb] += [f"buffer_load_dwordx4 v{V_KXG}, {WSR}, s{S_KXB} offen sc1 lds"]
        for p in range(32):
            A(mf(qk[p]))
            if p == 0 and loads: stamp(1)
            for x in fill[p]: A(x)
    qk_pass(True)
    A.label("L_v")
    stamp(2)
    seq = []
    seqR = [(0,0),(1,0),(0,1),(1,1),(0,2),(1,2),(0,3),(1,3),(0,4),(1,4),(0,5),(1,5)]
    ri = 0
    for pos in range(16):
        if pos % 4 == 0:
            f = pos // 4; seq.append(('S', 2, f & 1, 6 + (f >> 1), 8 + f))
        else:
            t, ks = seqR[ri]; ri += 1; seq.append(('R', 2, t, ks, None))
    fill = {p: [] for p in range(16)}
    fill[0] += sbload(0, *SL[10]); fill[4] += sbload(1, *SL[11])
    fill[1] += pack(V_AQ, 0, V_AQ + 2)[:1] + pack(V_AQ, 1, V_AQ + 6)[:1]
    fill[2] += pack(V_AQ, 0, V_AQ + 2)[1:] + pack(V_AQ, 1, V_AQ + 6)[1:] + [f"ds_write2_b32 v{V_XW}, v{V_AQ+2}, v{V_AQ+6} offset0:0 offset1:128"]
    fill[3] += pack(V_AK, 0, V_AK + 2)[:1] + pack(V_AK, 1, V_AK + 6)[:1]
    fill[4] += pack(V_AK, 0, V_AK + 2)[1:] + pack(V_AK, 1, V_AK + 6)[1:] + [f"ds_write2_b32 v{V_XW}, v{V_AK+2}, v{V_AK+6} offset0:1 offset1:129"]
    fill[5] += [f"v_mov_b32 v{V_T}, v{V_AK+2}", f"v_mov_b32 v{V_T+1}, v{V_AK+6}"]
    fill[7] += ["@wait_writes", "s_barrier"]
    xf = []
    for ks in range(4):
        for hh in range(2):
            xf.append(f"ds_read_b64_tr_b16 v[{V_XF+4*ks+2*hh}:{V_XF+4*ks+2*hh+1}], v{V_XR if hh == 0 else V_KMS} offset:{ks*1024}")
    last = {}
    for p, e in enumerate(seq): last[e[3]] = p
    free_order = sorted(last, key=lambda k: last[k])
    kxr = {}
    kxr[(0, 0)] = vr(V_AQ, 4); kxr[(0, 1)] = vr(V_AQ + 4, 4); kxr[(0, 2)] = vr(V_AK, 4); kxr[(0, 3)] = vr(V_AK + 4, 4)
    for kk in range(4): kxr[(1, kk)] = M(free_order[kk])
    def kxload(T, kk): return f"ds_read_b128 {kxr[(T, kk)]}, v0 offset:{8192 + (T*4+kk)*1024}"
    fill[7] += xf[0:2]; fill[8] += xf[2:4]; fill[9] += xf[4:6]; fill[10] += xf[6:8]
    fill[11] += [kxload(0, 0), kxload(0, 1)]; fill[13] += [kxload(0, 2)]; fill[14] += [kxload(0, 3)]
    assert last[free_order[3]] <= 13
    for p in range(16):
        A(mf(seq[p]))
        for x in fill[p]:
            if x == "s_barrier" and 'vdet' in opt: stamp(8)
            if x == "@wait_writes" and 'vdet' in opt: stamp(11)
            A(x)
            if x == "s_barrier" and 'vdet' in opt: stamp(9)
        if p == 11 and 'vdet' in opt: stamp(12)
    stamp(3)
    A.raw(f"    s_waitcnt vmcnt({(1 if 'noload' in opt else 3 if ('novt' in opt or 'nokx' in opt) else 5) + (1 if 'steps' in opt else 0)})")
    if 'merged' in opt:
        A(f"v_readfirstlane_b32 s{S_FLG}, v{V_S}")
    S0, S1, S2 = V_S, V_S + 4, V_S + 8
    def tm(dst, a_, ks, first):
        cc = "0" if first else vr(dst, 4)
        return f"v_mfma_f32_16x16x32_bf16 {vr(dst,4)}, {a_}, {vr(V_XF+4*ks,4)}, {cc}"
    seqT = [(S0, None, k) for k in range(4)] + [(S1, 0, k) for k in range(4)] + [(S2, 1, k) for k in range(4)]
    fill = {p: [] for p in range(12)}
    ONr = V_MK + 4 * free_order[4]
    LD = V_MK + 4 * free_order[5]
    fill[0] += [kxload(1, 0), kxload(1, 1)]; fill[1] += [kxload(1, 2), kxload(1, 3)]
    fill[7] += [f"v_mov_b32 v{ONr}, 0x3f803f80", f"v_mov_b32 v{ONr+1}, 0x3f803f80"]
    fill[8] += [f"v_mov_b32 v{ONr+2}, 0x3f803f80", f"v_mov_b32 v{ONr+3}, 0x3f803f80"]
    fill[2] += pack(V_AV, 0, V_AV + 2)[:1] + pack(V_AV, 1, V_AV + 6)[:1]
    fill[3] += pack(V_AV, 0, V_AV + 2)[1:] + pack(V_AV, 1, V_AV + 6)[1:]
    fill[4] += [f"v_mov_b32 v{V_AV+3}, 0", f"v_mov_b32 v{V_AV+7}, 0"]
    fill[5] += [f"v_mov_b32 v{V_AV}, v{V_T}", f"v_mov_b32 v{V_AV+1}, v{V_T+1}"]
    Tt = V_T + 1; Ls = V_T + 2; Mx = V_T + 3
    fill[9] += [f"v_max3_f32 v{Mx}, v{S0+2}, v{S0+3}, v{S1}"]
    fill[10] += [f"v_max3_f32 v{Mx}, v{Mx}, v{S1+1}, v{S1+2}"]
    fill[11] += [f"v_max_f32 v{Mx}, v{Mx}, v{S1+3}"]
    for p, (dst, T, kk) in enumerate(seqT):
        a_ = vr(V_XF + 4 * kk, 4) if T is None else kxr[(T, kk)]
        A(tm(dst, a_, kk, kk == 0))
        for x in fill[p]: A(x)
    stamp(4)
    A(f"s_cmp_eq_u32 s{S_STEP}, {nsteps-1}")
    A(f"s_cbranch_scc1 L_last")
    A(f"v_max3_f32 v{Mx}, v{Mx}, v{S2}, v{S2+1}")
    A(f"v_max3_f32 v{Tt}, v{Mx}, v{S2+2}, v{S2+3}")
    A(f"v_max3_f32 v{Mx}, v{Mx}, v{S2+2}, v{S2+3}")
    sbo = sbload(0, 3, 0) + sbload(1, 3, 1)
    A(sbo[0])
    A(f"v_permlane16_swap_b32 v{Mx}, v{Tt}")
    A(sbo[1])
    A(f"v_max_f32 v{Ls}, v{Mx}, v{Tt}")
    A(f"v_max_f32 v{Mx}, v{Mx}, v{Tt}")
    A(sbo[2])
    A(sbo[3])
    A(f"v_permlane32_swap_b32 v{Mx}, v{Ls}")
    A(f"v_max_f32 v{Mx}, v{Mx}, v{Ls}")
    A(f"v_mul_f32 v{Mx}, s{S_C}, v{Mx}")
    def pkf(r): return f"v_pk_fma_f32 v[{r}:{r+1}], v[{r}:{r+1}], s[{S_C}:{S_C+1}], v[{Mx-1}:{Mx}] op_sel:[0,0,1] op_sel_hi:[1,1,1] neg_lo:[0,0,1] neg_hi:[0,0,1]"
    for r in (S1, S1 + 2, S2, S2 + 2, S0 + 2): A(pkf(r))
    P12 = V_AQ; P0 = V_AQ + 4; OT = V_AK
    for r in range(S1, S1 + 4): A(f"v_exp_f32 v{r}, v{r}")
    A(f"v_exp_f32 v{S2}, v{S2}")
    A(f"v_exp_f32 v{S2+1}, v{S2+1}")
    A(f"v_cvt_pk_bf16_f32 v{P12}, v{S1}, v{S1+1}")
    A(f"v_exp_f32 v{S2+2}, v{S2+2}")
    A(f"v_cvt_pk_bf16_f32 v{P12+1}, v{S1+2}, v{S1+3}")
    A(f"v_exp_f32 v{S2+3}, v{S2+3}")
    A(f"v_cvt_pk_bf16_f32 v{P12+2}, v{S2}, v{S2+1}")
    A(f"v_exp_f32 v{S0+2}, v{S0+2}")
    A(f"v_cvt_pk_bf16_f32 v{P12+3}, v{S2+2}, v{S2+3}")
    A(f"v_exp_f32 v{S0+3}, v{S0+3}")
    A(f"v_mov_b32 v{P0+1}, 0")
    A(f"v_mfma_f32_16x16x32_bf16 {vr(LD,4)}, {vr(ONr,4)}, {vr(P12,4)}, 0")
    A(f"v_cvt_pk_bf16_f32 v{P0}, v{S0+2}, v{S0+3}")
    for t in range(2):
        A(f"v_mfma_f32_16x16x32_bf16 {vr(OT+4*t,4)}, {vr(V_VX+4*t,4)}, {vr(P12,4)}, 0")
    PO2 = V_S + 4
    for i in range(0, 4, 2): A(f"v_mov_b64 v[{PO2+i}:{PO2+i+1}], -1")
    A(f"v_mfma_f32_16x16x16_bf16 {vr(LD,4)}, {vr(ONr,2)}, {vr(P0,2)}, {vr(LD,4)}")
    for t in range(2):
        A(f"v_mfma_f32_16x16x16_bf16 {vr(OT+4*t,4)}, {vr(V_AV+4*t+2,2)}, {vr(P0,2)}, {vr(OT+4*t,4)}")
    A(f"v_mov_b32 v{V_AV+3}, v{V_AV+6}")
    A(f"v_rcp_f32 v{Ls}, v{LD}")
    for r in range(0, 8, 2):
        A(f"v_pk_mul_f32 v[{OT+r}:{OT+r+1}], v[{OT+r}:{OT+r+1}], v[{Ls}:{Ls+1}] op_sel_hi:[1,0]")
    for t in range(2):
        A(f"v_cvt_pk_bf16_f32 v{OT+4*t}, v{OT+4*t}, v{OT+4*t+1}")
        A(f"v_cvt_pk_bf16_f32 v{OT+4*t+1}, v{OT+4*t+2}, v{OT+4*t+3}")
        A(f"ds_write_b64 v{V_OW}, v[{OT+4*t}:{OT+4*t+1}] offset:{t*256}")
    A("@wait_writes")
    stamp(5)
    A("s_barrier")
    OF = V_VX
    A(f"ds_read_b128 {vr(OF,4)}, v{V_MEM} offset:{L_OB-L_MEMB}")
    A(f"ds_read_b128 {vr(OF+4,4)}, v{V_MEM} offset:{L_OB-L_MEMB+1024}")
    A(f"buffer_store_dwordx4 v[{PO2}:{PO2+3}], v{V_PL}, {WSR}, s{S_POI} offen")
    A(f"buffer_store_dwordx4 v[{PO2}:{PO2+3}], v{V_PL}, {WSR}, s{S_POI} offen offset:1024")
    for x in zero(V_MK, 32): A(x)
    stamp(6)
    oseq = [('S',6,0,0),('R',0,0),('R',0,1),('R',1,0),('S',7,0,1),('R',1,1),('R',2,0),('R',2,1),
            ('S',6,1,2),('R',3,0),('R',3,1),('R',4,0),('S',7,1,3),('R',4,1),('R',5,0),('R',5,1)]
    PQ = V_AQ
    def ppack(tile):
        a0 = V_MK + 4 * tile
        return [f"v_pk_add_f32 v[{a0}:{a0+1}], v[{a0}:{a0+1}], v[{a0+2}:{a0+3}]",
                f"v_cvt_pk_bf16_f32 v{PQ+tile}, v{a0}, v{a0+1}"]
    fill = {p: [] for p in range(16)}
    fill[0] += sbload(0, 3, 2); fill[4] += sbload(1, 3, 3); fill[8] += sbload(0, 0, 0); fill[12] += sbload(1, 0, 1)
    CAR = V_S
    fill[1] += [f"ds_read_b128 {vr(CAR,4)}, v{V_MEM} offset:{L_CA-L_MEMB}"]
    fill[6] += ppack(0); fill[9] += ppack(1); fill[11] += ppack(2); fill[13] += ppack(3)
    fill[14] += [f"buffer_store_dwordx4 v[{PQ}:{PQ+3}], v{V_PS}, {WSR}, s{S_PST0} offen"]
    fill[15] += ppack(6)
    for p, e in enumerate(oseq):
        tile, ks = e[1], e[2]
        bsrc = vr(V_SB + 8 * (e[3] & 1), 8) if e[0] == 'S' else wreg(3, tile >> 1, ks * 2 + (tile & 1))
        A(f"v_smfmac_f32_16x16x64_bf16 {vr(V_MK+4*tile,4)}, {vr(OF+4*ks,4)}, {bsrc}, v{V_IDX}")
        for x in fill[p]: A(x)
    for tl in (7, 4, 5):
        for x in ppack(tl): A(x)
    A(f"buffer_store_dwordx4 v[{PQ+4}:{PQ+7}], v{V_PS}, {WSR}, s{S_PST1} offen")
    stamp(7)
    ta = V_T + 1; tb = V_T + 2
    def poll2(name, regs, loadfn, mid=None, cnt=None, st=None, gap=()):
        def check():
            A(f"v_max3_u32 v{ta}, v{regs}, v{regs+1}, v{regs+2}")
            A(f"v_max3_u32 v{tb}, v{regs+4}, v{regs+5}, v{regs+6}")
            A(f"v_max_u32 v{ta}, v{ta}, v{regs+3}")
            if mid: mid(0)
            A(f"v_max_u32 v{tb}, v{tb}, v{regs+7}")
            if mid: mid(1)
            A(f"v_cmp_eq_u32 s[{S_MA}:{S_MA+1}], -1, v{ta}")
            A(f"v_cmp_eq_u32 s[{S_MB}:{S_MB+1}], -1, v{tb}")
            A(f"s_or_b64 s[{S_MT}:{S_MT+1}], s[{S_MA}:{S_MA+1}], s[{S_MB}:{S_MB+1}]")
            A(f"s_cbranch_scc0 L_{name}ok")
        def round_():
            A(f"s_or_b32 s{S_MA}, s{S_MA}, 1")
            A(f"s_or_b32 s{S_MB}, s{S_MB}, 1")
            A.auto = False
            A(f"s_mov_b64 exec, s[{S_MA}:{S_MA+1}]")
            loadfn(0)
            A(f"s_mov_b64 exec, s[{S_MB}:{S_MB+1}]")
            loadfn(1)
            A(f"s_mov_b64 exec, -1")
            A.auto = True
        A(f"s_mov_b32 s{S_TO}, 0")
        for x in gap: A(x)
        A.auto = False
        loadfn(0); loadfn(1)
        A.auto = True
        A(f"s_waitcnt vmcnt(2)")
        if st is not None: stamp(st)
        A.forget()
        check()
        A.label(f"L_{name}loop")
        round_()
        A(f"s_add_u32 s{S_TO}, s{S_TO}, 1")
        A(f"s_cmp_gt_u32 s{S_TO}, 0x40000")
        A(f"s_cbranch_scc1 L_bail")
        A(f"s_waitcnt vmcnt(2)")
        A.forget()
        check()
        A(f"s_branch L_{name}loop")
        A.label(f"L_{name}ok")
        A.forget()
        if cnt: cnt()
    PB = V_AK; RD = V_VX
    A(f"s_mov_b32 s{S_KEEP}, s{S_PLD}")
    A(f"s_mov_b32 s{S_EX}, s{S_POI}")
    A(f"s_mov_b32 s{S_EX+1}, s{S_VM}")
    A(f"s_mov_b32 s{S_PUB}, s{S_B1}")
    A(f"s_mov_b32 s{S_MPZ}, s{S_B2}")
    A(f"s_mov_b32 s{S_B2}, s{S_B0}")
    A(f"s_mov_b32 s{S_B0}, s{S_PUB}")
    A(f"s_mov_b32 s{S_B1}, s{S_MPZ}")
    A(f"s_xor_b32 s{S_PAR}, s{S_PAR}, 8192")
    A(f"s_add_u32 s{S_STEP}, s{S_STEP}, 1")
    A(f"s_add_u32 s{S_VM}, s{S_VM}, {32*4096}")
    A(f"s_mov_b32 s{S_T0}, s{S_R0}")
    A(f"s_mov_b32 s{S_R0}, s{S_R1}")
    A(f"s_mov_b32 s{S_R1}, s{S_R2}")
    A(f"s_mov_b32 s{S_R2}, s{S_T0}")
    for x in step_scalars(): A(x)
    if 'merged' in opt:
        A(f"s_cmp_ge_u32 s{S_FLG}, 128")
        A(f"s_cbranch_scc0 L_kvslow")
        A.label("L_kvok")
        A(f"s_add_u32 s{S_T0}, s{S_STEP}, 2")
        A(f"s_lshr_b32 s{S_T0}, s{S_T0}, 3")
        A(f"s_min_u32 s{S_T0}, s{S_T0}, 7")
        A(f"s_lshl_b32 s{S_T0}, s{S_T0}, 7")
        A(f"s_add_u32 s{S_FOFF}, s{S_T0}, {F_KV}")
    for x in zero(V_AQ, 8): A(x)
    for x in extra_delay: A(x)
    def h1load(q):
        A(f"buffer_load_dwordx4 v[{PB+4*q}:{PB+4*q+3}], v{V_PL}, {WSR}, s{S_KEEP} offen offset:{1024*q} sc1")
    if 'vdet' not in opt: stamp(8)
    h1load(0); h1load(1)
    def h1mid(i):
        if i == 0: A(f"v_mfma_f32_16x16x32_bf16 {vr(RD,4)}, {vr(CAR,4)}, {vr(PB,4)}, 0")
        else: A(f"v_mfma_f32_16x16x32_bf16 {vr(RD,4)}, {vr(CAR,4)}, {vr(PB+4,4)}, {vr(RD,4)}")
    poll2("h1", PB, h1load, mid=h1mid, st=(None if "vdet" in opt else 9), gap=["s_nop 0"] * g1)
    A("s_nop 2")
    if timing: A(f"s_add_u32 s{S_TACC+16}, s{S_TACC+16}, s{S_TO}")
    if 'rt' in opt: A(f"s_add_u32 s64, s64, s{S_TO}")
    stamp(10)
    for ror in (4, 8):
        for r in range(4):
            A(f"v_add_f32_dpp v{RD+r}, v{RD+r}, v{RD+r} row_ror:{ror} row_mask:0xf bank_mask:0xf")
    A(f"v_cvt_pk_bf16_f32 v{RD}, v{RD}, v{RD+1}")
    A(f"v_cvt_pk_bf16_f32 v{RD+1}, v{RD+2}, v{RD+3}")
    A(f"v_min_u32 v{RD}, -2, v{RD}")
    A(f"v_min_u32 v{RD+1}, -2, v{RD+1}")
    A(f"s_mov_b64 exec, 0xffffffff")
    A(f"buffer_store_dwordx2 v[{RD}:{RD+1}], v{V_MS}, {WSR}, s{S_PUB} offen")
    A(f"v_mov_b64 v[{RD+2}:{RD+3}], -1")
    A(f"buffer_store_dwordx2 v[{RD+2}:{RD+3}], v{V_MS}, {WSR}, s{S_MPZ} offen")
    A(f"s_mov_b64 exec, -1")
    for x in extra_delay2: A(x)
    def stage_mem():
        ML = V_S + 4
        def h2load(q):
            so = S_MSL if q == 0 else S_MPO
            A(f"buffer_load_dwordx4 v[{ML+4*q}:{ML+4*q+3}], v{V_MW}, {WSR}, s{so} offen sc1")
        if 'vdet' not in opt: stamp(11)
        h2load(0); h2load(1)
        poll2("h2", ML, h2load, st=(None if "vdet" in opt else 12), gap=["s_nop 0"] * g2)
        if timing: A(f"s_add_u32 s{S_TACC+17}, s{S_TACC+17}, s{S_TO}")
        if 'rt' in opt: A(f"s_add_u32 s65, s65, s{S_TO}")
        stamp(13)
        A(f"ds_write_b128 v{V_MW}, v[{ML}:{ML+3}]")
        A(f"ds_write_b128 v{V_MW}, v[{ML+4}:{ML+7}] offset:1024")
    stage_mem()
    for x in zero(V_AK, 8): A(x)
    A("@wait_writes")
    if 'steps' in opt:
        A(f"s_lshl_b32 s58, s{S_H}, 2")
        A(f"s_add_u32 s58, s58, s{S_WV}")
        A(f"s_lshl_b32 s58, s58, 6")
        A(f"s_add_u32 s58, s58, s{S_STEP}")
        A(f"s_lshl_b32 s58, s58, 2")
        A(f"s_add_u32 s58, s58, {WS_TIME - 4}")
        A(f"v_mov_b32 v{V_T}, s56")
        A(f"v_mov_b32 v{V_T+1}, 0")
        A(f"s_mov_b64 exec, 1")
        A(f"buffer_store_dword v{V_T}, v{V_T+1}, {WSR}, s58 offen")
        A(f"s_mov_b64 exec, -1")
    stamp(14)
    stamp_acc()
    A("s_barrier")
    A.settle()
    A.forget()
    A("s_branch L_step")
    if 'merged' in opt:
        A.label("L_kvslow")
        A(f"s_mov_b32 s{S_TO}, 0")
        A.label("L_kvslow2")
        A(f"buffer_load_dword v{V_T+1}, off, {WSR}, s{S_FOFF} sc1")
        A(f"s_add_u32 s{S_TO}, s{S_TO}, 1")
        A(f"s_cmp_gt_u32 s{S_TO}, 0x100000")
        A(f"s_cbranch_scc1 L_bail")
        A("s_waitcnt vmcnt(0)")
        A(f"v_cmp_gt_u32 vcc, 128, v{V_T+1}")
        A(f"s_cbranch_vccnz L_kvslow2")
        A.forget()
        A("s_branch L_kvok")
    A.label("L_last")
    if 'diag' in opt: dstamp(A, 7, True)
    A.settle()
    A(f"v_mov_b32 v{V_AV+3}, v{V_AV+6}")
    A(f"buffer_store_dwordx4 v[{V_AV}:{V_AV+3}], v{V_VMS}, {WSR}, s{S_VM} offen sc1")
    if 'rt' in opt:
        A.raw("    s_memtime s[60:61]")
        A.raw("    s_memrealtime s[62:63]")
        A.raw("    s_waitcnt lgkmcnt(0)")
        A(f"s_sub_u32 s56, s60, s56")
        A(f"s_sub_u32 s58, s62, s58")
        A(f"s_lshl_b32 s{S_T0}, s{S_H}, 2")
        A(f"s_add_u32 s{S_T0}, s{S_T0}, s{S_WV}")
        A(f"s_lshl_b32 s{S_T0}, s{S_T0}, 7")
        A(f"s_add_u32 s{S_T0}, s{S_T0}, {WS_TIME}")
        A(f"s_mov_b64 exec, 1")
        for k, r in enumerate((56, 58, 64, 65)):
            A(f"v_mov_b32 v{V_MK+1}, s{r}")
            A(f"v_mov_b32 v{V_MK}, {4*k}")
            A(f"buffer_store_dword v{V_MK+1}, v{V_MK}, {WSR}, s{S_T0} offen")
        A(f"s_mov_b64 exec, -1")
    A.wait(vm=0)
    if 'merged' in opt:
        A("s_barrier")
        A(f"s_cmp_lg_u32 s{S_WV}, 0")
        A(f"s_cbranch_scc1 L_end")
        A(f"v_mov_b32 v{V_T+1}, 64")
        A(f"s_mov_b64 exec, 1")
        A(f"buffer_store_dword v{V_T+1}, off, {WSR}, s{S_POFF} sc1")
        A.wait(vm=0)
    if timing:
        A(f"s_lshl_b32 s{S_T0}, s{S_H}, 2")
        A(f"s_add_u32 s{S_T0}, s{S_T0}, s{S_WV}")
        A(f"s_lshl_b32 s{S_T0}, s{S_T0}, 7")
        A(f"s_add_u32 s{S_T0}, s{S_T0}, {WS_TIME}")
        A(f"s_mov_b64 exec, 1")
        for k in range(18):
            A(f"v_mov_b32 v{V_T+1}, s{S_TACC+k}")
            A(f"v_mov_b32 v{V_T}, {4*k}")
            A(f"buffer_store_dword v{V_T+1}, v{V_T}, {WSR}, s{S_T0} offen")
        A.wait(vm=0)
    A("s_branch L_end")
    A.label("L_bail")
    A(f"s_mov_b64 exec, 1")
    A(f"v_mov_b32 v{V_T}, 60")
    A(f"v_mov_b32 v{V_T+1}, 0xdead")
    A(f"buffer_store_dword v{V_T+1}, v{V_T}, s[{S_DBG}:{S_DBG+3}], 0 offen")
    A.wait(vm=0)
    A.label("L_end")
```

```python
from asmlib import *
from layout import *
import struct

G_SRDA = 8
G_SRDB = 36
G_SRDC = 40
G_LDA = 44; G_LDB = 45; G_LDC = 46
G_AOFF = 47
G_BOFF = 48
G_COFF = 49
G_NST = 50
G_ST = 51
G_SA = 52; G_SB = 53
G_M0 = 54
G_T0 = 55; G_T1 = 56; G_T2 = 57
G_WM = 58; G_WN = 59
G_AUX = 60
G_WV = 27
G_SZA = 66; G_SZB = 67
G_M0A = 65
G_ROFF = 63
GV_C = 22
G_SRDX = 68

GV_LANE = 1
GV_AR = 2
GV_BR = 6
GV_DA = 10
GV_DB = 12
GV_T = 14
GV_FA = 64
GV_FB = 96

DMA_EVERY = 1
HALFB = [False]
REGSTAGE = False
GV_ST = 128
GV_WA = 30; GV_WB = 31
def f32bits(x): return hex(struct.unpack('<I', struct.pack('<f', x))[0])

def ring_cfg(MI):
    return (3, 16384, 49152) if (MI == 2 and not REGSTAGE) else (2, 32768, 65536)

def gemm_setup_lane(A):
    L = GV_LANE; t0 = GV_T; t1 = GV_T + 1; t2 = GV_T + 2
    A(f"v_and_b32 v{L}, 63, v0")
    A(f"s_lshr_b32 s{G_WM}, s{G_WV}, 1")
    A(f"s_and_b32 s{G_WN}, s{G_WV}, 1")

def gemm_task_addr(A, MI=4, halfB=False):
    L = GV_LANE; t0 = GV_T; t1 = GV_T + 1; t2 = GV_T + 2
    A(f"v_and_b32 v{t0}, 31, v{L}")
    A(f"v_bfe_u32 v{t1}, v{L}, 1, 3")
    A(f"v_lshrrev_b32 v{t2}, 5, v{L}")
    A(f"v_xor_b32 v{t1}, v{t1}, v{t2}")
    A(f"v_lshlrev_b32 v{t0}, 7, v{t0}")
    A(f"s_mul_i32 s{G_T0}, s{G_WM}, {4096*MI}")
    A(f"v_add_u32 v{t0}, s{G_T0}, v{t0}")
    for ks in range(4):
        A(f"v_xor_b32 v{t2}, {2*ks}, v{t1}")
        A(f"v_lshl_add_u32 v{GV_AR+ks}, v{t2}, 4, v{t0}")
    HALFB[0] = halfB
    RSH = 8 if halfB else 9
    A(f"v_lshrrev_b32 v{t0}, 5, v{L}")
    A(f"v_lshlrev_b32 v{t0}, 3, v{t0}")
    A(f"v_bfe_u32 v{t1}, v{L}, 2, 2")
    A(f"v_add_u32 v{t0}, v{t0}, v{t1}")
    A(f"v_lshlrev_b32 v{t0}, {RSH}, v{t0}")
    A(f"v_bfe_u32 v{t2}, v{L}, 4, 1")
    A(f"v_lshl_or_b32 v{t0}, v{t2}, 5, v{t0}")
    A(f"v_bfe_u32 v{t2}, v{L}, 1, 1")
    A(f"v_lshl_or_b32 v{t0}, v{t2}, 4, v{t0}")
    A(f"v_and_b32 v{t2}, 1, v{L}")
    A(f"v_lshl_or_b32 v{t0}, v{t2}, 3, v{t0}")
    if halfB: A(f"s_mov_b32 s{G_T0}, 0")
    else: A(f"s_lshl_b32 s{G_T0}, s{G_WN}, 8")
    A(f"s_add_u32 s{G_T0}, s{G_T0}, {ring_cfg(MI)[1]}")
    A(f"v_add_u32 v{t0}, s{G_T0}, v{t0}")
    for j in range(4):
        A(f"v_xor_b32 v{t2}, {j}, v{t1}")
        A(f"v_lshl_add_u32 v{GV_BR+j}, v{t2}, 6, v{t0}")
    if ring_cfg(MI)[0] == 3:
        for k in range(8): A(f"v_mov_b32 v{GV_C+k}, v{GV_AR+k}")
    A(f"v_lshrrev_b32 v{t0}, 3, v{L}")
    A(f"v_mul_lo_u32 v{t0}, v{t0}, s{G_LDA}")
    A(f"v_and_b32 v{t1}, 7, v{L}")
    A(f"v_bfe_u32 v{t2}, v{L}, 4, 2")
    A(f"v_xor_b32 v{t1}, v{t1}, v{t2}")
    A(f"v_lshl_add_u32 v{GV_DA}, v{t1}, 4, v{t0}")
    A(f"v_xor_b32 v{t1}, 4, v{t1}")
    A(f"v_lshl_add_u32 v{GV_DA+1}, v{t1}, 4, v{t0}")
    A(f"v_lshrrev_b32 v{t2}, 5, v{L}")
    A(f"v_mul_lo_u32 v{t0}, v{t2}, s{G_LDB}")
    A(f"v_and_b32 v{t1}, 31, v{L}")
    A(f"v_lshlrev_b32 v{t2}, 2, v{t2}")
    A(f"v_xor_b32 v{t1}, v{t1}, v{t2}")
    A(f"v_lshl_add_u32 v{GV_DB}, v{t1}, 4, v{t0}")
    A(f"v_xor_b32 v{t1}, 8, v{t1}")
    A(f"v_lshl_add_u32 v{GV_DB+1}, v{t1}, 4, v{t0}")
    if halfB:
        A(f"v_lshrrev_b32 v{t2}, 4, v{L}")
        A(f"v_mul_lo_u32 v{t0}, v{t2}, s{G_LDB}")
        A(f"v_and_b32 v{t1}, 15, v{L}")
        A(f"v_lshlrev_b32 v{t2}, 2, v{t2}")
        A(f"v_xor_b32 v{t1}, v{t1}, v{t2}")
        A(f"v_lshl_add_u32 v{GV_DB}, v{t1}, 4, v{t0}")
        A(f"v_mov_b32 v{GV_DB+1}, v{GV_DB}")

def dma_list(sc1A, MI=4):
    g = []
    for i in range(2 * MI):
        grp = [f"s_add_u32 m0, s{G_M0A}, {i*1024}",
               f"buffer_load_dwordx4 v{GV_DA+(i&1)}, s[{G_SRDA}:{G_SRDA+3}], s{G_T0} offen{' sc1' if sc1A else ''} lds"]
        pre = [f"s_mov_b32 s{G_T0}, s{G_SA}"] if i == 0 else [f"s_add_u32 s{G_T0}, s{G_T0}, s{G_T2}"]
        g.append(pre + grp)
    for i in range(4 if HALFB[0] else 8):
        grp = [f"s_add_u32 m0, s{G_M0}, {ring_cfg(MI)[1] + i*1024}",
               f"buffer_load_dwordx4 v{GV_DB+(i&1)}, s[{G_SRDB}:{G_SRDB+3}], s{G_T1} offen lds"]
        pre = [f"s_mov_b32 s{G_T1}, s{G_SB}"] if i == 0 else [f"s_add_u32 s{G_T1}, s{G_T1}, s{G_AUX+1}"]
        g.append(pre + grp)
    return g

def stage_loads(sc1A, MI=4):
    g = []
    n = 0
    for i in range(2 * MI):
        r = GV_ST + 4 * n; n += 1
        pre = [f"s_mov_b32 s{G_T0}, s{G_SA}"] if i == 0 else [f"s_add_u32 s{G_T0}, s{G_T0}, s{G_T2}"]
        g.append(pre + [f"buffer_load_dwordx4 v[{r}:{r+3}], v{GV_DA+(i&1)}, s[{G_SRDA}:{G_SRDA+3}], s{G_T0} offen{' sc1' if sc1A else ''}"])
    for i in range(8):
        r = GV_ST + 4 * n; n += 1
        pre = [f"s_mov_b32 s{G_T1}, s{G_SB}"] if i == 0 else [f"s_add_u32 s{G_T1}, s{G_T1}, s{G_AUX+1}"]
        g.append(pre + [f"buffer_load_dwordx4 v[{r}:{r+3}], v{GV_DB+(i&1)}, s[{G_SRDB}:{G_SRDB+3}], s{G_T1} offen"])
    return g
def stage_writes(MI=4):
    w = []
    n = 0
    for i in range(2 * MI):
        r = GV_ST + 4 * n; n += 1
        w.append(f"ds_write_b128 v{GV_WA}, v[{r}:{r+3}] offset:{i*1024}")
    for i in range(8):
        r = GV_ST + 4 * n; n += 1
        w.append(f"ds_write_b128 v{GV_WB}, v[{r}:{r+3}] offset:{i*1024}")
    return w
def adv_src(A):
    A(f"s_add_u32 s{G_SA}, s{G_SA}, 128")
    A(f"s_lshl_b32 s{G_AUX+2}, s{G_LDB}, 6")
    A(f"s_add_u32 s{G_SB}, s{G_SB}, s{G_AUX+2}")

def gemm_start_rs(A, sc1A=False, MI=4):
    A(f"s_mov_b32 s{G_SRDA+2}, s{G_SZA}")
    A(f"s_mov_b32 s{G_SRDB+2}, s{G_SZB}")
    A(f"s_lshl_b32 s{G_T2}, s{G_LDA}, 3")
    A(f"s_lshl_b32 s{G_AUX+1}, s{G_LDB}, 1")
    A(f"s_mul_i32 s{G_SA}, s{G_LDA}, s{G_WV}")
    A(f"s_mul_i32 s{G_SA}, s{G_SA}, {16*MI}")
    A(f"s_add_u32 s{G_SA}, s{G_SA}, s{G_AOFF}")
    A(f"s_mul_i32 s{G_SB}, s{G_LDB}, s{G_WV}")
    A(f"s_lshl_b32 s{G_SB}, s{G_SB}, 4")
    A(f"s_add_u32 s{G_SB}, s{G_SB}, s{G_BOFF}")
    A(f"v_lshlrev_b32 v{GV_WA}, 4, v{GV_LANE}")
    A(f"s_lshl_b32 s{G_T0}, s{G_WV}, 13")
    A(f"s_add_u32 s{G_T0}, s{G_T0}, 32768")
    A(f"v_add_u32 v{GV_WB}, s{G_T0}, v{GV_WA}")
    A(f"s_mul_i32 s{G_T0}, s{G_WV}, {2048*MI}")
    A(f"v_add_u32 v{GV_WA}, s{G_T0}, v{GV_WA}")
    for grp in stage_loads(sc1A, MI):
        for x in grp: A(x)
    adv_src(A)

def gemm_main_rs(A, tag, wT, sc1A=False, MI=4):
    for r in range(64 * MI): A(f"v_accvgpr_write_b32 a{r}, 0")
    for x in stage_writes(MI): A(x)
    for grp in stage_loads(sc1A, MI):
        for x in grp: A(x)
    adv_src(A)
    A(f"v_xor_b32 v{GV_WA}, 0x10000, v{GV_WA}")
    A(f"v_xor_b32 v{GV_WB}, 0x10000, v{GV_WB}")
    A(f"s_mov_b32 s{G_ST}, 0")
    A.wait(lg=0)
    A.settle(); A.forget()
    A.label(f"L_g{tag}")
    A("s_barrier")
    def fa(buf, i): return GV_FA + 16 * buf + 4 * i
    def fb(buf, j): return GV_FB + 16 * buf + 4 * j
    def ordered(ks, buf):
        a = [f"ds_read_b128 v[{fa(buf,i)}:{fa(buf,i)+3}], v{GV_AR+ks} offset:{i*4096}" for i in range(MI)]
        b = [[f"ds_read_b64_tr_b16 v[{fb(buf,j)+2*hh}:{fb(buf,j)+2*hh+1}], v{GV_BR+j} offset:{(16*ks+4*hh)*512}" for hh in range(2)] for j in range(4)]
        return [a[0]] + b[0] + b[1] + [a[1]] + b[2] + b[3] + a[2:]
    for x in ordered(0, 0): A(x)
    A(f"s_add_u32 s{G_T0}, s{G_ST}, 2")
    A(f"s_cmp_ge_u32 s{G_T0}, s{G_NST}")
    A(f"s_cselect_b32 s{G_SRDA+2}, 0, s{G_SZA}")
    A(f"s_cselect_b32 s{G_SRDB+2}, 0, s{G_SZB}")
    wl = stage_writes(MI); ll = stage_loads(sc1A, MI)
    nld = len(ll)
    A.vm = [set(f"v{GV_ST+4*n+k}" for k in range(4)) for n in range(nld)]
    order = [(0,0),(0,1),(1,0),(1,1),(0,2),(0,3),(1,2),(1,3),(2,0),(2,1),(2,2),(2,3),(3,0),(3,1),(3,2),(3,3)] if MI == 4 else [(0,0),(0,1),(1,0),(1,1),(0,2),(0,3),(1,2),(1,3)]
    wi = 0
    total = 4 * len(order); cnt = 0
    start = total // 4
    step = max(1, (total - start) // nld)
    for ks in range(4):
        buf = ks & 1
        nxt = ordered(ks + 1, buf ^ 1) if ks < 3 else []
        ni = 0
        for n, (i, j) in enumerate(order):
            acc = f"a[{16*(4*i+j)}:{16*(4*i+j)+15}]"
            xa = f"v[{fa(buf,i)}:{fa(buf,i)+3}]"; wb = f"v[{fb(buf,j)}:{fb(buf,j)+3}]"
            A(f"v_mfma_f32_32x32x16_bf16 {acc}, {wb if wT else xa}, {xa if wT else wb}, {acc}")
            per = 1 if MI == 4 else 2
            for _ in range(per):
                if ni < len(nxt): A(nxt[ni]); ni += 1
            cnt += 1
            if cnt >= start and (cnt - start) % step == 0 and wi < nld:
                A(wl[wi])
                for x in ll[wi]: A(x)
                wi += 1
        while ni < len(nxt): A(nxt[ni]); ni += 1
    while wi < nld:
        A(wl[wi])
        for x in ll[wi]: A(x)
        wi += 1
    adv_src(A)
    for r in list(range(GV_AR, GV_AR+4)) + list(range(GV_BR, GV_BR+4)) + [GV_WA, GV_WB]:
        A(f"v_xor_b32 v{r}, 0x10000, v{r}")
    A(f"s_add_u32 s{G_ST}, s{G_ST}, 1")
    A(f"s_cmp_lt_u32 s{G_ST}, s{G_NST}")
    A.wait(lg=0)
    A.forget()
    A(f"s_cbranch_scc1 L_g{tag}")
    A("s_waitcnt vmcnt(0)")
    A.settle()

def gemm_start(A, sc1A=False, MI=4):
    if REGSTAGE: return gemm_start_rs(A, sc1A, MI)
    return gemm_start_dma(A, sc1A, MI)

def gemm_start_dma(A, sc1A=False, MI=4):
    A(f"s_mov_b32 s{G_SRDA+2}, s{G_SZA}")
    A(f"s_mov_b32 s{G_SRDB+2}, s{G_SZB}")
    A(f"s_lshl_b32 s{G_T2}, s{G_LDA}, 3")
    A(f"s_lshl_b32 s{G_AUX+1}, s{G_LDB}, {2 if HALFB[0] else 1}")
    A(f"s_mul_i32 s{G_SA}, s{G_LDA}, s{G_WV}")
    A(f"s_mul_i32 s{G_SA}, s{G_SA}, {16*MI}")
    A(f"s_add_u32 s{G_SA}, s{G_SA}, s{G_AOFF}")
    A(f"s_mul_i32 s{G_SB}, s{G_LDB}, s{G_WV}")
    A(f"s_lshl_b32 s{G_SB}, s{G_SB}, 4")
    A(f"s_add_u32 s{G_SB}, s{G_SB}, s{G_BOFF}")
    A(f"s_lshl_b32 s{G_M0}, s{G_WV}, {12 if HALFB[0] else 13}")
    A(f"s_mul_i32 s{G_M0A}, s{G_WV}, {2048*MI}")
    for st in range(ring_cfg(MI)[0] - 1):
        for grp in dma_list(sc1A, MI):
            for x in grp: A(x)
        adv(A, MI)
    A(f"s_mov_b32 s{G_ROFF}, 0")

def adv(A, MI=4):
    A(f"s_add_u32 s{G_SA}, s{G_SA}, 128")
    A(f"s_lshl_b32 s{G_AUX+2}, s{G_LDB}, 6")
    A(f"s_add_u32 s{G_SB}, s{G_SB}, s{G_AUX+2}")
    NS, BL, SS = ring_cfg(MI)
    if NS == 2:
        A(f"s_xor_b32 s{G_M0}, s{G_M0}, 0x10000")
        A(f"s_xor_b32 s{G_M0A}, s{G_M0A}, 0x10000")
    else:
        for r in (G_M0, G_M0A):
            A(f"s_add_u32 s{r}, s{r}, {SS}")
            A(f"s_sub_u32 s{G_AUX+2}, s{r}, {NS*SS}")
            A(f"s_cmp_ge_u32 s{r}, {NS*SS}")
            A(f"s_cselect_b32 s{r}, s{G_AUX+2}, s{r}")

def gemm_main(A, tag, wT, sc1A=False, MI=4):
    if REGSTAGE: return gemm_main_rs(A, tag, wT, sc1A, MI)
    return gemm_main_dma(A, tag, wT, sc1A, MI)

def gemm_main_dma(A, tag, wT, sc1A=False, MI=4):
    for r in range(64 * MI): A(f"v_accvgpr_write_b32 a{r}, 0")
    A(f"s_mov_b32 s{G_ST}, 0")
    A.settle(); A.forget()
    A.label(f"L_g{tag}")
    NS, BL, SS = ring_cfg(MI)
    A(f"s_waitcnt vmcnt({(NS - 2) * (2 * MI + (4 if HALFB[0] else 8))})")
    A("s_barrier")
    def fa(buf, i): return GV_FA + 16 * buf + 4 * i
    def fb(buf, j): return GV_FB + 16 * buf + 4 * j
    def ordered(ks, buf):
        a = [f"ds_read_b128 v[{fa(buf,i)}:{fa(buf,i)+3}], v{GV_AR+ks} offset:{i*4096}" for i in range(MI)]
        b = [[f"ds_read_b64_tr_b16 v[{fb(buf,j)+2*hh}:{fb(buf,j)+2*hh+1}], v{GV_BR+j} offset:{(16*ks+4*hh)*(256 if HALFB[0] else 512)}" for hh in range(2)] for j in range(4)]
        return [a[0]] + b[0] + b[1] + [a[1]] + b[2] + b[3] + a[2:]
    for x in ordered(0, 0): A(x)
    A(f"s_add_u32 s{G_T0}, s{G_ST}, {NS - 1}")
    A(f"s_cmp_ge_u32 s{G_T0}, s{G_NST}")
    A(f"s_cselect_b32 s{G_SRDA+2}, 0, s{G_SZA}")
    A(f"s_cselect_b32 s{G_SRDB+2}, 0, s{G_SZB}")
    dl = dma_list(sc1A, MI)
    di = 0
    if MI == 4:
        order = [(0,0),(0,1),(1,0),(1,1),(0,2),(0,3),(1,2),(1,3),(2,0),(2,1),(2,2),(2,3),(3,0),(3,1),(3,2),(3,3)]
        every = DMA_EVERY
    else:
        order = [(0,0),(0,1),(1,0),(1,1),(0,2),(0,3),(1,2),(1,3)]
        every = DMA_EVERY
    for ks in range(4):
        buf = ks & 1
        nxt = ordered(ks + 1, buf ^ 1) if ks < 3 else []
        ni = 0
        for n, (i, j) in enumerate(order):
            acc = f"a[{16*(4*i+j)}:{16*(4*i+j)+15}]"
            xa = f"v[{fa(buf,i)}:{fa(buf,i)+3}]"; wb = f"v[{fb(buf,j)}:{fb(buf,j)+3}]"
            A(f"v_mfma_f32_32x32x16_bf16 {acc}, {wb if wT else xa}, {xa if wT else wb}, {acc}")
            per = 1 if MI == 4 else 2
            for _ in range(per):
                if ni < len(nxt): A(nxt[ni]); ni += 1
            if n % every == every - 1 and di < len(dl):
                for x in dl[di]: A(x)
                di += 1
        while ni < len(nxt): A(nxt[ni]); ni += 1
    while di < len(dl):
        for x in dl[di]: A(x)
        di += 1
    adv(A, MI)
    if NS == 2:
        for r in list(range(GV_AR, GV_AR+4)) + list(range(GV_BR, GV_BR+4)):
            A(f"v_xor_b32 v{r}, 0x10000, v{r}")
    else:
        A(f"s_add_u32 s{G_ROFF}, s{G_ROFF}, {SS}")
        A(f"s_cmp_ge_u32 s{G_ROFF}, {NS*SS}")
        A(f"s_cselect_b32 s{G_ROFF}, 0, s{G_ROFF}")
        A.wait(lg=0)
        for k in range(8): A(f"v_add_u32 v{GV_AR+k}, s{G_ROFF}, v{GV_C+k}")
    A(f"s_add_u32 s{G_ST}, s{G_ST}, 1")
    A(f"s_cmp_lt_u32 s{G_ST}, s{G_NST}")
    A.wait(lg=0)
    A.forget()
    A(f"s_cbranch_scc1 L_g{tag}")
    A("s_waitcnt vmcnt(0)")
    A.settle()

def store_pairs(A, vals_fn, addr_reg, imm, srd, soff, sc1):
    pass


EPI_BASE = 65536
def epi_lds_base(A, dst):
    A(f"s_mul_i32 s{G_T0}, s{G_WV}, 24576")
    A(f"s_add_u32 s{G_T0}, s{G_T0}, {EPI_BASE}")

def gelu4(A, X, tb, br):
    A(f"v_lshlrev_b32 v{tb}, 16, v{br}")
    A(f"v_and_b32 v{tb+1}, 0xffff0000, v{br}")
    A(f"v_lshlrev_b32 v{tb+2}, 16, v{br+1}")
    A(f"v_and_b32 v{tb+3}, 0xffff0000, v{br+1}")
    A(f"v_pk_add_f32 v[{X}:{X+1}], v[{X}:{X+1}], v[{tb}:{tb+1}]")
    A(f"v_pk_add_f32 v[{X+2}:{X+3}], v[{X+2}:{X+3}], v[{tb+2}:{tb+3}]")
    y = tb + 4
    A(f"v_pk_mul_f32 v[{y}:{y+1}], v[{X}:{X+1}], v[{X}:{X+1}]")
    A(f"v_pk_mul_f32 v[{y+2}:{y+3}], v[{X+2}:{X+3}], v[{X+2}:{X+3}]")
    A(f"v_pk_fma_f32 v[{y}:{y+1}], v[{y}:{y+1}], s[{G_AUX+4}:{G_AUX+5}], v[{GV_T+4}:{GV_T+5}]")
    A(f"v_pk_fma_f32 v[{y+2}:{y+3}], v[{y+2}:{y+3}], s[{G_AUX+4}:{G_AUX+5}], v[{GV_T+4}:{GV_T+5}]")
    A(f"v_pk_mul_f32 v[{y}:{y+1}], v[{y}:{y+1}], v[{X}:{X+1}]")
    A(f"v_pk_mul_f32 v[{y+2}:{y+3}], v[{y+2}:{y+3}], v[{X+2}:{X+3}]")
    for e in range(4): A(f"v_exp_f32 v{y+e}, -v{y+e}")
    A(f"v_pk_add_f32 v[{y}:{y+1}], v[{y}:{y+1}], 1.0 op_sel_hi:[1,0]")
    A(f"v_pk_add_f32 v[{y+2}:{y+3}], v[{y+2}:{y+3}], 1.0 op_sel_hi:[1,0]")
    for e in range(4): A(f"v_rcp_f32 v{y+e}, v{y+e}")
    A(f"v_pk_mul_f32 v[{X}:{X+1}], v[{X}:{X+1}], v[{y}:{y+1}]")
    A(f"v_pk_mul_f32 v[{X+2}:{X+3}], v[{X+2}:{X+3}], v[{y+2}:{y+3}]")

def epi_rowmajor(A, gelu=False, sc1=True, MI=4, skip=None):
    L = GV_LANE; t0 = GV_T; t1 = GV_T + 1
    VW = GV_T + 2; VR = GV_T + 3; VG = GV_T + 6
    X = 32
    A("s_barrier")
    if skip:
        A(f"s_cmp_lg_u32 s{G_WN}, 0")
        A(f"s_cbranch_scc1 {skip}")
    epi_lds_base(A, None)
    A(f"v_and_b32 v{t0}, 31, v{L}")
    A(f"v_lshlrev_b32 v{VW}, 8, v{t0}")
    A(f"v_lshrrev_b32 v{t1}, 5, v{L}")
    A(f"v_lshl_or_b32 v{VW}, v{t1}, 3, v{VW}")
    A(f"v_add_u32 v{VW}, s{G_T0}, v{VW}")
    A(f"v_and_b32 v{t0}, 15, v{L}")
    A(f"v_lshlrev_b32 v{GV_T+7}, 4, v{t0}")
    A(f"v_lshrrev_b32 v{t1}, 4, v{L}")
    A(f"v_xor_b32 v{t0}, v{t0}, v{t1}")
    A(f"v_lshlrev_b32 v{t0}, 4, v{t0}")
    A(f"v_lshl_or_b32 v{VR}, v{t1}, 8, v{t0}")
    A(f"v_add_u32 v{VR}, s{G_T0}, v{VR}")
    A(f"s_mul_i32 s{G_T1}, s{G_WM}, {32*MI}")
    A(f"v_add_u32 v{t1}, s{G_T1}, v{t1}")
    A(f"v_mul_lo_u32 v{t1}, v{t1}, s{G_LDC}")
    A(f"v_and_b32 v{t0}, 15, v{L}")
    A(f"v_lshlrev_b32 v{t0}, 4, v{t0}")
    A(f"s_lshl_b32 s{G_T1}, s{G_WN}, 8")
    A(f"v_add3_u32 v{VG}, v{t0}, v{t1}, s{G_T1}")
    A(f"s_lshl_b32 s{G_T2}, s{G_LDC}, 2")
    A(f"s_mov_b32 s{G_T1}, s{G_COFF}")
    if gelu:
        A(f"v_lshrrev_b32 v{t1}, 5, v{L}")
        A(f"v_lshlrev_b32 v{t1}, 3, v{t1}")
        A(f"s_lshl_b32 s{G_T0}, s{G_WN}, 8")
        A(f"s_add_u32 s{G_T0}, s{G_T0}, s{G_AUX}")
        for j in range(4):
            for iq in range(4):
                r = GV_FA + 2 * (4 * j + iq)
                A(f"buffer_load_dwordx2 v[{r}:{r+1}], v{t1}, s[{G_SRDX}:{G_SRDX+3}], s{G_T0} offen offset:{j*64+iq*16}")
        k = 0.7978845608028654 * 2 * 1.4426950408889634
        A(f"v_mov_b32 v{GV_T+4}, {f32bits(k)}")
        A(f"v_mov_b32 v{GV_T+5}, {f32bits(k)}")
        A(f"s_mov_b32 s{G_AUX+4}, {f32bits(k*0.044715)}")
        A(f"s_mov_b32 s{G_AUX+5}, {f32bits(k*0.044715)}")
    for half in range(MI // 2):
        for i2 in range(2):
            i = 2 * half + i2
            for j in range(4):
                base = 16 * (4 * i + j)
                for r in range(16): A(f"v_accvgpr_read_b32 v{X+r}, a{base+r}")
                for iq in range(4):
                    if gelu: gelu4(A, X + 4 * iq, X + 16, GV_FA + 2 * (4 * j + iq))
                    P = X + 24 + 2 * (iq & 1)
                    A(f"v_cvt_pk_bf16_f32 v{P}, v{X+4*iq}, v{X+4*iq+1}")
                    A(f"v_cvt_pk_bf16_f32 v{P+1}, v{X+4*iq+2}, v{X+4*iq+3}")
                    Ta = X + 28 + (iq & 1)
                    A(f"v_xor_b32 v{Ta}, {(4*j+iq)*16}, v{GV_T+7}")
                    A(f"v_add_u32 v{Ta}, v{Ta}, v{VW}")
                    A(f"ds_write_b64 v{Ta}, v[{P}:{P+1}] offset:{i2*32*256}")
        A.wait(lg=0)
        for it in range(16):
            R = GV_FB + 4 * (it & 7)
            Ta = X + 30 + (it & 1)
            A(f"v_xor_b32 v{Ta}, {(4*(it&3))*16}, v{VR}")
            A(f"ds_read_b128 v[{R}:{R+3}], v{Ta} offset:{it*1024}")
            if it >= 3 and False: pass
            if it % 8 == 7:
                for k2 in range(it - 7, it + 1):
                    R2 = GV_FB + 4 * (k2 & 7)
                    A(f"buffer_store_dwordx4 v[{R2}:{R2+3}], v{VG}, s[{G_SRDC}:{G_SRDC+3}], s{G_T1} offen" + (" sc1" if sc1 else ""))
                    A(f"s_add_u32 s{G_T1}, s{G_T1}, s{G_T2}")
        A.wait(lg=0)

def epi_vt(A, sc1=True, MI=4, skip=None):
    L = GV_LANE; t0 = GV_T; t1 = GV_T + 1
    VW = GV_T + 2; VR = GV_T + 3; VG = GV_T + 6; X = 32
    A("s_barrier")
    if skip:
        A(f"s_cmp_lg_u32 s{G_WN}, 0")
        A(f"s_cbranch_scc1 {skip}")
    epi_lds_base(A, None)
    A(f"v_and_b32 v{t0}, 31, v{L}")
    A(f"v_lshlrev_b32 v{VW}, 6, v{t0}")
    A(f"v_add_u32 v{VW}, s{G_T0}, v{VW}")
    A(f"v_bfe_u32 v{t0}, v{L}, 1, 2")
    A(f"v_lshrrev_b32 v{t1}, 5, v{L}")
    A(f"v_xor_b32 v{t0}, v{t0}, v{t1}")
    A(f"v_lshlrev_b32 v{GV_T+7}, 4, v{t0}")
    A(f"v_add_u32 v{GV_T+8}, v{GV_T+7}, v{VW}")
    A(f"v_xor_b32 v{GV_T+7}, 32, v{GV_T+7}")
    A(f"v_add_u32 v{GV_T+7}, v{GV_T+7}, v{VW}")
    A(f"v_lshlrev_b32 v{VR}, 4, v{L}")
    A(f"v_add_u32 v{VR}, s{G_T0}, v{VR}")
    A(f"v_lshrrev_b32 v{t0}, 2, v{L}")
    A(f"v_lshlrev_b32 v{t0}, 6, v{t0}")
    A(f"v_and_b32 v{t1}, 3, v{L}")
    A(f"v_bfe_u32 v{VG}, v{L}, 3, 2")
    A(f"v_xor_b32 v{t1}, v{t1}, v{VG}")
    A(f"v_lshl_or_b32 v{t0}, v{t1}, 4, v{t0}")
    A(f"s_mul_i32 s{G_T0}, s{G_WM}, {262144*MI}")
    A(f"s_lshl_b32 s{G_T1}, s{G_WN}, 13")
    A(f"s_add_u32 s{G_T0}, s{G_T0}, s{G_T1}")
    A(f"v_add_u32 v{VG}, s{G_T0}, v{t0}")
    A(f"s_mov_b32 s{G_T1}, s{G_COFF}")
    for half in range(MI // 2):
        for i2 in range(2):
            i = 2 * half + i2
            for j in range(4):
                base = 16 * (4 * i + j)
                for r in range(16): A(f"v_accvgpr_read_b32 v{X+r}, a{base+r}")
                for pr in range(2):
                    a = X + 16 + 4 * pr
                    for k, iq in enumerate((pr, pr + 2)):
                        A(f"v_cvt_pk_bf16_f32 v{a+2*k}, v{X+4*iq}, v{X+4*iq+1}")
                        A(f"v_cvt_pk_bf16_f32 v{a+2*k+1}, v{X+4*iq+2}, v{X+4*iq+3}")
                    A(f"ds_write_b128 v{GV_T+8 if pr == 0 else GV_T+7}, v[{a}:{a+3}] offset:{i2*8192 + j*2048}")
        A.wait(lg=0)
        for i2 in range(2):
            for it in range(8):
                R = GV_FB + 4 * it
                A(f"ds_read_b128 v[{R}:{R+3}], v{VR} offset:{i2*8192 + it*1024}")
            for it in range(8):
                R = GV_FB + 4 * it
                if it % 4 == 0: A(f"s_add_u32 s{G_T0}, s{G_T1}, {(it//4)*4096}")
                A(f"buffer_store_dwordx4 v[{R}:{R+3}], v{VG}, s[{G_SRDC}:{G_SRDC+3}], s{G_T0} offen offset:{(it%4)*1024}" + (" sc1" if sc1 else ""))
            A(f"s_add_u32 s{G_T1}, s{G_T1}, 262144")
        A.wait(lg=0)

def epi_f32(A, sc1=True):
    L = GV_LANE; t0 = GV_T; t1 = GV_T + 1
    VW = GV_T + 2; VR = GV_T + 3; VG = GV_T + 6; X = 32
    A("s_barrier")
    epi_lds_base(A, None)
    A(f"v_and_b32 v{t0}, 31, v{L}")
    A(f"v_lshlrev_b32 v{VW}, 9, v{t0}")
    A(f"v_add_u32 v{VW}, s{G_T0}, v{VW}")
    A(f"v_and_b32 v{t0}, 7, v{L}")
    A(f"v_lshrrev_b32 v{t1}, 5, v{L}")
    A(f"v_xor_b32 v{t0}, v{t0}, v{t1}")
    A(f"v_lshlrev_b32 v{GV_T+7}, 4, v{t0}")
    A(f"v_lshrrev_b32 v{t1}, 5, v{L}")
    A(f"v_and_b32 v{t0}, 31, v{L}")
    A(f"v_xor_b32 v{t0}, v{t0}, v{t1}")
    A(f"v_lshlrev_b32 v{t0}, 4, v{t0}")
    A(f"v_lshl_or_b32 v{VR}, v{t1}, 9, v{t0}")
    A(f"v_add_u32 v{VR}, s{G_T0}, v{VR}")
    A(f"s_lshl_b32 s{G_T1}, s{G_WM}, 7")
    A(f"v_add_u32 v{t1}, s{G_T1}, v{t1}")
    A(f"v_mul_lo_u32 v{t1}, v{t1}, s{G_LDC}")
    A(f"v_and_b32 v{t0}, 31, v{L}")
    A(f"v_lshlrev_b32 v{t0}, 4, v{t0}")
    A(f"s_lshl_b32 s{G_T1}, s{G_WN}, 9")
    A(f"v_add3_u32 v{VG}, v{t0}, v{t1}, s{G_T1}")
    A(f"s_lshl_b32 s{G_T2}, s{G_LDC}, 1")
    A(f"s_mov_b32 s{G_T1}, s{G_COFF}")
    for i in range(4):
        for j in range(4):
            base = 16 * (4 * i + j)
            Xr = X + 16 * (j & 1)
            for r in range(16): A(f"v_accvgpr_read_b32 v{Xr+r}, a{base+r}")
            for iq in range(4):
                Ta = GV_T + 8 + (iq & 1)
                A(f"v_xor_b32 v{Ta}, {(8*j+2*iq)*16}, v{GV_T+7}")
                A(f"v_add_u32 v{Ta}, v{Ta}, v{VW}")
                A(f"ds_write_b128 v{Ta}, v[{Xr+4*iq}:{Xr+4*iq+3}]")
        A.wait(lg=0)
        for it in range(16):
            R = GV_FB + 4 * (it & 7)
            Ta = GV_T + 8 + (it & 1)
            A(f"v_xor_b32 v{Ta}, {((2*it)&7)*16}, v{VR}")
            A(f"ds_read_b128 v[{R}:{R+3}], v{Ta} offset:{it*1024}")
            if it % 8 == 7:
                for k2 in range(it - 7, it + 1):
                    R2 = GV_FB + 4 * (k2 & 7)
                    A(f"buffer_store_dwordx4 v[{R2}:{R2+3}], v{VG}, s[{G_SRDC}:{G_SRDC+3}], s{G_T1} offen" + (" sc1" if sc1 else ""))
                    A(f"s_add_u32 s{G_T1}, s{G_T1}, s{G_T2}")
        A.wait(lg=0)
```

```python
from asmlib import *
from layout import *
from gemm import f32bits

def allreduce_add(A, v, t):
    for r in (1, 2, 4, 8):
        A(f"v_add_f32_dpp v{v}, v{v}, v{v} row_ror:{r} row_mask:0xf bank_mask:0xf")
    A(f"v_mov_b32 v{t}, v{v}")
    A(f"v_permlane16_swap_b32 v{v}, v{t}")
    A(f"v_add_f32 v{v}, v{v}, v{t}")
    A(f"v_mov_b32 v{t}, v{v}")
    A(f"v_permlane32_swap_b32 v{v}, v{t}")
    A(f"v_add_f32 v{v}, v{v}, v{t}")

def rbf(A, v, t):
    A(f"v_cvt_pk_bf16_f32 v{v}, v{v}, v{v}")
    A(f"v_lshlrev_b32 v{v}, 16, v{v}")

def emit_ln_rows(A, srd_x, srd_ws, s_row0, nrows, lane, sc1=True, VB=32, part=None, SO=55):
    off = VB; X = VB + 2
    if part in (None, 'issue'):
        A(f"v_lshlrev_b32 v{off}, 4, v{lane}")
        A(f"s_lshl_b32 s{SO}, s{s_row0}, 10")
        for r in range(nrows):
            A(f"buffer_load_dwordx4 v[{X+4*r}:{X+4*r+3}], v{off}, s[{srd_x}:{srd_x+3}], s{SO} offen offset:{r*1024}")
        A(f"s_add_u32 s{SO+1}, s{SO}, {WS_XN}")
        if part == 'issue': return
    F = X + 4 * nrows
    S = F + 8; T = S + 1; Q = S + 2; M = S + 3
    for r in range(nrows):
        x = X + 4 * r
        for i in range(4):
            A(f"v_lshlrev_b32 v{F+2*i}, 16, v{x+i}")
            A(f"v_and_b32 v{F+2*i+1}, 0xffff0000, v{x+i}")
        A(f"v_add_f32 v{S}, v{F}, v{F+1}")
        for i in range(2, 8): A(f"v_add_f32 v{S}, v{S}, v{F+i}")
        allreduce_add(A, S, T)
        A(f"v_mul_f32 v{S}, {f32bits(1.0/512)}, v{S}")
        A(f"v_sub_f32 v{T}, v{F}, v{S}")
        A(f"v_mul_f32 v{Q}, v{T}, v{T}")
        for i in range(1, 8):
            A(f"v_sub_f32 v{T}, v{F+i}, v{S}")
            A(f"v_fmac_f32 v{Q}, v{T}, v{T}")
        allreduce_add(A, Q, T)
        A(f"v_mul_f32 v{Q}, {f32bits(1.0/512)}, v{Q}")
        rbf(A, Q, T)
        A(f"v_add_f32 v{Q}, {f32bits(1e-5)}, v{Q}")
        rbf(A, Q, T)
        A(f"v_sqrt_f32 v{Q}, v{Q}")
        rbf(A, Q, T)
        A(f"v_rcp_f32 v{Q}, v{Q}")
        A(f"v_mov_b32 v{M}, v{S}")
        rbf(A, M, T)
        for i in range(8): A(f"v_sub_f32 v{F+i}, v{F+i}, v{M}")
        for i in range(4):
            A(f"v_cvt_pk_bf16_f32 v{x+i}, v{F+2*i}, v{F+2*i+1}")
        for i in range(4):
            A(f"v_lshlrev_b32 v{F+2*i}, 16, v{x+i}")
            A(f"v_and_b32 v{F+2*i+1}, 0xffff0000, v{x+i}")
        for i in range(8): A(f"v_mul_f32 v{F+i}, v{F+i}, v{Q}")
        for i in range(4):
            A(f"v_cvt_pk_bf16_f32 v{x+i}, v{F+2*i}, v{F+2*i+1}")
        A(f"buffer_store_dwordx4 v[{x}:{x+3}], v{off}, s[{srd_ws}:{srd_ws+3}], s{SO+1} offen offset:{r*1024}" + (" sc1" if sc1 else ""))
```

```python
import sys
from asmlib import *
from layout import *
from gemm import *
from ln import *
import ao
from ao import *
import chain
from chain import srd, emit_chain, S_PW, S_WS, S_DBG, S_H, S_WV, S_T2, L_X
from gen_gemm_test import khead, kdesc

KNAME = "parallel_sum__memory_aug_recurrent_mem_tr__mixer_channel_mlp__prompt_kernel"
T_KV = 128
T_H = T_KV + 224
T_Q = T_H + 56
T_M2 = T_Q + 128
NT2 = T_M2 + 64
KVT = 128
NYP = 4
HOLD_FROM = 600; HOLD_CNT = 128
P_X = 72; P_B2 = 74; P_OUT = 76; P_W2 = 78; P_WO = 80
W_TASK = 28; W_NEXT = 29; W_TO = 82; W_T = 83; W_T2 = 84; W_SIG = 85; W_PAR = 86; W_PREV = 87; W_NP = 88; W_INC = 90; W_KIND = 91; W_INI = 93
INIT_TICKET = 64
LNT = 16
WSR = "s[4:7]"; DBG = "s[12:15]"
LDS_BC = 163840 - 16

def spin(A, name, load, cmp_fail, limit=0x200000):
    A(f"s_cmp_lg_u32 s{G_WV}, 0")
    A(f"s_cbranch_scc1 L_{name}_j")
    A(f"s_mov_b32 s{W_TO}, 0")
    A.label(f"L_{name}_p")
    A(load)
    A(f"s_add_u32 s{W_TO}, s{W_TO}, 1")
    A(f"s_cmp_gt_u32 s{W_TO}, {limit}")
    A(f"s_cbranch_scc1 L_wbail")
    A("s_waitcnt vmcnt(0)")
    A(cmp_fail)
    A(f"s_cbranch_vccz L_{name}_j")
    A("s_sleep 2")
    A(f"s_branch L_{name}_p")
    A.label(f"L_{name}_j")
    A.forget()
    A("s_barrier")

def wait_ws_ge(A, name, soff, val):
    spin(A, name, f"buffer_load_dword v31, off, {WSR}, s{soff} sc1", f"v_cmp_gt_u32 vcc, {val}, v31")

def signal_ws(A, name, soff, inc=None):
    A("s_waitcnt vmcnt(0)")
    A.forget()
    A("s_barrier")
    A(f"s_cmp_lg_u32 s{G_WV}, 0")
    A(f"s_cbranch_scc1 L_{name}_s")
    A(f"s_cmp_lg_u32 s{W_INI}, 0")
    A(f"s_cbranch_scc1 L_{name}_i")
    A(f"s_mov_b32 s{W_TO}, 0")
    A.label(f"L_{name}_ip")
    A(f"buffer_load_dword v31, off, {DBG}, 0 offset:{D_INIT} sc1")
    A(f"s_add_u32 s{W_TO}, s{W_TO}, 1")
    A(f"s_cmp_gt_u32 s{W_TO}, 0x200000")
    A("s_cbranch_scc1 L_wbail")
    A("s_waitcnt vmcnt(0)")
    A("v_cmp_eq_u32 vcc, 0, v31")
    A(f"s_cbranch_vccnz L_{name}_ip")
    A(f"s_mov_b32 s{W_INI}, 1")
    A.label(f"L_{name}_i")
    A("v_mov_b32 v31, 1" if inc is None else f"v_mov_b32 v31, s{inc}")
    A("s_mov_b64 exec, 1")
    A(f"buffer_atomic_add v31, off, {WSR}, s{soff}")
    A("s_mov_b64 exec, -1")
    A.label(f"L_{name}_s")
    A.forget()

def fetch_ticket(A, name, dbg_off, dst, soff=None):
    A(f"s_cmp_lg_u32 s{G_WV}, 0")
    A(f"s_cbranch_scc1 L_{name}_t")
    A("v_mov_b32 v31, 1")
    A("s_mov_b64 exec, 1")
    A(f"buffer_atomic_add v31, off, {DBG}, {0 if soff is None else 's%d' % soff} offset:{dbg_off} sc0")
    A("s_waitcnt vmcnt(0)")
    A(f"v_mov_b32 v30, {LDS_BC}")
    A("ds_write_b32 v30, v31")
    A("s_waitcnt lgkmcnt(0)")
    A("s_mov_b64 exec, -1")
    A.label(f"L_{name}_t")
    A.forget()
    A("s_barrier")
    A(f"v_mov_b32 v30, {LDS_BC}")
    A("ds_read_b32 v31, v30")
    A.wait(lg=0)
    A(f"v_readfirstlane_b32 s{dst}, v31")
    A("s_barrier")

def prog_wait(A):
    saved = [set(x) for x in A.vm]; savedl = [set(x) for x in A.lgkm]
    A(f"s_cmp_lg_u32 s{G_WV}, 0")
    A("s_cbranch_scc1 L_ap_j")
    A(f"s_lshl_b32 s{W_T2}, s{O_KC}, 9")
    A(f"s_add_u32 s{W_T2}, s{W_T2}, {F_PROG}")
    A(f"v_and_b32 v30, 3, v{OV_L}")
    A("v_lshlrev_b32 v30, 7, v30")
    A(f"s_mov_b32 s{W_TO}, 0")
    A.label("L_ap_p")
    A.auto = False
    A(f"buffer_load_dword v31, v30, {WSR}, s{W_T2} offen sc1")
    A.auto = True
    A(f"s_add_u32 s{W_TO}, s{W_TO}, 1")
    A(f"s_cmp_gt_u32 s{W_TO}, 0x400000")
    A("s_cbranch_scc1 L_wbail")
    A("s_waitcnt vmcnt(0)")
    A(f"v_cmp_ge_u32 vcc, s{O_SEG}, v31")
    A("s_cbranch_vccz L_ap_j")
    A("s_sleep 2")
    A("s_branch L_ap_p")
    A.label("L_ap_j")
    A.vm = saved; A.lgkm = savedl
    A("s_barrier")

def red_flag_addrs(A, seg_sreg):
    A(f"s_lshl_b32 s{W_T}, s{seg_sreg}, 2")
    A(f"s_add_u32 s{W_T}, s{W_T}, s{O_NC}")
    A(f"s_lshl_b32 s{W_T}, s{W_T}, 7")
    A(f"s_add_u32 s{W_T}, s{W_T}, {F_R}")
    A(f"s_lshr_b32 s{W_T2}, s{seg_sreg}, 3")
    A(f"s_lshl_b32 s{W_T2}, s{W_T2}, 7")
    A(f"s_add_u32 s{W_T2}, s{W_T2}, {F_Y}")
    A(f"v_and_b32 v28, 1, v{OV_L}")
    A("v_cmp_eq_u32 vcc, 0, v28")
    A(f"v_mov_b32 v30, s{W_T2}")
    A(f"v_mov_b32 v29, s{W_T}")
    A("v_cndmask_b32 v30, v30, v29, vcc")
    A("v_mov_b32 v29, 8")
    A("v_mov_b32 v28, 8")
    A("v_cndmask_b32 v29, v29, v28, vcc")

def ao_reduce(A, seg_sreg, tag, wait=True):
    t0 = OV_T; t1 = OV_T + 1
    if wait:
        red_flag_addrs(A, seg_sreg)
        A(f"s_mov_b32 s{W_TO}, 0")
        A.label(f"L_rw{tag}")
        A(f"buffer_load_dword v31, v30, {WSR}, 0 offen sc1")
        A(f"s_add_u32 s{W_TO}, s{W_TO}, 1")
        A(f"s_cmp_gt_u32 s{W_TO}, 0x400000")
        A("s_cbranch_scc1 L_wbail")
        A("s_waitcnt vmcnt(0)")
        A("v_cmp_gt_u32 vcc, v29, v31")
        A.forget()
        A(f"s_cbranch_vccnz L_rw{tag}")
    A(f"s_lshl_b32 s{W_T}, s{seg_sreg}, 2")
    A(f"s_add_u32 s{W_T}, s{W_T}, s{O_NC}")
    A(f"s_lshl_b32 s{W_T}, s{W_T}, 17")
    A(f"s_add_u32 s{W_T}, s{W_T}, {WS_PART}")
    A(f"s_lshl_b32 s{O_T0}, s{O_KC}, 2")
    A(f"s_add_u32 s{O_T0}, s{O_T0}, s{O_WV}")
    A(f"s_lshl_b32 s{O_T1}, s{O_T0}, 9")
    A(f"s_add_u32 s{W_T}, s{W_T}, s{O_T1}")
    A(f"v_lshlrev_b32 v{t0}, 3, v{OV_L}")
    R = OV_Q
    for kc in range(8):
        A(f"s_add_u32 s{O_T1}, s{W_T}, {kc*16384}")
        A(f"buffer_load_dwordx2 v[{R+2*kc}:{R+2*kc+1}], v{t0}, {WSR}, s{O_T1} offen sc1")
    A(f"s_lshl_b32 s{O_T1}, s{seg_sreg}, 5")
    A(f"s_add_u32 s{O_T0}, s{O_T0}, s{O_T1}")
    A(f"s_lshl_b32 s{O_T1}, s{O_T0}, 11")
    A(f"s_lshl_b32 s{O_T2}, s{O_NC}, 9")
    A(f"s_add_u32 s{O_T1}, s{O_T1}, s{O_T2}")
    A(f"s_add_u32 s{O_T1}, s{O_T1}, {WS_Y}")
    for pl in range(NYP):
        A(f"buffer_load_dwordx2 v[{R+16+2*pl}:{R+17+2*pl}], v{t0}, {WSR}, s{O_T1} offen sc1")
        if pl < NYP - 1: A(f"s_add_u32 s{O_T1}, s{O_T1}, {4*MB}")
    A(f"v_lshlrev_b32 v{t1}, 2, v{OV_L}")
    A(f"s_lshl_b32 s{O_T1}, s{O_T0}, 10")
    A(f"s_lshl_b32 s{O_T2}, s{O_NC}, 8")
    A(f"s_add_u32 s{O_T1}, s{O_T1}, s{O_T2}")
    A(f"buffer_load_dword v{R+24}, v{t1}, s[56:59], s{O_T1} offen")
    A(f"buffer_load_dword v{R+25}, v{t1}, s[60:63], s{O_T2} offen")
    A(f"v_pk_add_f32 v[{R}:{R+1}], v[{R}:{R+1}], v[{R+2}:{R+3}]")
    for k in range(2, 8 + NYP):
        A(f"v_pk_add_f32 v[{R}:{R+1}], v[{R}:{R+1}], v[{R+2*k}:{R+2*k+1}]")
    for src in (R + 24, R + 25):
        A(f"v_lshlrev_b32 v{R+26}, 16, v{src}")
        A(f"v_and_b32 v{R+27}, 0xffff0000, v{src}")
        A(f"v_pk_add_f32 v[{R}:{R+1}], v[{R}:{R+1}], v[{R+26}:{R+27}]")
    A(f"v_cvt_pk_bf16_f32 v{R}, v{R}, v{R+1}")
    A(f"buffer_store_dword v{R}, v{t1}, s[64:67], s{O_T1} offen")

def dstamp(A, idx, diag, sreg_idx=None, cyc=False):
    if not diag: return
    lb = A.newlabel("L_ds")
    A.raw("    s_memtime s[98:99]" if cyc else "    s_memrealtime s[98:99]")
    A.raw("    s_waitcnt lgkmcnt(0)")
    A(f"s_cmp_lg_u32 s27, 0")
    A(f"s_cbranch_scc1 {lb}")
    A(f"s_lshl_b32 s100, s2, 9")
    if sreg_idx is not None:
        A(f"s_lshl_b32 s101, s{sreg_idx}, 2")
        A(f"s_add_u32 s100, s100, s101")
    A(f"s_add_u32 s100, s100, {WS_TIME + 4*idx}")
    A("v_mov_b32 v30, s98")
    A("s_mov_b64 exec, 1")
    A(f"buffer_store_dword v30, off, s[4:7], s100")
    A("s_mov_b64 exec, -1")
    A.vm.pop()
    A.label(lb)

def main_kernel(d1, d2, g1, g2, NPAR=6, diag=0):
    A = Asm()
    A("s_cmp_ge_u32 s2, 256")
    A("s_cbranch_scc1 L_end")
    A(f"s_load_dwordx2 s[{S_PW}:{S_PW+1}], s[0:1], {KA_WQ}")
    A(f"s_load_dwordx2 s[{S_PW+2}:{S_PW+3}], s[0:1], {KA_WK}")
    A(f"s_load_dwordx2 s[{S_PW+4}:{S_PW+5}], s[0:1], {KA_WV}")
    A(f"s_load_dwordx2 s[{S_PW+6}:{S_PW+7}], s[0:1], {KA_WO}")
    A(f"s_load_dwordx2 s[{S_PW+8}:{S_PW+9}], s[0:1], {KA_MEM0}")
    A(f"s_load_dwordx2 s[52:53], s[0:1], {KA_DBG}")
    A(f"s_load_dwordx2 s[54:55], s[0:1], {KA_WS}")
    A(f"s_load_dwordx2 s[56:57], s[0:1], {KA_X}")
    A(f"s_getreg_b32 s{S_T2}, hwreg(HW_REG_XCC_ID)")
    A(f"v_lshrrev_b32 v1, 6, v0")
    A(f"v_readfirstlane_b32 s{S_WV}, v1")
    A.wait(lg=0)
    srd(A, S_WS, 54, WS_SIZE)
    srd(A, S_DBG, 52, 256)
    A(f"s_and_b32 s60, s{S_T2}, 15")
    dstamp(A, 0, diag)
    A("s_cmp_lg_u32 s2, 0")
    A("s_cbranch_scc1 L_noinit")
    for i in range(4): A(f"v_mov_b32 v{60+i}, 0")
    A("v_lshlrev_b32 v64, 4, v0")
    for i in range(FLAG_BYTES // 4096):
        A(f"s_mov_b32 s61, {WS_FLAG + i*4096}")
        A(f"buffer_store_dwordx4 v[60:63], v64, {WSR}, s61 offen sc1")
    A.label("L_noinit")
    A.forget()
    A(f"s_cmp_eq_u32 s60, 0")
    A(f"s_cselect_b32 s29, {D_CTK}, {D_WTK}")
    fetch_ticket(A, "tk", 0, S_H, soff=29)
    A("s_cmp_lg_u32 s2, 0")
    A("s_cbranch_scc1 L_noinit2")
    A("s_waitcnt vmcnt(0)")
    A("s_barrier")
    A(f"s_cmp_lg_u32 s{S_WV}, 0")
    A("s_cbranch_scc1 L_noinit2")
    A("v_mov_b32 v64, 1")
    A("s_mov_b64 exec, 1")
    A(f"buffer_store_dword v64, off, {DBG}, 0 offset:{D_INIT} sc1")
    A("s_mov_b64 exec, -1")
    A.label("L_noinit2")
    A.forget()
    A(f"s_cmp_lg_u32 s60, 0")
    A("s_cbranch_scc1 L_worker")
    A(f"s_cmp_ge_u32 s{S_H}, 32")
    A("s_cbranch_scc1 L_xs")
    emit_chain(A, d1=d1, d2=d2, g1=g1, g2=g2, opt=('merged',) + (('diag',) if diag else ()) + (('nostep',) if diag == 2 else ()), dstamp=dstamp)
    A("s_endpgm")

    A.label("L_xs")
    fetch_ticket(A, "xtk", D_WTK, S_H)
    A.label("L_worker")
    A.forget()
    A(f"s_mov_b32 s{W_TASK}, s{S_H}")
    A(f"s_mov_b32 s{P_WO}, s{S_PW+6}"); A(f"s_mov_b32 s{P_WO+1}, s{S_PW+7}")
    A(f"s_mov_b32 s{P_X}, s56"); A(f"s_mov_b32 s{P_X+1}, s57")
    A(f"s_load_dwordx2 s[22:23], s[0:1], {KA_W1}")
    A(f"s_load_dwordx2 s[24:25], s[0:1], {KA_B1}")
    A(f"s_load_dwordx2 s[{P_B2}:{P_B2+1}], s[0:1], {KA_B2}")
    A(f"s_load_dwordx2 s[{P_OUT}:{P_OUT+1}], s[0:1], {KA_OUT}")
    A(f"s_load_dwordx2 s[{P_W2}:{P_W2+1}], s[0:1], {KA_W2}")
    A.wait(lg=0)
    srd(A, G_SRDX, 24, 1792 * 2)
    gemm_setup_lane(A)
    A(f"s_mov_b32 s{W_INI}, 1")
    A(f"s_cmp_ge_u32 s{W_TASK}, 128")
    A("s_cbranch_scc1 L_noln")
    srd(A, 8, P_X, 2048 * 512 * 2)
    A(f"s_lshl_b32 s30, s{W_TASK}, 4")
    A(f"s_lshl_b32 s31, s{G_WV}, 2")
    A("s_add_u32 s30, s30, s31")
    emit_ln_rows(A, 8, 4, 30, 4, GV_LANE, SO=94)
    A("s_waitcnt vmcnt(0)")
    A.forget()
    A("s_barrier")
    A.label("L_noln")
    A(f"s_cmp_lg_u32 s{G_WV}, 0")
    A("s_cbranch_scc1 L_lnsig")
    A(f"s_mov_b32 s62, 0")
    A.label("L_ln_ip")
    A(f"buffer_load_dword v31, off, {DBG}, 0 offset:{D_INIT} sc1")
    A("s_add_u32 s62, s62, 1")
    A("s_cmp_gt_u32 s62, 0x200000")
    A("s_cbranch_scc1 L_wbail")
    A("s_waitcnt vmcnt(0)")
    A("v_cmp_eq_u32 vcc, 0, v31")
    A("s_cbranch_vccnz L_ln_ip")
    A(f"s_cmp_ge_u32 s{W_TASK}, 128")
    A("s_cbranch_scc1 L_lnsig")
    A(f"s_lshr_b32 s30, s{W_TASK}, 4")
    A("s_lshl_b32 s30, s30, 7")
    A(f"s_add_u32 s30, s30, {F_LN}")
    A("v_mov_b32 v31, 1")
    A("s_mov_b64 exec, 1")
    A(f"buffer_atomic_add v31, off, {WSR}, s30")
    A("s_mov_b64 exec, -1")
    A.label("L_lnsig")
    A.forget()
    dstamp(A, 1, diag)
    A(f"s_mov_b32 s89, 0")
    A.label("L_g1_next")
    A(f"s_cmp_ge_u32 s{W_TASK}, {NT2}")
    A("s_cbranch_scc1 L_ao_role")
    A(f"s_cmp_ge_u32 s{W_TASK}, {T_M2}")
    A("s_cbranch_scc1 L_m2")
    t = W_TASK
    A(f"s_mov_b32 s{G_LDA}, 1024")
    A(f"s_mov_b32 s{G_NST}, 8")
    A(f"s_mov_b32 s{G_SZA}, {WS_SIZE}")
    A(f"s_mov_b32 s{G_SRDA}, s4"); A(f"s_mov_b32 s{G_SRDA+1}, s5"); A(f"s_mov_b32 s{G_SRDA+3}, 0x20000")
    A(f"s_mov_b32 s{G_SRDC}, s4"); A(f"s_mov_b32 s{G_SRDC+1}, s5"); A(f"s_mov_b32 s{G_SRDC+2}, {WS_SIZE}"); A(f"s_mov_b32 s{G_SRDC+3}, 0x20000")
    A(f"s_mov_b32 s{G_SRDB+3}, 0x20000")
    A(f"s_mov_b32 s{W_INC}, 1")
    A(f"s_cmp_ge_u32 s{t}, {T_Q}")
    A("s_cbranch_scc1 L_dec_q")
    A(f"s_cmp_ge_u32 s{t}, {T_H}")
    A("s_cbranch_scc1 L_dec_h")
    A(f"s_mov_b32 s{G_LDB}, 8192")
    A(f"s_mov_b32 s{G_SZB}, 4194304")
    A(f"s_mov_b32 s{G_LDC}, 8192")
    A(f"s_cmp_lt_u32 s{t}, {T_KV}")
    A("s_cbranch_scc1 L_kv_small")
    A(f"s_sub_u32 s{W_T}, s{t}, {T_KV - 32}")
    A(f"s_and_b32 s{G_T1}, s{W_T}, 15")
    A(f"s_lshl_b32 s{G_BOFF}, s{G_T1}, 9")
    A(f"s_lshl_b32 s{G_T2}, s{G_T1}, 14")
    A(f"s_bfe_u32 s{W_KIND}, s{W_T}, 0x10004")
    A(f"s_lshr_b32 s{W_T2}, s{W_T}, 5")
    A(f"s_lshl_b32 s{W_T}, s{W_T2}, 1")
    A(f"s_mov_b32 s{W_INC}, 4")
    A("s_branch L_kv_common")
    A.label("L_kv_small")
    A(f"s_and_b32 s{G_T1}, s{t}, 31")
    A(f"s_lshl_b32 s{G_BOFF}, s{G_T1}, 8")
    A(f"s_lshl_b32 s{G_T2}, s{G_T1}, 13")
    A(f"s_bfe_u32 s{W_KIND}, s{t}, 0x10005")
    A(f"s_lshr_b32 s{W_T}, s{t}, 6")
    A(f"s_mov_b32 s{W_T2}, 0")
    A.label("L_kv_common")
    A(f"s_lshl_b32 s{G_AOFF}, s{W_T}, 17")
    A(f"s_add_u32 s{G_AOFF}, s{G_AOFF}, {WS_XN}")
    A(f"s_lshl_b32 s{W_SIG}, s{W_T2}, 7")
    A(f"s_add_u32 s{W_SIG}, s{W_SIG}, {F_KV}")
    A(f"s_lshl_b32 s{G_COFF}, s{W_T}, 20")
    A(f"s_cmp_eq_u32 s{W_KIND}, 1")
    A("s_cbranch_scc1 L_dec_v")
    A(f"s_mov_b32 s{G_SRDB}, s18"); A(f"s_and_b32 s{G_SRDB+1}, s19, 0xffff")
    A(f"s_add_u32 s{G_COFF}, s{G_COFF}, s{G_BOFF}")
    A(f"s_add_u32 s{G_COFF}, s{G_COFF}, {WS_KX}")
    A("s_branch L_lnwait")
    A.label("L_dec_v")
    A(f"s_mov_b32 s{G_SRDB}, s20"); A(f"s_and_b32 s{G_SRDB+1}, s21, 0xffff")
    A(f"s_add_u32 s{G_COFF}, s{G_COFF}, s{G_T2}")
    A(f"s_add_u32 s{G_COFF}, s{G_COFF}, {WS_VT}")
    A("s_branch L_lnwait")
    A.label("L_dec_q")
    A(f"s_sub_u32 s{W_T}, s{t}, {T_Q}")
    A(f"s_and_b32 s{G_T1}, s{W_T}, 15")
    A(f"s_lshr_b32 s{W_T2}, s{W_T}, 4")
    A(f"s_mov_b32 s{G_LDB}, 8192")
    A(f"s_mov_b32 s{G_SZB}, 4194304")
    A(f"s_lshl_b32 s{G_BOFF}, s{G_T1}, 9")
    A(f"s_mov_b32 s{G_LDC}, 8192")
    A(f"s_lshl_b32 s{G_AOFF}, s{W_T2}, 18")
    A(f"s_add_u32 s{G_AOFF}, s{G_AOFF}, {WS_XN}")
    A(f"s_mov_b32 s{G_SRDB}, s16"); A(f"s_and_b32 s{G_SRDB+1}, s17, 0xffff")
    A(f"s_lshl_b32 s{G_COFF}, s{W_T2}, 21")
    A(f"s_add_u32 s{G_COFF}, s{G_COFF}, s{G_BOFF}")
    A(f"s_add_u32 s{G_COFF}, s{G_COFF}, {WS_QX}")
    A(f"s_lshl_b32 s{W_SIG}, s{W_T2}, 7")
    A(f"s_add_u32 s{W_SIG}, s{W_SIG}, {F_Q}")
    A(f"s_mov_b32 s{W_KIND}, 0")
    A("s_branch L_lnwait")
    A.label("L_dec_h")
    A(f"s_sub_u32 s{G_T1}, s{t}, {T_H}")
    A(f"s_mul_i32 s{W_T2}, s{G_T1}, 37")
    A(f"s_lshr_b32 s{W_T2}, s{W_T2}, 8")
    A(f"s_mul_i32 s{G_T2}, s{W_T2}, 7")
    A(f"s_sub_u32 s{G_T1}, s{G_T1}, s{G_T2}")
    A(f"s_lshl_b32 s{G_AOFF}, s{W_T2}, 18")
    A(f"s_add_u32 s{G_AOFF}, s{G_AOFF}, {WS_XN}")
    A(f"s_mov_b32 s{G_LDB}, 3584")
    A(f"s_mov_b32 s{G_SZB}, {512*1792*2}")
    A(f"s_lshl_b32 s{G_BOFF}, s{G_T1}, 9")
    A(f"s_mov_b32 s{G_AUX}, s{G_BOFF}")
    A(f"s_mov_b32 s{G_SRDB}, s22"); A(f"s_and_b32 s{G_SRDB+1}, s23, 0xffff")
    A(f"s_mov_b32 s{G_LDC}, 3584")
    A(f"s_mul_i32 s{G_COFF}, s{W_T2}, {256*3584}")
    A(f"s_add_u32 s{G_COFF}, s{G_COFF}, s{G_BOFF}")
    A(f"s_add_u32 s{G_COFF}, s{G_COFF}, {WS_HB}")
    A(f"s_lshl_b32 s{W_SIG}, s{W_T2}, 7")
    A(f"s_add_u32 s{W_SIG}, s{W_SIG}, {F_H}")
    A(f"s_mov_b32 s{W_KIND}, 2")
    A.label("L_lnwait")
    A(f"s_cmp_lt_u32 s{t}, {HOLD_FROM}")
    A("s_cbranch_scc1 L_nohold")
    A(f"s_mov_b32 s30, {F_KV}")
    wait_ws_ge(A, "hold", 30, HOLD_CNT)
    A.label("L_nohold")
    A.forget()
    A(f"s_lshl_b32 s30, s{W_T2}, 7")
    A(f"s_add_u32 s30, s30, {F_LN}")
    wait_ws_ge(A, "lnw", 30, LNT)
    A(f"s_cmp_eq_u32 s{W_KIND}, 2")
    A("s_cbranch_scc1 L_task_h")
    A(f"s_cmp_lt_u32 s{t}, {T_KV}")
    A("s_cbranch_scc1 L_small")
    A(f"s_cmp_eq_u32 s{W_KIND}, 1")
    A("s_cbranch_scc1 L_task_v")
    A("s_branch L_task_k")
    A.label("L_small")
    A(f"s_cmp_eq_u32 s{W_KIND}, 1")
    A("s_cbranch_scc1 L_task_vs")
    A("s_branch L_task_ks")
    def run(tag, wT, epi, MI=4, halfB=False):
        A.label(f"L_task_{tag}")
        A.forget()
        if diag: A("s_lshl_b32 s92, s89, 2")
        dstamp(A, 96, diag, 92)
        gemm_task_addr(A, MI, halfB)
        gemm_start(A, sc1A=True, MI=MI)
        gemm_main(A, tag, wT, sc1A=True, MI=MI)
        dstamp(A, 97, diag, 92)
        epi()
        A.label(f"L_eskip_{tag}")
        A.forget()
        dstamp(A, 98, diag, 92)
        signal_ws(A, f"sg{tag}", W_SIG, inc=W_INC)
        dstamp(A, 80, diag, 89)
        A("s_add_u32 s89, s89, 1")
        A("s_branch L_fetch")
    run("ks", True, lambda: epi_rowmajor(A, MI=2, skip="L_eskip_ks"), MI=2, halfB=True)
    run("vs", False, lambda: epi_vt(A, MI=2, skip="L_eskip_vs"), MI=2, halfB=True)
    run("k", True, lambda: epi_rowmajor(A))
    run("v", False, lambda: epi_vt(A))
    run("h", True, lambda: epi_rowmajor(A, gelu=True))
    A.label("L_m2")
    A.forget()
    A(f"s_sub_u32 s{W_T}, s{W_TASK}, {T_M2}")
    A(f"s_lshr_b32 s{W_T2}, s{W_T}, 3")
    A(f"s_lshl_b32 s{W_T2}, s{W_T2}, 7")
    A(f"s_add_u32 s{W_SIG}, s{W_T2}, {F_Y}")
    A(f"s_add_u32 s{W_T2}, s{W_T2}, {F_H}")
    wait_ws_ge(A, "hw", W_T2, 7)
    A(f"s_mov_b32 s{W_INC}, 1")
    A(f"s_mov_b32 s{G_LDA}, 3584")
    A(f"s_mov_b32 s{G_NST}, 7")
    A(f"s_mov_b32 s{G_SZA}, {WS_SIZE}")
    A(f"s_mov_b32 s{G_SRDA}, s4"); A(f"s_mov_b32 s{G_SRDA+1}, s5"); A(f"s_mov_b32 s{G_SRDA+3}, 0x20000")
    A(f"s_mov_b32 s{G_SRDC}, s4"); A(f"s_mov_b32 s{G_SRDC+1}, s5"); A(f"s_mov_b32 s{G_SRDC+2}, {WS_SIZE}"); A(f"s_mov_b32 s{G_SRDC+3}, 0x20000")
    A(f"s_mov_b32 s{G_SRDB}, s{P_W2}"); A(f"s_and_b32 s{G_SRDB+1}, s{P_W2+1}, 0xffff"); A(f"s_mov_b32 s{G_SRDB+3}, 0x20000")
    A(f"s_mov_b32 s{G_LDB}, 1024")
    A(f"s_mov_b32 s{G_SZB}, {1792*512*2}")
    A(f"s_mov_b32 s{G_LDC}, 2048")
    A(f"s_and_b32 s{G_T0}, s{W_T}, 3")
    A(f"s_bfe_u32 s{G_T1}, s{W_T}, 0x10002")
    A(f"s_lshr_b32 s{G_T2}, s{W_T}, 3")
    A(f"s_mul_i32 s{G_AOFF}, s{G_T2}, {256*3584}")
    A(f"s_mul_i32 s{G_AUX}, s{G_T0}, 896")
    A(f"s_add_u32 s{G_AOFF}, s{G_AOFF}, s{G_AUX}")
    A(f"s_add_u32 s{G_AOFF}, s{G_AOFF}, {WS_HB}")
    A(f"s_mul_i32 s{G_BOFF}, s{G_T0}, {448*1024}")
    A(f"s_lshl_b32 s{G_AUX}, s{G_T1}, 9")
    A(f"s_add_u32 s{G_BOFF}, s{G_BOFF}, s{G_AUX}")
    A(f"s_lshl_b32 s{G_COFF}, s{G_T0}, 22")
    A(f"s_lshl_b32 s{G_AUX}, s{G_T2}, 19")
    A(f"s_add_u32 s{G_COFF}, s{G_COFF}, s{G_AUX}")
    A(f"s_lshl_b32 s{G_AUX}, s{G_T1}, 10")
    A(f"s_add_u32 s{G_COFF}, s{G_COFF}, s{G_AUX}")
    A(f"s_add_u32 s{G_COFF}, s{G_COFF}, {WS_Y}")
    run("m2", True, lambda: epi_f32(A))
    A.label("L_fetch")
    A.forget()
    fetch_ticket(A, "nxt", D_WTK, W_TASK)
    A("s_branch L_g1_next")

    A.label("L_ao_role")
    A.forget()
    spin(A, "ini", f"buffer_load_dword v31, off, {DBG}, 0 offset:{D_INIT} sc1", "v_cmp_eq_u32 vcc, 0, v31")
    fetch_ticket(A, "aot", D_AO, W_TASK)
    A(f"s_cmp_ge_u32 s{W_TASK}, {32*NPAR}")
    A("s_cbranch_scc1 L_end")
    A(f"s_and_b32 s{O_KC}, s{W_TASK}, 7")
    A(f"s_bfe_u32 s{O_NC}, s{W_TASK}, 0x20003")
    A(f"s_lshr_b32 s{O_SEG}, s{W_TASK}, 5")
    srd(A, 56, P_X, 2048 * 512 * 2); srd(A, 60, P_B2, 1024); srd(A, 64, P_OUT, 2048 * 512 * 2)
    dstamp(A, 10, diag)
    ao_prologue(A, P_WO)
    dstamp(A, 11, diag)
    A(f"s_mov_b32 s{W_PREV}, s{O_SEG}")
    A(f"s_mov_b32 s{W_NP}, -1")
    A.label("L_ao_loop")
    A.forget()
    A(f"s_lshr_b32 s{W_T}, s{O_SEG}, 3")
    A(f"s_cmp_eq_u32 s{W_T}, s{W_NP}")
    A("s_cbranch_scc1 L_ao_rbok")
    A(f"s_mov_b32 s{W_NP}, s{W_T}")
    A(f"s_lshl_b32 s{W_T}, s{W_T}, 7")
    A(f"s_add_u32 s{W_T2}, s{W_T}, {F_Q}")
    wait_ws_ge(A, "aq", W_T2, 16)
    A(f"s_add_u32 s{W_T2}, s{W_T}, {F_KV}")
    wait_ws_ge(A, "ak", W_T2, KVT)
    A.label("L_ao_rbok")
    A.forget()
    ao_segment(A, prog_wait=lambda: prog_wait(A))
    A(f"s_lshl_b32 s{W_T}, s{O_SEG}, 2")
    A(f"s_add_u32 s{W_T}, s{W_T}, s{O_NC}")
    A(f"s_lshl_b32 s{W_T}, s{W_T}, 7")
    A(f"s_add_u32 s{W_SIG}, s{W_T}, {F_R}")
    signal_ws(A, "sgr", W_SIG)
    dstamp(A, 16, diag, O_SEG)
    A(f"s_add_u32 s{O_SEG}, s{O_SEG}, {NPAR}")
    A.label("L_ao_red")
    A.forget()
    A(f"s_add_u32 s{W_T}, s{W_PREV}, {NPAR}")
    A(f"s_cmp_ge_u32 s{W_T}, s{O_SEG}")
    A("s_cbranch_scc1 L_ao_rdone")
    red_flag_addrs(A, W_PREV)
    A(f"buffer_load_dword v31, v30, {WSR}, 0 offen sc1")
    A("s_waitcnt vmcnt(0)")
    A(f"v_cmp_gt_u32 vcc, v29, v31")
    A.forget()
    A("s_cbranch_vccnz L_ao_rdone")
    ao_reduce(A, W_PREV, "a", wait=False)
    A(f"s_add_u32 s{W_PREV}, s{W_PREV}, {NPAR}")
    A.settle()
    A("s_branch L_ao_red")
    A.label("L_ao_rdone")
    A.forget()
    A(f"s_cmp_lt_u32 s{O_SEG}, 64")
    A.settle()
    A("s_cbranch_scc1 L_ao_loop")
    A.label("L_ao_fin")
    A.forget()
    A(f"s_cmp_ge_u32 s{W_PREV}, 64")
    A("s_cbranch_scc1 L_ao_end")
    ao_reduce(A, W_PREV, "b", wait=True)
    A(f"s_add_u32 s{W_PREV}, s{W_PREV}, {NPAR}")
    A.settle()
    A("s_branch L_ao_fin")
    A.label("L_ao_end")
    A("s_waitcnt vmcnt(0)")
    dstamp(A, 12, diag)
    A("s_endpgm")
    A.label("L_wbail")
    A("s_mov_b64 exec, 1")
    A("v_mov_b32 v31, 0xbeef")
    A(f"buffer_store_dword v31, off, {DBG}, 0 offset:56")
    A("s_waitcnt vmcnt(0)")
    A("s_endpgm")
    return A.text()

if __name__ == "__main__":
    kw = dict(d1=40, d2=45, g1=20, g2=20)
    for a in sys.argv[2:]:
        k, v = a.split('=')
        if k in ('HOLD_FROM', 'HOLD_CNT'): globals()[k] = int(v)
        else: kw[k] = int(v)
    hdr = open('parallel_sum__memory_aug_recurrent_mem_tr__mixer_channel_mlp__prompt.s.ref').read().split('; Override launch')[0]
    txt = hdr + f"; @launch kernel={KNAME} grid=(256,1,1) block=(256,1,1) lds=163840\n"
    txt += '.amdgcn_target "amdgcn-amd-amdhsa--gfx950"\n.text\n'
    txt += khead(KNAME) + main_kernel(**kw)
    txt += '.section .rodata,"a"\n.p2align 6\n' + kdesc(KNAME)
    open(sys.argv[1], "w").write(txt)
```

```python
from asmlib import *
from layout import *
import math, struct
from gemm import f32bits

O_WS = 4
O_SRDW = 8
O_KC = 36; O_NC = 37; O_SEG = 38; O_STEP = 39; O_WV = 27
O_T0 = 40; O_T1 = 41; O_T2 = 42; O_C = 44
O_MSK = 46
O_HD = 54
LA_A = 0; LA_X = 32768
OV_L = 1; OV_QA = 2; OV_VA = 3; OV_KVA = 4; OV_XW = 5; OV_XR = 6; OV_AW = 7; OV_AR = 8; OV_PS = 9; OV_T = 10
OV_Q = 32; OV_K = 64; OV_V = 96; OV_KV = 128; OV_XF = 144; OV_S = 160
OV_P = 184
OV_ON = 200
OV_LD = 204
OV_AF = 212
OA_WO = 0; OA_O = 128; OA_OUT = 192

def ao_prologue(A, ptr_wo):
    from chain import srd
    L = OV_L; t0 = OV_T; t1 = OV_T + 1; t2 = OV_T + 2; t3 = OV_T + 3
    A(f"v_and_b32 v{L}, 63, v0")
    srd(A, O_SRDW, ptr_wo, 4194304)
    A(f"v_lshrrev_b32 v{t0}, 4, v{L}")
    A(f"v_bfe_u32 v{t1}, v{L}, 1, 3")
    A(f"v_xor_b32 v{t1}, v{t1}, v{t0}")
    A(f"v_and_b32 v{t2}, 1, v{L}")
    A(f"v_lshl_or_b32 v{t1}, v{t1}, 1, v{t2}")
    A(f"v_lshlrev_b32 v{t1}, 4, v{t1}")
    D = OV_T + 4
    A(f"v_lshl_or_b32 v{D}, v{t0}, 10, v{t1}")
    A(f"v_xor_b32 v{D+1}, 128, v{D}")
    A(f"s_lshl_b32 s{O_T0}, s{O_KC}, 19")
    A(f"s_lshl_b32 s{O_T1}, s{O_WV}, 17")
    A(f"s_add_u32 s{O_T0}, s{O_T0}, s{O_T1}")
    A(f"s_lshl_b32 s{O_T1}, s{O_NC}, 8")
    A(f"s_add_u32 s{O_T0}, s{O_T0}, s{O_T1}")
    A(f"s_lshl_b32 s{O_T1}, s{O_WV}, 15")
    for i in range(32):
        A(f"s_mov_b32 m0, s{O_T1}")
        A(f"buffer_load_dwordx4 v{D + ((i >> 1) & 1)}, s[{O_SRDW}:{O_SRDW+3}], s{O_T0} offen lds")
        A(f"s_add_u32 s{O_T0}, s{O_T0}, 4096")
        A(f"s_add_u32 s{O_T1}, s{O_T1}, 1024")
    A(f"v_lshrrev_b32 v{t0}, 4, v{L}")
    A(f"v_lshlrev_b32 v{t0}, 3, v{t0}")
    A(f"v_bfe_u32 v{t1}, v{L}, 2, 2")
    A(f"v_add_u32 v{t0}, v{t0}, v{t1}")
    A(f"v_lshlrev_b32 v{t0}, 8, v{t0}")
    A(f"v_bfe_u32 v{t2}, v{L}, 4, 1")
    A(f"v_lshl_or_b32 v{t1}, v{t2}, 2, v{t1}")
    A(f"s_lshl_b32 s{O_T0}, s{O_WV}, 1")
    A(f"v_xor_b32 v{t1}, s{O_T0}, v{t1}")
    A(f"v_lshl_or_b32 v{t0}, v{t1}, 5, v{t0}")
    A(f"v_and_b32 v{t2}, 3, v{L}")
    A(f"v_lshl_or_b32 v{t0}, v{t2}, 3, v{t0}")
    A(f"v_xor_b32 v{t3}, 32, v{t0}")
    TB = [OV_T + 6, OV_T + 7, OV_T + 8, OV_T + 9]
    A(f"v_mov_b32 v{TB[0]}, v{t0}"); A(f"v_mov_b32 v{TB[1]}, v{t3}")
    A(f"v_add_u32 v{TB[2]}, 0x10000, v{t0}"); A(f"v_add_u32 v{TB[3]}, 0x10000, v{t3}")
    A.wait(vm=0)
    A("s_barrier")
    for t in range(2):
        for ks in range(16):
            for hh in range(2):
                row = 32 * ks + 4 * hh
                b = TB[t + (2 if row >= 256 else 0)]
                r = OA_WO + (t * 16 + ks) * 4 + 2 * hh
                A(f"ds_read_b64_tr_b16 a[{r}:{r+1}], v{b} offset:{(row & 255) * 256}")
    A.wait(lg=0)
    A("s_barrier")
    A(f"s_lshl_b32 s{O_HD}, s{O_KC}, 2")
    A(f"s_add_u32 s{O_HD}, s{O_HD}, s{O_WV}")
    A(f"v_and_b32 v{t0}, 15, v{L}")
    A(f"v_lshlrev_b32 v{t0}, 13, v{t0}")
    A(f"v_lshrrev_b32 v{t1}, 4, v{L}")
    A(f"v_lshl_or_b32 v{t0}, v{t1}, 4, v{t0}")
    A(f"s_lshl_b32 s{O_T0}, s{O_HD}, 8")
    A(f"v_add_u32 v{OV_QA}, s{O_T0}, v{t0}")
    A(f"v_and_b32 v{t0}, 15, v{L}")
    A(f"v_lshlrev_b32 v{t0}, 6, v{t0}")
    A(f"v_lshl_or_b32 v{t0}, v{t1}, 4, v{t0}")
    A(f"s_lshl_b32 s{O_T0}, s{O_HD}, 13")
    A(f"v_add_u32 v{OV_VA}, s{O_T0}, v{t0}")
    A(f"v_lshlrev_b32 v{t0}, 4, v{L}")
    A(f"s_lshl_b32 s{O_T0}, s{O_HD}, 12")
    A(f"v_add_u32 v{OV_KVA}, s{O_T0}, v{t0}")
    A(f"v_and_b32 v{t0}, 15, v{L}")
    A(f"v_lshlrev_b32 v{t0}, 5, v{t0}")
    A(f"v_lshl_or_b32 v{t0}, v{t1}, 3, v{t0}")
    A(f"s_lshl_b32 s{O_T0}, s{O_WV}, 12")
    A(f"s_add_u32 s{O_T0}, s{O_T0}, {LA_X}")
    A(f"v_add_u32 v{OV_XW}, s{O_T0}, v{t0}")
    A(f"v_lshlrev_b32 v{t0}, 3, v{t1}")
    A(f"v_bfe_u32 v{t2}, v{L}, 2, 2")
    A(f"v_add_u32 v{t0}, v{t0}, v{t2}")
    A(f"v_lshlrev_b32 v{t0}, 5, v{t0}")
    A(f"v_and_b32 v{t2}, 3, v{L}")
    A(f"v_lshl_or_b32 v{t0}, v{t2}, 3, v{t0}")
    A(f"v_add_u32 v{OV_XR}, s{O_T0}, v{t0}")
    Z = OV_AF
    for i in range(4): A(f"v_mov_b32 v{Z+i}, 0")
    A(f"v_lshlrev_b32 v{t0}, 4, v{L}")
    A(f"v_add_u32 v{t0}, s{O_T0}, v{t0}")
    for i in range(4): A(f"ds_write_b128 v{t0}, v[{Z}:{Z+3}] offset:{i*1024}")
    A(f"v_and_b32 v{t0}, 15, v{L}")
    A(f"v_lshlrev_b32 v{OV_AW}, 10, v{t0}")
    A(f"v_bfe_u32 v{t2}, v{L}, 4, 1")
    A(f"v_lshl_or_b32 v{OV_AW}, v{t2}, 3, v{OV_AW}")
    A(f"s_lshl_b32 s{O_T0}, s{O_WV}, 8")
    A(f"v_add_u32 v{OV_AW}, s{O_T0}, v{OV_AW}")
    A(f"v_bfe_u32 v{t2}, v{L}, 5, 1")
    A(f"v_xor_b32 v{t0}, v{t0}, v{t2}")
    A(f"v_lshlrev_b32 v{20}, 4, v{t0}")
    A(f"v_and_b32 v{t0}, 15, v{L}")
    A(f"v_lshlrev_b32 v{OV_AR}, 10, v{t0}")
    A(f"v_xor_b32 v{t0}, v{t0}, v{t1}")
    A(f"v_lshlrev_b32 v{21}, 4, v{t0}")
    A(f"v_and_b32 v{t0}, 15, v{L}")
    A(f"v_lshlrev_b32 v{t0}, 9, v{t0}")
    A(f"v_lshl_or_b32 v{t0}, v{t1}, 4, v{t0}")
    A(f"s_lshl_b32 s{O_T0}, s{O_WV}, 7")
    A(f"v_add_u32 v{OV_PS}, s{O_T0}, v{t0}")
    A(f"v_and_b32 v{t0}, 15, v{L}")
    A(f"v_lshlrev_b32 v{t2}, 2, v{t1}")
    for r in range(4):
        A(f"v_add_u32 v{t3}, {r}, v{t2}")
        A(f"v_cmp_gt_u32 s[{O_MSK+2*r}:{O_MSK+2*r+1}], v{t3}, v{t0}")
    for i in range(4): A(f"v_mov_b32 v{OV_ON+i}, 0x3f803f80")
    c = (128 ** -0.5) * math.log2(math.e)
    A(f"s_mov_b32 s{O_C}, {f32bits(c)}"); A(f"s_mov_b32 s{O_C+1}, {f32bits(c)}")
    A.wait(lg=0)
    A.settle(); A.forget()

def ao_segment(A, sc1=True, prog_wait=None):
    WS = f"s[{O_WS}:{O_WS+3}]"; sc = " sc1" if sc1 else ""
    t0 = OV_T; t1 = OV_T + 1
    A(f"s_lshl_b32 s{O_T0}, s{O_SEG}, 18")
    A(f"s_add_u32 s{O_T1}, s{O_T0}, {WS_KX}")
    A(f"s_add_u32 s{O_T2}, s{O_T0}, {WS_QX}")
    for T in range(2):
        for ks in range(4):
            if T == 1 and ks == 0:
                A(f"s_add_u32 s{O_T1}, s{O_T1}, {16*8192}")
            r = OV_K + 4 * (4 * T + ks)
            A(f"buffer_load_dwordx4 v[{r}:{r+3}], v{OV_QA}, {WS}, s{O_T1} offen offset:{ks*64}{sc}")
    for T in range(2):
        for ks in range(4):
            if T == 1 and ks == 0:
                A(f"s_add_u32 s{O_T2}, s{O_T2}, {16*8192}")
            r = OV_Q + 4 * (4 * T + ks)
            A(f"buffer_load_dwordx4 v[{r}:{r+3}], v{OV_QA}, {WS}, s{O_T2} offen offset:{ks*64}{sc}")
    A(f"s_add_u32 s{O_T0}, s{O_T0}, {WS_VT}")
    for t in range(8):
        if t == 4: A(f"s_add_u32 s{O_T0}, s{O_T0}, 4096")
        r = OV_V + 4 * t
        A(f"buffer_load_dwordx4 v[{r}:{r+3}], v{OV_VA}, {WS}, s{O_T0} offen offset:{(t&3)*1024}{sc}")
    A(f"s_lshl_b32 s{O_STEP}, s{O_SEG}, 17")
    A(f"s_add_u32 s{O_STEP}, s{O_STEP}, {WS_KVM}")
    def kvloads():
        for wp in range(4):
            A(f"buffer_load_dwordx4 v[{OV_KV+4*wp}:{OV_KV+4*wp+3}], v{OV_KVA}, {WS}, s{O_STEP} offen offset:{wp*1024}{sc}")
    if prog_wait:
        A(f"s_cmp_ge_u32 s{O_SEG}, {TAIL_SEG}")
        A("s_cbranch_scc1 L_ao_tail")
        saved = [set(x) for x in A.vm]
        prog_wait()
        kvloads()
        A("s_branch L_ao_kv")
        A.label("L_ao_tail")
        A(f"s_mov_b32 s{O_T1}, 0")
        A.label("L_ao_tailp")
        A.auto = False
        kvloads()
        A.auto = True
        A(f"s_add_u32 s{O_T1}, s{O_T1}, 1")
        A(f"s_cmp_gt_u32 s{O_T1}, 0x400000")
        A("s_cbranch_scc1 L_wbail")
        A.raw("    s_waitcnt vmcnt(0)")
        A.auto = False
        A(f"v_max3_u32 v{t0}, v{OV_KV}, v{OV_KV+1}, v{OV_KV+2}")
        for i in range(3, 15, 2): A(f"v_max3_u32 v{t0}, v{t0}, v{OV_KV+i}, v{OV_KV+i+1}")
        A(f"v_max_u32 v{t0}, v{t0}, v{OV_KV+15}")
        A(f"v_cmp_eq_u32 vcc, -1, v{t0}")
        A.auto = True
        A("s_cbranch_vccnz L_ao_tailp")
        A.label("L_ao_kv")
        A.vm = saved + [set(f"v{OV_KV+4*wp+k}" for k in range(4)) for wp in range(4)]
    else:
        kvloads()
    pre_tiles = True
    for wp in range(4):
        A(f"ds_write2_b32 v{OV_XW}, v{OV_KV+4*wp}, v{OV_KV+4*wp+1} offset0:1 offset1:129" if wp == 0 else
          f"v_add_u32 v{t0}, {wp*1024}, v{OV_XW}")
        if wp > 0:
            A(f"ds_write2_b32 v{t0}, v{OV_KV+4*wp}, v{OV_KV+4*wp+1} offset0:1 offset1:129")
    A.wait(lg=0)
    for ks in range(4):
        for hh in range(2):
            r = OV_XF + 4 * ks + 2 * hh
            A(f"ds_read_b64_tr_b16 v[{r}:{r+1}], v{OV_XR} offset:{ks*1024+hh*128}")
    def S(qt, T): return OV_S + 12 * qt + 4 * T
    def q(qt, ks): return vr(OV_Q + 4 * (4 * qt + ks), 4)
    def k(T, ks): return vr(OV_K + 4 * (4 * T + ks), 4)
    tiles = [(0, 1), (1, 1), (1, 2), (0, 0), (1, 0)]
    for (qt, T) in tiles:
        for ks in range(4):
            a_ = vr(OV_XF + 4 * ks, 4) if T == 0 else k(T - 1, ks)
            d = vr(S(qt, T), 4)
            A(f"v_mfma_f32_16x16x32_bf16 {d}, {a_}, {q(qt, ks)}, {'0' if ks == 0 else d}")
    NEG = OV_T + 2
    A(f"v_mov_b32 v{NEG}, 0xff800000")
    for (qt, T) in ((0, 1), (1, 2)):
        for r in range(4):
            A(f"v_cndmask_b32 v{S(qt,T)+r}, v{S(qt,T)+r}, v{NEG}, s[{O_MSK+2*r}:{O_MSK+2*r+1}]")
    for qt in range(2):
        vals = [S(qt, 0) + 2, S(qt, 0) + 3] + [S(qt, 1) + r for r in range(4)] + ([S(qt, 2) + r for r in range(4)] if qt == 1 else [])
        Mx = OV_T + 4; Tt = OV_T + 5
        A(f"v_max3_f32 v{Mx}, v{vals[0]}, v{vals[1]}, v{vals[2]}")
        i = 3
        while i + 1 < len(vals):
            A(f"v_max3_f32 v{Mx}, v{Mx}, v{vals[i]}, v{vals[i+1]}"); i += 2
        if i < len(vals): A(f"v_max_f32 v{Mx}, v{Mx}, v{vals[i]}")
        A(f"v_mov_b32 v{Tt}, v{Mx}")
        A(f"v_permlane16_swap_b32 v{Mx}, v{Tt}")
        A(f"v_max_f32 v{Mx}, v{Mx}, v{Tt}")
        A(f"v_mov_b32 v{Tt}, v{Mx}")
        A(f"v_permlane32_swap_b32 v{Mx}, v{Tt}")
        A(f"v_max_f32 v{Mx}, v{Mx}, v{Tt}")
        A(f"v_mul_f32 v{Mx}, s{O_C}, v{Mx}")
        for r in vals: A(f"v_fma_f32 v{r}, v{r}, s{O_C}, -v{Mx}")
        for r in vals: A(f"v_exp_f32 v{r}, v{r}")
        P12 = OV_P + 4 * qt; P0a = OV_P + 8 + 4 * qt; P0b = P0a + 2
        A(f"v_cvt_pk_bf16_f32 v{P12}, v{S(qt,1)}, v{S(qt,1)+1}")
        A(f"v_cvt_pk_bf16_f32 v{P12+1}, v{S(qt,1)+2}, v{S(qt,1)+3}")
        if qt == 1:
            A(f"v_cvt_pk_bf16_f32 v{P12+2}, v{S(qt,2)}, v{S(qt,2)+1}")
            A(f"v_cvt_pk_bf16_f32 v{P12+3}, v{S(qt,2)+2}, v{S(qt,2)+3}")
        else:
            A(f"v_mov_b32 v{P12+2}, 0"); A(f"v_mov_b32 v{P12+3}, 0")
        A(f"v_cvt_pk_bf16_f32 v{P0a}, v{S(qt,0)+2}, v{S(qt,0)+3}")
        A(f"v_mov_b32 v{P0a+1}, 0")
        A(f"v_mov_b32 v{P0b}, 0")
        A(f"v_mov_b32 v{P0b+1}, v{P0a}")
    for qt in range(2):
        P12 = OV_P + 4 * qt; P0a = OV_P + 8 + 4 * qt; P0b = P0a + 2
        ld = vr(OV_LD + 4 * qt, 4)
        A(f"v_mfma_f32_16x16x32_bf16 {ld}, {vr(OV_ON,4)}, {vr(P12,4)}, 0")
        for t in range(8):
            o = ar(OA_O + 32 * qt + 4 * t, 4)
            A(f"v_mfma_f32_16x16x32_bf16 {o}, {vr(OV_V+4*t,4)}, {vr(P12,4)}, 0")
        A(f"v_mfma_f32_16x16x16_bf16 {ld}, {vr(OV_ON,2)}, {vr(P0a,2)}, {ld}")
        for t in range(8):
            o = ar(OA_O + 32 * qt + 4 * t, 4)
            wp = t >> 1
            A(f"v_mfma_f32_16x16x16_bf16 {o}, {vr(OV_KV+4*wp+2,2)}, {vr(P0a if (t & 1) == 0 else P0b,2)}, {o}")
    A("s_barrier")
    for qt in range(2):
        Ls = OV_T + 4
        A(f"v_rcp_f32 v{Ls}, v{OV_LD+4*qt}")
        for t in range(8):
            X = OV_T + 6
            for r in range(4): A(f"v_accvgpr_read_b32 v{22+r}, a{OA_O+32*qt+4*t+r}")
            for r in range(4): A(f"v_mul_f32 v{22+r}, v{22+r}, v{Ls}")
            A(f"v_cvt_pk_bf16_f32 v{26}, v22, v23")
            A(f"v_cvt_pk_bf16_f32 v{27}, v24, v25")
            A(f"v_xor_b32 v{t0}, {2*t*16}, v20")
            A(f"v_add_u32 v{t0}, v{t0}, v{OV_AW}")
            A(f"ds_write_b64 v{t0}, v[26:27] offset:{qt*16*1024}")
    A.wait(lg=0)
    A("s_barrier")
    for i in range(16): A(f"v_accvgpr_write_b32 a{OA_OUT+i}, 0")
    AD = [28, 29, 30, 31]
    for kk in range(4):
        A(f"v_xor_b32 v{AD[kk]}, {4*kk*16}, v21")
        A(f"v_add_u32 v{AD[kk]}, v{AD[kk]}, v{OV_AR}")
    steps = [(ks, mt) for ks in range(16) for mt in range(2)]
    def aload(n):
        ks, mt = steps[n]; r = OV_AF + 4 * (n & 7)
        return f"ds_read_b128 v[{r}:{r+3}], v{AD[ks & 3]} offset:{mt*16*1024 + (ks >> 2)*256}"
    for n in range(6): A(aload(n))
    for n, (ks, mt) in enumerate(steps):
        r = OV_AF + 4 * (n & 7)
        for ct in range(2):
            acc = ar(OA_OUT + 4 * (2 * mt + ct), 4)
            wo = ar(OA_WO + (ct * 16 + ks) * 4, 4)
            A(f"v_mfma_f32_16x16x32_bf16 {acc}, {wo}, {vr(r,4)}, {acc}")
        if n + 6 < len(steps): A(aload(n + 6))
    A(f"s_lshl_b32 s{O_T0}, s{O_SEG}, 2")
    A(f"s_add_u32 s{O_T0}, s{O_T0}, s{O_NC}")
    A(f"s_lshl_b32 s{O_T0}, s{O_T0}, 3")
    A(f"s_add_u32 s{O_T0}, s{O_T0}, s{O_KC}")
    A(f"s_lshl_b32 s{O_T0}, s{O_T0}, 14")
    A(f"s_add_u32 s{O_T0}, s{O_T0}, {WS_PART}")
    A(f"s_add_u32 s{O_T1}, s{O_T0}, {16*512}")
    for mt in range(2):
        for ct in range(2):
            R = 22 + 4 * ((2 * mt + ct) & 1)
            for r in range(4): A(f"v_accvgpr_read_b32 v{R+r}, a{OA_OUT+4*(2*mt+ct)+r}")
            A(f"buffer_store_dwordx4 v[{R}:{R+3}], v{OV_PS}, {WS}, s{O_T0 if mt == 0 else O_T1} offen offset:{ct*64}{sc}")
```

```python
from asmlib import *
from layout import *
import math, struct

L_WL   = 0
L_MEMB = 131072
L_KXB  = L_MEMB + 8192
L_X    = L_MEMB + 24576
L_OB   = L_X + 4096
L_CA   = L_OB + 2048
L_DUM  = L_CA + 1024
LDS_TOTAL = 163840
PSLOT = 262144

S_WS = 4; S_W = 8; S_DBG = 12
S_PW = 16
S_H = 26; S_WV = 27; S_STEP = 28; S_T0 = 29; S_T1 = 30; S_T2 = 31
S_C = 32
S_PAR = 34
S_PST0 = 35; S_PST1 = 36; S_PLD = 37; S_POI = 38; S_MSL = 39; S_MPO = 40
S_KXA = 41; S_KXB = 42; S_M0A = 43; S_M0B = 44; S_VT = 45; S_KM = 46; S_VM = 47
S_TO = 48
S_R0 = 8; S_R1 = 9; S_R2 = 10
S_EX = 50
S_TM = 52
S_TACC = 54
S_STAMP = 72

V_IDX, V_WL0, V_WL1, V_MEM, V_XW, V_XR, V_OW, V_PS, V_PL, V_MS, V_MW, V_KXG, V_VVT, V_KMS, V_VMS = range(1, 16)
V_T = 16
V_MK = 20
V_SB = 52
V_AQ = 68; V_AK = 76; V_AV = 84
V_XF = 92
V_S = 108
V_VX = 120

def wreg(X, c, f):
    idx = X * 12 + c * 4 + f
    return ar(8 * idx, 8) if idx < 32 else vr(128 + 8 * (idx - 32), 8)
def wreg_part(X, c, f, p):
    idx = X * 12 + c * 4 + f
    return ar(8 * idx + 2 * p, 2) if idx < 32 else vr(128 + 8 * (idx - 32) + 2 * p, 2)

def srd(A, s, ptr, size):
    A(f"s_mov_b32 s{s}, s{ptr}")
    A(f"s_and_b32 s{s+1}, s{ptr+1}, 0xffff")
    A(f"s_mov_b32 s{s+2}, {size}")
    A(f"s_mov_b32 s{s+3}, 0x20000")

WSR = f"s[{S_WS}:{S_WS+3}]"

def poll_with_shadow(A, poll, name, regs, loadfn, pre_ok, shadow):
    orig = A.wait
    state = {'done': False}
    def w(vm=None, lg=None):
        if not state['done']:
            state['done'] = True
            shadow()
        orig(vm, lg)
    A.wait = w
    try:
        poll(name, regs, loadfn, pre_ok)
    finally:
        A.wait = orig

def emit_chain(A, timing=False, nsteps=64, opt=(), d1=0, d2=0, hodelay=8, kxpos=(14, 22), g1=12, g2=12, dstamp=None):
    extra_delay = ["s_nop 0"] * d1
    extra_delay2 = ["s_nop 0"] * d2
    lane = 17; t0 = 18; t1 = 19
    def pst(k):
        if 'pro' in opt: A.raw(f"    s_memrealtime s[{72+2*k}:{73+2*k}]")
    pst(1)
    A(f"v_and_b32 v{lane}, 63, v0")
    DQ = V_MK
    DO = V_MK + 2
    TRA = V_MK + 6
    TRO = V_MK + 8
    TMP = V_SB
    a = V_MK + 12; b = V_MK + 13; c_ = V_MK + 14; d_ = V_MK + 15
    A(f"v_lshrrev_b32 v{a}, 4, v{lane}")
    A(f"v_bfe_u32 v{b}, v{lane}, 1, 3")
    A(f"v_xor_b32 v{c_}, v{b}, v{a}")
    A(f"v_and_b32 v{d_}, 1, v{lane}")
    A(f"v_lshl_or_b32 v{c_}, v{c_}, 1, v{d_}")
    A(f"v_lshlrev_b32 v{c_}, 4, v{c_}")
    A(f"v_lshl_or_b32 v{DQ}, v{a}, 13, v{c_}")
    A(f"v_xor_b32 v{DQ+1}, 128, v{DQ}")
    A(f"v_and_b32 v{c_}, 1, v{a}")
    A(f"v_xor_b32 v{c_}, v{b}, v{c_}")
    A(f"v_lshl_or_b32 v{c_}, v{c_}, 1, v{d_}")
    A(f"v_lshrrev_b32 v{b}, 2, v{c_}")
    A(f"v_lshlrev_b32 v{b}, 8, v{b}")
    A(f"v_and_b32 v{c_}, 3, v{c_}")
    A(f"v_lshl_or_b32 v{b}, v{c_}, 5, v{b}")
    A(f"v_lshl_or_b32 v{DO}, v{a}, 10, v{b}")
    A(f"v_xor_b32 v{DO+1}, 256, v{DO}")
    A(f"v_xor_b32 v{DO+2}, 512, v{DO}")
    A(f"v_xor_b32 v{DO+3}, 768, v{DO}")
    A(f"v_bfe_u32 v{b}, v{lane}, 4, 1")
    A(f"v_bfe_u32 v{c_}, v{lane}, 3, 1")
    A(f"v_lshl_or_b32 v{b}, v{c_}, 1, v{b}")
    A(f"v_bfe_u32 v{c_}, v{lane}, 2, 1")
    A(f"v_lshl_or_b32 v{b}, v{c_}, 2, v{b}")
    A(f"v_bfe_u32 v{c_}, v{lane}, 5, 1")
    A(f"v_lshl_or_b32 v{c_}, v{c_}, 4, v{b}")
    A(f"v_lshlrev_b32 v{c_}, 8, v{c_}")
    A(f"v_and_b32 v{d_}, 3, v{lane}")
    A(f"v_lshl_or_b32 v{c_}, v{d_}, 3, v{c_}")
    A(f"s_lshl_b32 s{S_T0}, s{S_WV}, 1")
    A(f"v_xor_b32 v{b}, s{S_T0}, v{b}")
    A(f"v_lshl_or_b32 v{TRA}, v{b}, 5, v{c_}")
    A(f"v_xor_b32 v{TRA+1}, 32, v{TRA}")
    A(f"v_bfe_u32 v{b}, v{lane}, 5, 1")
    A(f"v_lshlrev_b32 v{b}, 4, v{b}")
    A(f"v_bfe_u32 v{c_}, v{lane}, 4, 1")
    A(f"v_lshl_or_b32 v{b}, v{c_}, 2, v{b}")
    A(f"v_lshlrev_b32 v{t0}, 1, v{c_}")
    A(f"v_bfe_u32 v{c_}, v{lane}, 2, 1")
    A(f"v_or_b32 v{b}, v{b}, v{c_}")
    A(f"v_or_b32 v{t0}, v{t0}, v{c_}")
    A(f"v_bfe_u32 v{c_}, v{lane}, 3, 1")
    A(f"v_lshl_or_b32 v{b}, v{c_}, 3, v{b}")
    A(f"v_lshl_or_b32 v{t0}, v{c_}, 2, v{t0}")
    A(f"v_lshlrev_b32 v{b}, 8, v{b}")
    A(f"v_and_b32 v{c_}, 1, v{lane}")
    A(f"v_lshl_or_b32 v{b}, v{c_}, 4, v{b}")
    A(f"v_bfe_u32 v{c_}, v{lane}, 1, 1")
    A(f"v_or_b32 v{c_}, s{S_T0}, v{c_}")
    A(f"v_xor_b32 v{c_}, v{c_}, v{t0}")
    A(f"v_lshl_or_b32 v{TRO}, v{c_}, 5, v{b}")
    A(f"v_add_u32 v{TRO+1}, 8, v{TRO}")

    A(f"v_bfe_u32 v{t0}, v{lane}, 1, 1")
    A(f"v_lshlrev_b32 v{t0}, 1, v{t0}")
    A(f"v_lshrrev_b32 v{t1}, 4, v{lane}")
    A(f"v_add_u32 v{t0}, v{t0}, v{t1}")
    A(f"v_lshlrev_b32 v{t0}, 4, v{t0}")
    A(f"v_and_b32 v{t1}, 1, v{lane}")
    A(f"v_lshl_or_b32 v{t0}, v{t1}, 3, v{t0}")
    A(f"s_lshl_b32 s{S_T0}, s{S_H}, 8")
    A(f"s_lshl_b32 s{S_T1}, s{S_WV}, 6")
    A(f"s_add_u32 s{S_T0}, s{S_T0}, s{S_T1}")
    A(f"v_bfe_u32 v{t1}, v{lane}, 2, 2")
    A(f"v_lshl_or_b32 v{t0}, v{t1}, 13, v{t0}")
    A(f"v_add_u32 v{V_MS}, s{S_T0}, v{t0}")
    srd(A, S_W, S_PW + 8, 8192)
    A(f"v_lshrrev_b32 v{t0}, 4, v{lane}")
    A(f"v_and_b32 v{t0}, 1, v{t0}")
    A(f"v_lshlrev_b32 v{t0}, 10, v{t0}")
    A(f"v_and_b32 v{t1}, 3, v{lane}")
    A(f"v_lshl_or_b32 v{t0}, v{t1}, 1, v{t0}")
    A(f"s_lshl_b32 s{S_T0}, s{S_WV}, 11")
    A(f"s_lshl_b32 s{S_T1}, s{S_H}, 5")
    A(f"s_add_u32 s{S_T0}, s{S_T0}, s{S_T1}")
    M0R = V_S + 4
    MT = V_S
    for j in range(4):
        A(f"buffer_load_ushort v{MT+j}, v{t0}, s[{S_W}:{S_W+3}], s{S_T0} offen offset:{8*j}")
    P = V_XF
    for i in range(4): A(f"v_mov_b32 v{P+i}, -1")
    A(f"v_lshlrev_b32 v{t0}, 4, v0")
    A(f"s_lshl_b32 s{S_T0}, s{S_H}, 13")
    A(f"s_add_u32 s{S_T0}, s{S_T0}, {WS_PBUF}")
    for slot in range(3):
        for i in range(2):
            A(f"s_add_u32 s{S_T1}, s{S_T0}, {slot*PSLOT + i*4096}")
            A(f"buffer_store_dwordx4 v[{P}:{P+3}], v{t0}, {WSR}, s{S_T1} offen")
    A(f"v_cmp_gt_u32 vcc, 16, v0")
    A(f"s_and_saveexec_b64 s[{S_EX}:{S_EX+1}], vcc")
    A(f"s_cbranch_execz L_nomp")
    A(f"s_lshl_b32 s{S_T0}, s{S_H}, 8")
    A(f"s_add_u32 s{S_T0}, s{S_T0}, {WS_MBUF}")
    for sl in (1, 2):
        for cp in range(4):
            A(f"s_add_u32 s{S_T1}, s{S_T0}, {sl*32768 + cp*8192}")
            A(f"buffer_store_dwordx4 v[{P}:{P+3}], v{t0}, {WSR}, s{S_T1} offen")
    A.label("L_nomp")
    A(f"s_mov_b64 exec, s[{S_EX}:{S_EX+1}]")
    A.vm = []

    S_WR = 61
    if 'rot1' in opt:
        A(f"s_add_u32 s{S_WR}, s{S_WV}, s{S_H}")
        A(f"s_and_b32 s{S_WR}, s{S_WR}, 3")
    elif 'rot2' in opt:
        A(f"s_lshr_b32 s{S_WR}, s{S_H}, 2")
        A(f"s_add_u32 s{S_WR}, s{S_WR}, s{S_WV}")
        A(f"s_and_b32 s{S_WR}, s{S_WR}, 3")
    else:
        A(f"s_mov_b32 s{S_WR}, s{S_WV}")
    order = [(X, c) for X in range(4) for c in range(3)] + [(X, 3) for X in range(4)]
    slot_of = {}
    for i, (X, c) in enumerate(order[:12]): slot_of[(X, c)] = i % 5
    for X in range(4): slot_of[(X, 3)] = X
    def issue(X, c):
        srd(A, S_W, S_PW + 2 * X, 4194304)
        slot = slot_of[(X, c)]
        if X < 3:
            A(f"s_lshl_b32 s{S_T0}, s{S_WR}, 18")
            A(f"s_lshl_b32 s{S_T1}, s{S_H}, 8")
            A(f"s_add_u32 s{S_T0}, s{S_T0}, s{S_T1}")
            A(f"s_add_u32 s{S_T0}, s{S_T0}, {128*c*8192}")
            step = 4 * 8192
        else:
            A(f"s_lshl_b32 s{S_T0}, s{S_WR}, 15")
            A(f"s_lshl_b32 s{S_T1}, s{S_H}, 17")
            A(f"s_add_u32 s{S_T0}, s{S_T0}, s{S_T1}")
            A(f"s_add_u32 s{S_T0}, s{S_T0}, {(c >> 1) * 128 + (c & 1) * 16}")
            step = 4 * 1024
        A(f"s_lshl_b32 s{S_T1}, s{S_WR}, 13")
        A(f"s_add_u32 s{S_T1}, s{S_T1}, {slot*32768}")
        for i in range(8):
            D = DQ + (i & 1) if X < 3 else DO + (i & 3)
            A(f"s_mov_b32 m0, s{S_T1}")
            A(f"buffer_load_dwordx4 v{D}, s[{S_W}:{S_W+3}], s{S_T0} offen lds")
            if i < 7:
                A(f"s_add_u32 s{S_T0}, s{S_T0}, {step}")
                A(f"s_add_u32 s{S_T1}, s{S_T1}, 1024")
    pst(2)
    if 'diag' in opt:
        dstamp(A, 14, True)
        A.raw("    s_getreg_b32 s98, hwreg(HW_REG_HW_ID)")
        A(f"s_lshl_b32 s98, s98, 8"); A(f"s_or_b32 s98, s98, s{S_H}")
        lb = A.newlabel("L_dh")
        A(f"s_cmp_lg_u32 s27, 0"); A(f"s_cbranch_scc1 {lb}")
        A(f"s_lshl_b32 s100, s2, 9"); A(f"s_add_u32 s100, s100, {WS_TIME + 4*15}")
        A("v_mov_b32 v30, s98"); A("s_mov_b64 exec, 1"); A("buffer_store_dword v30, off, s[4:7], s100"); A("s_mov_b64 exec, -1"); A.vm.pop(); A.label(lb)
    issued = []
    for k in range(5):
        issue(*order[k]); issued.append(order[k])
    if 'nopf' not in opt:
        A.raw("    s_getpc_b64 s[56:57]")
        A.raw("L_pc0:")
        A.raw("    s_add_u32 s56, s56, L_step-L_pc0")
        A.raw("    s_addc_u32 s57, s57, 0")
        A(f"v_lshlrev_b32 v{V_AQ}, 4, v{lane}")
        A(f"s_lshl_b32 s{S_T0}, s{S_WV}, 11")
        A(f"v_add_u32 v{V_AQ}, s{S_T0}, v{V_AQ}")
        A(f"global_load_dwordx4 v[{V_AK}:{V_AK+3}], v{V_AQ}, s[56:57]")
        A(f"global_load_dwordx4 v[{V_AK+4}:{V_AK+7}], v{V_AQ}, s[56:57] offset:1024")
    A.raw(f"    s_waitcnt vmcnt({40 if 'nopf' in opt else 42})")
    _sv = A.vm; A.vm = []
    A(f"v_lshl_or_b32 v{M0R}, v{MT+1}, 16, v{MT}")
    A(f"v_lshl_or_b32 v{M0R+1}, v{MT+3}, 16, v{MT+2}")
    A(f"s_mov_b32 s{S_T0}, {WS_MBUF}")
    A(f"s_mov_b64 exec, 0xffffffff")
    A(f"buffer_store_dwordx2 v[{M0R}:{M0R+1}], v{V_MS}, {WSR}, s{S_T0} offen")
    A(f"s_mov_b64 exec, -1")
    if 'merged' in opt:
        A(f"v_lshlrev_b32 v{V_AQ+1}, 4, v0")
        A(f"s_lshl_b32 s{S_T0}, s{S_H}, 12")
        for sg in range(TAIL_SEG, 64):
            A(f"s_add_u32 s{S_T1}, s{S_T0}, {WS_KVM + sg*32*4096}")
            A(f"buffer_store_dwordx4 v[{P}:{P+3}], v{V_AQ+1}, {WSR}, s{S_T1} offen sc1")
    A.vm = _sv
    follow = {0: order[5], 1: order[6], 2: order[7], 3: order[8], 4: order[9], 5: order[10], 6: order[11],
              7: (2, 3), 8: (3, 3), 10: (0, 3), 11: (1, 3)}
    def trreads(X, slot, f, dst_fn):
        t = f & 1; ksp = f >> 1
        base = slot * 32768
        TR = TRA if X < 3 else TRO
        breg = TR + t
        if base >= 32768:
            A(f"v_add_u32 v{t1}, {base}, v{TR+t}")
            breg = t1
        for tp in range(4):
            if X < 3: imm = (64 * ksp + 32 * (tp >> 1) + 8 * (tp & 1)) * 256
            else: imm = (64 * ksp + 32 * (tp >> 1) + 2 * (tp & 1)) * 256
            A(f"ds_read_b64_tr_b16 {dst_fn(tp)}, v{breg} offset:{imm}")
    def consume_wait(ch):
        pos = issued.index(ch)
        n_after = len(issued) - 1 - pos
        A.wait(vm=8 * n_after)
        A("s_barrier")
    for i, (X, c) in enumerate(order[:12]):
        consume_wait((X, c))
        if i == 0: pst(3)
        if i == 4: pst(4)
        if i == 8: pst(5)
        if i == 5:
            A(f"s_cmp_lg_u32 s{S_WV}, 0")
            A(f"s_cbranch_scc1 L_rdy_skip")
            A(f"v_mov_b32 v{t1}, 1")
            A(f"s_mov_b64 exec, 1")
            A(f"buffer_atomic_add v{t1}, off, s[{S_DBG}:{S_DBG+3}], 0 offset:36")
            A(f"s_mov_b64 exec, -1")
            A.vm.pop()
            A.label("L_rdy_skip")
        for f in range(4):
            trreads(X, slot_of[(X, c)], f, lambda tp: wreg_part(X, c, f, tp))
        A.wait(lg=0)
        A("s_barrier")
        if i in follow:
            issue(*follow[i]); issued.append(follow[i])
    pst(6)
    if 'diag' in opt: dstamp(A, 10, True)
    def S(x): A(x)
    S(f"v_bfe_u32 v{t0}, v{lane}, 1, 1")
    S(f"v_mov_b32 v{V_IDX}, 0x4444")
    S(f"v_mov_b32 v{t1}, 0xeeee")
    S(f"v_cmp_ne_u32 vcc, 0, v{t0}")
    S(f"v_cndmask_b32 v{V_IDX}, v{V_IDX}, v{t1}, vcc")
    S(f"s_lshl_b32 s{S_T0}, s{S_WV}, 13")
    S(f"v_lshlrev_b32 v{t0}, 4, v{lane}")
    S(f"v_add_u32 v{V_WL0}, s{S_T0}, v{t0}")
    S(f"v_add_u32 v{V_WL1}, 0x10000, v{V_WL0}")
    S(f"v_add_u32 v{V_MEM}, {L_MEMB}, v{t0}")
    S(f"s_lshl_b32 s{S_T0}, s{S_WV}, 11")
    S(f"v_add_u32 v{V_MW}, s{S_T0}, v{V_MEM}")
    S(f"s_lshl_b32 s{S_T1}, s{S_H}, 13")
    S(f"s_add_u32 s{S_T0}, s{S_T0}, s{S_T1}")
    S(f"v_add_u32 v{V_PL}, s{S_T0}, v{t0}")
    S(f"v_and_b32 v{t0}, 15, v{lane}")
    S(f"v_lshlrev_b32 v{t0}, 5, v{t0}")
    S(f"v_lshrrev_b32 v{t1}, 4, v{lane}")
    S(f"v_lshl_or_b32 v{t0}, v{t1}, 3, v{t0}")
    S(f"v_bfe_u32 v{t1}, v{lane}, 3, 1")
    S(f"v_lshlrev_b32 v{t1}, 7, v{t1}")
    S(f"v_xor_b32 v{t0}, v{t0}, v{t1}")
    S(f"s_lshl_b32 s{S_T0}, s{S_WV}, 10")
    S(f"s_add_u32 s{S_T0}, s{S_T0}, {L_X}")
    S(f"v_add_u32 v{V_XW}, s{S_T0}, v{t0}")
    S(f"v_lshrrev_b32 v{t0}, 4, v{lane}")
    S(f"v_lshlrev_b32 v{t0}, 3, v{t0}")
    S(f"v_bfe_u32 v{t1}, v{lane}, 2, 2")
    S(f"v_or_b32 v{t0}, v{t0}, v{t1}")
    S(f"v_lshlrev_b32 v{t0}, 5, v{t0}")
    S(f"v_and_b32 v{t1}, 3, v{lane}")
    S(f"v_lshl_or_b32 v{t0}, v{t1}, 3, v{t0}")
    S(f"v_bfe_u32 v{t1}, v{lane}, 4, 1")
    S(f"v_lshlrev_b32 v{t1}, 7, v{t1}")
    S(f"v_xor_b32 v{t0}, v{t0}, v{t1}")
    S(f"v_add_u32 v{V_XR}, {L_X}, v{t0}")
    S(f"v_xor_b32 v{V_KMS}, 128, v{t0}")
    S(f"v_add_u32 v{V_KMS}, {L_X}, v{V_KMS}")
    S(f"v_and_b32 v{t0}, 13, v{lane}")
    S(f"v_bfe_u32 v{t1}, v{lane}, 5, 1")
    S(f"v_lshl_or_b32 v{t0}, v{t1}, 1, v{t0}")
    S(f"v_lshlrev_b32 v{t0}, 4, v{t0}")
    S(f"v_bfe_u32 v{t1}, v{lane}, 4, 1")
    S(f"v_lshl_or_b32 v{t0}, v{t1}, 3, v{t0}")
    S(f"s_lshl_b32 s{S_T0}, s{S_WV}, 9")
    S(f"s_add_u32 s{S_T0}, s{S_T0}, {L_OB}")
    S(f"v_add_u32 v{V_OW}, s{S_T0}, v{t0}")
    S(f"v_mov_b32 v{t0}, {L_DUM}")
    S(f"v_and_b32 v{t1}, 2, v{lane}")
    S(f"v_cmp_ne_u32 vcc, 0, v{t1}")
    S(f"v_cndmask_b32 v{V_OW}, v{V_OW}, v{t0}, vcc")
    S(f"v_bfe_u32 v{t0}, v{lane}, 2, 2")
    S(f"v_lshlrev_b32 v{t0}, 13, v{t0}")
    S(f"v_lshrrev_b32 v{t1}, 4, v{lane}")
    S(f"v_lshl_or_b32 v{t0}, v{t1}, 11, v{t0}")
    S(f"v_and_b32 v{t1}, 3, v{lane}")
    S(f"v_lshl_or_b32 v{t0}, v{t1}, 4, v{t0}")
    S(f"s_lshl_b32 s{S_T0}, s{S_H}, 6")
    S(f"v_add_u32 v{V_PS}, s{S_T0}, v{t0}")
    S(f"v_and_b32 v{t0}, 15, v{lane}")
    S(f"v_lshlrev_b32 v{t0}, 13, v{t0}")
    S(f"v_lshrrev_b32 v{t1}, 4, v{lane}")
    S(f"v_lshl_or_b32 v{t0}, v{t1}, 4, v{t0}")
    S(f"s_lshl_b32 s{S_T0}, s{S_H}, 8")
    S(f"s_lshr_b32 s{S_T1}, s{S_WV}, 1")
    S(f"s_lshl_b32 s{S_T1}, s{S_T1}, 17")
    S(f"s_add_u32 s{S_T0}, s{S_T0}, s{S_T1}")
    S(f"s_and_b32 s{S_T1}, s{S_WV}, 1")
    S(f"s_lshl_b32 s{S_T1}, s{S_T1}, 7")
    S(f"s_add_u32 s{S_T0}, s{S_T0}, s{S_T1}")
    S(f"v_add_u32 v{V_KXG}, s{S_T0}, v{t0}")
    S(f"v_and_b32 v{t0}, 15, v{lane}")
    S(f"v_lshlrev_b32 v{t0}, 6, v{t0}")
    S(f"v_lshrrev_b32 v{t1}, 4, v{lane}")
    S(f"v_lshl_or_b32 v{t0}, v{t1}, 4, v{t0}")
    S(f"s_lshl_b32 s{S_T0}, s{S_H}, 13")
    S(f"s_lshl_b32 s{S_T1}, s{S_WV}, 11")
    S(f"s_add_u32 s{S_T0}, s{S_T0}, s{S_T1}")
    S(f"v_add_u32 v{V_VVT}, s{S_T0}, v{t0}")
    S(f"v_lshlrev_b32 v{t0}, 4, v{lane}")
    S(f"s_lshl_b32 s{S_T0}, s{S_H}, 12")
    S(f"s_lshl_b32 s{S_T1}, s{S_WV}, 10")
    S(f"s_add_u32 s{S_T0}, s{S_T0}, s{S_T1}")
    S(f"v_add_u32 v{V_VMS}, s{S_T0}, v{t0}")
    c = (128 ** -0.5) * math.log2(math.e)
    cbits = hex(struct.unpack('<I', struct.pack('<f', c))[0])
    S(f"s_mov_b32 s{S_C}, {cbits}")
    S(f"s_mov_b32 s{S_C+1}, {cbits}")

    CA = V_AK
    A(f"v_and_b32 v{a}, 15, v{lane}")
    A(f"v_mov_b32 v{b}, 0x3f80")
    A(f"v_mov_b32 v{c_}, 0x3f800000")
    A(f"v_cmp_gt_u32 vcc, 4, v{a}")
    A(f"v_cndmask_b32 v{b}, v{c_}, v{b}, vcc")
    A(f"v_cmp_gt_u32 vcc, 8, v{a}")
    A(f"v_cndmask_b32 v{b}, 0, v{b}, vcc")
    A(f"v_and_b32 v{a}, 3, v{a}")
    for i in range(4):
        A(f"v_cmp_eq_u32 vcc, {i}, v{a}")
        A(f"v_cndmask_b32 v{CA+i}, 0, v{b}, vcc")
    A(f"s_lshl_b32 s{S_M0A}, s{S_WV}, 11")
    A(f"s_add_u32 s{S_M0A}, s{S_M0A}, {L_KXB}")
    A(f"s_mov_b32 s{S_KXA}, {WS_KX}")
    def kx0():
        A(f"s_mov_b32 m0, s{S_M0A}")
        A(f"buffer_load_dwordx4 v{V_KXG}, {WSR}, s{S_KXA} offen sc1 lds")
        A(f"s_add_u32 s{S_T0}, s{S_M0A}, 1024")
        A(f"s_add_u32 s{S_T1}, s{S_KXA}, 64")
        A(f"s_mov_b32 m0, s{S_T0}")
        A(f"buffer_load_dwordx4 v{V_KXG}, {WSR}, s{S_T1} offen sc1 lds")
    if 'merged' not in opt: kx0()
    A.wait(vm=0)
    A.vm = []
    A(f"ds_write_b128 v{V_MEM}, v[{CA}:{CA+3}] offset:{L_CA-L_MEMB}")
    A.wait(lg=0)
    A("s_barrier")
    A(f"s_mov_b32 s{S_TO}, 0")
    A(f"v_mov_b32 v{t0}, 36")
    A.label("L_rdy_poll")
    A(f"buffer_load_dword v{t1}, v{t0}, s[{S_DBG}:{S_DBG+3}], 0 offen sc1")
    A(f"s_add_u32 s{S_TO}, s{S_TO}, 1")
    A(f"s_cmp_gt_u32 s{S_TO}, 0x40000")
    A(f"s_cbranch_scc1 L_bail")
    A.wait(vm=0)
    A(f"v_cmp_gt_u32 vcc, 32, v{t1}")
    A(f"s_cbranch_vccnz L_rdy_poll")
    A.forget()
    if 'merged' in opt:
        A(f"s_mov_b32 s{S_TO}, 0")
        A.label("L_ci_poll")
        A(f"buffer_load_dword v{t1}, off, s[{S_DBG}:{S_DBG+3}], 0 offset:{D_INIT} sc1")
        A(f"s_add_u32 s{S_TO}, s{S_TO}, 1")
        A(f"s_cmp_gt_u32 s{S_TO}, 0x100000")
        A(f"s_cbranch_scc1 L_bail")
        A.wait(vm=0)
        A(f"v_cmp_eq_u32 vcc, 0, v{t1}")
        A(f"s_cbranch_vccnz L_ci_poll")
        A.forget()
    pst(7)
    if 'diag' in opt: dstamp(A, 11, True)
    for X in range(4):
        for f in range(4):
            trreads(X, X, f, lambda tp: vr(TMP + 8 * f + 2 * tp, 2))
        A.wait(lg=0)
        A("s_barrier")
        base = V_WL0 if X < 2 else V_WL1
        for f in range(4):
            for hh in range(2):
                A(f"ds_write_b128 v{base}, v[{TMP+8*f+4*hh}:{TMP+8*f+4*hh+3}] offset:{(X&1)*32768 + f*2048 + hh*1024}")
        A.wait(lg=0)
    if 'diag' in opt: dstamp(A, 12, True)
    if 'merged' in opt:
        A(f"s_mov_b32 s{S_T0}, {F_KV}")
        A.label("L_ck_poll")
        A(f"buffer_load_dword v{t1}, off, {WSR}, s{S_T0} sc1")
        A(f"s_add_u32 s{S_TO}, s{S_TO}, 1")
        A(f"s_cmp_gt_u32 s{S_TO}, 0x100000")
        A(f"s_cbranch_scc1 L_bail")
        A.wait(vm=0)
        A(f"v_cmp_gt_u32 vcc, 128, v{t1}")
        A(f"s_cbranch_vccnz L_ck_poll")
        A.forget()
        if 'diag' in opt: dstamp(A, 13, True)
        kx0()


    A("s_waitcnt vmcnt(0)")
    A("s_barrier")
    pst(8)
    if 'diag' in opt: dstamp(A, 5, True)
    pst(9)
    if 'pro' in opt:
        A.raw("    s_waitcnt lgkmcnt(0)")
        A(f"s_lshl_b32 s{S_T0}, s{S_H}, 2")
        A(f"s_add_u32 s{S_T0}, s{S_T0}, s{S_WV}")
        A(f"s_lshl_b32 s{S_T0}, s{S_T0}, 7")
        A(f"s_add_u32 s{S_T0}, s{S_T0}, {WS_TIME}")
        A(f"s_mov_b64 exec, 1")
        for k in range(10):
            A(f"v_mov_b32 v{V_T+1}, s{72+2*k}")
            A(f"v_mov_b32 v{V_T}, {4*k}")
            A(f"buffer_store_dword v{V_T+1}, v{V_T}, {WSR}, s{S_T0} offen")
        A(f"s_mov_b64 exec, -1")
        A.wait(vm=0)
    S_MA = 16; S_MB = 18; S_MT = 20
    S_PUB = 22; S_MPZ = 23; S_KEEP = 24; S_B0 = 11; S_B1 = 25; S_B2 = 49; S_HC = 46
    A(f"s_mov_b32 s{S_STEP}, 0")
    A(f"s_mov_b32 s{S_PAR}, 0")
    A(f"s_mov_b32 s{S_VT}, {WS_VT - 32*8192}")
    A(f"s_and_b32 s{S_HC}, s{S_H}, 3")
    A(f"s_lshl_b32 s{S_HC}, s{S_HC}, 13")
    A(f"s_sub_u32 s{S_HC}, s{S_HC}, {L_MEMB}")
    A(f"s_mov_b32 s{S_B0}, {WS_MBUF}")
    A(f"s_mov_b32 s{S_B1}, {WS_MBUF + 32768}")
    A(f"s_mov_b32 s{S_B2}, {WS_MBUF + 65536}")
    A(f"s_mov_b32 s{S_VM}, {WS_KVM}")
    S_FLG = 53; S_FOFF = 52; S_POFF = 54; S_CHK = 55
    if 'merged' in opt:
        A(f"s_mov_b32 s{S_FOFF}, {F_KV}")
        A(f"s_lshl_b32 s{S_POFF}, s{S_H}, 7")
        A(f"s_add_u32 s{S_POFF}, s{S_POFF}, {F_PROG}")
    A(f"s_mov_b32 s{S_EX+1}, {WS_KVM + 64*32*4096}")
    A(f"s_mov_b32 s{S_R0}, {WS_PBUF}")
    A(f"s_mov_b32 s{S_R1}, {WS_PBUF + PSLOT}")
    A(f"s_mov_b32 s{S_R2}, {WS_PBUF + 2*PSLOT}")
    def zero(r, n): return [f"v_mov_b64 v[{r+i}:{r+i+1}], 0" for i in range(0, n, 2)]
    def step_scalars():
        o = []
        o.append(f"s_mov_b32 s{S_PLD}, s{S_R0}")
        o.append(f"s_mov_b32 s{S_POI}, s{S_R2}")
        o.append(f"s_lshl_b32 s{S_T1}, s{S_WV}, 16")
        o.append(f"s_add_u32 s{S_PST0}, s{S_PLD}, s{S_T1}")
        o.append(f"s_add_u32 s{S_PST1}, s{S_PST0}, 32768")
        o.append(f"s_add_u32 s{S_MSL}, s{S_B0}, s{S_HC}")
        o.append(f"s_add_u32 s{S_MPO}, s{S_MSL}, 1024")
        o.append(f"s_add_u32 s{S_VT}, s{S_VT}, {32*8192}")
        o.append(f"s_add_u32 s{S_KXA}, s{S_KXA}, {32*8192}")
        o.append(f"s_add_u32 s{S_KXB}, s{S_KXA}, 64")
        o.append(f"s_xor_b32 s{S_M0A}, s{S_M0A}, {L_KXB ^ (L_KXB + 8192)}")
        o.append(f"s_add_u32 s{S_M0B}, s{S_M0A}, 1024")
        o.append(f"v_add_u32 v0, s{S_PAR}, v{V_MEM}")
        return o
    for x in zero(V_AQ, 24): A(x)
    for x in step_scalars(): A(x)
    A(f"buffer_load_dwordx4 v[{V_S+4}:{V_S+7}], v{V_MW}, {WSR}, s{S_MSL} offen sc1")
    A(f"buffer_load_dwordx4 v[{V_S+8}:{V_S+11}], v{V_MW}, {WSR}, s{S_MPO} offen sc1")
    A(f"ds_write_b128 v{V_MW}, v[{V_S+4}:{V_S+7}]")
    A(f"ds_write_b128 v{V_MW}, v[{V_S+8}:{V_S+11}] offset:1024")
    A.wait(lg=0)
    A("s_barrier")
    def sbload(buf, X, f):
        base = V_WL0 if X < 2 else V_WL1
        r = V_SB + 8 * buf
        return [f"ds_read_b128 v[{r}:{r+3}], v{base} offset:{(X&1)*32768 + f*2048}",
                f"ds_read_b128 v[{r+4}:{r+7}], v{base} offset:{(X&1)*32768 + f*2048 + 1024}"]
    for s_ in sbload(0, 0, 0) + sbload(1, 0, 1): A(s_)
    if timing:
        for i in range(18): A(f"s_mov_b32 s{S_TACC+i}, 0")
    A.wait(lg=0)
    A.settle()
    A.forget()

    NST = 15
    def stamp(k):
        if timing: A.raw(f"    {'s_memrealtime' if ('abs' in opt and 'absm' not in opt) else 's_memtime'} s[{S_STAMP+2*k}:{S_STAMP+2*k+1}]")
    def stamp_acc():
        if timing and 'abs' in opt:
            A.raw("    s_waitcnt lgkmcnt(0)")
            lb = A.newlabel("L_abs")
            A(f"s_cmp_lg_u32 s{S_STEP}, 31")
            A(f"s_cbranch_scc1 {lb}")
            for k in range(NST):
                A(f"s_mov_b32 s{S_TACC+k}, s{S_STAMP+2*k}")
            A.label(lb)
            return
        if timing:
            A.raw("    s_waitcnt lgkmcnt(0)")
            A(f"s_sub_u32 s{S_T2}, s{S_STAMP}, s{S_TM}")
            A(f"s_add_u32 s{S_TACC}, s{S_TACC}, s{S_T2}")
            for k in range(1, NST):
                A(f"s_sub_u32 s{S_T2}, s{S_STAMP+2*k}, s{S_STAMP+2*(k-1)}")
                A(f"s_add_u32 s{S_TACC+k}, s{S_TACC+k}, s{S_T2}")
            A(f"s_mov_b32 s{S_TM}, s{S_STAMP+2*(NST-1)}")
    def M(ks): return vr(V_MK + 4 * ks, 4)
    def mload(ks, sc=""):
        return f"ds_read_b128 {M(ks)}, v{V_MEM} offset:{ks*1024}"
    def pack(acc, t, dst):
        return [f"v_pk_add_f32 v[{acc+4*t}:{acc+4*t+1}], v[{acc+4*t}:{acc+4*t+1}], v[{acc+4*t+2}:{acc+4*t+3}]",
                f"v_cvt_pk_bf16_f32 v{dst}, v{acc+4*t}, v{acc+4*t+1}"]

    if 'diag' in opt: dstamp(A, 6, True)
    pre_barrier = []
    sfx = ['']
    if 'rt' in opt:
        A.raw("    s_memtime s[56:57]")
        A.raw("    s_memrealtime s[58:59]")
        A.raw("    s_waitcnt lgkmcnt(0)")
        A("s_mov_b32 s64, 0"); A("s_mov_b32 s65, 0")
    if timing:
        A(f"s_memtime s[{S_TM}:{S_TM+1}]")
        A.wait(lg=0)
    A.label("L_step")
    if 'diag' in opt: dstamp(A, 16, True, S_STEP)
    if 'steps' in opt:
        A.raw("    s_memtime s[56:57]")
    stamp(0)
    morder = [6, 0, 1, 2, 7, 3, 4, 5]
    npre = 8
    for ks in morder: A(mload(ks))
    if 'merged' in opt:
        A(f"s_add_u32 s{S_T0}, s{S_STEP}, 2")
        A(f"s_and_b32 s{S_CHK}, s{S_T0}, 7")
        A(f"s_cmp_lg_u32 s{S_CHK}, 0")
        A(f"s_cbranch_scc1 L_noflag")
        A(f"buffer_load_dword v{V_S}, off, {WSR}, s{S_FOFF} sc1")
        A.vm.pop()
        A.label("L_noflag")
    if 'noload' not in opt and 'novt' not in opt:
        A(f"buffer_load_dwordx4 v[{V_VX}:{V_VX+3}], v{V_VVT}, {WSR}, s{S_VT} offen sc1")
        A(f"buffer_load_dwordx4 v[{V_VX+4}:{V_VX+7}], v{V_VVT}, {WSR}, s{S_VT} offen offset:1024 sc1")
    A(f"buffer_store_dwordx4 v[{V_AV}:{V_AV+3}], v{V_VMS}, {WSR}, s{S_EX+1} offen" + ("" if 'nopub' in opt else " sc1"))
    if 'merged' in opt:
        A(f"s_and_b32 s{S_T0}, s{S_STEP}, 3")
        A(f"s_or_b32 s{S_T0}, s{S_T0}, s{S_WV}")
        A(f"s_cmp_lg_u32 s{S_T0}, 0")
        A(f"s_cbranch_scc1 L_noprog")
        A(f"s_sub_u32 s{S_T0}, s{S_STEP}, 1")
        A(f"s_max_i32 s{S_T0}, s{S_T0}, 0")
        A(f"v_mov_b32 v{V_T+1}, s{S_T0}")
        A(f"s_mov_b64 exec, 1")
        A(f"buffer_store_dword v{V_T+1}, off, {WSR}, s{S_POFF} sc1")
        A(f"s_mov_b64 exec, -1")
        A.vm.pop()
        A.label("L_noprog")
    late_zero = zero(V_AV, 8)
    SL = [(0,0),(0,1),(1,0),(1,1),(0,2),(0,3),(1,2),(1,3),(2,0),(2,1),(2,2),(2,3)]
    RL = [(X, t, ks) for ks in range(6) for X in (0, 1) for t in (0, 1)]
    ACC = {0: V_AQ, 1: V_AK, 2: V_AV}
    CHK = V_T + 1
    qk = []
    ri = 0
    for pos in range(32):
        if pos % 4 == 0:
            X, f = SL[pos // 4]; qk.append(('S', X, f & 1, 6 + (f >> 1), pos // 4))
        else:
            X, t, ks = RL[ri]; ri += 1; qk.append(('R', X, t, ks, None))
    def mf(e):
        kind, X, t, ks, si = e
        d = vr(ACC[X] + 4 * t, 4)
        bsrc = vr(V_SB + 8 * (si & 1), 8) if kind == 'S' else wreg(X, ks >> 1, (ks & 1) * 2 + t)
        return f"v_smfmac_f32_16x16x64_bf16 {d}, {M(ks)}, {bsrc}, v{V_IDX}"
    def qk_pass(loads):
        fill = {p: [] for p in range(32)}
        for p in range(0, 32, 4):
            si = p // 4
            fill[p] += sbload(si & 1, *SL[si + 2])
        first_use = {}
        for p, e in enumerate(qk):
            first_use.setdefault(e[3], p)
        if loads:
            rem = morder[npre:]
            for i, ks in enumerate(rem): fill[1 + 5 * i].append(mload(ks))
        for i, x in enumerate(late_zero): fill[9 + 4 * i].append(x)
        if 'noload' not in opt and 'nokx' not in opt:
            pa, pb = kxpos
            fill[pa - 1] += [f"s_mov_b32 m0, s{S_M0A}"]
            fill[pa] += [f"buffer_load_dwordx4 v{V_KXG}, {WSR}, s{S_KXA} offen sc1 lds"]
            fill[pb - 1] += [f"s_mov_b32 m0, s{S_M0B}"]
            fill[pb] += [f"buffer_load_dwordx4 v{V_KXG}, {WSR}, s{S_KXB} offen sc1 lds"]
        for p in range(32):
            A(mf(qk[p]))
            if p == 0 and loads: stamp(1)
            for x in fill[p]: A(x)
    qk_pass(True)
    A.label("L_v")
    stamp(2)
    seq = []
    seqR = [(0,0),(1,0),(0,1),(1,1),(0,2),(1,2),(0,3),(1,3),(0,4),(1,4),(0,5),(1,5)]
    ri = 0
    for pos in range(16):
        if pos % 4 == 0:
            f = pos // 4; seq.append(('S', 2, f & 1, 6 + (f >> 1), 8 + f))
        else:
            t, ks = seqR[ri]; ri += 1; seq.append(('R', 2, t, ks, None))
    fill = {p: [] for p in range(16)}
    fill[0] += sbload(0, *SL[10]); fill[4] += sbload(1, *SL[11])
    fill[1] += pack(V_AQ, 0, V_AQ + 2)[:1] + pack(V_AQ, 1, V_AQ + 6)[:1]
    fill[2] += pack(V_AQ, 0, V_AQ + 2)[1:] + pack(V_AQ, 1, V_AQ + 6)[1:] + [f"ds_write2_b32 v{V_XW}, v{V_AQ+2}, v{V_AQ+6} offset0:0 offset1:128"]
    fill[3] += pack(V_AK, 0, V_AK + 2)[:1] + pack(V_AK, 1, V_AK + 6)[:1]
    fill[4] += pack(V_AK, 0, V_AK + 2)[1:] + pack(V_AK, 1, V_AK + 6)[1:] + [f"ds_write2_b32 v{V_XW}, v{V_AK+2}, v{V_AK+6} offset0:1 offset1:129"]
    fill[5] += [f"v_mov_b32 v{V_T}, v{V_AK+2}", f"v_mov_b32 v{V_T+1}, v{V_AK+6}"]
    fill[7] += ["@wait_writes", "s_barrier"]
    xf = []
    for ks in range(4):
        for hh in range(2):
            xf.append(f"ds_read_b64_tr_b16 v[{V_XF+4*ks+2*hh}:{V_XF+4*ks+2*hh+1}], v{V_XR if hh == 0 else V_KMS} offset:{ks*1024}")
    last = {}
    for p, e in enumerate(seq): last[e[3]] = p
    free_order = sorted(last, key=lambda k: last[k])
    kxr = {}
    kxr[(0, 0)] = vr(V_AQ, 4); kxr[(0, 1)] = vr(V_AQ + 4, 4); kxr[(0, 2)] = vr(V_AK, 4); kxr[(0, 3)] = vr(V_AK + 4, 4)
    for kk in range(4): kxr[(1, kk)] = M(free_order[kk])
    def kxload(T, kk): return f"ds_read_b128 {kxr[(T, kk)]}, v0 offset:{8192 + (T*4+kk)*1024}"
    fill[7] += xf[0:2]; fill[8] += xf[2:4]; fill[9] += xf[4:6]; fill[10] += xf[6:8]
    fill[11] += [kxload(0, 0), kxload(0, 1)]; fill[13] += [kxload(0, 2)]; fill[14] += [kxload(0, 3)]
    assert last[free_order[3]] <= 13
    for p in range(16):
        A(mf(seq[p]))
        for x in fill[p]:
            if x == "s_barrier" and 'vdet' in opt: stamp(8)
            if x == "@wait_writes" and 'vdet' in opt: stamp(11)
            A(x)
            if x == "s_barrier" and 'vdet' in opt: stamp(9)
        if p == 11 and 'vdet' in opt: stamp(12)
    stamp(3)
    A.raw(f"    s_waitcnt vmcnt({(1 if 'noload' in opt else 3 if ('novt' in opt or 'nokx' in opt) else 5) + (1 if 'steps' in opt else 0)})")
    if 'merged' in opt:
        A(f"s_mov_b32 s{S_FLG}, 128")
        A(f"s_cmp_lg_u32 s{S_CHK}, 0")
        A(f"s_cbranch_scc1 L_norfl")
        A(f"v_readfirstlane_b32 s{S_FLG}, v{V_S}")
        A.label("L_norfl")
    S0, S1, S2 = V_S, V_S + 4, V_S + 8
    def tm(dst, a_, ks, first):
        cc = "0" if first else vr(dst, 4)
        return f"v_mfma_f32_16x16x32_bf16 {vr(dst,4)}, {a_}, {vr(V_XF+4*ks,4)}, {cc}"
    seqT = [(S0, None, k) for k in range(4)] + [(S1, 0, k) for k in range(4)] + [(S2, 1, k) for k in range(4)]
    fill = {p: [] for p in range(12)}
    ONr = V_MK + 4 * free_order[4]
    LD = V_MK + 4 * free_order[5]
    fill[0] += [kxload(1, 0), kxload(1, 1)]; fill[1] += [kxload(1, 2), kxload(1, 3)]
    fill[7] += [f"v_mov_b32 v{ONr}, 0x3f803f80", f"v_mov_b32 v{ONr+1}, 0x3f803f80"]
    fill[8] += [f"v_mov_b32 v{ONr+2}, 0x3f803f80", f"v_mov_b32 v{ONr+3}, 0x3f803f80"]
    fill[2] += pack(V_AV, 0, V_AV + 2)[:1] + pack(V_AV, 1, V_AV + 6)[:1]
    fill[3] += pack(V_AV, 0, V_AV + 2)[1:] + pack(V_AV, 1, V_AV + 6)[1:]
    fill[4] += [f"v_mov_b32 v{V_AV+3}, 0", f"v_mov_b32 v{V_AV+7}, 0"]
    fill[5] += [f"v_min_u32 v{V_AV}, -2, v{V_T}", f"v_min_u32 v{V_AV+1}, -2, v{V_T+1}"]
    Tt = V_T + 1; Ls = V_T + 2; Mx = V_T + 3
    fill[9] += [f"v_max3_f32 v{Mx}, v{S0+2}, v{S0+3}, v{S1}"]
    fill[10] += [f"v_max3_f32 v{Mx}, v{Mx}, v{S1+1}, v{S1+2}"]
    fill[11] += [f"v_max_f32 v{Mx}, v{Mx}, v{S1+3}"]
    for p, (dst, T, kk) in enumerate(seqT):
        a_ = vr(V_XF + 4 * kk, 4) if T is None else kxr[(T, kk)]
        A(tm(dst, a_, kk, kk == 0))
        for x in fill[p]: A(x)
    stamp(4)
    A(f"s_cmp_eq_u32 s{S_STEP}, {nsteps-1}")
    A(f"s_cbranch_scc1 L_last")
    A(f"v_max3_f32 v{Mx}, v{Mx}, v{S2}, v{S2+1}")
    A(f"v_max3_f32 v{Tt}, v{Mx}, v{S2+2}, v{S2+3}")
    A(f"v_max3_f32 v{Mx}, v{Mx}, v{S2+2}, v{S2+3}")
    sbo = sbload(0, 3, 0) + sbload(1, 3, 1)
    A(sbo[0])
    A(f"v_permlane16_swap_b32 v{Mx}, v{Tt}")
    A(sbo[1])
    A(f"v_max_f32 v{Ls}, v{Mx}, v{Tt}")
    A(f"v_max_f32 v{Mx}, v{Mx}, v{Tt}")
    A(sbo[2])
    A(sbo[3])
    A(f"v_permlane32_swap_b32 v{Mx}, v{Ls}")
    A(f"v_max_f32 v{Mx}, v{Mx}, v{Ls}")
    A(f"v_mul_f32 v{Mx}, s{S_C}, v{Mx}")
    def pkf(r): return f"v_pk_fma_f32 v[{r}:{r+1}], v[{r}:{r+1}], s[{S_C}:{S_C+1}], v[{Mx-1}:{Mx}] op_sel:[0,0,1] op_sel_hi:[1,1,1] neg_lo:[0,0,1] neg_hi:[0,0,1]"
    for r in (S1, S1 + 2, S2, S2 + 2, S0 + 2): A(pkf(r))
    P12 = V_AQ; P0 = V_AQ + 4; OT = V_AK
    for r in range(S1, S1 + 4): A(f"v_exp_f32 v{r}, v{r}")
    A(f"v_exp_f32 v{S2}, v{S2}")
    A(f"v_exp_f32 v{S2+1}, v{S2+1}")
    A(f"v_cvt_pk_bf16_f32 v{P12}, v{S1}, v{S1+1}")
    A(f"v_exp_f32 v{S2+2}, v{S2+2}")
    A(f"v_cvt_pk_bf16_f32 v{P12+1}, v{S1+2}, v{S1+3}")
    A(f"v_exp_f32 v{S2+3}, v{S2+3}")
    A(f"v_cvt_pk_bf16_f32 v{P12+2}, v{S2}, v{S2+1}")
    A(f"v_exp_f32 v{S0+2}, v{S0+2}")
    A(f"v_cvt_pk_bf16_f32 v{P12+3}, v{S2+2}, v{S2+3}")
    A(f"v_exp_f32 v{S0+3}, v{S0+3}")
    A(f"v_mov_b32 v{P0+1}, 0")
    A(f"v_mfma_f32_16x16x32_bf16 {vr(LD,4)}, {vr(ONr,4)}, {vr(P12,4)}, 0")
    A(f"v_cvt_pk_bf16_f32 v{P0}, v{S0+2}, v{S0+3}")
    for t in range(2):
        A(f"v_mfma_f32_16x16x32_bf16 {vr(OT+4*t,4)}, {vr(V_VX+4*t,4)}, {vr(P12,4)}, 0")
    PO2 = V_S + 4
    for i in range(0, 4, 2): A(f"v_mov_b64 v[{PO2+i}:{PO2+i+1}], -1")
    A(f"v_mfma_f32_16x16x16_bf16 {vr(LD,4)}, {vr(ONr,2)}, {vr(P0,2)}, {vr(LD,4)}")
    for t in range(2):
        A(f"v_mfma_f32_16x16x16_bf16 {vr(OT+4*t,4)}, {vr(V_AV+4*t+2,2)}, {vr(P0,2)}, {vr(OT+4*t,4)}")
    A(f"v_min_u32 v{V_AV+3}, -2, v{V_AV+6}")
    A(f"v_min_u32 v{V_AV+2}, -2, v{V_AV+2}")
    A(f"v_rcp_f32 v{Ls}, v{LD}")
    for r in range(0, 8, 2):
        A(f"v_pk_mul_f32 v[{OT+r}:{OT+r+1}], v[{OT+r}:{OT+r+1}], v[{Ls}:{Ls+1}] op_sel_hi:[1,0]")
    for t in range(2):
        A(f"v_cvt_pk_bf16_f32 v{OT+4*t}, v{OT+4*t}, v{OT+4*t+1}")
        A(f"v_cvt_pk_bf16_f32 v{OT+4*t+1}, v{OT+4*t+2}, v{OT+4*t+3}")
        A(f"ds_write_b64 v{V_OW}, v[{OT+4*t}:{OT+4*t+1}] offset:{t*256}")
    A("@wait_writes")
    stamp(5)
    A("s_barrier")
    OF = V_VX
    A(f"ds_read_b128 {vr(OF,4)}, v{V_MEM} offset:{L_OB-L_MEMB}")
    A(f"ds_read_b128 {vr(OF+4,4)}, v{V_MEM} offset:{L_OB-L_MEMB+1024}")
    A(f"buffer_store_dwordx4 v[{PO2}:{PO2+3}], v{V_PL}, {WSR}, s{S_POI} offen")
    A(f"buffer_store_dwordx4 v[{PO2}:{PO2+3}], v{V_PL}, {WSR}, s{S_POI} offen offset:1024")
    for x in zero(V_MK, 32): A(x)
    stamp(6)
    oseq = [('S',6,0,0),('R',0,0),('R',0,1),('R',1,0),('S',7,0,1),('R',1,1),('R',2,0),('R',2,1),
            ('S',6,1,2),('R',3,0),('R',3,1),('R',4,0),('S',7,1,3),('R',4,1),('R',5,0),('R',5,1)]
    PQ = V_AQ
    def ppack(tile):
        a0 = V_MK + 4 * tile
        return [f"v_pk_add_f32 v[{a0}:{a0+1}], v[{a0}:{a0+1}], v[{a0+2}:{a0+3}]",
                f"v_cvt_pk_bf16_f32 v{PQ+tile}, v{a0}, v{a0+1}"]
    fill = {p: [] for p in range(16)}
    fill[0] += sbload(0, 3, 2); fill[4] += sbload(1, 3, 3); fill[8] += sbload(0, 0, 0); fill[12] += sbload(1, 0, 1)
    CAR = V_S
    fill[1] += [f"ds_read_b128 {vr(CAR,4)}, v{V_MEM} offset:{L_CA-L_MEMB}"]
    fill[6] += ppack(0); fill[9] += ppack(1); fill[11] += ppack(2); fill[13] += ppack(3)
    fill[14] += [f"buffer_store_dwordx4 v[{PQ}:{PQ+3}], v{V_PS}, {WSR}, s{S_PST0} offen"]
    fill[15] += ppack(6)
    for p, e in enumerate(oseq):
        tile, ks = e[1], e[2]
        bsrc = vr(V_SB + 8 * (e[3] & 1), 8) if e[0] == 'S' else wreg(3, tile >> 1, ks * 2 + (tile & 1))
        A(f"v_smfmac_f32_16x16x64_bf16 {vr(V_MK+4*tile,4)}, {vr(OF+4*ks,4)}, {bsrc}, v{V_IDX}")
        for x in fill[p]: A(x)
    for tl in (7, 4, 5):
        for x in ppack(tl): A(x)
    A(f"buffer_store_dwordx4 v[{PQ+4}:{PQ+7}], v{V_PS}, {WSR}, s{S_PST1} offen")
    stamp(7)
    ta = V_T + 1; tb = V_T + 2
    def poll2(name, regs, loadfn, mid=None, cnt=None, st=None, gap=()):
        def check():
            A(f"v_max3_u32 v{ta}, v{regs}, v{regs+1}, v{regs+2}")
            A(f"v_max3_u32 v{tb}, v{regs+4}, v{regs+5}, v{regs+6}")
            A(f"v_max_u32 v{ta}, v{ta}, v{regs+3}")
            if mid: mid(0)
            A(f"v_max_u32 v{tb}, v{tb}, v{regs+7}")
            if mid: mid(1)
            A(f"v_cmp_eq_u32 s[{S_MA}:{S_MA+1}], -1, v{ta}")
            A(f"v_cmp_eq_u32 s[{S_MB}:{S_MB+1}], -1, v{tb}")
            A(f"s_or_b64 s[{S_MT}:{S_MT+1}], s[{S_MA}:{S_MA+1}], s[{S_MB}:{S_MB+1}]")
            A(f"s_cbranch_scc0 L_{name}ok")
        def round_():
            A(f"s_or_b32 s{S_MA}, s{S_MA}, 1")
            A(f"s_or_b32 s{S_MB}, s{S_MB}, 1")
            A.auto = False
            A(f"s_mov_b64 exec, s[{S_MA}:{S_MA+1}]")
            loadfn(0)
            A(f"s_mov_b64 exec, s[{S_MB}:{S_MB+1}]")
            loadfn(1)
            A(f"s_mov_b64 exec, -1")
            A.auto = True
        A(f"s_mov_b32 s{S_TO}, 0")
        for x in gap: A(x)
        A.auto = False
        loadfn(0); loadfn(1)
        A.auto = True
        A(f"s_waitcnt vmcnt(2)")
        if st is not None: stamp(st)
        A.forget()
        check()
        A.label(f"L_{name}loop")
        round_()
        A(f"s_add_u32 s{S_TO}, s{S_TO}, 1")
        A(f"s_cmp_gt_u32 s{S_TO}, 0x40000")
        A(f"s_cbranch_scc1 L_bail")
        A(f"s_waitcnt vmcnt(2)")
        A.forget()
        check()
        A(f"s_branch L_{name}loop")
        A.label(f"L_{name}ok")
        A.forget()
        if cnt: cnt()
    PB = V_AK; RD = V_VX
    A(f"s_mov_b32 s{S_KEEP}, s{S_PLD}")
    A(f"s_mov_b32 s{S_EX}, s{S_POI}")
    A(f"s_mov_b32 s{S_EX+1}, s{S_VM}")
    A(f"s_mov_b32 s{S_PUB}, s{S_B1}")
    A(f"s_mov_b32 s{S_MPZ}, s{S_B2}")
    A(f"s_mov_b32 s{S_B2}, s{S_B0}")
    A(f"s_mov_b32 s{S_B0}, s{S_PUB}")
    A(f"s_mov_b32 s{S_B1}, s{S_MPZ}")
    A(f"s_xor_b32 s{S_PAR}, s{S_PAR}, 8192")
    A(f"s_add_u32 s{S_STEP}, s{S_STEP}, 1")
    A(f"s_add_u32 s{S_VM}, s{S_VM}, {32*4096}")
    A(f"s_mov_b32 s{S_T0}, s{S_R0}")
    A(f"s_mov_b32 s{S_R0}, s{S_R1}")
    A(f"s_mov_b32 s{S_R1}, s{S_R2}")
    A(f"s_mov_b32 s{S_R2}, s{S_T0}")
    for x in step_scalars(): A(x)
    if 'merged' in opt:
        A(f"s_cmp_ge_u32 s{S_FLG}, 128")
        A(f"s_cbranch_scc0 L_kvslow")
        A.label("L_kvok")
        A(f"s_add_u32 s{S_T0}, s{S_STEP}, 2")
        A(f"s_lshr_b32 s{S_T0}, s{S_T0}, 3")
        A(f"s_min_u32 s{S_T0}, s{S_T0}, 7")
        A(f"s_lshl_b32 s{S_T0}, s{S_T0}, 7")
        A(f"s_add_u32 s{S_FOFF}, s{S_T0}, {F_KV}")
    for x in zero(V_AQ, 8): A(x)
    for x in extra_delay: A(x)
    def h1load(q):
        A(f"buffer_load_dwordx4 v[{PB+4*q}:{PB+4*q+3}], v{V_PL}, {WSR}, s{S_KEEP} offen offset:{1024*q} sc1")
    if 'vdet' not in opt: stamp(8)
    h1load(0); h1load(1)
    def h1mid(i):
        if i == 0: A(f"v_mfma_f32_16x16x32_bf16 {vr(RD,4)}, {vr(CAR,4)}, {vr(PB,4)}, 0")
        else: A(f"v_mfma_f32_16x16x32_bf16 {vr(RD,4)}, {vr(CAR,4)}, {vr(PB+4,4)}, {vr(RD,4)}")
    poll2("h1", PB, h1load, mid=h1mid, st=(None if "vdet" in opt else 9), gap=["s_nop 0"] * g1)
    A("s_nop 2")
    if timing: A(f"s_add_u32 s{S_TACC+16}, s{S_TACC+16}, s{S_TO}")
    if 'rt' in opt: A(f"s_add_u32 s64, s64, s{S_TO}")
    stamp(10)
    for ror in (4, 8):
        for r in range(4):
            A(f"v_add_f32_dpp v{RD+r}, v{RD+r}, v{RD+r} row_ror:{ror} row_mask:0xf bank_mask:0xf")
    A(f"v_cvt_pk_bf16_f32 v{RD}, v{RD}, v{RD+1}")
    A(f"v_cvt_pk_bf16_f32 v{RD+1}, v{RD+2}, v{RD+3}")
    A(f"v_min_u32 v{RD}, -2, v{RD}")
    A(f"v_min_u32 v{RD+1}, -2, v{RD+1}")
    A(f"s_mov_b64 exec, 0xffffffff")
    A(f"buffer_store_dwordx2 v[{RD}:{RD+1}], v{V_MS}, {WSR}, s{S_PUB} offen")
    A(f"v_mov_b64 v[{RD+2}:{RD+3}], -1")
    A(f"buffer_store_dwordx2 v[{RD+2}:{RD+3}], v{V_MS}, {WSR}, s{S_MPZ} offen")
    A(f"s_mov_b64 exec, -1")
    for x in extra_delay2: A(x)
    def stage_mem():
        ML = V_S + 4
        def h2load(q):
            so = S_MSL if q == 0 else S_MPO
            A(f"buffer_load_dwordx4 v[{ML+4*q}:{ML+4*q+3}], v{V_MW}, {WSR}, s{so} offen sc1")
        if 'vdet' not in opt: stamp(11)
        h2load(0); h2load(1)
        poll2("h2", ML, h2load, st=(None if "vdet" in opt else 12), gap=["s_nop 0"] * g2)
        if timing: A(f"s_add_u32 s{S_TACC+17}, s{S_TACC+17}, s{S_TO}")
        if 'rt' in opt: A(f"s_add_u32 s65, s65, s{S_TO}")
        stamp(13)
        A(f"ds_write_b128 v{V_MW}, v[{ML}:{ML+3}]")
        A(f"ds_write_b128 v{V_MW}, v[{ML+4}:{ML+7}] offset:1024")
    stage_mem()
    for x in zero(V_AK, 8): A(x)
    A("@wait_writes")
    if 'steps' in opt:
        A(f"s_lshl_b32 s58, s{S_H}, 2")
        A(f"s_add_u32 s58, s58, s{S_WV}")
        A(f"s_lshl_b32 s58, s58, 6")
        A(f"s_add_u32 s58, s58, s{S_STEP}")
        A(f"s_lshl_b32 s58, s58, 2")
        A(f"s_add_u32 s58, s58, {WS_TIME - 4}")
        A(f"v_mov_b32 v{V_T}, s56")
        A(f"v_mov_b32 v{V_T+1}, 0")
        A(f"s_mov_b64 exec, 1")
        A(f"buffer_store_dword v{V_T}, v{V_T+1}, {WSR}, s58 offen")
        A(f"s_mov_b64 exec, -1")
    stamp(14)
    stamp_acc()
    A("s_barrier")
    A.settle()
    A.forget()
    A("s_branch L_step")
    if 'merged' in opt:
        A.label("L_kvslow")
        A(f"s_mov_b32 s{S_TO}, 0")
        A.label("L_kvslow2")
        A(f"buffer_load_dword v{V_T+1}, off, {WSR}, s{S_FOFF} sc1")
        A(f"s_add_u32 s{S_TO}, s{S_TO}, 1")
        A(f"s_cmp_gt_u32 s{S_TO}, 0x100000")
        A(f"s_cbranch_scc1 L_bail")
        A("s_waitcnt vmcnt(0)")
        A(f"v_cmp_gt_u32 vcc, 128, v{V_T+1}")
        A(f"s_cbranch_vccnz L_kvslow2")
        A.forget()
        A("s_branch L_kvok")
    A.label("L_last")
    if 'diag' in opt: dstamp(A, 7, True)
    A.settle()
    A(f"v_min_u32 v{V_AV+3}, -2, v{V_AV+6}")
    A(f"v_min_u32 v{V_AV+2}, -2, v{V_AV+2}")
    A(f"buffer_store_dwordx4 v[{V_AV}:{V_AV+3}], v{V_VMS}, {WSR}, s{S_VM} offen sc1")
    if 'rt' in opt:
        A.raw("    s_memtime s[60:61]")
        A.raw("    s_memrealtime s[62:63]")
        A.raw("    s_waitcnt lgkmcnt(0)")
        A(f"s_sub_u32 s56, s60, s56")
        A(f"s_sub_u32 s58, s62, s58")
        A(f"s_lshl_b32 s{S_T0}, s{S_H}, 2")
        A(f"s_add_u32 s{S_T0}, s{S_T0}, s{S_WV}")
        A(f"s_lshl_b32 s{S_T0}, s{S_T0}, 7")
        A(f"s_add_u32 s{S_T0}, s{S_T0}, {WS_TIME}")
        A(f"s_mov_b64 exec, 1")
        for k, r in enumerate((56, 58, 64, 65)):
            A(f"v_mov_b32 v{V_MK+1}, s{r}")
            A(f"v_mov_b32 v{V_MK}, {4*k}")
            A(f"buffer_store_dword v{V_MK+1}, v{V_MK}, {WSR}, s{S_T0} offen")
        A(f"s_mov_b64 exec, -1")
    A.wait(vm=0)
    if 'merged' in opt:
        A("s_barrier")
        A(f"s_cmp_lg_u32 s{S_WV}, 0")
        A(f"s_cbranch_scc1 L_end")
        A(f"v_mov_b32 v{V_T+1}, 64")
        A(f"s_mov_b64 exec, 1")
        A(f"buffer_store_dword v{V_T+1}, off, {WSR}, s{S_POFF} sc1")
        A.wait(vm=0)
    if timing:
        A(f"s_lshl_b32 s{S_T0}, s{S_H}, 2")
        A(f"s_add_u32 s{S_T0}, s{S_T0}, s{S_WV}")
        A(f"s_lshl_b32 s{S_T0}, s{S_T0}, 7")
        A(f"s_add_u32 s{S_T0}, s{S_T0}, {WS_TIME}")
        A(f"s_mov_b64 exec, 1")
        for k in range(18):
            A(f"v_mov_b32 v{V_T+1}, s{S_TACC+k}")
            A(f"v_mov_b32 v{V_T}, {4*k}")
            A(f"buffer_store_dword v{V_T+1}, v{V_T}, {WSR}, s{S_T0} offen")
        A.wait(vm=0)
    A("s_branch L_end")
    A.label("L_bail")
    A(f"s_mov_b64 exec, 1")
    A(f"v_mov_b32 v{V_T}, 60")
    A(f"v_mov_b32 v{V_T+1}, 0xdead")
    A(f"buffer_store_dword v{V_T+1}, v{V_T}, s[{S_DBG}:{S_DBG+3}], 0 offen")
    A.wait(vm=0)
    A.label("L_end")
```

```python
import sys
from asmlib import *
from layout import *
from gemm import *
from ln import *
import ao
from ao import *
import chain
from chain import srd, emit_chain, S_PW, S_WS, S_DBG, S_H, S_WV, S_T2, L_X
from gen_gemm_test import khead, kdesc

KNAME = "parallel_sum__memory_aug_recurrent_mem_tr__mixer_channel_mlp__prompt_kernel"
T_KV = 128
T_H = T_KV + 224
T_Q = T_H + 56
T_M2 = T_Q + 128
NT2 = T_M2 + 64
KVT = 128
NYP = 4
HOLD_FROM = 600; HOLD_CNT = 128
PREF = 0
P_X = 72; P_B2 = 74; P_OUT = 76; P_W2 = 78; P_WO = 80
W_TASK = 28; W_NEXT = 29; W_TO = 82; W_T = 83; W_T2 = 84; W_SIG = 85; W_PAR = 86; W_PREV = 87; W_NP = 88; W_INC = 90; W_KIND = 91; W_INI = 93; W_LAST = 96
INIT_TICKET = 64
LNT = 16
WSR = "s[4:7]"; DBG = "s[12:15]"
LDS_BC = 163840 - 16

def spin(A, name, load, cmp_fail, limit=0x200000):
    A(f"s_cmp_lg_u32 s{G_WV}, 0")
    A(f"s_cbranch_scc1 L_{name}_j")
    A(f"s_mov_b32 s{W_TO}, 0")
    A.label(f"L_{name}_p")
    A(load)
    A(f"s_add_u32 s{W_TO}, s{W_TO}, 1")
    A(f"s_cmp_gt_u32 s{W_TO}, {limit}")
    A(f"s_cbranch_scc1 L_wbail")
    A("s_waitcnt vmcnt(0)")
    A(cmp_fail)
    A(f"s_cbranch_vccz L_{name}_j")
    A("s_sleep 2")
    A(f"s_branch L_{name}_p")
    A.label(f"L_{name}_j")
    A.forget()
    A("s_barrier")

def wait_ws_ge(A, name, soff, val):
    spin(A, name, f"buffer_load_dword v31, off, {WSR}, s{soff} sc1", f"v_cmp_gt_u32 vcc, {val}, v31")

def signal_ws(A, name, soff, inc=None):
    A("s_waitcnt vmcnt(0)")
    A.forget()
    A("s_barrier")
    A(f"s_cmp_lg_u32 s{G_WV}, 0")
    A(f"s_cbranch_scc1 L_{name}_s")
    A(f"s_cmp_lg_u32 s{W_INI}, 0")
    A(f"s_cbranch_scc1 L_{name}_i")
    A(f"s_mov_b32 s{W_TO}, 0")
    A.label(f"L_{name}_ip")
    A(f"buffer_load_dword v31, off, {DBG}, 0 offset:{D_INIT} sc1")
    A(f"s_add_u32 s{W_TO}, s{W_TO}, 1")
    A(f"s_cmp_gt_u32 s{W_TO}, 0x200000")
    A("s_cbranch_scc1 L_wbail")
    A("s_waitcnt vmcnt(0)")
    A("v_cmp_eq_u32 vcc, 0, v31")
    A(f"s_cbranch_vccnz L_{name}_ip")
    A(f"s_mov_b32 s{W_INI}, 1")
    A.label(f"L_{name}_i")
    A("v_mov_b32 v31, 1" if inc is None else f"v_mov_b32 v31, s{inc}")
    A("s_mov_b64 exec, 1")
    A(f"buffer_atomic_add v31, off, {WSR}, s{soff}")
    A("s_mov_b64 exec, -1")
    A.label(f"L_{name}_s")
    A.forget()

def fetch_ticket(A, name, dbg_off, dst, soff=None):
    A(f"s_cmp_lg_u32 s{G_WV}, 0")
    A(f"s_cbranch_scc1 L_{name}_t")
    A("v_mov_b32 v31, 1")
    A("s_mov_b64 exec, 1")
    A(f"buffer_atomic_add v31, off, {DBG}, {0 if soff is None else 's%d' % soff} offset:{dbg_off} sc0")
    A("s_waitcnt vmcnt(0)")
    A(f"v_mov_b32 v30, {LDS_BC}")
    A("ds_write_b32 v30, v31")
    A("s_waitcnt lgkmcnt(0)")
    A("s_mov_b64 exec, -1")
    A.label(f"L_{name}_t")
    A.forget()
    A("s_barrier")
    A(f"v_mov_b32 v30, {LDS_BC}")
    A("ds_read_b32 v31, v30")
    A.wait(lg=0)
    A(f"v_readfirstlane_b32 s{dst}, v31")
    A("s_barrier")

def prog_wait(A):
    saved = [set(x) for x in A.vm]; savedl = [set(x) for x in A.lgkm]
    A(f"s_cmp_lg_u32 s{G_WV}, 0")
    A("s_cbranch_scc1 L_ap_j")
    A(f"s_lshl_b32 s{W_T2}, s{O_KC}, 9")
    A(f"s_add_u32 s{W_T2}, s{W_T2}, {F_PROG}")
    A(f"v_and_b32 v30, 3, v{OV_L}")
    A("v_lshlrev_b32 v30, 7, v30")
    A(f"s_mov_b32 s{W_TO}, 0")
    A.label("L_ap_p")
    A.auto = False
    A(f"buffer_load_dword v31, v30, {WSR}, s{W_T2} offen sc1")
    A.auto = True
    A(f"s_add_u32 s{W_TO}, s{W_TO}, 1")
    A(f"s_cmp_gt_u32 s{W_TO}, 0x400000")
    A("s_cbranch_scc1 L_wbail")
    A("s_waitcnt vmcnt(0)")
    A(f"v_cmp_ge_u32 vcc, s{O_SEG}, v31")
    A("s_cbranch_vccz L_ap_j")
    A("s_sleep 2")
    A("s_branch L_ap_p")
    A.label("L_ap_j")
    A.vm = saved; A.lgkm = savedl
    A("s_barrier")

def red_flag_addrs(A, seg_sreg):
    A(f"s_lshl_b32 s{W_T}, s{seg_sreg}, 2")
    A(f"s_add_u32 s{W_T}, s{W_T}, s{O_NC}")
    A(f"s_lshl_b32 s{W_T}, s{W_T}, 7")
    A(f"s_add_u32 s{W_T}, s{W_T}, {F_R}")
    A(f"s_lshr_b32 s{W_T2}, s{seg_sreg}, 3")
    A(f"s_lshl_b32 s{W_T2}, s{W_T2}, 7")
    A(f"s_add_u32 s{W_T2}, s{W_T2}, {F_Y}")
    A(f"v_and_b32 v28, 1, v{OV_L}")
    A("v_cmp_eq_u32 vcc, 0, v28")
    A(f"v_mov_b32 v30, s{W_T2}")
    A(f"v_mov_b32 v29, s{W_T}")
    A("v_cndmask_b32 v30, v30, v29, vcc")
    A("v_mov_b32 v29, 8")
    A("v_mov_b32 v28, 8")
    A("v_cndmask_b32 v29, v29, v28, vcc")

def ao_reduce(A, seg_sreg, tag, wait=True):
    t0 = OV_T; t1 = OV_T + 1
    if wait:
        red_flag_addrs(A, seg_sreg)
        if wait == 'data': A("v_mov_b32 v28, 0"); A(f"v_and_b32 v27, 1, v{OV_L}"); A("v_cmp_eq_u32 vcc, 0, v27"); A("v_cndmask_b32 v29, v29, v28, vcc")
        A(f"s_mov_b32 s{W_TO}, 0")
        A.label(f"L_rw{tag}")
        A(f"buffer_load_dword v31, v30, {WSR}, 0 offen sc1")
        A(f"s_add_u32 s{W_TO}, s{W_TO}, 1")
        A(f"s_cmp_gt_u32 s{W_TO}, 0x400000")
        A("s_cbranch_scc1 L_wbail")
        A("s_waitcnt vmcnt(0)")
        A("v_cmp_gt_u32 vcc, v29, v31")
        A.forget()
        A(f"s_cbranch_vccnz L_rw{tag}")
    A(f"s_lshl_b32 s{W_T}, s{seg_sreg}, 2")
    A(f"s_add_u32 s{W_T}, s{W_T}, s{O_NC}")
    A(f"s_lshl_b32 s{W_T}, s{W_T}, 17")
    A(f"s_add_u32 s{W_T}, s{W_T}, {WS_PART}")
    A(f"s_lshl_b32 s{O_T0}, s{O_KC}, 2")
    A(f"s_add_u32 s{O_T0}, s{O_T0}, s{O_WV}")
    A(f"s_lshl_b32 s{O_T1}, s{O_T0}, 9")
    A(f"s_add_u32 s{W_T}, s{W_T}, s{O_T1}")
    A(f"v_lshlrev_b32 v{t0}, 3, v{OV_L}")
    R = OV_Q
    def ploads():
        for kc in range(8):
            A(f"s_add_u32 s{O_T1}, s{W_T}, {kc*16384}")
            A(f"buffer_load_dwordx2 v[{R+2*kc}:{R+2*kc+1}], v{t0}, {WSR}, s{O_T1} offen sc1")
    if wait == 'data':
        A(f"s_mov_b32 s{W_TO}, 0")
        A.label(f"L_rd{tag}")
        ploads()
        A(f"s_add_u32 s{W_TO}, s{W_TO}, 1")
        A(f"s_cmp_gt_u32 s{W_TO}, 0x400000")
        A("s_cbranch_scc1 L_wbail")
        A.wait(vm=0)
        A(f"v_max3_u32 v{t1}, v{R}, v{R+1}, v{R+2}")
        for i in range(3, 15, 2): A(f"v_max3_u32 v{t1}, v{t1}, v{R+i}, v{R+i+1}")
        A(f"v_max_u32 v{t1}, v{t1}, v{R+15}")
        A(f"v_cmp_eq_u32 vcc, -1, v{t1}")
        A(f"s_cbranch_vccnz L_rd{tag}")
        A.forget()
    else:
        ploads()
    A(f"s_lshl_b32 s{O_T1}, s{seg_sreg}, 5")
    A(f"s_add_u32 s{O_T0}, s{O_T0}, s{O_T1}")
    A(f"s_lshl_b32 s{O_T1}, s{O_T0}, 11")
    A(f"s_lshl_b32 s{O_T2}, s{O_NC}, 9")
    A(f"s_add_u32 s{O_T1}, s{O_T1}, s{O_T2}")
    A(f"s_add_u32 s{O_T1}, s{O_T1}, {WS_Y}")
    for pl in range(NYP):
        A(f"buffer_load_dwordx2 v[{R+16+2*pl}:{R+17+2*pl}], v{t0}, {WSR}, s{O_T1} offen sc1")
        if pl < NYP - 1: A(f"s_add_u32 s{O_T1}, s{O_T1}, {4*MB}")
    A(f"v_lshlrev_b32 v{t1}, 2, v{OV_L}")
    A(f"s_lshl_b32 s{O_T1}, s{O_T0}, 10")
    A(f"s_lshl_b32 s{O_T2}, s{O_NC}, 8")
    A(f"s_add_u32 s{O_T1}, s{O_T1}, s{O_T2}")
    A(f"buffer_load_dword v{R+24}, v{t1}, s[56:59], s{O_T1} offen")
    A(f"buffer_load_dword v{R+25}, v{t1}, s[60:63], s{O_T2} offen")
    A(f"v_pk_add_f32 v[{R}:{R+1}], v[{R}:{R+1}], v[{R+2}:{R+3}]")
    for k in range(2, 8 + NYP):
        A(f"v_pk_add_f32 v[{R}:{R+1}], v[{R}:{R+1}], v[{R+2*k}:{R+2*k+1}]")
    for src in (R + 24, R + 25):
        A(f"v_lshlrev_b32 v{R+26}, 16, v{src}")
        A(f"v_and_b32 v{R+27}, 0xffff0000, v{src}")
        A(f"v_pk_add_f32 v[{R}:{R+1}], v[{R}:{R+1}], v[{R+26}:{R+27}]")
    A(f"v_cvt_pk_bf16_f32 v{R}, v{R}, v{R+1}")
    A(f"buffer_store_dword v{R}, v{t1}, s[64:67], s{O_T1} offen")

def dstamp(A, idx, diag, sreg_idx=None, cyc=False):
    if not diag: return
    lb = A.newlabel("L_ds")
    A.raw("    s_memtime s[98:99]" if cyc else "    s_memrealtime s[98:99]")
    A.raw("    s_waitcnt lgkmcnt(0)")
    A(f"s_cmp_lg_u32 s27, 0")
    A(f"s_cbranch_scc1 {lb}")
    A(f"s_lshl_b32 s100, s2, 9")
    if sreg_idx is not None:
        A(f"s_lshl_b32 s101, s{sreg_idx}, 2")
        A(f"s_add_u32 s100, s100, s101")
    A(f"s_add_u32 s100, s100, {WS_TIME + 4*idx}")
    A("v_mov_b32 v30, s98")
    A("s_mov_b64 exec, 1")
    A(f"buffer_store_dword v30, off, s[4:7], s100")
    A("s_mov_b64 exec, -1")
    A.vm.pop()
    A.label(lb)

def main_kernel(d1, d2, g1, g2, NPAR=6, diag=0):
    A = Asm()
    A("s_cmp_ge_u32 s2, 256")
    A("s_cbranch_scc1 L_end")
    A(f"s_load_dwordx2 s[{S_PW}:{S_PW+1}], s[0:1], {KA_WQ}")
    A(f"s_load_dwordx2 s[{S_PW+2}:{S_PW+3}], s[0:1], {KA_WK}")
    A(f"s_load_dwordx2 s[{S_PW+4}:{S_PW+5}], s[0:1], {KA_WV}")
    A(f"s_load_dwordx2 s[{S_PW+6}:{S_PW+7}], s[0:1], {KA_WO}")
    A(f"s_load_dwordx2 s[{S_PW+8}:{S_PW+9}], s[0:1], {KA_MEM0}")
    A(f"s_load_dwordx2 s[52:53], s[0:1], {KA_DBG}")
    A(f"s_load_dwordx2 s[54:55], s[0:1], {KA_WS}")
    A(f"s_load_dwordx2 s[56:57], s[0:1], {KA_X}")
    A(f"s_getreg_b32 s{S_T2}, hwreg(HW_REG_XCC_ID)")
    A(f"v_lshrrev_b32 v1, 6, v0")
    A(f"v_readfirstlane_b32 s{S_WV}, v1")
    A.wait(lg=0)
    srd(A, S_WS, 54, WS_SIZE)
    srd(A, S_DBG, 52, 256)
    A(f"s_and_b32 s60, s{S_T2}, 15")
    dstamp(A, 0, diag)
    A("s_cmp_lg_u32 s2, 0")
    A("s_cbranch_scc1 L_noinit")
    for i in range(4): A(f"v_mov_b32 v{60+i}, 0")
    A("v_lshlrev_b32 v64, 4, v0")
    for i in range(FLAG_BYTES // 4096):
        A(f"s_mov_b32 s61, {WS_FLAG + i*4096}")
        A(f"buffer_store_dwordx4 v[60:63], v64, {WSR}, s61 offen sc1")
    A.label("L_noinit")
    A.forget()
    A(f"s_cmp_eq_u32 s60, 0")
    A(f"s_cselect_b32 s29, {D_CTK}, {D_WTK}")
    fetch_ticket(A, "tk", 0, S_H, soff=29)
    A("s_cmp_lg_u32 s2, 0")
    A("s_cbranch_scc1 L_noinit2")
    A("s_waitcnt vmcnt(0)")
    A("s_barrier")
    A(f"s_cmp_lg_u32 s{S_WV}, 0")
    A("s_cbranch_scc1 L_noinit2")
    A("v_mov_b32 v64, 1")
    A("s_mov_b64 exec, 1")
    A(f"buffer_store_dword v64, off, {DBG}, 0 offset:{D_INIT} sc1")
    A("s_mov_b64 exec, -1")
    A.label("L_noinit2")
    A.forget()
    A(f"s_cmp_lg_u32 s60, 0")
    A("s_cbranch_scc1 L_worker")
    A(f"s_cmp_ge_u32 s{S_H}, 32")
    A("s_cbranch_scc1 L_xs")
    emit_chain(A, d1=d1, d2=d2, g1=g1, g2=g2, opt=('merged',) + (('diag',) if diag else ()) + (('nostep',) if diag == 2 else ()), dstamp=dstamp)
    A("s_endpgm")

    A.label("L_xs")
    fetch_ticket(A, "xtk", D_WTK, S_H)
    A.label("L_worker")
    A.forget()
    A(f"s_mov_b32 s{W_TASK}, s{S_H}")
    A(f"s_mov_b32 s{P_WO}, s{S_PW+6}"); A(f"s_mov_b32 s{P_WO+1}, s{S_PW+7}")
    A(f"s_mov_b32 s{P_X}, s56"); A(f"s_mov_b32 s{P_X+1}, s57")
    A(f"s_load_dwordx2 s[22:23], s[0:1], {KA_W1}")
    A(f"s_load_dwordx2 s[24:25], s[0:1], {KA_B1}")
    A(f"s_load_dwordx2 s[{P_B2}:{P_B2+1}], s[0:1], {KA_B2}")
    A(f"s_load_dwordx2 s[{P_OUT}:{P_OUT+1}], s[0:1], {KA_OUT}")
    A(f"s_load_dwordx2 s[{P_W2}:{P_W2+1}], s[0:1], {KA_W2}")
    A.wait(lg=0)
    srd(A, G_SRDX, 24, 1792 * 2)
    gemm_setup_lane(A)
    A(f"s_mov_b32 s{W_INI}, 1")
    if PREF:
        A(f"s_cmp_lt_u32 s{W_TASK}, 160")
        A("s_cbranch_scc1 L_nopref")
        A(f"s_cmp_ge_u32 s{W_TASK}, 224")
        A("s_cbranch_scc1 L_nopref")
        A(f"s_sub_u32 s30, s{W_TASK}, 160")
        A("s_lshl_b32 s30, s30, 14")
        A(f"s_lshl_b32 s31, s{G_WV}, 12")
        A("s_add_u32 s30, s30, s31")
        A(f"v_lshlrev_b32 v32, 4, v{GV_LANE}")
        blocks = [(16,0),(16,1),(16,2),(18,0),(18,1),(18,2),(20,0),(20,1),(20,2),(P_WO,0),(P_WO,1),(P_WO,2),(P_WO,3),(16,3),(18,3),(20,3)]
        n = 0
        for (ptr, mb) in blocks:
            srd(A, 8, ptr, 4194304)
            A(f"s_add_u32 s31, s30, {mb << 20}")
            for q in range(4):
                r = 36 + 4 * (n % 16); n += 1
                A.auto = False
                A(f"buffer_load_dwordx4 v[{r}:{r+3}], v32, s[8:11], s31 offen offset:{q*1024}")
                A.auto = True
            if len(A.vm) > 48: A.wait(vm=32)
        A.wait(vm=0)
        A.label("L_nopref")
        A.forget()
    A(f"s_cmp_ge_u32 s{W_TASK}, 128")
    A("s_cbranch_scc1 L_noln")
    srd(A, 8, P_X, 2048 * 512 * 2)
    A(f"s_lshl_b32 s30, s{W_TASK}, 4")
    A(f"s_lshl_b32 s31, s{G_WV}, 2")
    A("s_add_u32 s30, s30, s31")
    emit_ln_rows(A, 8, 4, 30, 4, GV_LANE, SO=94)
    A("s_waitcnt vmcnt(0)")
    A.forget()
    A("s_barrier")
    A.label("L_noln")
    A(f"s_cmp_lg_u32 s{G_WV}, 0")
    A("s_cbranch_scc1 L_lnsig")
    A(f"s_mov_b32 s62, 0")
    A.label("L_ln_ip")
    A(f"buffer_load_dword v31, off, {DBG}, 0 offset:{D_INIT} sc1")
    A("s_add_u32 s62, s62, 1")
    A("s_cmp_gt_u32 s62, 0x200000")
    A("s_cbranch_scc1 L_wbail")
    A("s_waitcnt vmcnt(0)")
    A("v_cmp_eq_u32 vcc, 0, v31")
    A("s_cbranch_vccnz L_ln_ip")
    A(f"s_cmp_ge_u32 s{W_TASK}, 128")
    A("s_cbranch_scc1 L_lnsig")
    A(f"s_lshr_b32 s30, s{W_TASK}, 4")
    A("s_lshl_b32 s30, s30, 7")
    A(f"s_add_u32 s30, s30, {F_LN}")
    A("v_mov_b32 v31, 1")
    A("s_mov_b64 exec, 1")
    A(f"buffer_atomic_add v31, off, {WSR}, s30")
    A("s_mov_b64 exec, -1")
    A.label("L_lnsig")
    A.forget()
    dstamp(A, 1, diag)
    A(f"s_mov_b32 s89, 0")
    A.label("L_g1_next")
    A(f"s_cmp_ge_u32 s{W_TASK}, {NT2}")
    A("s_cbranch_scc1 L_ao_role")
    A(f"s_cmp_ge_u32 s{W_TASK}, {T_M2}")
    A("s_cbranch_scc1 L_m2")
    t = W_TASK
    A(f"s_mov_b32 s{G_LDA}, 1024")
    A(f"s_mov_b32 s{G_NST}, 8")
    A(f"s_mov_b32 s{G_SZA}, {WS_SIZE}")
    A(f"s_mov_b32 s{G_SRDA}, s4"); A(f"s_mov_b32 s{G_SRDA+1}, s5"); A(f"s_mov_b32 s{G_SRDA+3}, 0x20000")
    A(f"s_mov_b32 s{G_SRDC}, s4"); A(f"s_mov_b32 s{G_SRDC+1}, s5"); A(f"s_mov_b32 s{G_SRDC+2}, {WS_SIZE}"); A(f"s_mov_b32 s{G_SRDC+3}, 0x20000")
    A(f"s_mov_b32 s{G_SRDB+3}, 0x20000")
    A(f"s_mov_b32 s{W_INC}, 1")
    A(f"s_cmp_ge_u32 s{t}, {T_Q}")
    A("s_cbranch_scc1 L_dec_q")
    A(f"s_cmp_ge_u32 s{t}, {T_H}")
    A("s_cbranch_scc1 L_dec_h")
    A(f"s_mov_b32 s{G_LDB}, 8192")
    A(f"s_mov_b32 s{G_SZB}, 4194304")
    A(f"s_mov_b32 s{G_LDC}, 8192")
    A(f"s_cmp_lt_u32 s{t}, {T_KV}")
    A("s_cbranch_scc1 L_kv_small")
    A(f"s_sub_u32 s{W_T}, s{t}, {T_KV - 32}")
    A(f"s_and_b32 s{G_T1}, s{W_T}, 15")
    A(f"s_lshl_b32 s{G_BOFF}, s{G_T1}, 9")
    A(f"s_lshl_b32 s{G_T2}, s{G_T1}, 14")
    A(f"s_bfe_u32 s{W_KIND}, s{W_T}, 0x10004")
    A(f"s_lshr_b32 s{W_T2}, s{W_T}, 5")
    A(f"s_lshl_b32 s{W_T}, s{W_T2}, 1")
    A(f"s_mov_b32 s{W_INC}, 4")
    A("s_branch L_kv_common")
    A.label("L_kv_small")
    A(f"s_and_b32 s{G_T1}, s{t}, 31")
    A(f"s_lshl_b32 s{G_BOFF}, s{G_T1}, 8")
    A(f"s_lshl_b32 s{G_T2}, s{G_T1}, 13")
    A(f"s_bfe_u32 s{W_KIND}, s{t}, 0x10005")
    A(f"s_lshr_b32 s{W_T}, s{t}, 6")
    A(f"s_mov_b32 s{W_T2}, 0")
    A.label("L_kv_common")
    A(f"s_lshl_b32 s{G_AOFF}, s{W_T}, 17")
    A(f"s_add_u32 s{G_AOFF}, s{G_AOFF}, {WS_XN}")
    A(f"s_lshl_b32 s{W_SIG}, s{W_T2}, 7")
    A(f"s_add_u32 s{W_SIG}, s{W_SIG}, {F_KV}")
    A(f"s_lshl_b32 s{G_COFF}, s{W_T}, 20")
    A(f"s_cmp_eq_u32 s{W_KIND}, 1")
    A("s_cbranch_scc1 L_dec_v")
    A(f"s_mov_b32 s{G_SRDB}, s18"); A(f"s_and_b32 s{G_SRDB+1}, s19, 0xffff")
    A(f"s_add_u32 s{G_COFF}, s{G_COFF}, s{G_BOFF}")
    A(f"s_add_u32 s{G_COFF}, s{G_COFF}, {WS_KX}")
    A("s_branch L_lnwait")
    A.label("L_dec_v")
    A(f"s_mov_b32 s{G_SRDB}, s20"); A(f"s_and_b32 s{G_SRDB+1}, s21, 0xffff")
    A(f"s_add_u32 s{G_COFF}, s{G_COFF}, s{G_T2}")
    A(f"s_add_u32 s{G_COFF}, s{G_COFF}, {WS_VT}")
    A("s_branch L_lnwait")
    A.label("L_dec_q")
    A(f"s_sub_u32 s{W_T}, s{t}, {T_Q}")
    A(f"s_and_b32 s{G_T1}, s{W_T}, 15")
    A(f"s_lshr_b32 s{W_T2}, s{W_T}, 4")
    A(f"s_mov_b32 s{G_LDB}, 8192")
    A(f"s_mov_b32 s{G_SZB}, 4194304")
    A(f"s_lshl_b32 s{G_BOFF}, s{G_T1}, 9")
    A(f"s_mov_b32 s{G_LDC}, 8192")
    A(f"s_lshl_b32 s{G_AOFF}, s{W_T2}, 18")
    A(f"s_add_u32 s{G_AOFF}, s{G_AOFF}, {WS_XN}")
    A(f"s_mov_b32 s{G_SRDB}, s16"); A(f"s_and_b32 s{G_SRDB+1}, s17, 0xffff")
    A(f"s_lshl_b32 s{G_COFF}, s{W_T2}, 21")
    A(f"s_add_u32 s{G_COFF}, s{G_COFF}, s{G_BOFF}")
    A(f"s_add_u32 s{G_COFF}, s{G_COFF}, {WS_QX}")
    A(f"s_lshl_b32 s{W_SIG}, s{W_T2}, 7")
    A(f"s_add_u32 s{W_SIG}, s{W_SIG}, {F_Q}")
    A(f"s_mov_b32 s{W_KIND}, 0")
    A("s_branch L_lnwait")
    A.label("L_dec_h")
    A(f"s_sub_u32 s{G_T1}, s{t}, {T_H}")
    A(f"s_mul_i32 s{W_T2}, s{G_T1}, 37")
    A(f"s_lshr_b32 s{W_T2}, s{W_T2}, 8")
    A(f"s_mul_i32 s{G_T2}, s{W_T2}, 7")
    A(f"s_sub_u32 s{G_T1}, s{G_T1}, s{G_T2}")
    A(f"s_lshl_b32 s{G_AOFF}, s{W_T2}, 18")
    A(f"s_add_u32 s{G_AOFF}, s{G_AOFF}, {WS_XN}")
    A(f"s_mov_b32 s{G_LDB}, 3584")
    A(f"s_mov_b32 s{G_SZB}, {512*1792*2}")
    A(f"s_lshl_b32 s{G_BOFF}, s{G_T1}, 9")
    A(f"s_mov_b32 s{G_AUX}, s{G_BOFF}")
    A(f"s_mov_b32 s{G_SRDB}, s22"); A(f"s_and_b32 s{G_SRDB+1}, s23, 0xffff")
    A(f"s_mov_b32 s{G_LDC}, 3584")
    A(f"s_mul_i32 s{G_COFF}, s{W_T2}, {256*3584}")
    A(f"s_add_u32 s{G_COFF}, s{G_COFF}, s{G_BOFF}")
    A(f"s_add_u32 s{G_COFF}, s{G_COFF}, {WS_HB}")
    A(f"s_lshl_b32 s{W_SIG}, s{W_T2}, 7")
    A(f"s_add_u32 s{W_SIG}, s{W_SIG}, {F_H}")
    A(f"s_mov_b32 s{W_KIND}, 2")
    A.label("L_lnwait")
    A(f"s_cmp_lt_u32 s{t}, {HOLD_FROM}")
    A("s_cbranch_scc1 L_nohold")
    A(f"s_mov_b32 s30, {F_KV}")
    wait_ws_ge(A, "hold", 30, HOLD_CNT)
    A.label("L_nohold")
    A.forget()
    A(f"s_lshl_b32 s30, s{W_T2}, 7")
    A(f"s_add_u32 s30, s30, {F_LN}")
    wait_ws_ge(A, "lnw", 30, LNT)
    A(f"s_cmp_eq_u32 s{W_KIND}, 2")
    A("s_cbranch_scc1 L_task_h")
    A(f"s_cmp_lt_u32 s{t}, {T_KV}")
    A("s_cbranch_scc1 L_small")
    A(f"s_cmp_eq_u32 s{W_KIND}, 1")
    A("s_cbranch_scc1 L_task_v")
    A("s_branch L_task_k")
    A.label("L_small")
    A(f"s_cmp_eq_u32 s{W_KIND}, 1")
    A("s_cbranch_scc1 L_task_vs")
    A("s_branch L_task_ks")
    def run(tag, wT, epi, MI=4, halfB=False):
        A.label(f"L_task_{tag}")
        A.forget()
        if diag: A("s_lshl_b32 s92, s89, 2")
        dstamp(A, 96, diag, 92)
        gemm_task_addr(A, MI, halfB)
        gemm_start(A, sc1A=True, MI=MI)
        gemm_main(A, tag, wT, sc1A=True, MI=MI)
        dstamp(A, 97, diag, 92)
        epi()
        A.label(f"L_eskip_{tag}")
        A.forget()
        dstamp(A, 98, diag, 92)
        signal_ws(A, f"sg{tag}", W_SIG, inc=W_INC)
        dstamp(A, 80, diag, 89)
        A("s_add_u32 s89, s89, 1")
        A("s_branch L_fetch")
    run("ks", True, lambda: epi_rowmajor(A, MI=2, skip="L_eskip_ks"), MI=2, halfB=True)
    run("vs", False, lambda: epi_vt(A, MI=2, skip="L_eskip_vs"), MI=2, halfB=True)
    run("k", True, lambda: epi_rowmajor(A))
    run("v", False, lambda: epi_vt(A))
    run("h", True, lambda: epi_rowmajor(A, gelu=True))
    A.label("L_m2")
    A.forget()
    A(f"s_sub_u32 s{W_T}, s{W_TASK}, {T_M2}")
    A(f"s_lshr_b32 s{W_T2}, s{W_T}, 3")
    A(f"s_lshl_b32 s{W_T2}, s{W_T2}, 7")
    A(f"s_add_u32 s{W_SIG}, s{W_T2}, {F_Y}")
    A(f"s_add_u32 s{W_T2}, s{W_T2}, {F_H}")
    wait_ws_ge(A, "hw", W_T2, 7)
    A(f"s_mov_b32 s{W_INC}, 1")
    A(f"s_mov_b32 s{G_LDA}, 3584")
    A(f"s_mov_b32 s{G_NST}, 7")
    A(f"s_mov_b32 s{G_SZA}, {WS_SIZE}")
    A(f"s_mov_b32 s{G_SRDA}, s4"); A(f"s_mov_b32 s{G_SRDA+1}, s5"); A(f"s_mov_b32 s{G_SRDA+3}, 0x20000")
    A(f"s_mov_b32 s{G_SRDC}, s4"); A(f"s_mov_b32 s{G_SRDC+1}, s5"); A(f"s_mov_b32 s{G_SRDC+2}, {WS_SIZE}"); A(f"s_mov_b32 s{G_SRDC+3}, 0x20000")
    A(f"s_mov_b32 s{G_SRDB}, s{P_W2}"); A(f"s_and_b32 s{G_SRDB+1}, s{P_W2+1}, 0xffff"); A(f"s_mov_b32 s{G_SRDB+3}, 0x20000")
    A(f"s_mov_b32 s{G_LDB}, 1024")
    A(f"s_mov_b32 s{G_SZB}, {1792*512*2}")
    A(f"s_mov_b32 s{G_LDC}, 2048")
    A(f"s_and_b32 s{G_T0}, s{W_T}, 3")
    A(f"s_bfe_u32 s{G_T1}, s{W_T}, 0x10002")
    A(f"s_lshr_b32 s{G_T2}, s{W_T}, 3")
    A(f"s_mul_i32 s{G_AOFF}, s{G_T2}, {256*3584}")
    A(f"s_mul_i32 s{G_AUX}, s{G_T0}, 896")
    A(f"s_add_u32 s{G_AOFF}, s{G_AOFF}, s{G_AUX}")
    A(f"s_add_u32 s{G_AOFF}, s{G_AOFF}, {WS_HB}")
    A(f"s_mul_i32 s{G_BOFF}, s{G_T0}, {448*1024}")
    A(f"s_lshl_b32 s{G_AUX}, s{G_T1}, 9")
    A(f"s_add_u32 s{G_BOFF}, s{G_BOFF}, s{G_AUX}")
    A(f"s_lshl_b32 s{G_COFF}, s{G_T0}, 22")
    A(f"s_lshl_b32 s{G_AUX}, s{G_T2}, 19")
    A(f"s_add_u32 s{G_COFF}, s{G_COFF}, s{G_AUX}")
    A(f"s_lshl_b32 s{G_AUX}, s{G_T1}, 10")
    A(f"s_add_u32 s{G_COFF}, s{G_COFF}, s{G_AUX}")
    A(f"s_add_u32 s{G_COFF}, s{G_COFF}, {WS_Y}")
    run("m2", True, lambda: epi_f32(A))
    A.label("L_fetch")
    A.forget()
    fetch_ticket(A, "nxt", D_WTK, W_TASK)
    A("s_branch L_g1_next")

    A.label("L_ao_role")
    A.forget()
    spin(A, "ini", f"buffer_load_dword v31, off, {DBG}, 0 offset:{D_INIT} sc1", "v_cmp_eq_u32 vcc, 0, v31")
    fetch_ticket(A, "aot", D_AO, W_TASK)
    A(f"s_cmp_ge_u32 s{W_TASK}, {32*NPAR}")
    A("s_cbranch_scc1 L_end")
    A(f"s_and_b32 s{O_KC}, s{W_TASK}, 7")
    A(f"s_bfe_u32 s{O_NC}, s{W_TASK}, 0x20003")
    A(f"s_lshr_b32 s{O_SEG}, s{W_TASK}, 5")
    srd(A, 56, P_X, 2048 * 512 * 2); srd(A, 60, P_B2, 1024); srd(A, 64, P_OUT, 2048 * 512 * 2)
    dstamp(A, 10, diag)
    ao_prologue(A, P_WO)
    dstamp(A, 11, diag)
    A(f"s_sub_u32 s{W_T}, 63, s{O_SEG}")
    A(f"s_mul_i32 s{W_T2}, s{W_T}, {(65536 + NPAR - 1) // NPAR}")
    A(f"s_lshr_b32 s{W_T2}, s{W_T2}, 16")
    A(f"s_mul_i32 s{W_T2}, s{W_T2}, {NPAR}")
    A(f"s_add_u32 s{W_LAST}, s{W_T2}, s{O_SEG}")
    A(f"s_lshl_b32 s{W_T}, s{W_LAST}, 2")
    A(f"s_add_u32 s{W_T}, s{W_T}, s{O_NC}")
    A(f"s_lshl_b32 s{W_T}, s{W_T}, 3")
    A(f"s_add_u32 s{W_T}, s{W_T}, s{O_KC}")
    A(f"s_lshl_b32 s{W_T}, s{W_T}, 14")
    A(f"s_add_u32 s{W_T}, s{W_T}, {WS_PART}")
    for i in range(4): A(f"v_mov_b32 v{32+i}, -1")
    A("v_lshlrev_b32 v36, 4, v0")
    for i in range(4):
        A(f"s_add_u32 s{W_T2}, s{W_T}, {i*4096}")
        A(f"buffer_store_dwordx4 v[32:35], v36, {WSR}, s{W_T2} offen sc1")
    A.wait(vm=0)
    A(f"s_mov_b32 s{W_PREV}, s{O_SEG}")
    A(f"s_mov_b32 s{W_NP}, -1")
    A.label("L_ao_loop")
    A.forget()
    A(f"s_lshr_b32 s{W_T}, s{O_SEG}, 3")
    A(f"s_cmp_eq_u32 s{W_T}, s{W_NP}")
    A("s_cbranch_scc1 L_ao_rbok")
    A(f"s_mov_b32 s{W_NP}, s{W_T}")
    A(f"s_lshl_b32 s{W_T}, s{W_T}, 7")
    A(f"s_add_u32 s{W_T2}, s{W_T}, {F_Q}")
    wait_ws_ge(A, "aq", W_T2, 16)
    A(f"s_add_u32 s{W_T2}, s{W_T}, {F_KV}")
    wait_ws_ge(A, "ak", W_T2, KVT)
    A.label("L_ao_rbok")
    A.forget()
    ao_segment(A, prog_wait=lambda: prog_wait(A))
    A(f"s_cmp_eq_u32 s{O_SEG}, s{W_LAST}")
    A("s_cbranch_scc1 L_ao_nosig")
    A(f"s_lshl_b32 s{W_T}, s{O_SEG}, 2")
    A(f"s_add_u32 s{W_T}, s{W_T}, s{O_NC}")
    A(f"s_lshl_b32 s{W_T}, s{W_T}, 7")
    A(f"s_add_u32 s{W_SIG}, s{W_T}, {F_R}")
    signal_ws(A, "sgr", W_SIG)
    A.label("L_ao_nosig")
    A.forget()
    dstamp(A, 16, diag, O_SEG)
    A(f"s_add_u32 s{O_SEG}, s{O_SEG}, {NPAR}")
    A.label("L_ao_red")
    A.forget()
    A(f"s_add_u32 s{W_T}, s{W_PREV}, {NPAR}")
    A(f"s_cmp_ge_u32 s{W_T}, s{O_SEG}")
    A("s_cbranch_scc1 L_ao_rdone")
    red_flag_addrs(A, W_PREV)
    A(f"buffer_load_dword v31, v30, {WSR}, 0 offen sc1")
    A("s_waitcnt vmcnt(0)")
    A(f"v_cmp_gt_u32 vcc, v29, v31")
    A.forget()
    A("s_cbranch_vccnz L_ao_rdone")
    ao_reduce(A, W_PREV, "a", wait=False)
    A(f"s_add_u32 s{W_PREV}, s{W_PREV}, {NPAR}")
    A.settle()
    A("s_branch L_ao_red")
    A.label("L_ao_rdone")
    A.forget()
    A(f"s_cmp_lt_u32 s{O_SEG}, 64")
    A.settle()
    A("s_cbranch_scc1 L_ao_loop")
    A.label("L_ao_fin")
    A.forget()
    A(f"s_cmp_ge_u32 s{W_PREV}, s{W_LAST}")
    A("s_cbranch_scc1 L_ao_lastred")
    ao_reduce(A, W_PREV, "b", wait=True)
    A(f"s_add_u32 s{W_PREV}, s{W_PREV}, {NPAR}")
    A.settle()
    A("s_branch L_ao_fin")
    A.label("L_ao_lastred")
    A.forget()
    ao_reduce(A, W_PREV, "c", wait='data')
    A.label("L_ao_end")
    A("s_waitcnt vmcnt(0)")
    dstamp(A, 12, diag)
    A("s_endpgm")
    A.label("L_wbail")
    A("s_mov_b64 exec, 1")
    A("v_mov_b32 v31, 0xbeef")
    A(f"buffer_store_dword v31, off, {DBG}, 0 offset:56")
    A("s_waitcnt vmcnt(0)")
    A("s_endpgm")
    return A.text()

if __name__ == "__main__":
    kw = dict(d1=40, d2=45, g1=20, g2=20)
    for a in sys.argv[2:]:
        k, v = a.split('=')
        if k in ('HOLD_FROM', 'HOLD_CNT', 'PREF'): globals()[k] = int(v)
        else: kw[k] = int(v)
    hdr = open('parallel_sum__memory_aug_recurrent_mem_tr__mixer_channel_mlp__prompt.s.ref').read().split('; Override launch')[0]
    txt = hdr + f"; @launch kernel={KNAME} grid=(256,1,1) block=(256,1,1) lds=163840\n"
    txt += '.amdgcn_target "amdgcn-amd-amdhsa--gfx950"\n.text\n'
    txt += khead(KNAME) + main_kernel(**kw)
    txt += '.section .rodata,"a"\n.p2align 6\n' + kdesc(KNAME)
    open(sys.argv[1], "w").write(txt)
```

```python
from asmlib import *
from layout import *
import math, struct

L_WL   = 0
L_MEMB = 131072
L_KXB  = L_MEMB + 8192
L_X    = L_MEMB + 24576
L_OB   = L_X + 4096
L_CA   = L_OB + 2048
L_DUM  = L_CA + 1024
LDS_TOTAL = 163840
PSLOT = 262144

S_WS = 4; S_W = 8; S_DBG = 12
S_PW = 16
S_H = 26; S_WV = 27; S_STEP = 28; S_T0 = 29; S_T1 = 30; S_T2 = 31
S_C = 32
S_PAR = 34
S_PST0 = 35; S_PST1 = 36; S_PLD = 37; S_POI = 38; S_MSL = 39; S_MPO = 40
S_KXA = 41; S_KXB = 42; S_M0A = 43; S_M0B = 44; S_VT = 45; S_KM = 46; S_VM = 47
S_TO = 48
S_R0 = 8; S_R1 = 9; S_R2 = 10
S_EX = 50
S_TM = 52
S_TACC = 54
S_STAMP = 72

V_IDX, V_WL0, V_WL1, V_MEM, V_XW, V_XR, V_OW, V_PS, V_PL, V_MS, V_MW, V_KXG, V_VVT, V_KMS, V_VMS = range(1, 16)
V_T = 16
V_MK = 20
V_SB = 52
V_AQ = 68; V_AK = 76; V_AV = 84
V_XF = 92
V_S = 108
V_VX = 120

def wreg(X, c, f):
    idx = X * 12 + c * 4 + f
    return ar(8 * idx, 8) if idx < 32 else vr(128 + 8 * (idx - 32), 8)
def wreg_part(X, c, f, p):
    idx = X * 12 + c * 4 + f
    return ar(8 * idx + 2 * p, 2) if idx < 32 else vr(128 + 8 * (idx - 32) + 2 * p, 2)

def srd(A, s, ptr, size):
    A(f"s_mov_b32 s{s}, s{ptr}")
    A(f"s_and_b32 s{s+1}, s{ptr+1}, 0xffff")
    A(f"s_mov_b32 s{s+2}, {size}")
    A(f"s_mov_b32 s{s+3}, 0x20000")

WSR = f"s[{S_WS}:{S_WS+3}]"

def poll_with_shadow(A, poll, name, regs, loadfn, pre_ok, shadow):
    orig = A.wait
    state = {'done': False}
    def w(vm=None, lg=None):
        if not state['done']:
            state['done'] = True
            shadow()
        orig(vm, lg)
    A.wait = w
    try:
        poll(name, regs, loadfn, pre_ok)
    finally:
        A.wait = orig

def emit_chain(A, timing=False, nsteps=64, opt=(), d1=0, d2=0, hodelay=8, kxpos=(14, 22), g1=12, g2=12, dstamp=None):
    extra_delay = ["s_nop 0"] * d1
    extra_delay2 = ["s_nop 0"] * d2
    lane = 17; t0 = 18; t1 = 19
    def pst(k):
        if 'pro' in opt: A.raw(f"    s_memrealtime s[{72+2*k}:{73+2*k}]")
    pst(1)
    A(f"v_and_b32 v{lane}, 63, v0")
    DQ = V_MK
    DO = V_MK + 2
    TRA = V_MK + 6
    TRO = V_MK + 8
    TMP = V_SB
    a = V_MK + 12; b = V_MK + 13; c_ = V_MK + 14; d_ = V_MK + 15
    A(f"v_lshrrev_b32 v{a}, 4, v{lane}")
    A(f"v_bfe_u32 v{b}, v{lane}, 1, 3")
    A(f"v_xor_b32 v{c_}, v{b}, v{a}")
    A(f"v_and_b32 v{d_}, 1, v{lane}")
    A(f"v_lshl_or_b32 v{c_}, v{c_}, 1, v{d_}")
    A(f"v_lshlrev_b32 v{c_}, 4, v{c_}")
    A(f"v_lshl_or_b32 v{DQ}, v{a}, 13, v{c_}")
    A(f"v_xor_b32 v{DQ+1}, 128, v{DQ}")
    A(f"v_and_b32 v{c_}, 1, v{a}")
    A(f"v_xor_b32 v{c_}, v{b}, v{c_}")
    A(f"v_lshl_or_b32 v{c_}, v{c_}, 1, v{d_}")
    A(f"v_lshrrev_b32 v{b}, 2, v{c_}")
    A(f"v_lshlrev_b32 v{b}, 8, v{b}")
    A(f"v_and_b32 v{c_}, 3, v{c_}")
    A(f"v_lshl_or_b32 v{b}, v{c_}, 5, v{b}")
    A(f"v_lshl_or_b32 v{DO}, v{a}, 10, v{b}")
    A(f"v_xor_b32 v{DO+1}, 256, v{DO}")
    A(f"v_xor_b32 v{DO+2}, 512, v{DO}")
    A(f"v_xor_b32 v{DO+3}, 768, v{DO}")
    A(f"v_bfe_u32 v{b}, v{lane}, 4, 1")
    A(f"v_bfe_u32 v{c_}, v{lane}, 3, 1")
    A(f"v_lshl_or_b32 v{b}, v{c_}, 1, v{b}")
    A(f"v_bfe_u32 v{c_}, v{lane}, 2, 1")
    A(f"v_lshl_or_b32 v{b}, v{c_}, 2, v{b}")
    A(f"v_bfe_u32 v{c_}, v{lane}, 5, 1")
    A(f"v_lshl_or_b32 v{c_}, v{c_}, 4, v{b}")
    A(f"v_lshlrev_b32 v{c_}, 8, v{c_}")
    A(f"v_and_b32 v{d_}, 3, v{lane}")
    A(f"v_lshl_or_b32 v{c_}, v{d_}, 3, v{c_}")
    A(f"s_lshl_b32 s{S_T0}, s{S_WV}, 1")
    A(f"v_xor_b32 v{b}, s{S_T0}, v{b}")
    A(f"v_lshl_or_b32 v{TRA}, v{b}, 5, v{c_}")
    A(f"v_xor_b32 v{TRA+1}, 32, v{TRA}")
    A(f"v_bfe_u32 v{b}, v{lane}, 5, 1")
    A(f"v_lshlrev_b32 v{b}, 4, v{b}")
    A(f"v_bfe_u32 v{c_}, v{lane}, 4, 1")
    A(f"v_lshl_or_b32 v{b}, v{c_}, 2, v{b}")
    A(f"v_lshlrev_b32 v{t0}, 1, v{c_}")
    A(f"v_bfe_u32 v{c_}, v{lane}, 2, 1")
    A(f"v_or_b32 v{b}, v{b}, v{c_}")
    A(f"v_or_b32 v{t0}, v{t0}, v{c_}")
    A(f"v_bfe_u32 v{c_}, v{lane}, 3, 1")
    A(f"v_lshl_or_b32 v{b}, v{c_}, 3, v{b}")
    A(f"v_lshl_or_b32 v{t0}, v{c_}, 2, v{t0}")
    A(f"v_lshlrev_b32 v{b}, 8, v{b}")
    A(f"v_and_b32 v{c_}, 1, v{lane}")
    A(f"v_lshl_or_b32 v{b}, v{c_}, 4, v{b}")
    A(f"v_bfe_u32 v{c_}, v{lane}, 1, 1")
    A(f"v_or_b32 v{c_}, s{S_T0}, v{c_}")
    A(f"v_xor_b32 v{c_}, v{c_}, v{t0}")
    A(f"v_lshl_or_b32 v{TRO}, v{c_}, 5, v{b}")
    A(f"v_add_u32 v{TRO+1}, 8, v{TRO}")

    A(f"v_bfe_u32 v{t0}, v{lane}, 1, 1")
    A(f"v_lshlrev_b32 v{t0}, 1, v{t0}")
    A(f"v_lshrrev_b32 v{t1}, 4, v{lane}")
    A(f"v_add_u32 v{t0}, v{t0}, v{t1}")
    A(f"v_lshlrev_b32 v{t0}, 4, v{t0}")
    A(f"v_and_b32 v{t1}, 1, v{lane}")
    A(f"v_lshl_or_b32 v{t0}, v{t1}, 3, v{t0}")
    A(f"s_lshl_b32 s{S_T0}, s{S_H}, 8")
    A(f"s_lshl_b32 s{S_T1}, s{S_WV}, 6")
    A(f"s_add_u32 s{S_T0}, s{S_T0}, s{S_T1}")
    A(f"v_bfe_u32 v{t1}, v{lane}, 2, 2")
    A(f"v_lshl_or_b32 v{t0}, v{t1}, 13, v{t0}")
    A(f"v_add_u32 v{V_MS}, s{S_T0}, v{t0}")
    srd(A, S_W, S_PW + 8, 8192)
    A(f"v_lshrrev_b32 v{t0}, 4, v{lane}")
    A(f"v_and_b32 v{t0}, 1, v{t0}")
    A(f"v_lshlrev_b32 v{t0}, 10, v{t0}")
    A(f"v_and_b32 v{t1}, 3, v{lane}")
    A(f"v_lshl_or_b32 v{t0}, v{t1}, 1, v{t0}")
    A(f"s_lshl_b32 s{S_T0}, s{S_WV}, 11")
    A(f"s_lshl_b32 s{S_T1}, s{S_H}, 5")
    A(f"s_add_u32 s{S_T0}, s{S_T0}, s{S_T1}")
    M0R = V_S + 4
    MT = V_S
    for j in range(4):
        A(f"buffer_load_ushort v{MT+j}, v{t0}, s[{S_W}:{S_W+3}], s{S_T0} offen offset:{8*j}")
    P = V_XF
    for i in range(4): A(f"v_mov_b32 v{P+i}, -1")
    A(f"v_lshlrev_b32 v{t0}, 4, v0")
    A(f"s_lshl_b32 s{S_T0}, s{S_H}, 13")
    A(f"s_add_u32 s{S_T0}, s{S_T0}, {WS_PBUF}")
    for slot in range(3):
        for i in range(2):
            A(f"s_add_u32 s{S_T1}, s{S_T0}, {slot*PSLOT + i*4096}")
            A(f"buffer_store_dwordx4 v[{P}:{P+3}], v{t0}, {WSR}, s{S_T1} offen")
    A(f"v_cmp_gt_u32 vcc, 16, v0")
    A(f"s_and_saveexec_b64 s[{S_EX}:{S_EX+1}], vcc")
    A(f"s_cbranch_execz L_nomp")
    A(f"s_lshl_b32 s{S_T0}, s{S_H}, 8")
    A(f"s_add_u32 s{S_T0}, s{S_T0}, {WS_MBUF}")
    for sl in (1, 2):
        for cp in range(4):
            A(f"s_add_u32 s{S_T1}, s{S_T0}, {sl*32768 + cp*8192}")
            A(f"buffer_store_dwordx4 v[{P}:{P+3}], v{t0}, {WSR}, s{S_T1} offen")
    A.label("L_nomp")
    A(f"s_mov_b64 exec, s[{S_EX}:{S_EX+1}]")
    A.vm = []

    order = [(X, c) for X in range(4) for c in range(3)] + [(X, 3) for X in range(4)]
    slot_of = {}
    for i, (X, c) in enumerate(order[:12]): slot_of[(X, c)] = i % 5
    for X in range(4): slot_of[(X, 3)] = X
    def issue(X, c):
        srd(A, S_W, S_PW + 2 * X, 4194304)
        slot = slot_of[(X, c)]
        if X < 3:
            A(f"s_lshl_b32 s{S_T0}, s{S_WV}, 18")
            A(f"s_lshl_b32 s{S_T1}, s{S_H}, 8")
            A(f"s_add_u32 s{S_T0}, s{S_T0}, s{S_T1}")
            A(f"s_add_u32 s{S_T0}, s{S_T0}, {128*c*8192}")
            step = 4 * 8192
        else:
            A(f"s_lshl_b32 s{S_T0}, s{S_WV}, 15")
            A(f"s_lshl_b32 s{S_T1}, s{S_H}, 17")
            A(f"s_add_u32 s{S_T0}, s{S_T0}, s{S_T1}")
            A(f"s_add_u32 s{S_T0}, s{S_T0}, {(c >> 1) * 128 + (c & 1) * 16}")
            step = 4 * 1024
        A(f"s_lshl_b32 s{S_T1}, s{S_WV}, 13")
        A(f"s_add_u32 s{S_T1}, s{S_T1}, {slot*32768}")
        for i in range(8):
            D = DQ + (i & 1) if X < 3 else DO + (i & 3)
            A(f"s_mov_b32 m0, s{S_T1}")
            A(f"buffer_load_dwordx4 v{D}, s[{S_W}:{S_W+3}], s{S_T0} offen lds")
            if i < 7:
                A(f"s_add_u32 s{S_T0}, s{S_T0}, {step}")
                A(f"s_add_u32 s{S_T1}, s{S_T1}, 1024")
    pst(2)
    if 'diag' in opt: dstamp(A, 14, True)
    issued = []
    for k in range(5):
        issue(*order[k]); issued.append(order[k])
    A.raw("    s_waitcnt vmcnt(40)")
    _sv = A.vm; A.vm = []
    A(f"v_lshl_or_b32 v{M0R}, v{MT+1}, 16, v{MT}")
    A(f"v_lshl_or_b32 v{M0R+1}, v{MT+3}, 16, v{MT+2}")
    A(f"s_mov_b32 s{S_T0}, {WS_MBUF}")
    A(f"s_mov_b64 exec, 0xffffffff")
    A(f"buffer_store_dwordx2 v[{M0R}:{M0R+1}], v{V_MS}, {WSR}, s{S_T0} offen")
    A(f"s_mov_b64 exec, -1")
    A.vm = _sv
    follow = {0: order[5], 1: order[6], 2: order[7], 3: order[8], 4: order[9], 5: order[10], 6: order[11],
              7: (2, 3), 8: (3, 3), 10: (0, 3), 11: (1, 3)}
    def trreads(X, slot, f, dst_fn):
        t = f & 1; ksp = f >> 1
        base = slot * 32768
        TR = TRA if X < 3 else TRO
        breg = TR + t
        if base >= 32768:
            A(f"v_add_u32 v{t1}, {base}, v{TR+t}")
            breg = t1
        for tp in range(4):
            if X < 3: imm = (64 * ksp + 32 * (tp >> 1) + 8 * (tp & 1)) * 256
            else: imm = (64 * ksp + 32 * (tp >> 1) + 2 * (tp & 1)) * 256
            A(f"ds_read_b64_tr_b16 {dst_fn(tp)}, v{breg} offset:{imm}")
    def consume_wait(ch):
        pos = issued.index(ch)
        n_after = len(issued) - 1 - pos
        A.wait(vm=8 * n_after)
        A("s_barrier")
    for i, (X, c) in enumerate(order[:12]):
        consume_wait((X, c))
        if i == 0: pst(3)
        if i == 4: pst(4)
        if i == 8: pst(5)
        if i == 5:
            A(f"s_cmp_lg_u32 s{S_WV}, 0")
            A(f"s_cbranch_scc1 L_rdy_skip")
            A(f"v_mov_b32 v{t1}, 1")
            A(f"s_mov_b64 exec, 1")
            A(f"buffer_atomic_add v{t1}, off, s[{S_DBG}:{S_DBG+3}], 0 offset:36")
            A(f"s_mov_b64 exec, -1")
            A.vm.pop()
            A.label("L_rdy_skip")
        for f in range(4):
            trreads(X, slot_of[(X, c)], f, lambda tp: wreg_part(X, c, f, tp))
        A.wait(lg=0)
        A("s_barrier")
        if i in follow:
            issue(*follow[i]); issued.append(follow[i])
    pst(6)
    if 'diag' in opt: dstamp(A, 10, True)
    def S(x): A(x)
    S(f"v_bfe_u32 v{t0}, v{lane}, 1, 1")
    S(f"v_mov_b32 v{V_IDX}, 0x4444")
    S(f"v_mov_b32 v{t1}, 0xeeee")
    S(f"v_cmp_ne_u32 vcc, 0, v{t0}")
    S(f"v_cndmask_b32 v{V_IDX}, v{V_IDX}, v{t1}, vcc")
    S(f"s_lshl_b32 s{S_T0}, s{S_WV}, 13")
    S(f"v_lshlrev_b32 v{t0}, 4, v{lane}")
    S(f"v_add_u32 v{V_WL0}, s{S_T0}, v{t0}")
    S(f"v_add_u32 v{V_WL1}, 0x10000, v{V_WL0}")
    S(f"v_add_u32 v{V_MEM}, {L_MEMB}, v{t0}")
    S(f"s_lshl_b32 s{S_T0}, s{S_WV}, 11")
    S(f"v_add_u32 v{V_MW}, s{S_T0}, v{V_MEM}")
    S(f"s_lshl_b32 s{S_T1}, s{S_H}, 13")
    S(f"s_add_u32 s{S_T0}, s{S_T0}, s{S_T1}")
    S(f"v_add_u32 v{V_PL}, s{S_T0}, v{t0}")
    S(f"v_and_b32 v{t0}, 15, v{lane}")
    S(f"v_lshlrev_b32 v{t0}, 5, v{t0}")
    S(f"v_lshrrev_b32 v{t1}, 4, v{lane}")
    S(f"v_lshl_or_b32 v{t0}, v{t1}, 3, v{t0}")
    S(f"v_bfe_u32 v{t1}, v{lane}, 3, 1")
    S(f"v_lshlrev_b32 v{t1}, 7, v{t1}")
    S(f"v_xor_b32 v{t0}, v{t0}, v{t1}")
    S(f"s_lshl_b32 s{S_T0}, s{S_WV}, 10")
    S(f"s_add_u32 s{S_T0}, s{S_T0}, {L_X}")
    S(f"v_add_u32 v{V_XW}, s{S_T0}, v{t0}")
    S(f"v_lshrrev_b32 v{t0}, 4, v{lane}")
    S(f"v_lshlrev_b32 v{t0}, 3, v{t0}")
    S(f"v_bfe_u32 v{t1}, v{lane}, 2, 2")
    S(f"v_or_b32 v{t0}, v{t0}, v{t1}")
    S(f"v_lshlrev_b32 v{t0}, 5, v{t0}")
    S(f"v_and_b32 v{t1}, 3, v{lane}")
    S(f"v_lshl_or_b32 v{t0}, v{t1}, 3, v{t0}")
    S(f"v_bfe_u32 v{t1}, v{lane}, 4, 1")
    S(f"v_lshlrev_b32 v{t1}, 7, v{t1}")
    S(f"v_xor_b32 v{t0}, v{t0}, v{t1}")
    S(f"v_add_u32 v{V_XR}, {L_X}, v{t0}")
    S(f"v_xor_b32 v{V_KMS}, 128, v{t0}")
    S(f"v_add_u32 v{V_KMS}, {L_X}, v{V_KMS}")
    S(f"v_and_b32 v{t0}, 13, v{lane}")
    S(f"v_bfe_u32 v{t1}, v{lane}, 5, 1")
    S(f"v_lshl_or_b32 v{t0}, v{t1}, 1, v{t0}")
    S(f"v_lshlrev_b32 v{t0}, 4, v{t0}")
    S(f"v_bfe_u32 v{t1}, v{lane}, 4, 1")
    S(f"v_lshl_or_b32 v{t0}, v{t1}, 3, v{t0}")
    S(f"s_lshl_b32 s{S_T0}, s{S_WV}, 9")
    S(f"s_add_u32 s{S_T0}, s{S_T0}, {L_OB}")
    S(f"v_add_u32 v{V_OW}, s{S_T0}, v{t0}")
    S(f"v_mov_b32 v{t0}, {L_DUM}")
    S(f"v_and_b32 v{t1}, 2, v{lane}")
    S(f"v_cmp_ne_u32 vcc, 0, v{t1}")
    S(f"v_cndmask_b32 v{V_OW}, v{V_OW}, v{t0}, vcc")
    S(f"v_bfe_u32 v{t0}, v{lane}, 2, 2")
    S(f"v_lshlrev_b32 v{t0}, 13, v{t0}")
    S(f"v_lshrrev_b32 v{t1}, 4, v{lane}")
    S(f"v_lshl_or_b32 v{t0}, v{t1}, 11, v{t0}")
    S(f"v_and_b32 v{t1}, 3, v{lane}")
    S(f"v_lshl_or_b32 v{t0}, v{t1}, 4, v{t0}")
    S(f"s_lshl_b32 s{S_T0}, s{S_H}, 6")
    S(f"v_add_u32 v{V_PS}, s{S_T0}, v{t0}")
    S(f"v_and_b32 v{t0}, 15, v{lane}")
    S(f"v_lshlrev_b32 v{t0}, 13, v{t0}")
    S(f"v_lshrrev_b32 v{t1}, 4, v{lane}")
    S(f"v_lshl_or_b32 v{t0}, v{t1}, 4, v{t0}")
    S(f"s_lshl_b32 s{S_T0}, s{S_H}, 8")
    S(f"s_lshr_b32 s{S_T1}, s{S_WV}, 1")
    S(f"s_lshl_b32 s{S_T1}, s{S_T1}, 17")
    S(f"s_add_u32 s{S_T0}, s{S_T0}, s{S_T1}")
    S(f"s_and_b32 s{S_T1}, s{S_WV}, 1")
    S(f"s_lshl_b32 s{S_T1}, s{S_T1}, 7")
    S(f"s_add_u32 s{S_T0}, s{S_T0}, s{S_T1}")
    S(f"v_add_u32 v{V_KXG}, s{S_T0}, v{t0}")
    S(f"v_and_b32 v{t0}, 15, v{lane}")
    S(f"v_lshlrev_b32 v{t0}, 6, v{t0}")
    S(f"v_lshrrev_b32 v{t1}, 4, v{lane}")
    S(f"v_lshl_or_b32 v{t0}, v{t1}, 4, v{t0}")
    S(f"s_lshl_b32 s{S_T0}, s{S_H}, 13")
    S(f"s_lshl_b32 s{S_T1}, s{S_WV}, 11")
    S(f"s_add_u32 s{S_T0}, s{S_T0}, s{S_T1}")
    S(f"v_add_u32 v{V_VVT}, s{S_T0}, v{t0}")
    S(f"v_lshlrev_b32 v{t0}, 4, v{lane}")
    S(f"s_lshl_b32 s{S_T0}, s{S_H}, 12")
    S(f"s_lshl_b32 s{S_T1}, s{S_WV}, 10")
    S(f"s_add_u32 s{S_T0}, s{S_T0}, s{S_T1}")
    S(f"v_add_u32 v{V_VMS}, s{S_T0}, v{t0}")
    c = (128 ** -0.5) * math.log2(math.e)
    cbits = hex(struct.unpack('<I', struct.pack('<f', c))[0])
    S(f"s_mov_b32 s{S_C}, {cbits}")
    S(f"s_mov_b32 s{S_C+1}, {cbits}")

    CA = V_AK
    A(f"v_and_b32 v{a}, 15, v{lane}")
    A(f"v_mov_b32 v{b}, 0x3f80")
    A(f"v_mov_b32 v{c_}, 0x3f800000")
    A(f"v_cmp_gt_u32 vcc, 4, v{a}")
    A(f"v_cndmask_b32 v{b}, v{c_}, v{b}, vcc")
    A(f"v_cmp_gt_u32 vcc, 8, v{a}")
    A(f"v_cndmask_b32 v{b}, 0, v{b}, vcc")
    A(f"v_and_b32 v{a}, 3, v{a}")
    for i in range(4):
        A(f"v_cmp_eq_u32 vcc, {i}, v{a}")
        A(f"v_cndmask_b32 v{CA+i}, 0, v{b}, vcc")
    A(f"s_lshl_b32 s{S_M0A}, s{S_WV}, 11")
    A(f"s_add_u32 s{S_M0A}, s{S_M0A}, {L_KXB}")
    A(f"s_mov_b32 s{S_KXA}, {WS_KX}")
    def kx0():
        A(f"s_mov_b32 m0, s{S_M0A}")
        A(f"buffer_load_dwordx4 v{V_KXG}, {WSR}, s{S_KXA} offen sc1 lds")
        A(f"s_add_u32 s{S_T0}, s{S_M0A}, 1024")
        A(f"s_add_u32 s{S_T1}, s{S_KXA}, 64")
        A(f"s_mov_b32 m0, s{S_T0}")
        A(f"buffer_load_dwordx4 v{V_KXG}, {WSR}, s{S_T1} offen sc1 lds")
    if 'merged' not in opt: kx0()
    A.wait(vm=0)
    A.vm = []
    A(f"ds_write_b128 v{V_MEM}, v[{CA}:{CA+3}] offset:{L_CA-L_MEMB}")
    A.wait(lg=0)
    A("s_barrier")
    A(f"s_mov_b32 s{S_TO}, 0")
    A(f"v_mov_b32 v{t0}, 36")
    A.label("L_rdy_poll")
    A(f"buffer_load_dword v{t1}, v{t0}, s[{S_DBG}:{S_DBG+3}], 0 offen sc1")
    A(f"s_add_u32 s{S_TO}, s{S_TO}, 1")
    A(f"s_cmp_gt_u32 s{S_TO}, 0x40000")
    A(f"s_cbranch_scc1 L_bail")
    A.wait(vm=0)
    A(f"v_cmp_gt_u32 vcc, 32, v{t1}")
    A(f"s_cbranch_vccnz L_rdy_poll")
    A.forget()
    if 'merged' in opt:
        A(f"s_mov_b32 s{S_TO}, 0")
        A.label("L_ci_poll")
        A(f"buffer_load_dword v{t1}, off, s[{S_DBG}:{S_DBG+3}], 0 offset:{D_INIT} sc1")
        A(f"s_add_u32 s{S_TO}, s{S_TO}, 1")
        A(f"s_cmp_gt_u32 s{S_TO}, 0x100000")
        A(f"s_cbranch_scc1 L_bail")
        A.wait(vm=0)
        A(f"v_cmp_eq_u32 vcc, 0, v{t1}")
        A(f"s_cbranch_vccnz L_ci_poll")
        A.forget()
    pst(7)
    if 'diag' in opt: dstamp(A, 11, True)
    for X in range(4):
        for f in range(4):
            trreads(X, X, f, lambda tp: vr(TMP + 8 * f + 2 * tp, 2))
        A.wait(lg=0)
        A("s_barrier")
        base = V_WL0 if X < 2 else V_WL1
        for f in range(4):
            for hh in range(2):
                A(f"ds_write_b128 v{base}, v[{TMP+8*f+4*hh}:{TMP+8*f+4*hh+3}] offset:{(X&1)*32768 + f*2048 + hh*1024}")
        A.wait(lg=0)
    if 'diag' in opt: dstamp(A, 12, True)
    if 'merged' in opt:
        A(f"s_mov_b32 s{S_T0}, {F_KV}")
        A.label("L_ck_poll")
        A(f"buffer_load_dword v{t1}, off, {WSR}, s{S_T0} sc1")
        A(f"s_add_u32 s{S_TO}, s{S_TO}, 1")
        A(f"s_cmp_gt_u32 s{S_TO}, 0x100000")
        A(f"s_cbranch_scc1 L_bail")
        A.wait(vm=0)
        A(f"v_cmp_gt_u32 vcc, 128, v{t1}")
        A(f"s_cbranch_vccnz L_ck_poll")
        A.forget()
        if 'diag' in opt: dstamp(A, 13, True)
        kx0()


    A("s_waitcnt vmcnt(0)")
    A("s_barrier")
    pst(8)
    if 'diag' in opt: dstamp(A, 5, True)
    pst(9)
    if 'pro' in opt:
        A.raw("    s_waitcnt lgkmcnt(0)")
        A(f"s_lshl_b32 s{S_T0}, s{S_H}, 2")
        A(f"s_add_u32 s{S_T0}, s{S_T0}, s{S_WV}")
        A(f"s_lshl_b32 s{S_T0}, s{S_T0}, 7")
        A(f"s_add_u32 s{S_T0}, s{S_T0}, {WS_TIME}")
        A(f"s_mov_b64 exec, 1")
        for k in range(10):
            A(f"v_mov_b32 v{V_T+1}, s{72+2*k}")
            A(f"v_mov_b32 v{V_T}, {4*k}")
            A(f"buffer_store_dword v{V_T+1}, v{V_T}, {WSR}, s{S_T0} offen")
        A(f"s_mov_b64 exec, -1")
        A.wait(vm=0)
    S_MA = 16; S_MB = 18; S_MT = 20
    S_PUB = 22; S_MPZ = 23; S_KEEP = 24; S_B0 = 11; S_B1 = 25; S_B2 = 49; S_HC = 46
    A(f"s_mov_b32 s{S_STEP}, 0")
    A(f"s_mov_b32 s{S_PAR}, 0")
    A(f"s_mov_b32 s{S_VT}, {WS_VT - 32*8192}")
    A(f"s_and_b32 s{S_HC}, s{S_H}, 3")
    A(f"s_lshl_b32 s{S_HC}, s{S_HC}, 13")
    A(f"s_sub_u32 s{S_HC}, s{S_HC}, {L_MEMB}")
    A(f"s_mov_b32 s{S_B0}, {WS_MBUF}")
    A(f"s_mov_b32 s{S_B1}, {WS_MBUF + 32768}")
    A(f"s_mov_b32 s{S_B2}, {WS_MBUF + 65536}")
    A(f"s_mov_b32 s{S_VM}, {WS_KVM}")
    S_FLG = 53; S_FOFF = 52; S_POFF = 54; S_CHK = 55
    if 'merged' in opt:
        A(f"s_mov_b32 s{S_FOFF}, {F_KV}")
        A(f"s_lshl_b32 s{S_POFF}, s{S_H}, 7")
        A(f"s_add_u32 s{S_POFF}, s{S_POFF}, {F_PROG}")
    A(f"s_mov_b32 s{S_EX+1}, {WS_KVM + 64*32*4096}")
    A(f"s_mov_b32 s{S_R0}, {WS_PBUF}")
    A(f"s_mov_b32 s{S_R1}, {WS_PBUF + PSLOT}")
    A(f"s_mov_b32 s{S_R2}, {WS_PBUF + 2*PSLOT}")
    def zero(r, n): return [f"v_mov_b64 v[{r+i}:{r+i+1}], 0" for i in range(0, n, 2)]
    def step_scalars():
        o = []
        o.append(f"s_mov_b32 s{S_PLD}, s{S_R0}")
        o.append(f"s_mov_b32 s{S_POI}, s{S_R2}")
        o.append(f"s_lshl_b32 s{S_T1}, s{S_WV}, 16")
        o.append(f"s_add_u32 s{S_PST0}, s{S_PLD}, s{S_T1}")
        o.append(f"s_add_u32 s{S_PST1}, s{S_PST0}, 32768")
        o.append(f"s_add_u32 s{S_MSL}, s{S_B0}, s{S_HC}")
        o.append(f"s_add_u32 s{S_MPO}, s{S_MSL}, 1024")
        o.append(f"s_add_u32 s{S_VT}, s{S_VT}, {32*8192}")
        o.append(f"s_add_u32 s{S_KXA}, s{S_KXA}, {32*8192}")
        o.append(f"s_add_u32 s{S_KXB}, s{S_KXA}, 64")
        o.append(f"s_xor_b32 s{S_M0A}, s{S_M0A}, {L_KXB ^ (L_KXB + 8192)}")
        o.append(f"s_add_u32 s{S_M0B}, s{S_M0A}, 1024")
        o.append(f"v_add_u32 v0, s{S_PAR}, v{V_MEM}")
        return o
    for x in zero(V_AQ, 24): A(x)
    for x in step_scalars(): A(x)
    A(f"buffer_load_dwordx4 v[{V_S+4}:{V_S+7}], v{V_MW}, {WSR}, s{S_MSL} offen sc1")
    A(f"buffer_load_dwordx4 v[{V_S+8}:{V_S+11}], v{V_MW}, {WSR}, s{S_MPO} offen sc1")
    A(f"ds_write_b128 v{V_MW}, v[{V_S+4}:{V_S+7}]")
    A(f"ds_write_b128 v{V_MW}, v[{V_S+8}:{V_S+11}] offset:1024")
    A.wait(lg=0)
    A("s_barrier")
    def sbload(buf, X, f):
        base = V_WL0 if X < 2 else V_WL1
        r = V_SB + 8 * buf
        return [f"ds_read_b128 v[{r}:{r+3}], v{base} offset:{(X&1)*32768 + f*2048}",
                f"ds_read_b128 v[{r+4}:{r+7}], v{base} offset:{(X&1)*32768 + f*2048 + 1024}"]
    for s_ in sbload(0, 0, 0) + sbload(1, 0, 1): A(s_)
    if timing:
        for i in range(18): A(f"s_mov_b32 s{S_TACC+i}, 0")
    A.wait(lg=0)
    A.settle()
    A.forget()

    NST = 15
    def stamp(k):
        if timing: A.raw(f"    {'s_memrealtime' if ('abs' in opt and 'absm' not in opt) else 's_memtime'} s[{S_STAMP+2*k}:{S_STAMP+2*k+1}]")
    def stamp_acc():
        if timing and 'abs' in opt:
            A.raw("    s_waitcnt lgkmcnt(0)")
            lb = A.newlabel("L_abs")
            A(f"s_cmp_lg_u32 s{S_STEP}, 31")
            A(f"s_cbranch_scc1 {lb}")
            for k in range(NST):
                A(f"s_mov_b32 s{S_TACC+k}, s{S_STAMP+2*k}")
            A.label(lb)
            return
        if timing:
            A.raw("    s_waitcnt lgkmcnt(0)")
            A(f"s_sub_u32 s{S_T2}, s{S_STAMP}, s{S_TM}")
            A(f"s_add_u32 s{S_TACC}, s{S_TACC}, s{S_T2}")
            for k in range(1, NST):
                A(f"s_sub_u32 s{S_T2}, s{S_STAMP+2*k}, s{S_STAMP+2*(k-1)}")
                A(f"s_add_u32 s{S_TACC+k}, s{S_TACC+k}, s{S_T2}")
            A(f"s_mov_b32 s{S_TM}, s{S_STAMP+2*(NST-1)}")
    def M(ks): return vr(V_MK + 4 * ks, 4)
    def mload(ks, sc=""):
        return f"ds_read_b128 {M(ks)}, v{V_MEM} offset:{ks*1024}"
    def pack(acc, t, dst):
        return [f"v_pk_add_f32 v[{acc+4*t}:{acc+4*t+1}], v[{acc+4*t}:{acc+4*t+1}], v[{acc+4*t+2}:{acc+4*t+3}]",
                f"v_cvt_pk_bf16_f32 v{dst}, v{acc+4*t}, v{acc+4*t+1}"]

    if 'diag' in opt: dstamp(A, 6, True)
    pre_barrier = []
    sfx = ['']
    if 'rt' in opt:
        A.raw("    s_memtime s[56:57]")
        A.raw("    s_memrealtime s[58:59]")
        A.raw("    s_waitcnt lgkmcnt(0)")
        A("s_mov_b32 s64, 0"); A("s_mov_b32 s65, 0")
    if timing:
        A(f"s_memtime s[{S_TM}:{S_TM+1}]")
        A.wait(lg=0)
    A.label("L_step")
    if 'diag' in opt: dstamp(A, 16, True, S_STEP)
    if 'steps' in opt:
        A.raw("    s_memtime s[56:57]")
    stamp(0)
    morder = [6, 0, 1, 2, 7, 3, 4, 5]
    npre = 8
    for ks in morder: A(mload(ks))
    if 'merged' in opt:
        A(f"s_add_u32 s{S_T0}, s{S_STEP}, 2")
        A(f"s_and_b32 s{S_CHK}, s{S_T0}, 7")
        A(f"s_cmp_lg_u32 s{S_CHK}, 0")
        A(f"s_cbranch_scc1 L_noflag")
        A(f"buffer_load_dword v{V_S}, off, {WSR}, s{S_FOFF} sc1")
        A.vm.pop()
        A.label("L_noflag")
    if 'noload' not in opt and 'novt' not in opt:
        A(f"buffer_load_dwordx4 v[{V_VX}:{V_VX+3}], v{V_VVT}, {WSR}, s{S_VT} offen sc1")
        A(f"buffer_load_dwordx4 v[{V_VX+4}:{V_VX+7}], v{V_VVT}, {WSR}, s{S_VT} offen offset:1024 sc1")
    A(f"buffer_store_dwordx4 v[{V_AV}:{V_AV+3}], v{V_VMS}, {WSR}, s{S_EX+1} offen" + ("" if 'nopub' in opt else " sc1"))
    if 'merged' in opt:
        A(f"s_and_b32 s{S_T0}, s{S_STEP}, 3")
        A(f"s_or_b32 s{S_T0}, s{S_T0}, s{S_WV}")
        A(f"s_cmp_lg_u32 s{S_T0}, 0")
        A(f"s_cbranch_scc1 L_noprog")
        A(f"s_sub_u32 s{S_T0}, s{S_STEP}, 1")
        A(f"s_max_i32 s{S_T0}, s{S_T0}, 0")
        A(f"v_mov_b32 v{V_T+1}, s{S_T0}")
        A(f"s_mov_b64 exec, 1")
        A(f"buffer_store_dword v{V_T+1}, off, {WSR}, s{S_POFF} sc1")
        A(f"s_mov_b64 exec, -1")
        A.vm.pop()
        A.label("L_noprog")
    late_zero = zero(V_AV, 8)
    SL = [(0,0),(0,1),(1,0),(1,1),(0,2),(0,3),(1,2),(1,3),(2,0),(2,1),(2,2),(2,3)]
    RL = [(X, t, ks) for ks in range(6) for X in (0, 1) for t in (0, 1)]
    ACC = {0: V_AQ, 1: V_AK, 2: V_AV}
    CHK = V_T + 1
    qk = []
    ri = 0
    for pos in range(32):
        if pos % 4 == 0:
            X, f = SL[pos // 4]; qk.append(('S', X, f & 1, 6 + (f >> 1), pos // 4))
        else:
            X, t, ks = RL[ri]; ri += 1; qk.append(('R', X, t, ks, None))
    def mf(e):
        kind, X, t, ks, si = e
        d = vr(ACC[X] + 4 * t, 4)
        bsrc = vr(V_SB + 8 * (si & 1), 8) if kind == 'S' else wreg(X, ks >> 1, (ks & 1) * 2 + t)
        return f"v_smfmac_f32_16x16x64_bf16 {d}, {M(ks)}, {bsrc}, v{V_IDX}"
    def qk_pass(loads):
        fill = {p: [] for p in range(32)}
        for p in range(0, 32, 4):
            si = p // 4
            fill[p] += sbload(si & 1, *SL[si + 2])
        first_use = {}
        for p, e in enumerate(qk):
            first_use.setdefault(e[3], p)
        if loads:
            rem = morder[npre:]
            for i, ks in enumerate(rem): fill[1 + 5 * i].append(mload(ks))
        for i, x in enumerate(late_zero): fill[9 + 4 * i].append(x)
        if 'noload' not in opt and 'nokx' not in opt:
            pa, pb = kxpos
            fill[pa - 1] += [f"s_mov_b32 m0, s{S_M0A}"]
            fill[pa] += [f"buffer_load_dwordx4 v{V_KXG}, {WSR}, s{S_KXA} offen sc1 lds"]
            fill[pb - 1] += [f"s_mov_b32 m0, s{S_M0B}"]
            fill[pb] += [f"buffer_load_dwordx4 v{V_KXG}, {WSR}, s{S_KXB} offen sc1 lds"]
        for p in range(32):
            A(mf(qk[p]))
            if p == 0 and loads: stamp(1)
            for x in fill[p]: A(x)
    qk_pass(True)
    A.label("L_v")
    stamp(2)
    seq = []
    seqR = [(0,0),(1,0),(0,1),(1,1),(0,2),(1,2),(0,3),(1,3),(0,4),(1,4),(0,5),(1,5)]
    ri = 0
    for pos in range(16):
        if pos % 4 == 0:
            f = pos // 4; seq.append(('S', 2, f & 1, 6 + (f >> 1), 8 + f))
        else:
            t, ks = seqR[ri]; ri += 1; seq.append(('R', 2, t, ks, None))
    fill = {p: [] for p in range(16)}
    fill[0] += sbload(0, *SL[10]); fill[4] += sbload(1, *SL[11])
    fill[1] += pack(V_AQ, 0, V_AQ + 2)[:1] + pack(V_AQ, 1, V_AQ + 6)[:1]
    fill[2] += pack(V_AQ, 0, V_AQ + 2)[1:] + pack(V_AQ, 1, V_AQ + 6)[1:] + [f"ds_write2_b32 v{V_XW}, v{V_AQ+2}, v{V_AQ+6} offset0:0 offset1:128"]
    fill[3] += pack(V_AK, 0, V_AK + 2)[:1] + pack(V_AK, 1, V_AK + 6)[:1]
    fill[4] += pack(V_AK, 0, V_AK + 2)[1:] + pack(V_AK, 1, V_AK + 6)[1:] + [f"ds_write2_b32 v{V_XW}, v{V_AK+2}, v{V_AK+6} offset0:1 offset1:129"]
    fill[5] += [f"v_mov_b32 v{V_T}, v{V_AK+2}", f"v_mov_b32 v{V_T+1}, v{V_AK+6}"]
    fill[7] += ["@wait_writes", "s_barrier"]
    xf = []
    for ks in range(4):
        for hh in range(2):
            xf.append(f"ds_read_b64_tr_b16 v[{V_XF+4*ks+2*hh}:{V_XF+4*ks+2*hh+1}], v{V_XR if hh == 0 else V_KMS} offset:{ks*1024}")
    last = {}
    for p, e in enumerate(seq): last[e[3]] = p
    free_order = sorted(last, key=lambda k: last[k])
    kxr = {}
    kxr[(0, 0)] = vr(V_AQ, 4); kxr[(0, 1)] = vr(V_AQ + 4, 4); kxr[(0, 2)] = vr(V_AK, 4); kxr[(0, 3)] = vr(V_AK + 4, 4)
    for kk in range(4): kxr[(1, kk)] = M(free_order[kk])
    def kxload(T, kk): return f"ds_read_b128 {kxr[(T, kk)]}, v0 offset:{8192 + (T*4+kk)*1024}"
    fill[7] += xf[0:2]; fill[8] += xf[2:4]; fill[9] += xf[4:6]; fill[10] += xf[6:8]
    fill[11] += [kxload(0, 0), kxload(0, 1)]; fill[13] += [kxload(0, 2)]; fill[14] += [kxload(0, 3)]
    assert last[free_order[3]] <= 13
    for p in range(16):
        A(mf(seq[p]))
        for x in fill[p]:
            if x == "s_barrier" and 'vdet' in opt: stamp(8)
            if x == "@wait_writes" and 'vdet' in opt: stamp(11)
            A(x)
            if x == "s_barrier" and 'vdet' in opt: stamp(9)
        if p == 11 and 'vdet' in opt: stamp(12)
    stamp(3)
    A.raw(f"    s_waitcnt vmcnt({(1 if 'noload' in opt else 3 if ('novt' in opt or 'nokx' in opt) else 5) + (1 if 'steps' in opt else 0)})")
    if 'merged' in opt:
        A(f"s_mov_b32 s{S_FLG}, 128")
        A(f"s_cmp_lg_u32 s{S_CHK}, 0")
        A(f"s_cbranch_scc1 L_norfl")
        A(f"v_readfirstlane_b32 s{S_FLG}, v{V_S}")
        A.label("L_norfl")
    S0, S1, S2 = V_S, V_S + 4, V_S + 8
    def tm(dst, a_, ks, first):
        cc = "0" if first else vr(dst, 4)
        return f"v_mfma_f32_16x16x32_bf16 {vr(dst,4)}, {a_}, {vr(V_XF+4*ks,4)}, {cc}"
    seqT = [(S0, None, k) for k in range(4)] + [(S1, 0, k) for k in range(4)] + [(S2, 1, k) for k in range(4)]
    fill = {p: [] for p in range(12)}
    ONr = V_MK + 4 * free_order[4]
    LD = V_MK + 4 * free_order[5]
    fill[0] += [kxload(1, 0), kxload(1, 1)]; fill[1] += [kxload(1, 2), kxload(1, 3)]
    fill[7] += [f"v_mov_b32 v{ONr}, 0x3f803f80", f"v_mov_b32 v{ONr+1}, 0x3f803f80"]
    fill[8] += [f"v_mov_b32 v{ONr+2}, 0x3f803f80", f"v_mov_b32 v{ONr+3}, 0x3f803f80"]
    fill[2] += pack(V_AV, 0, V_AV + 2)[:1] + pack(V_AV, 1, V_AV + 6)[:1]
    fill[3] += pack(V_AV, 0, V_AV + 2)[1:] + pack(V_AV, 1, V_AV + 6)[1:]
    fill[4] += [f"v_mov_b32 v{V_AV+3}, 0", f"v_mov_b32 v{V_AV+7}, 0"]
    fill[5] += [f"v_mov_b32 v{V_AV}, v{V_T}", f"v_mov_b32 v{V_AV+1}, v{V_T+1}"]
    Tt = V_T + 1; Ls = V_T + 2; Mx = V_T + 3
    fill[9] += [f"v_max3_f32 v{Mx}, v{S0+2}, v{S0+3}, v{S1}"]
    fill[10] += [f"v_max3_f32 v{Mx}, v{Mx}, v{S1+1}, v{S1+2}"]
    fill[11] += [f"v_max_f32 v{Mx}, v{Mx}, v{S1+3}"]
    for p, (dst, T, kk) in enumerate(seqT):
        a_ = vr(V_XF + 4 * kk, 4) if T is None else kxr[(T, kk)]
        A(tm(dst, a_, kk, kk == 0))
        for x in fill[p]: A(x)
    stamp(4)
    A(f"s_cmp_eq_u32 s{S_STEP}, {nsteps-1}")
    A(f"s_cbranch_scc1 L_last")
    A(f"v_max3_f32 v{Mx}, v{Mx}, v{S2}, v{S2+1}")
    A(f"v_max3_f32 v{Tt}, v{Mx}, v{S2+2}, v{S2+3}")
    A(f"v_max3_f32 v{Mx}, v{Mx}, v{S2+2}, v{S2+3}")
    sbo = sbload(0, 3, 0) + sbload(1, 3, 1)
    A(sbo[0])
    A(f"v_permlane16_swap_b32 v{Mx}, v{Tt}")
    A(sbo[1])
    A(f"v_max_f32 v{Ls}, v{Mx}, v{Tt}")
    A(f"v_max_f32 v{Mx}, v{Mx}, v{Tt}")
    A(sbo[2])
    A(sbo[3])
    A(f"v_permlane32_swap_b32 v{Mx}, v{Ls}")
    A(f"v_max_f32 v{Mx}, v{Mx}, v{Ls}")
    A(f"v_mul_f32 v{Mx}, s{S_C}, v{Mx}")
    def pkf(r): return f"v_pk_fma_f32 v[{r}:{r+1}], v[{r}:{r+1}], s[{S_C}:{S_C+1}], v[{Mx-1}:{Mx}] op_sel:[0,0,1] op_sel_hi:[1,1,1] neg_lo:[0,0,1] neg_hi:[0,0,1]"
    for r in (S1, S1 + 2, S2, S2 + 2, S0 + 2): A(pkf(r))
    P12 = V_AQ; P0 = V_AQ + 4; OT = V_AK
    for r in range(S1, S1 + 4): A(f"v_exp_f32 v{r}, v{r}")
    A(f"v_exp_f32 v{S2}, v{S2}")
    A(f"v_exp_f32 v{S2+1}, v{S2+1}")
    A(f"v_cvt_pk_bf16_f32 v{P12}, v{S1}, v{S1+1}")
    A(f"v_exp_f32 v{S2+2}, v{S2+2}")
    A(f"v_cvt_pk_bf16_f32 v{P12+1}, v{S1+2}, v{S1+3}")
    A(f"v_exp_f32 v{S2+3}, v{S2+3}")
    A(f"v_cvt_pk_bf16_f32 v{P12+2}, v{S2}, v{S2+1}")
    A(f"v_exp_f32 v{S0+2}, v{S0+2}")
    A(f"v_cvt_pk_bf16_f32 v{P12+3}, v{S2+2}, v{S2+3}")
    A(f"v_exp_f32 v{S0+3}, v{S0+3}")
    A(f"v_mov_b32 v{P0+1}, 0")
    A(f"v_mfma_f32_16x16x32_bf16 {vr(LD,4)}, {vr(ONr,4)}, {vr(P12,4)}, 0")
    A(f"v_cvt_pk_bf16_f32 v{P0}, v{S0+2}, v{S0+3}")
    for t in range(2):
        A(f"v_mfma_f32_16x16x32_bf16 {vr(OT+4*t,4)}, {vr(V_VX+4*t,4)}, {vr(P12,4)}, 0")
    PO2 = V_S + 4
    for i in range(0, 4, 2): A(f"v_mov_b64 v[{PO2+i}:{PO2+i+1}], -1")
    A(f"v_mfma_f32_16x16x16_bf16 {vr(LD,4)}, {vr(ONr,2)}, {vr(P0,2)}, {vr(LD,4)}")
    for t in range(2):
        A(f"v_mfma_f32_16x16x16_bf16 {vr(OT+4*t,4)}, {vr(V_AV+4*t+2,2)}, {vr(P0,2)}, {vr(OT+4*t,4)}")
    A(f"v_mov_b32 v{V_AV+3}, v{V_AV+6}")
    A(f"v_rcp_f32 v{Ls}, v{LD}")
    for r in range(0, 8, 2):
        A(f"v_pk_mul_f32 v[{OT+r}:{OT+r+1}], v[{OT+r}:{OT+r+1}], v[{Ls}:{Ls+1}] op_sel_hi:[1,0]")
    for t in range(2):
        A(f"v_cvt_pk_bf16_f32 v{OT+4*t}, v{OT+4*t}, v{OT+4*t+1}")
        A(f"v_cvt_pk_bf16_f32 v{OT+4*t+1}, v{OT+4*t+2}, v{OT+4*t+3}")
        A(f"ds_write_b64 v{V_OW}, v[{OT+4*t}:{OT+4*t+1}] offset:{t*256}")
    A("@wait_writes")
    stamp(5)
    A("s_barrier")
    OF = V_VX
    A(f"ds_read_b128 {vr(OF,4)}, v{V_MEM} offset:{L_OB-L_MEMB}")
    A(f"ds_read_b128 {vr(OF+4,4)}, v{V_MEM} offset:{L_OB-L_MEMB+1024}")
    A(f"buffer_store_dwordx4 v[{PO2}:{PO2+3}], v{V_PL}, {WSR}, s{S_POI} offen")
    A(f"buffer_store_dwordx4 v[{PO2}:{PO2+3}], v{V_PL}, {WSR}, s{S_POI} offen offset:1024")
    for x in zero(V_MK, 32): A(x)
    stamp(6)
    oseq = [('S',6,0,0),('R',0,0),('R',0,1),('R',1,0),('S',7,0,1),('R',1,1),('R',2,0),('R',2,1),
            ('S',6,1,2),('R',3,0),('R',3,1),('R',4,0),('S',7,1,3),('R',4,1),('R',5,0),('R',5,1)]
    PQ = V_AQ
    def ppack(tile):
        a0 = V_MK + 4 * tile
        return [f"v_pk_add_f32 v[{a0}:{a0+1}], v[{a0}:{a0+1}], v[{a0+2}:{a0+3}]",
                f"v_cvt_pk_bf16_f32 v{PQ+tile}, v{a0}, v{a0+1}"]
    fill = {p: [] for p in range(16)}
    fill[0] += sbload(0, 3, 2); fill[4] += sbload(1, 3, 3); fill[8] += sbload(0, 0, 0); fill[12] += sbload(1, 0, 1)
    CAR = V_S
    fill[1] += [f"ds_read_b128 {vr(CAR,4)}, v{V_MEM} offset:{L_CA-L_MEMB}"]
    fill[6] += ppack(0); fill[9] += ppack(1); fill[11] += ppack(2); fill[13] += ppack(3)
    fill[14] += [f"buffer_store_dwordx4 v[{PQ}:{PQ+3}], v{V_PS}, {WSR}, s{S_PST0} offen"]
    fill[15] += ppack(6)
    for p, e in enumerate(oseq):
        tile, ks = e[1], e[2]
        bsrc = vr(V_SB + 8 * (e[3] & 1), 8) if e[0] == 'S' else wreg(3, tile >> 1, ks * 2 + (tile & 1))
        A(f"v_smfmac_f32_16x16x64_bf16 {vr(V_MK+4*tile,4)}, {vr(OF+4*ks,4)}, {bsrc}, v{V_IDX}")
        for x in fill[p]: A(x)
    for tl in (7, 4, 5):
        for x in ppack(tl): A(x)
    A(f"buffer_store_dwordx4 v[{PQ+4}:{PQ+7}], v{V_PS}, {WSR}, s{S_PST1} offen")
    stamp(7)
    ta = V_T + 1; tb = V_T + 2
    def poll2(name, regs, loadfn, mid=None, cnt=None, st=None, gap=()):
        def check():
            A(f"v_max3_u32 v{ta}, v{regs}, v{regs+1}, v{regs+2}")
            A(f"v_max3_u32 v{tb}, v{regs+4}, v{regs+5}, v{regs+6}")
            A(f"v_max_u32 v{ta}, v{ta}, v{regs+3}")
            if mid: mid(0)
            A(f"v_max_u32 v{tb}, v{tb}, v{regs+7}")
            if mid: mid(1)
            A(f"v_cmp_eq_u32 s[{S_MA}:{S_MA+1}], -1, v{ta}")
            A(f"v_cmp_eq_u32 s[{S_MB}:{S_MB+1}], -1, v{tb}")
            A(f"s_or_b64 s[{S_MT}:{S_MT+1}], s[{S_MA}:{S_MA+1}], s[{S_MB}:{S_MB+1}]")
            A(f"s_cbranch_scc0 L_{name}ok")
        def round_():
            A(f"s_or_b32 s{S_MA}, s{S_MA}, 1")
            A(f"s_or_b32 s{S_MB}, s{S_MB}, 1")
            A.auto = False
            A(f"s_mov_b64 exec, s[{S_MA}:{S_MA+1}]")
            loadfn(0)
            A(f"s_mov_b64 exec, s[{S_MB}:{S_MB+1}]")
            loadfn(1)
            A(f"s_mov_b64 exec, -1")
            A.auto = True
        A(f"s_mov_b32 s{S_TO}, 0")
        for x in gap: A(x)
        A.auto = False
        loadfn(0); loadfn(1)
        A.auto = True
        A(f"s_waitcnt vmcnt(2)")
        if st is not None: stamp(st)
        A.forget()
        check()
        A.label(f"L_{name}loop")
        round_()
        A(f"s_add_u32 s{S_TO}, s{S_TO}, 1")
        A(f"s_cmp_gt_u32 s{S_TO}, 0x40000")
        A(f"s_cbranch_scc1 L_bail")
        A(f"s_waitcnt vmcnt(2)")
        A.forget()
        check()
        A(f"s_branch L_{name}loop")
        A.label(f"L_{name}ok")
        A.forget()
        if cnt: cnt()
    PB = V_AK; RD = V_VX
    A(f"s_mov_b32 s{S_KEEP}, s{S_PLD}")
    A(f"s_mov_b32 s{S_EX}, s{S_POI}")
    A(f"s_mov_b32 s{S_EX+1}, s{S_VM}")
    A(f"s_mov_b32 s{S_PUB}, s{S_B1}")
    A(f"s_mov_b32 s{S_MPZ}, s{S_B2}")
    A(f"s_mov_b32 s{S_B2}, s{S_B0}")
    A(f"s_mov_b32 s{S_B0}, s{S_PUB}")
    A(f"s_mov_b32 s{S_B1}, s{S_MPZ}")
    A(f"s_xor_b32 s{S_PAR}, s{S_PAR}, 8192")
    A(f"s_add_u32 s{S_STEP}, s{S_STEP}, 1")
    A(f"s_add_u32 s{S_VM}, s{S_VM}, {32*4096}")
    A(f"s_mov_b32 s{S_T0}, s{S_R0}")
    A(f"s_mov_b32 s{S_R0}, s{S_R1}")
    A(f"s_mov_b32 s{S_R1}, s{S_R2}")
    A(f"s_mov_b32 s{S_R2}, s{S_T0}")
    for x in step_scalars(): A(x)
    if 'merged' in opt:
        A(f"s_cmp_ge_u32 s{S_FLG}, 128")
        A(f"s_cbranch_scc0 L_kvslow")
        A.label("L_kvok")
        A(f"s_add_u32 s{S_T0}, s{S_STEP}, 2")
        A(f"s_lshr_b32 s{S_T0}, s{S_T0}, 3")
        A(f"s_min_u32 s{S_T0}, s{S_T0}, 7")
        A(f"s_lshl_b32 s{S_T0}, s{S_T0}, 7")
        A(f"s_add_u32 s{S_FOFF}, s{S_T0}, {F_KV}")
    for x in zero(V_AQ, 8): A(x)
    for x in extra_delay: A(x)
    def h1load(q):
        A(f"buffer_load_dwordx4 v[{PB+4*q}:{PB+4*q+3}], v{V_PL}, {WSR}, s{S_KEEP} offen offset:{1024*q} sc1")
    if 'vdet' not in opt: stamp(8)
    h1load(0); h1load(1)
    def h1mid(i):
        if i == 0: A(f"v_mfma_f32_16x16x32_bf16 {vr(RD,4)}, {vr(CAR,4)}, {vr(PB,4)}, 0")
        else: A(f"v_mfma_f32_16x16x32_bf16 {vr(RD,4)}, {vr(CAR,4)}, {vr(PB+4,4)}, {vr(RD,4)}")
    poll2("h1", PB, h1load, mid=h1mid, st=(None if "vdet" in opt else 9), gap=["s_nop 0"] * g1)
    A("s_nop 2")
    if timing: A(f"s_add_u32 s{S_TACC+16}, s{S_TACC+16}, s{S_TO}")
    if 'rt' in opt: A(f"s_add_u32 s64, s64, s{S_TO}")
    stamp(10)
    for ror in (4, 8):
        for r in range(4):
            A(f"v_add_f32_dpp v{RD+r}, v{RD+r}, v{RD+r} row_ror:{ror} row_mask:0xf bank_mask:0xf")
    A(f"v_cvt_pk_bf16_f32 v{RD}, v{RD}, v{RD+1}")
    A(f"v_cvt_pk_bf16_f32 v{RD+1}, v{RD+2}, v{RD+3}")
    A(f"v_min_u32 v{RD}, -2, v{RD}")
    A(f"v_min_u32 v{RD+1}, -2, v{RD+1}")
    A(f"s_mov_b64 exec, 0xffffffff")
    A(f"buffer_store_dwordx2 v[{RD}:{RD+1}], v{V_MS}, {WSR}, s{S_PUB} offen")
    A(f"v_mov_b64 v[{RD+2}:{RD+3}], -1")
    A(f"buffer_store_dwordx2 v[{RD+2}:{RD+3}], v{V_MS}, {WSR}, s{S_MPZ} offen")
    A(f"s_mov_b64 exec, -1")
    for x in extra_delay2: A(x)
    def stage_mem():
        ML = V_S + 4
        def h2load(q):
            so = S_MSL if q == 0 else S_MPO
            A(f"buffer_load_dwordx4 v[{ML+4*q}:{ML+4*q+3}], v{V_MW}, {WSR}, s{so} offen sc1")
        if 'vdet' not in opt: stamp(11)
        h2load(0); h2load(1)
        poll2("h2", ML, h2load, st=(None if "vdet" in opt else 12), gap=["s_nop 0"] * g2)
        if timing: A(f"s_add_u32 s{S_TACC+17}, s{S_TACC+17}, s{S_TO}")
        if 'rt' in opt: A(f"s_add_u32 s65, s65, s{S_TO}")
        stamp(13)
        A(f"ds_write_b128 v{V_MW}, v[{ML}:{ML+3}]")
        A(f"ds_write_b128 v{V_MW}, v[{ML+4}:{ML+7}] offset:1024")
    stage_mem()
    for x in zero(V_AK, 8): A(x)
    A("@wait_writes")
    if 'steps' in opt:
        A(f"s_lshl_b32 s58, s{S_H}, 2")
        A(f"s_add_u32 s58, s58, s{S_WV}")
        A(f"s_lshl_b32 s58, s58, 6")
        A(f"s_add_u32 s58, s58, s{S_STEP}")
        A(f"s_lshl_b32 s58, s58, 2")
        A(f"s_add_u32 s58, s58, {WS_TIME - 4}")
        A(f"v_mov_b32 v{V_T}, s56")
        A(f"v_mov_b32 v{V_T+1}, 0")
        A(f"s_mov_b64 exec, 1")
        A(f"buffer_store_dword v{V_T}, v{V_T+1}, {WSR}, s58 offen")
        A(f"s_mov_b64 exec, -1")
    stamp(14)
    stamp_acc()
    A("s_barrier")
    A.settle()
    A.forget()
    A("s_branch L_step")
    if 'merged' in opt:
        A.label("L_kvslow")
        A(f"s_mov_b32 s{S_TO}, 0")
        A.label("L_kvslow2")
        A(f"buffer_load_dword v{V_T+1}, off, {WSR}, s{S_FOFF} sc1")
        A(f"s_add_u32 s{S_TO}, s{S_TO}, 1")
        A(f"s_cmp_gt_u32 s{S_TO}, 0x100000")
        A(f"s_cbranch_scc1 L_bail")
        A("s_waitcnt vmcnt(0)")
        A(f"v_cmp_gt_u32 vcc, 128, v{V_T+1}")
        A(f"s_cbranch_vccnz L_kvslow2")
        A.forget()
        A("s_branch L_kvok")
    A.label("L_last")
    if 'diag' in opt: dstamp(A, 7, True)
    A.settle()
    A(f"v_mov_b32 v{V_AV+3}, v{V_AV+6}")
    A(f"buffer_store_dwordx4 v[{V_AV}:{V_AV+3}], v{V_VMS}, {WSR}, s{S_VM} offen sc1")
    if 'rt' in opt:
        A.raw("    s_memtime s[60:61]")
        A.raw("    s_memrealtime s[62:63]")
        A.raw("    s_waitcnt lgkmcnt(0)")
        A(f"s_sub_u32 s56, s60, s56")
        A(f"s_sub_u32 s58, s62, s58")
        A(f"s_lshl_b32 s{S_T0}, s{S_H}, 2")
        A(f"s_add_u32 s{S_T0}, s{S_T0}, s{S_WV}")
        A(f"s_lshl_b32 s{S_T0}, s{S_T0}, 7")
        A(f"s_add_u32 s{S_T0}, s{S_T0}, {WS_TIME}")
        A(f"s_mov_b64 exec, 1")
        for k, r in enumerate((56, 58, 64, 65)):
            A(f"v_mov_b32 v{V_MK+1}, s{r}")
            A(f"v_mov_b32 v{V_MK}, {4*k}")
            A(f"buffer_store_dword v{V_MK+1}, v{V_MK}, {WSR}, s{S_T0} offen")
        A(f"s_mov_b64 exec, -1")
    A.wait(vm=0)
    if 'merged' in opt:
        A("s_barrier")
        A(f"s_cmp_lg_u32 s{S_WV}, 0")
        A(f"s_cbranch_scc1 L_end")
        A(f"v_mov_b32 v{V_T+1}, 64")
        A(f"s_mov_b64 exec, 1")
        A(f"buffer_store_dword v{V_T+1}, off, {WSR}, s{S_POFF} sc1")
        A.wait(vm=0)
    if timing:
        A(f"s_lshl_b32 s{S_T0}, s{S_H}, 2")
        A(f"s_add_u32 s{S_T0}, s{S_T0}, s{S_WV}")
        A(f"s_lshl_b32 s{S_T0}, s{S_T0}, 7")
        A(f"s_add_u32 s{S_T0}, s{S_T0}, {WS_TIME}")
        A(f"s_mov_b64 exec, 1")
        for k in range(18):
            A(f"v_mov_b32 v{V_T+1}, s{S_TACC+k}")
            A(f"v_mov_b32 v{V_T}, {4*k}")
            A(f"buffer_store_dword v{V_T+1}, v{V_T}, {WSR}, s{S_T0} offen")
        A.wait(vm=0)
    A("s_branch L_end")
    A.label("L_bail")
    A(f"s_mov_b64 exec, 1")
    A(f"v_mov_b32 v{V_T}, 60")
    A(f"v_mov_b32 v{V_T+1}, 0xdead")
    A(f"buffer_store_dword v{V_T+1}, v{V_T}, s[{S_DBG}:{S_DBG+3}], 0 offen")
    A.wait(vm=0)
    A.label("L_end")
```

```python
from asmlib import *
from layout import *
import math, struct

L_WL   = 0
L_MEMB = 131072
L_KXB  = L_MEMB + 8192
L_X    = L_MEMB + 24576
L_OB   = L_X + 4096
L_CA   = L_OB + 2048
L_DUM  = L_CA + 1024
LDS_TOTAL = 163840
PSLOT = 262144

S_WS = 4; S_W = 8; S_DBG = 12
S_PW = 16
S_H = 26; S_WV = 27; S_STEP = 28; S_T0 = 29; S_T1 = 30; S_T2 = 31
S_C = 32
S_PAR = 34
S_PST0 = 35; S_PST1 = 36; S_PLD = 37; S_POI = 38; S_MSL = 39; S_MPO = 40
S_KXA = 41; S_KXB = 42; S_M0A = 43; S_M0B = 44; S_VT = 45; S_KM = 46; S_VM = 47
S_TO = 48
S_R0 = 8; S_R1 = 9; S_R2 = 10
S_EX = 50
S_TM = 52
S_TACC = 54
S_STAMP = 72

V_IDX, V_WL0, V_WL1, V_MEM, V_XW, V_XR, V_OW, V_PS, V_PL, V_MS, V_MW, V_KXG, V_VVT, V_KMS, V_VMS = range(1, 16)
V_T = 16
V_MK = 20
V_SB = 52
V_AQ = 68; V_AK = 76; V_AV = 84
V_XF = 92
V_S = 108
V_VX = 120

def wreg(X, c, f):
    idx = X * 12 + c * 4 + f
    return ar(8 * idx, 8) if idx < 32 else vr(128 + 8 * (idx - 32), 8)
def wreg_part(X, c, f, p):
    idx = X * 12 + c * 4 + f
    return ar(8 * idx + 2 * p, 2) if idx < 32 else vr(128 + 8 * (idx - 32) + 2 * p, 2)

def srd(A, s, ptr, size):
    A(f"s_mov_b32 s{s}, s{ptr}")
    A(f"s_and_b32 s{s+1}, s{ptr+1}, 0xffff")
    A(f"s_mov_b32 s{s+2}, {size}")
    A(f"s_mov_b32 s{s+3}, 0x20000")

WSR = f"s[{S_WS}:{S_WS+3}]"

def poll_with_shadow(A, poll, name, regs, loadfn, pre_ok, shadow):
    orig = A.wait
    state = {'done': False}
    def w(vm=None, lg=None):
        if not state['done']:
            state['done'] = True
            shadow()
        orig(vm, lg)
    A.wait = w
    try:
        poll(name, regs, loadfn, pre_ok)
    finally:
        A.wait = orig

def emit_chain(A, timing=False, nsteps=64, opt=(), d1=0, d2=0, hodelay=8, kxpos=(14, 22), g1=12, g2=12, dstamp=None):
    extra_delay = ["s_nop 0"] * d1
    extra_delay2 = ["s_nop 0"] * d2
    lane = 17; t0 = 18; t1 = 19
    def pst(k):
        if 'pro' in opt: A.raw(f"    s_memrealtime s[{72+2*k}:{73+2*k}]")
    pst(1)
    A(f"v_and_b32 v{lane}, 63, v0")
    DQ = V_MK
    DO = V_MK + 2
    TRA = V_MK + 6
    TRO = V_MK + 8
    TMP = V_SB
    a = V_MK + 12; b = V_MK + 13; c_ = V_MK + 14; d_ = V_MK + 15
    A(f"v_lshrrev_b32 v{a}, 4, v{lane}")
    A(f"v_bfe_u32 v{b}, v{lane}, 1, 3")
    A(f"v_xor_b32 v{c_}, v{b}, v{a}")
    A(f"v_and_b32 v{d_}, 1, v{lane}")
    A(f"v_lshl_or_b32 v{c_}, v{c_}, 1, v{d_}")
    A(f"v_lshlrev_b32 v{c_}, 4, v{c_}")
    A(f"v_lshl_or_b32 v{DQ}, v{a}, 13, v{c_}")
    A(f"v_xor_b32 v{DQ+1}, 128, v{DQ}")
    A(f"v_and_b32 v{c_}, 1, v{a}")
    A(f"v_xor_b32 v{c_}, v{b}, v{c_}")
    A(f"v_lshl_or_b32 v{c_}, v{c_}, 1, v{d_}")
    A(f"v_lshrrev_b32 v{b}, 2, v{c_}")
    A(f"v_lshlrev_b32 v{b}, 8, v{b}")
    A(f"v_and_b32 v{c_}, 3, v{c_}")
    A(f"v_lshl_or_b32 v{b}, v{c_}, 5, v{b}")
    A(f"v_lshl_or_b32 v{DO}, v{a}, 10, v{b}")
    A(f"v_xor_b32 v{DO+1}, 256, v{DO}")
    A(f"v_xor_b32 v{DO+2}, 512, v{DO}")
    A(f"v_xor_b32 v{DO+3}, 768, v{DO}")
    A(f"v_bfe_u32 v{b}, v{lane}, 4, 1")
    A(f"v_bfe_u32 v{c_}, v{lane}, 3, 1")
    A(f"v_lshl_or_b32 v{b}, v{c_}, 1, v{b}")
    A(f"v_bfe_u32 v{c_}, v{lane}, 2, 1")
    A(f"v_lshl_or_b32 v{b}, v{c_}, 2, v{b}")
    A(f"v_bfe_u32 v{c_}, v{lane}, 5, 1")
    A(f"v_lshl_or_b32 v{c_}, v{c_}, 4, v{b}")
    A(f"v_lshlrev_b32 v{c_}, 8, v{c_}")
    A(f"v_and_b32 v{d_}, 3, v{lane}")
    A(f"v_lshl_or_b32 v{c_}, v{d_}, 3, v{c_}")
    A(f"s_lshl_b32 s{S_T0}, s{S_WV}, 1")
    A(f"v_xor_b32 v{b}, s{S_T0}, v{b}")
    A(f"v_lshl_or_b32 v{TRA}, v{b}, 5, v{c_}")
    A(f"v_xor_b32 v{TRA+1}, 32, v{TRA}")
    A(f"v_bfe_u32 v{b}, v{lane}, 5, 1")
    A(f"v_lshlrev_b32 v{b}, 4, v{b}")
    A(f"v_bfe_u32 v{c_}, v{lane}, 4, 1")
    A(f"v_lshl_or_b32 v{b}, v{c_}, 2, v{b}")
    A(f"v_lshlrev_b32 v{t0}, 1, v{c_}")
    A(f"v_bfe_u32 v{c_}, v{lane}, 2, 1")
    A(f"v_or_b32 v{b}, v{b}, v{c_}")
    A(f"v_or_b32 v{t0}, v{t0}, v{c_}")
    A(f"v_bfe_u32 v{c_}, v{lane}, 3, 1")
    A(f"v_lshl_or_b32 v{b}, v{c_}, 3, v{b}")
    A(f"v_lshl_or_b32 v{t0}, v{c_}, 2, v{t0}")
    A(f"v_lshlrev_b32 v{b}, 8, v{b}")
    A(f"v_and_b32 v{c_}, 1, v{lane}")
    A(f"v_lshl_or_b32 v{b}, v{c_}, 4, v{b}")
    A(f"v_bfe_u32 v{c_}, v{lane}, 1, 1")
    A(f"v_or_b32 v{c_}, s{S_T0}, v{c_}")
    A(f"v_xor_b32 v{c_}, v{c_}, v{t0}")
    A(f"v_lshl_or_b32 v{TRO}, v{c_}, 5, v{b}")
    A(f"v_add_u32 v{TRO+1}, 8, v{TRO}")

    A(f"v_bfe_u32 v{t0}, v{lane}, 1, 1")
    A(f"v_lshlrev_b32 v{t0}, 1, v{t0}")
    A(f"v_lshrrev_b32 v{t1}, 4, v{lane}")
    A(f"v_add_u32 v{t0}, v{t0}, v{t1}")
    A(f"v_lshlrev_b32 v{t0}, 4, v{t0}")
    A(f"v_and_b32 v{t1}, 1, v{lane}")
    A(f"v_lshl_or_b32 v{t0}, v{t1}, 3, v{t0}")
    A(f"s_lshl_b32 s{S_T0}, s{S_H}, 8")
    A(f"s_lshl_b32 s{S_T1}, s{S_WV}, 6")
    A(f"s_add_u32 s{S_T0}, s{S_T0}, s{S_T1}")
    A(f"v_bfe_u32 v{t1}, v{lane}, 2, 2")
    A(f"v_lshl_or_b32 v{t0}, v{t1}, 13, v{t0}")
    A(f"v_add_u32 v{V_MS}, s{S_T0}, v{t0}")
    srd(A, S_W, S_PW + 8, 8192)
    A(f"v_lshrrev_b32 v{t0}, 4, v{lane}")
    A(f"v_and_b32 v{t0}, 1, v{t0}")
    A(f"v_lshlrev_b32 v{t0}, 10, v{t0}")
    A(f"v_and_b32 v{t1}, 3, v{lane}")
    A(f"v_lshl_or_b32 v{t0}, v{t1}, 1, v{t0}")
    A(f"s_lshl_b32 s{S_T0}, s{S_WV}, 11")
    A(f"s_lshl_b32 s{S_T1}, s{S_H}, 5")
    A(f"s_add_u32 s{S_T0}, s{S_T0}, s{S_T1}")
    M0R = V_S + 4
    MT = V_S
    for j in range(4):
        A(f"buffer_load_ushort v{MT+j}, v{t0}, s[{S_W}:{S_W+3}], s{S_T0} offen offset:{8*j}")
    P = V_XF
    for i in range(4): A(f"v_mov_b32 v{P+i}, -1")
    A(f"v_lshlrev_b32 v{t0}, 4, v0")
    A(f"s_lshl_b32 s{S_T0}, s{S_H}, 13")
    A(f"s_add_u32 s{S_T0}, s{S_T0}, {WS_PBUF}")
    for slot in range(3):
        for i in range(2):
            A(f"s_add_u32 s{S_T1}, s{S_T0}, {slot*PSLOT + i*4096}")
            A(f"buffer_store_dwordx4 v[{P}:{P+3}], v{t0}, {WSR}, s{S_T1} offen")
    A(f"v_cmp_gt_u32 vcc, 16, v0")
    A(f"s_and_saveexec_b64 s[{S_EX}:{S_EX+1}], vcc")
    A(f"s_cbranch_execz L_nomp")
    A(f"s_lshl_b32 s{S_T0}, s{S_H}, 8")
    A(f"s_add_u32 s{S_T0}, s{S_T0}, {WS_MBUF}")
    for sl in (1, 2):
        for cp in range(4):
            A(f"s_add_u32 s{S_T1}, s{S_T0}, {sl*32768 + cp*8192}")
            A(f"buffer_store_dwordx4 v[{P}:{P+3}], v{t0}, {WSR}, s{S_T1} offen")
    A.label("L_nomp")
    A(f"s_mov_b64 exec, s[{S_EX}:{S_EX+1}]")
    A.vm = []

    S_WR = 61
    if 'rot1' in opt:
        A(f"s_add_u32 s{S_WR}, s{S_WV}, s{S_H}")
        A(f"s_and_b32 s{S_WR}, s{S_WR}, 3")
    elif 'rot2' in opt:
        A(f"s_lshr_b32 s{S_WR}, s{S_H}, 2")
        A(f"s_add_u32 s{S_WR}, s{S_WR}, s{S_WV}")
        A(f"s_and_b32 s{S_WR}, s{S_WR}, 3")
    else:
        A(f"s_mov_b32 s{S_WR}, s{S_WV}")
    order = [(X, c) for X in range(4) for c in range(3)] + [(X, 3) for X in range(4)]
    slot_of = {}
    for i, (X, c) in enumerate(order[:12]): slot_of[(X, c)] = i % 5
    for X in range(4): slot_of[(X, 3)] = X
    def issue(X, c):
        srd(A, S_W, S_PW + 2 * X, 4194304)
        slot = slot_of[(X, c)]
        if X < 3:
            A(f"s_lshl_b32 s{S_T0}, s{S_WR}, 18")
            A(f"s_lshl_b32 s{S_T1}, s{S_H}, 8")
            A(f"s_add_u32 s{S_T0}, s{S_T0}, s{S_T1}")
            A(f"s_add_u32 s{S_T0}, s{S_T0}, {128*c*8192}")
            step = 4 * 8192
        else:
            A(f"s_lshl_b32 s{S_T0}, s{S_WR}, 15")
            A(f"s_lshl_b32 s{S_T1}, s{S_H}, 17")
            A(f"s_add_u32 s{S_T0}, s{S_T0}, s{S_T1}")
            A(f"s_add_u32 s{S_T0}, s{S_T0}, {(c >> 1) * 128 + (c & 1) * 16}")
            step = 4 * 1024
        A(f"s_lshl_b32 s{S_T1}, s{S_WR}, 13")
        A(f"s_add_u32 s{S_T1}, s{S_T1}, {slot*32768}")
        for i in range(8):
            D = DQ + (i & 1) if X < 3 else DO + (i & 3)
            A(f"s_mov_b32 m0, s{S_T1}")
            A(f"buffer_load_dwordx4 v{D}, s[{S_W}:{S_W+3}], s{S_T0} offen lds")
            if i < 7:
                A(f"s_add_u32 s{S_T0}, s{S_T0}, {step}")
                A(f"s_add_u32 s{S_T1}, s{S_T1}, 1024")
    pst(2)
    if 'diag' in opt:
        dstamp(A, 14, True)
        A.raw("    s_getreg_b32 s98, hwreg(HW_REG_HW_ID)")
        A(f"s_lshl_b32 s98, s98, 8"); A(f"s_or_b32 s98, s98, s{S_H}")
        lb = A.newlabel("L_dh")
        A(f"s_cmp_lg_u32 s27, 0"); A(f"s_cbranch_scc1 {lb}")
        A(f"s_lshl_b32 s100, s2, 9"); A(f"s_add_u32 s100, s100, {WS_TIME + 4*15}")
        A("v_mov_b32 v30, s98"); A("s_mov_b64 exec, 1"); A("buffer_store_dword v30, off, s[4:7], s100"); A("s_mov_b64 exec, -1"); A.vm.pop(); A.label(lb)
    issued = []
    for k in range(5):
        issue(*order[k]); issued.append(order[k])
    if 'nopf' not in opt:
        A.raw("    s_getpc_b64 s[56:57]")
        A.raw("L_pc0:")
        A.raw("    s_add_u32 s56, s56, L_step-L_pc0")
        A.raw("    s_addc_u32 s57, s57, 0")
        A(f"v_lshlrev_b32 v{V_AQ}, 4, v{lane}")
        A(f"s_lshl_b32 s{S_T0}, s{S_WV}, 11")
        A(f"v_add_u32 v{V_AQ}, s{S_T0}, v{V_AQ}")
        A(f"global_load_dwordx4 v[{V_AK}:{V_AK+3}], v{V_AQ}, s[56:57]")
        A(f"global_load_dwordx4 v[{V_AK+4}:{V_AK+7}], v{V_AQ}, s[56:57] offset:1024")
    A.raw(f"    s_waitcnt vmcnt({40 if 'nopf' in opt else 42})")
    _sv = A.vm; A.vm = []
    A(f"v_lshl_or_b32 v{M0R}, v{MT+1}, 16, v{MT}")
    A(f"v_lshl_or_b32 v{M0R+1}, v{MT+3}, 16, v{MT+2}")
    A(f"s_mov_b32 s{S_T0}, {WS_MBUF}")
    A(f"s_mov_b64 exec, 0xffffffff")
    A(f"buffer_store_dwordx2 v[{M0R}:{M0R+1}], v{V_MS}, {WSR}, s{S_T0} offen")
    A(f"s_mov_b64 exec, -1")
    A.vm = _sv
    follow = {0: order[5], 1: order[6], 2: order[7], 3: order[8], 4: order[9], 5: order[10], 6: order[11],
              7: (2, 3), 8: (3, 3), 10: (0, 3), 11: (1, 3)}
    def trreads(X, slot, f, dst_fn):
        t = f & 1; ksp = f >> 1
        base = slot * 32768
        TR = TRA if X < 3 else TRO
        breg = TR + t
        if base >= 32768:
            A(f"v_add_u32 v{t1}, {base}, v{TR+t}")
            breg = t1
        for tp in range(4):
            if X < 3: imm = (64 * ksp + 32 * (tp >> 1) + 8 * (tp & 1)) * 256
            else: imm = (64 * ksp + 32 * (tp >> 1) + 2 * (tp & 1)) * 256
            A(f"ds_read_b64_tr_b16 {dst_fn(tp)}, v{breg} offset:{imm}")
    def consume_wait(ch):
        pos = issued.index(ch)
        n_after = len(issued) - 1 - pos
        A.wait(vm=8 * n_after)
        A("s_barrier")
    for i, (X, c) in enumerate(order[:12]):
        consume_wait((X, c))
        if i == 0: pst(3)
        if i == 4: pst(4)
        if i == 8: pst(5)
        if i == 5:
            A(f"s_cmp_lg_u32 s{S_WV}, 0")
            A(f"s_cbranch_scc1 L_rdy_skip")
            A(f"v_mov_b32 v{t1}, 1")
            A(f"s_mov_b64 exec, 1")
            A(f"buffer_atomic_add v{t1}, off, s[{S_DBG}:{S_DBG+3}], 0 offset:36")
            A(f"s_mov_b64 exec, -1")
            A.vm.pop()
            A.label("L_rdy_skip")
        for f in range(4):
            trreads(X, slot_of[(X, c)], f, lambda tp: wreg_part(X, c, f, tp))
        A.wait(lg=0)
        A("s_barrier")
        if i in follow:
            issue(*follow[i]); issued.append(follow[i])
    pst(6)
    if 'diag' in opt: dstamp(A, 10, True)
    def S(x): A(x)
    S(f"v_bfe_u32 v{t0}, v{lane}, 1, 1")
    S(f"v_mov_b32 v{V_IDX}, 0x4444")
    S(f"v_mov_b32 v{t1}, 0xeeee")
    S(f"v_cmp_ne_u32 vcc, 0, v{t0}")
    S(f"v_cndmask_b32 v{V_IDX}, v{V_IDX}, v{t1}, vcc")
    S(f"s_lshl_b32 s{S_T0}, s{S_WV}, 13")
    S(f"v_lshlrev_b32 v{t0}, 4, v{lane}")
    S(f"v_add_u32 v{V_WL0}, s{S_T0}, v{t0}")
    S(f"v_add_u32 v{V_WL1}, 0x10000, v{V_WL0}")
    S(f"v_add_u32 v{V_MEM}, {L_MEMB}, v{t0}")
    S(f"s_lshl_b32 s{S_T0}, s{S_WV}, 11")
    S(f"v_add_u32 v{V_MW}, s{S_T0}, v{V_MEM}")
    S(f"s_lshl_b32 s{S_T1}, s{S_H}, 13")
    S(f"s_add_u32 s{S_T0}, s{S_T0}, s{S_T1}")
    S(f"v_add_u32 v{V_PL}, s{S_T0}, v{t0}")
    S(f"v_and_b32 v{t0}, 15, v{lane}")
    S(f"v_lshlrev_b32 v{t0}, 5, v{t0}")
    S(f"v_lshrrev_b32 v{t1}, 4, v{lane}")
    S(f"v_lshl_or_b32 v{t0}, v{t1}, 3, v{t0}")
    S(f"v_bfe_u32 v{t1}, v{lane}, 3, 1")
    S(f"v_lshlrev_b32 v{t1}, 7, v{t1}")
    S(f"v_xor_b32 v{t0}, v{t0}, v{t1}")
    S(f"s_lshl_b32 s{S_T0}, s{S_WV}, 10")
    S(f"s_add_u32 s{S_T0}, s{S_T0}, {L_X}")
    S(f"v_add_u32 v{V_XW}, s{S_T0}, v{t0}")
    S(f"v_lshrrev_b32 v{t0}, 4, v{lane}")
    S(f"v_lshlrev_b32 v{t0}, 3, v{t0}")
    S(f"v_bfe_u32 v{t1}, v{lane}, 2, 2")
    S(f"v_or_b32 v{t0}, v{t0}, v{t1}")
    S(f"v_lshlrev_b32 v{t0}, 5, v{t0}")
    S(f"v_and_b32 v{t1}, 3, v{lane}")
    S(f"v_lshl_or_b32 v{t0}, v{t1}, 3, v{t0}")
    S(f"v_bfe_u32 v{t1}, v{lane}, 4, 1")
    S(f"v_lshlrev_b32 v{t1}, 7, v{t1}")
    S(f"v_xor_b32 v{t0}, v{t0}, v{t1}")
    S(f"v_add_u32 v{V_XR}, {L_X}, v{t0}")
    S(f"v_xor_b32 v{V_KMS}, 128, v{t0}")
    S(f"v_add_u32 v{V_KMS}, {L_X}, v{V_KMS}")
    S(f"v_and_b32 v{t0}, 13, v{lane}")
    S(f"v_bfe_u32 v{t1}, v{lane}, 5, 1")
    S(f"v_lshl_or_b32 v{t0}, v{t1}, 1, v{t0}")
    S(f"v_lshlrev_b32 v{t0}, 4, v{t0}")
    S(f"v_bfe_u32 v{t1}, v{lane}, 4, 1")
    S(f"v_lshl_or_b32 v{t0}, v{t1}, 3, v{t0}")
    S(f"s_lshl_b32 s{S_T0}, s{S_WV}, 9")
    S(f"s_add_u32 s{S_T0}, s{S_T0}, {L_OB}")
    S(f"v_add_u32 v{V_OW}, s{S_T0}, v{t0}")
    S(f"v_mov_b32 v{t0}, {L_DUM}")
    S(f"v_and_b32 v{t1}, 2, v{lane}")
    S(f"v_cmp_ne_u32 vcc, 0, v{t1}")
    S(f"v_cndmask_b32 v{V_OW}, v{V_OW}, v{t0}, vcc")
    S(f"v_bfe_u32 v{t0}, v{lane}, 2, 2")
    S(f"v_lshlrev_b32 v{t0}, 13, v{t0}")
    S(f"v_lshrrev_b32 v{t1}, 4, v{lane}")
    S(f"v_lshl_or_b32 v{t0}, v{t1}, 11, v{t0}")
    S(f"v_and_b32 v{t1}, 3, v{lane}")
    S(f"v_lshl_or_b32 v{t0}, v{t1}, 4, v{t0}")
    S(f"s_lshl_b32 s{S_T0}, s{S_H}, 6")
    S(f"v_add_u32 v{V_PS}, s{S_T0}, v{t0}")
    S(f"v_and_b32 v{t0}, 15, v{lane}")
    S(f"v_lshlrev_b32 v{t0}, 13, v{t0}")
    S(f"v_lshrrev_b32 v{t1}, 4, v{lane}")
    S(f"v_lshl_or_b32 v{t0}, v{t1}, 4, v{t0}")
    S(f"s_lshl_b32 s{S_T0}, s{S_H}, 8")
    S(f"s_lshr_b32 s{S_T1}, s{S_WV}, 1")
    S(f"s_lshl_b32 s{S_T1}, s{S_T1}, 17")
    S(f"s_add_u32 s{S_T0}, s{S_T0}, s{S_T1}")
    S(f"s_and_b32 s{S_T1}, s{S_WV}, 1")
    S(f"s_lshl_b32 s{S_T1}, s{S_T1}, 7")
    S(f"s_add_u32 s{S_T0}, s{S_T0}, s{S_T1}")
    S(f"v_add_u32 v{V_KXG}, s{S_T0}, v{t0}")
    S(f"v_and_b32 v{t0}, 15, v{lane}")
    S(f"v_lshlrev_b32 v{t0}, 6, v{t0}")
    S(f"v_lshrrev_b32 v{t1}, 4, v{lane}")
    S(f"v_lshl_or_b32 v{t0}, v{t1}, 4, v{t0}")
    S(f"s_lshl_b32 s{S_T0}, s{S_H}, 13")
    S(f"s_lshl_b32 s{S_T1}, s{S_WV}, 11")
    S(f"s_add_u32 s{S_T0}, s{S_T0}, s{S_T1}")
    S(f"v_add_u32 v{V_VVT}, s{S_T0}, v{t0}")
    S(f"v_lshlrev_b32 v{t0}, 4, v{lane}")
    S(f"s_lshl_b32 s{S_T0}, s{S_H}, 12")
    S(f"s_lshl_b32 s{S_T1}, s{S_WV}, 10")
    S(f"s_add_u32 s{S_T0}, s{S_T0}, s{S_T1}")
    S(f"v_add_u32 v{V_VMS}, s{S_T0}, v{t0}")
    c = (128 ** -0.5) * math.log2(math.e)
    cbits = hex(struct.unpack('<I', struct.pack('<f', c))[0])
    S(f"s_mov_b32 s{S_C}, {cbits}")
    S(f"s_mov_b32 s{S_C+1}, {cbits}")

    CA = V_AK
    A(f"v_and_b32 v{a}, 15, v{lane}")
    A(f"v_mov_b32 v{b}, 0x3f80")
    A(f"v_mov_b32 v{c_}, 0x3f800000")
    A(f"v_cmp_gt_u32 vcc, 4, v{a}")
    A(f"v_cndmask_b32 v{b}, v{c_}, v{b}, vcc")
    A(f"v_cmp_gt_u32 vcc, 8, v{a}")
    A(f"v_cndmask_b32 v{b}, 0, v{b}, vcc")
    A(f"v_and_b32 v{a}, 3, v{a}")
    for i in range(4):
        A(f"v_cmp_eq_u32 vcc, {i}, v{a}")
        A(f"v_cndmask_b32 v{CA+i}, 0, v{b}, vcc")
    A(f"s_lshl_b32 s{S_M0A}, s{S_WV}, 11")
    A(f"s_add_u32 s{S_M0A}, s{S_M0A}, {L_KXB}")
    A(f"s_mov_b32 s{S_KXA}, {WS_KX}")
    def kx0():
        A(f"s_mov_b32 m0, s{S_M0A}")
        A(f"buffer_load_dwordx4 v{V_KXG}, {WSR}, s{S_KXA} offen sc1 lds")
        A(f"s_add_u32 s{S_T0}, s{S_M0A}, 1024")
        A(f"s_add_u32 s{S_T1}, s{S_KXA}, 64")
        A(f"s_mov_b32 m0, s{S_T0}")
        A(f"buffer_load_dwordx4 v{V_KXG}, {WSR}, s{S_T1} offen sc1 lds")
    if 'merged' not in opt: kx0()
    A.wait(vm=0)
    A.vm = []
    A(f"ds_write_b128 v{V_MEM}, v[{CA}:{CA+3}] offset:{L_CA-L_MEMB}")
    A.wait(lg=0)
    A("s_barrier")
    A(f"s_mov_b32 s{S_TO}, 0")
    A(f"v_mov_b32 v{t0}, 36")
    A.label("L_rdy_poll")
    A(f"buffer_load_dword v{t1}, v{t0}, s[{S_DBG}:{S_DBG+3}], 0 offen sc1")
    A(f"s_add_u32 s{S_TO}, s{S_TO}, 1")
    A(f"s_cmp_gt_u32 s{S_TO}, 0x40000")
    A(f"s_cbranch_scc1 L_bail")
    A.wait(vm=0)
    A(f"v_cmp_gt_u32 vcc, 32, v{t1}")
    A(f"s_cbranch_vccnz L_rdy_poll")
    A.forget()
    if 'merged' in opt:
        A(f"s_mov_b32 s{S_TO}, 0")
        A.label("L_ci_poll")
        A(f"buffer_load_dword v{t1}, off, s[{S_DBG}:{S_DBG+3}], 0 offset:{D_INIT} sc1")
        A(f"s_add_u32 s{S_TO}, s{S_TO}, 1")
        A(f"s_cmp_gt_u32 s{S_TO}, 0x100000")
        A(f"s_cbranch_scc1 L_bail")
        A.wait(vm=0)
        A(f"v_cmp_eq_u32 vcc, 0, v{t1}")
        A(f"s_cbranch_vccnz L_ci_poll")
        A.forget()
    pst(7)
    if 'diag' in opt: dstamp(A, 11, True)
    for X in range(4):
        for f in range(4):
            trreads(X, X, f, lambda tp: vr(TMP + 8 * f + 2 * tp, 2))
        A.wait(lg=0)
        A("s_barrier")
        base = V_WL0 if X < 2 else V_WL1
        for f in range(4):
            for hh in range(2):
                A(f"ds_write_b128 v{base}, v[{TMP+8*f+4*hh}:{TMP+8*f+4*hh+3}] offset:{(X&1)*32768 + f*2048 + hh*1024}")
        A.wait(lg=0)
    if 'diag' in opt: dstamp(A, 12, True)
    if 'merged' in opt:
        A(f"s_mov_b32 s{S_T0}, {F_KV}")
        A.label("L_ck_poll")
        A(f"buffer_load_dword v{t1}, off, {WSR}, s{S_T0} sc1")
        A(f"s_add_u32 s{S_TO}, s{S_TO}, 1")
        A(f"s_cmp_gt_u32 s{S_TO}, 0x100000")
        A(f"s_cbranch_scc1 L_bail")
        A.wait(vm=0)
        A(f"v_cmp_gt_u32 vcc, 128, v{t1}")
        A(f"s_cbranch_vccnz L_ck_poll")
        A.forget()
        if 'diag' in opt: dstamp(A, 13, True)
        kx0()


    A("s_waitcnt vmcnt(0)")
    A("s_barrier")
    pst(8)
    if 'diag' in opt: dstamp(A, 5, True)
    pst(9)
    if 'pro' in opt:
        A.raw("    s_waitcnt lgkmcnt(0)")
        A(f"s_lshl_b32 s{S_T0}, s{S_H}, 2")
        A(f"s_add_u32 s{S_T0}, s{S_T0}, s{S_WV}")
        A(f"s_lshl_b32 s{S_T0}, s{S_T0}, 7")
        A(f"s_add_u32 s{S_T0}, s{S_T0}, {WS_TIME}")
        A(f"s_mov_b64 exec, 1")
        for k in range(10):
            A(f"v_mov_b32 v{V_T+1}, s{72+2*k}")
            A(f"v_mov_b32 v{V_T}, {4*k}")
            A(f"buffer_store_dword v{V_T+1}, v{V_T}, {WSR}, s{S_T0} offen")
        A(f"s_mov_b64 exec, -1")
        A.wait(vm=0)
    S_MA = 16; S_MB = 18; S_MT = 20
    S_PUB = 22; S_MPZ = 23; S_KEEP = 24; S_B0 = 11; S_B1 = 25; S_B2 = 49; S_HC = 46
    A(f"s_mov_b32 s{S_STEP}, 0")
    A(f"s_mov_b32 s{S_PAR}, 0")
    A(f"s_mov_b32 s{S_VT}, {WS_VT - 32*8192}")
    A(f"s_and_b32 s{S_HC}, s{S_H}, 3")
    A(f"s_lshl_b32 s{S_HC}, s{S_HC}, 13")
    A(f"s_sub_u32 s{S_HC}, s{S_HC}, {L_MEMB}")
    A(f"s_mov_b32 s{S_B0}, {WS_MBUF}")
    A(f"s_mov_b32 s{S_B1}, {WS_MBUF + 32768}")
    A(f"s_mov_b32 s{S_B2}, {WS_MBUF + 65536}")
    A(f"s_mov_b32 s{S_VM}, {WS_KVM}")
    S_FLG = 53; S_FOFF = 52; S_POFF = 54; S_CHK = 55
    if 'merged' in opt:
        A(f"s_mov_b32 s{S_FOFF}, {F_KV}")
        A(f"s_lshl_b32 s{S_POFF}, s{S_H}, 7")
        A(f"s_add_u32 s{S_POFF}, s{S_POFF}, {F_PROG}")
    A(f"s_mov_b32 s{S_EX+1}, {WS_KVM + 64*32*4096}")
    A(f"s_mov_b32 s{S_R0}, {WS_PBUF}")
    A(f"s_mov_b32 s{S_R1}, {WS_PBUF + PSLOT}")
    A(f"s_mov_b32 s{S_R2}, {WS_PBUF + 2*PSLOT}")
    def zero(r, n): return [f"v_mov_b64 v[{r+i}:{r+i+1}], 0" for i in range(0, n, 2)]
    def step_scalars():
        o = []
        o.append(f"s_mov_b32 s{S_PLD}, s{S_R0}")
        o.append(f"s_mov_b32 s{S_POI}, s{S_R2}")
        o.append(f"s_lshl_b32 s{S_T1}, s{S_WV}, 16")
        o.append(f"s_add_u32 s{S_PST0}, s{S_PLD}, s{S_T1}")
        o.append(f"s_add_u32 s{S_PST1}, s{S_PST0}, 32768")
        o.append(f"s_add_u32 s{S_MSL}, s{S_B0}, s{S_HC}")
        o.append(f"s_add_u32 s{S_MPO}, s{S_MSL}, 1024")
        o.append(f"s_add_u32 s{S_VT}, s{S_VT}, {32*8192}")
        o.append(f"s_add_u32 s{S_KXA}, s{S_KXA}, {32*8192}")
        o.append(f"s_add_u32 s{S_KXB}, s{S_KXA}, 64")
        o.append(f"s_xor_b32 s{S_M0A}, s{S_M0A}, {L_KXB ^ (L_KXB + 8192)}")
        o.append(f"s_add_u32 s{S_M0B}, s{S_M0A}, 1024")
        o.append(f"v_add_u32 v0, s{S_PAR}, v{V_MEM}")
        return o
    for x in zero(V_AQ, 24): A(x)
    for x in step_scalars(): A(x)
    A(f"buffer_load_dwordx4 v[{V_S+4}:{V_S+7}], v{V_MW}, {WSR}, s{S_MSL} offen sc1")
    A(f"buffer_load_dwordx4 v[{V_S+8}:{V_S+11}], v{V_MW}, {WSR}, s{S_MPO} offen sc1")
    A(f"ds_write_b128 v{V_MW}, v[{V_S+4}:{V_S+7}]")
    A(f"ds_write_b128 v{V_MW}, v[{V_S+8}:{V_S+11}] offset:1024")
    A.wait(lg=0)
    A("s_barrier")
    def sbload(buf, X, f):
        base = V_WL0 if X < 2 else V_WL1
        r = V_SB + 8 * buf
        return [f"ds_read_b128 v[{r}:{r+3}], v{base} offset:{(X&1)*32768 + f*2048}",
                f"ds_read_b128 v[{r+4}:{r+7}], v{base} offset:{(X&1)*32768 + f*2048 + 1024}"]
    for s_ in sbload(0, 0, 0) + sbload(1, 0, 1): A(s_)
    if timing:
        for i in range(18): A(f"s_mov_b32 s{S_TACC+i}, 0")
    A.wait(lg=0)
    A.settle()
    A.forget()

    NST = 15
    def stamp(k):
        if timing: A.raw(f"    {'s_memrealtime' if ('abs' in opt and 'absm' not in opt) else 's_memtime'} s[{S_STAMP+2*k}:{S_STAMP+2*k+1}]")
    def stamp_acc():
        if timing and 'abs' in opt:
            A.raw("    s_waitcnt lgkmcnt(0)")
            lb = A.newlabel("L_abs")
            A(f"s_cmp_lg_u32 s{S_STEP}, 31")
            A(f"s_cbranch_scc1 {lb}")
            for k in range(NST):
                A(f"s_mov_b32 s{S_TACC+k}, s{S_STAMP+2*k}")
            A.label(lb)
            return
        if timing:
            A.raw("    s_waitcnt lgkmcnt(0)")
            A(f"s_sub_u32 s{S_T2}, s{S_STAMP}, s{S_TM}")
            A(f"s_add_u32 s{S_TACC}, s{S_TACC}, s{S_T2}")
            for k in range(1, NST):
                A(f"s_sub_u32 s{S_T2}, s{S_STAMP+2*k}, s{S_STAMP+2*(k-1)}")
                A(f"s_add_u32 s{S_TACC+k}, s{S_TACC+k}, s{S_T2}")
            A(f"s_mov_b32 s{S_TM}, s{S_STAMP+2*(NST-1)}")
    def M(ks): return vr(V_MK + 4 * ks, 4)
    def mload(ks, sc=""):
        return f"ds_read_b128 {M(ks)}, v{V_MEM} offset:{ks*1024}"
    def pack(acc, t, dst):
        return [f"v_pk_add_f32 v[{acc+4*t}:{acc+4*t+1}], v[{acc+4*t}:{acc+4*t+1}], v[{acc+4*t+2}:{acc+4*t+3}]",
                f"v_cvt_pk_bf16_f32 v{dst}, v{acc+4*t}, v{acc+4*t+1}"]

    if 'diag' in opt: dstamp(A, 6, True)
    pre_barrier = []
    sfx = ['']
    if 'rt' in opt:
        A.raw("    s_memtime s[56:57]")
        A.raw("    s_memrealtime s[58:59]")
        A.raw("    s_waitcnt lgkmcnt(0)")
        A("s_mov_b32 s64, 0"); A("s_mov_b32 s65, 0")
    if timing:
        A(f"s_memtime s[{S_TM}:{S_TM+1}]")
        A.wait(lg=0)
    A.label("L_step")
    if 'diag' in opt: dstamp(A, 16, True, S_STEP)
    if 'steps' in opt:
        A.raw("    s_memtime s[56:57]")
    stamp(0)
    morder = [6, 0, 1, 2, 7, 3, 4, 5]
    npre = 8
    for ks in morder: A(mload(ks))
    if 'merged' in opt:
        A(f"s_add_u32 s{S_T0}, s{S_STEP}, 2")
        A(f"s_and_b32 s{S_CHK}, s{S_T0}, 7")
        A(f"s_cmp_lg_u32 s{S_CHK}, 0")
        A(f"s_cbranch_scc1 L_noflag")
        A(f"buffer_load_dword v{V_S}, off, {WSR}, s{S_FOFF} sc1")
        A.vm.pop()
        A.label("L_noflag")
    if 'noload' not in opt and 'novt' not in opt:
        A(f"buffer_load_dwordx4 v[{V_VX}:{V_VX+3}], v{V_VVT}, {WSR}, s{S_VT} offen sc1")
        A(f"buffer_load_dwordx4 v[{V_VX+4}:{V_VX+7}], v{V_VVT}, {WSR}, s{S_VT} offen offset:1024 sc1")
    A(f"buffer_store_dwordx4 v[{V_AV}:{V_AV+3}], v{V_VMS}, {WSR}, s{S_EX+1} offen" + ("" if 'nopub' in opt else " sc1"))
    if 'merged' in opt:
        A(f"s_and_b32 s{S_T0}, s{S_STEP}, 3")
        A(f"s_or_b32 s{S_T0}, s{S_T0}, s{S_WV}")
        A(f"s_cmp_lg_u32 s{S_T0}, 0")
        A(f"s_cbranch_scc1 L_noprog")
        A(f"s_sub_u32 s{S_T0}, s{S_STEP}, 1")
        A(f"s_max_i32 s{S_T0}, s{S_T0}, 0")
        A(f"v_mov_b32 v{V_T+1}, s{S_T0}")
        A(f"s_mov_b64 exec, 1")
        A(f"buffer_store_dword v{V_T+1}, off, {WSR}, s{S_POFF} sc1")
        A(f"s_mov_b64 exec, -1")
        A.vm.pop()
        A.label("L_noprog")
    late_zero = zero(V_AV, 8)
    SL = [(0,0),(0,1),(1,0),(1,1),(0,2),(0,3),(1,2),(1,3),(2,0),(2,1),(2,2),(2,3)]
    RL = [(X, t, ks) for ks in range(6) for X in (0, 1) for t in (0, 1)]
    ACC = {0: V_AQ, 1: V_AK, 2: V_AV}
    CHK = V_T + 1
    qk = []
    ri = 0
    for pos in range(32):
        if pos % 4 == 0:
            X, f = SL[pos // 4]; qk.append(('S', X, f & 1, 6 + (f >> 1), pos // 4))
        else:
            X, t, ks = RL[ri]; ri += 1; qk.append(('R', X, t, ks, None))
    def mf(e):
        kind, X, t, ks, si = e
        d = vr(ACC[X] + 4 * t, 4)
        bsrc = vr(V_SB + 8 * (si & 1), 8) if kind == 'S' else wreg(X, ks >> 1, (ks & 1) * 2 + t)
        return f"v_smfmac_f32_16x16x64_bf16 {d}, {M(ks)}, {bsrc}, v{V_IDX}"
    def qk_pass(loads):
        fill = {p: [] for p in range(32)}
        for p in range(0, 32, 4):
            si = p // 4
            fill[p] += sbload(si & 1, *SL[si + 2])
        first_use = {}
        for p, e in enumerate(qk):
            first_use.setdefault(e[3], p)
        if loads:
            rem = morder[npre:]
            for i, ks in enumerate(rem): fill[1 + 5 * i].append(mload(ks))
        for i, x in enumerate(late_zero): fill[9 + 4 * i].append(x)
        if 'noload' not in opt and 'nokx' not in opt:
            pa, pb = kxpos
            fill[pa - 1] += [f"s_mov_b32 m0, s{S_M0A}"]
            fill[pa] += [f"buffer_load_dwordx4 v{V_KXG}, {WSR}, s{S_KXA} offen sc1 lds"]
            fill[pb - 1] += [f"s_mov_b32 m0, s{S_M0B}"]
            fill[pb] += [f"buffer_load_dwordx4 v{V_KXG}, {WSR}, s{S_KXB} offen sc1 lds"]
        for p in range(32):
            A(mf(qk[p]))
            if p == 0 and loads: stamp(1)
            for x in fill[p]: A(x)
    qk_pass(True)
    A.label("L_v")
    stamp(2)
    seq = []
    seqR = [(0,0),(1,0),(0,1),(1,1),(0,2),(1,2),(0,3),(1,3),(0,4),(1,4),(0,5),(1,5)]
    ri = 0
    for pos in range(16):
        if pos % 4 == 0:
            f = pos // 4; seq.append(('S', 2, f & 1, 6 + (f >> 1), 8 + f))
        else:
            t, ks = seqR[ri]; ri += 1; seq.append(('R', 2, t, ks, None))
    fill = {p: [] for p in range(16)}
    fill[0] += sbload(0, *SL[10]); fill[4] += sbload(1, *SL[11])
    fill[1] += pack(V_AQ, 0, V_AQ + 2)[:1] + pack(V_AQ, 1, V_AQ + 6)[:1]
    fill[2] += pack(V_AQ, 0, V_AQ + 2)[1:] + pack(V_AQ, 1, V_AQ + 6)[1:] + [f"ds_write2_b32 v{V_XW}, v{V_AQ+2}, v{V_AQ+6} offset0:0 offset1:128"]
    fill[3] += pack(V_AK, 0, V_AK + 2)[:1] + pack(V_AK, 1, V_AK + 6)[:1]
    fill[4] += pack(V_AK, 0, V_AK + 2)[1:] + pack(V_AK, 1, V_AK + 6)[1:] + [f"ds_write2_b32 v{V_XW}, v{V_AK+2}, v{V_AK+6} offset0:1 offset1:129"]
    fill[5] += [f"v_mov_b32 v{V_T}, v{V_AK+2}", f"v_mov_b32 v{V_T+1}, v{V_AK+6}"]
    fill[7] += ["@wait_writes", "s_barrier"]
    xf = []
    for ks in range(4):
        for hh in range(2):
            xf.append(f"ds_read_b64_tr_b16 v[{V_XF+4*ks+2*hh}:{V_XF+4*ks+2*hh+1}], v{V_XR if hh == 0 else V_KMS} offset:{ks*1024}")
    last = {}
    for p, e in enumerate(seq): last[e[3]] = p
    free_order = sorted(last, key=lambda k: last[k])
    kxr = {}
    kxr[(0, 0)] = vr(V_AQ, 4); kxr[(0, 1)] = vr(V_AQ + 4, 4); kxr[(0, 2)] = vr(V_AK, 4); kxr[(0, 3)] = vr(V_AK + 4, 4)
    for kk in range(4): kxr[(1, kk)] = M(free_order[kk])
    def kxload(T, kk): return f"ds_read_b128 {kxr[(T, kk)]}, v0 offset:{8192 + (T*4+kk)*1024}"
    fill[7] += xf[0:2]; fill[8] += xf[2:4]; fill[9] += xf[4:6]; fill[10] += xf[6:8]
    fill[11] += [kxload(0, 0), kxload(0, 1)]; fill[13] += [kxload(0, 2)]; fill[14] += [kxload(0, 3)]
    assert last[free_order[3]] <= 13
    for p in range(16):
        A(mf(seq[p]))
        for x in fill[p]:
            if x == "s_barrier" and 'vdet' in opt: stamp(8)
            if x == "@wait_writes" and 'vdet' in opt: stamp(11)
            A(x)
            if x == "s_barrier" and 'vdet' in opt: stamp(9)
        if p == 11 and 'vdet' in opt: stamp(12)
    stamp(3)
    A.raw(f"    s_waitcnt vmcnt({(1 if 'noload' in opt else 3 if ('novt' in opt or 'nokx' in opt) else 5) + (1 if 'steps' in opt else 0)})")
    if 'merged' in opt:
        A(f"s_mov_b32 s{S_FLG}, 128")
        A(f"s_cmp_lg_u32 s{S_CHK}, 0")
        A(f"s_cbranch_scc1 L_norfl")
        A(f"v_readfirstlane_b32 s{S_FLG}, v{V_S}")
        A.label("L_norfl")
    S0, S1, S2 = V_S, V_S + 4, V_S + 8
    def tm(dst, a_, ks, first):
        cc = "0" if first else vr(dst, 4)
        return f"v_mfma_f32_16x16x32_bf16 {vr(dst,4)}, {a_}, {vr(V_XF+4*ks,4)}, {cc}"
    seqT = [(S0, None, k) for k in range(4)] + [(S1, 0, k) for k in range(4)] + [(S2, 1, k) for k in range(4)]
    fill = {p: [] for p in range(12)}
    ONr = V_MK + 4 * free_order[4]
    LD = V_MK + 4 * free_order[5]
    fill[0] += [kxload(1, 0), kxload(1, 1)]; fill[1] += [kxload(1, 2), kxload(1, 3)]
    fill[7] += [f"v_mov_b32 v{ONr}, 0x3f803f80", f"v_mov_b32 v{ONr+1}, 0x3f803f80"]
    fill[8] += [f"v_mov_b32 v{ONr+2}, 0x3f803f80", f"v_mov_b32 v{ONr+3}, 0x3f803f80"]
    fill[2] += pack(V_AV, 0, V_AV + 2)[:1] + pack(V_AV, 1, V_AV + 6)[:1]
    fill[3] += pack(V_AV, 0, V_AV + 2)[1:] + pack(V_AV, 1, V_AV + 6)[1:]
    fill[4] += [f"v_mov_b32 v{V_AV+3}, 0", f"v_mov_b32 v{V_AV+7}, 0"]
    fill[5] += [f"v_min_u32 v{V_AV}, -2, v{V_T}", f"v_min_u32 v{V_AV+1}, -2, v{V_T+1}"]
    Tt = V_T + 1; Ls = V_T + 2; Mx = V_T + 3
    fill[9] += [f"v_max3_f32 v{Mx}, v{S0+2}, v{S0+3}, v{S1}"]
    fill[10] += [f"v_max3_f32 v{Mx}, v{Mx}, v{S1+1}, v{S1+2}"]
    fill[11] += [f"v_max_f32 v{Mx}, v{Mx}, v{S1+3}"]
    for p, (dst, T, kk) in enumerate(seqT):
        a_ = vr(V_XF + 4 * kk, 4) if T is None else kxr[(T, kk)]
        A(tm(dst, a_, kk, kk == 0))
        for x in fill[p]: A(x)
    stamp(4)
    A(f"s_cmp_eq_u32 s{S_STEP}, {nsteps-1}")
    A(f"s_cbranch_scc1 L_last")
    A(f"v_max3_f32 v{Mx}, v{Mx}, v{S2}, v{S2+1}")
    A(f"v_max3_f32 v{Tt}, v{Mx}, v{S2+2}, v{S2+3}")
    A(f"v_max3_f32 v{Mx}, v{Mx}, v{S2+2}, v{S2+3}")
    sbo = sbload(0, 3, 0) + sbload(1, 3, 1)
    A(sbo[0])
    A(f"v_permlane16_swap_b32 v{Mx}, v{Tt}")
    A(sbo[1])
    A(f"v_max_f32 v{Ls}, v{Mx}, v{Tt}")
    A(f"v_max_f32 v{Mx}, v{Mx}, v{Tt}")
    A(sbo[2])
    A(sbo[3])
    A(f"v_permlane32_swap_b32 v{Mx}, v{Ls}")
    A(f"v_max_f32 v{Mx}, v{Mx}, v{Ls}")
    A(f"v_mul_f32 v{Mx}, s{S_C}, v{Mx}")
    def pkf(r): return f"v_pk_fma_f32 v[{r}:{r+1}], v[{r}:{r+1}], s[{S_C}:{S_C+1}], v[{Mx-1}:{Mx}] op_sel:[0,0,1] op_sel_hi:[1,1,1] neg_lo:[0,0,1] neg_hi:[0,0,1]"
    for r in (S1, S1 + 2, S2, S2 + 2, S0 + 2): A(pkf(r))
    P12 = V_AQ; P0 = V_AQ + 4; OT = V_AK
    for r in range(S1, S1 + 4): A(f"v_exp_f32 v{r}, v{r}")
    A(f"v_exp_f32 v{S2}, v{S2}")
    A(f"v_exp_f32 v{S2+1}, v{S2+1}")
    A(f"v_cvt_pk_bf16_f32 v{P12}, v{S1}, v{S1+1}")
    A(f"v_exp_f32 v{S2+2}, v{S2+2}")
    A(f"v_cvt_pk_bf16_f32 v{P12+1}, v{S1+2}, v{S1+3}")
    A(f"v_exp_f32 v{S2+3}, v{S2+3}")
    A(f"v_cvt_pk_bf16_f32 v{P12+2}, v{S2}, v{S2+1}")
    A(f"v_exp_f32 v{S0+2}, v{S0+2}")
    A(f"v_cvt_pk_bf16_f32 v{P12+3}, v{S2+2}, v{S2+3}")
    A(f"v_exp_f32 v{S0+3}, v{S0+3}")
    A(f"v_mov_b32 v{P0+1}, 0")
    A(f"v_mfma_f32_16x16x32_bf16 {vr(LD,4)}, {vr(ONr,4)}, {vr(P12,4)}, 0")
    A(f"v_cvt_pk_bf16_f32 v{P0}, v{S0+2}, v{S0+3}")
    for t in range(2):
        A(f"v_mfma_f32_16x16x32_bf16 {vr(OT+4*t,4)}, {vr(V_VX+4*t,4)}, {vr(P12,4)}, 0")
    PO2 = V_S + 4
    for i in range(0, 4, 2): A(f"v_mov_b64 v[{PO2+i}:{PO2+i+1}], -1")
    A(f"v_mfma_f32_16x16x16_bf16 {vr(LD,4)}, {vr(ONr,2)}, {vr(P0,2)}, {vr(LD,4)}")
    for t in range(2):
        A(f"v_mfma_f32_16x16x16_bf16 {vr(OT+4*t,4)}, {vr(V_AV+4*t+2,2)}, {vr(P0,2)}, {vr(OT+4*t,4)}")
    A(f"v_min_u32 v{V_AV+3}, -2, v{V_AV+6}")
    A(f"v_min_u32 v{V_AV+2}, -2, v{V_AV+2}")
    A(f"v_rcp_f32 v{Ls}, v{LD}")
    for r in range(0, 8, 2):
        A(f"v_pk_mul_f32 v[{OT+r}:{OT+r+1}], v[{OT+r}:{OT+r+1}], v[{Ls}:{Ls+1}] op_sel_hi:[1,0]")
    for t in range(2):
        A(f"v_cvt_pk_bf16_f32 v{OT+4*t}, v{OT+4*t}, v{OT+4*t+1}")
        A(f"v_cvt_pk_bf16_f32 v{OT+4*t+1}, v{OT+4*t+2}, v{OT+4*t+3}")
        A(f"ds_write_b64 v{V_OW}, v[{OT+4*t}:{OT+4*t+1}] offset:{t*256}")
    A("@wait_writes")
    stamp(5)
    A("s_barrier")
    OF = V_VX
    A(f"ds_read_b128 {vr(OF,4)}, v{V_MEM} offset:{L_OB-L_MEMB}")
    A(f"ds_read_b128 {vr(OF+4,4)}, v{V_MEM} offset:{L_OB-L_MEMB+1024}")
    A(f"buffer_store_dwordx4 v[{PO2}:{PO2+3}], v{V_PL}, {WSR}, s{S_POI} offen")
    A(f"buffer_store_dwordx4 v[{PO2}:{PO2+3}], v{V_PL}, {WSR}, s{S_POI} offen offset:1024")
    for x in zero(V_MK, 32): A(x)
    stamp(6)
    oseq = [('S',6,0,0),('R',0,0),('R',0,1),('R',1,0),('S',7,0,1),('R',1,1),('R',2,0),('R',2,1),
            ('S',6,1,2),('R',3,0),('R',3,1),('R',4,0),('S',7,1,3),('R',4,1),('R',5,0),('R',5,1)]
    PQ = V_AQ
    def ppack(tile):
        a0 = V_MK + 4 * tile
        return [f"v_pk_add_f32 v[{a0}:{a0+1}], v[{a0}:{a0+1}], v[{a0+2}:{a0+3}]",
                f"v_cvt_pk_bf16_f32 v{PQ+tile}, v{a0}, v{a0+1}"]
    fill = {p: [] for p in range(16)}
    fill[0] += sbload(0, 3, 2); fill[4] += sbload(1, 3, 3); fill[8] += sbload(0, 0, 0); fill[12] += sbload(1, 0, 1)
    CAR = V_S
    fill[1] += [f"ds_read_b128 {vr(CAR,4)}, v{V_MEM} offset:{L_CA-L_MEMB}"]
    fill[6] += ppack(0); fill[9] += ppack(1); fill[11] += ppack(2); fill[13] += ppack(3)
    fill[14] += [f"buffer_store_dwordx4 v[{PQ}:{PQ+3}], v{V_PS}, {WSR}, s{S_PST0} offen"]
    fill[15] += ppack(6)
    for p, e in enumerate(oseq):
        tile, ks = e[1], e[2]
        bsrc = vr(V_SB + 8 * (e[3] & 1), 8) if e[0] == 'S' else wreg(3, tile >> 1, ks * 2 + (tile & 1))
        A(f"v_smfmac_f32_16x16x64_bf16 {vr(V_MK+4*tile,4)}, {vr(OF+4*ks,4)}, {bsrc}, v{V_IDX}")
        for x in fill[p]: A(x)
    for tl in (7, 4, 5):
        for x in ppack(tl): A(x)
    A(f"buffer_store_dwordx4 v[{PQ+4}:{PQ+7}], v{V_PS}, {WSR}, s{S_PST1} offen")
    stamp(7)
    ta = V_T + 1; tb = V_T + 2
    def poll2(name, regs, loadfn, mid=None, cnt=None, st=None, gap=()):
        def check():
            A(f"v_max3_u32 v{ta}, v{regs}, v{regs+1}, v{regs+2}")
            A(f"v_max3_u32 v{tb}, v{regs+4}, v{regs+5}, v{regs+6}")
            A(f"v_max_u32 v{ta}, v{ta}, v{regs+3}")
            if mid: mid(0)
            A(f"v_max_u32 v{tb}, v{tb}, v{regs+7}")
            if mid: mid(1)
            A(f"v_cmp_eq_u32 s[{S_MA}:{S_MA+1}], -1, v{ta}")
            A(f"v_cmp_eq_u32 s[{S_MB}:{S_MB+1}], -1, v{tb}")
            A(f"s_or_b64 s[{S_MT}:{S_MT+1}], s[{S_MA}:{S_MA+1}], s[{S_MB}:{S_MB+1}]")
            A(f"s_cbranch_scc0 L_{name}ok")
        def round_():
            A(f"s_or_b32 s{S_MA}, s{S_MA}, 1")
            A(f"s_or_b32 s{S_MB}, s{S_MB}, 1")
            A.auto = False
            A(f"s_mov_b64 exec, s[{S_MA}:{S_MA+1}]")
            loadfn(0)
            A(f"s_mov_b64 exec, s[{S_MB}:{S_MB+1}]")
            loadfn(1)
            A(f"s_mov_b64 exec, -1")
            A.auto = True
        A(f"s_mov_b32 s{S_TO}, 0")
        for x in gap: A(x)
        A.auto = False
        loadfn(0); loadfn(1)
        A.auto = True
        A(f"s_waitcnt vmcnt(2)")
        if st is not None: stamp(st)
        A.forget()
        check()
        A.label(f"L_{name}loop")
        round_()
        A(f"s_add_u32 s{S_TO}, s{S_TO}, 1")
        A(f"s_cmp_gt_u32 s{S_TO}, 0x40000")
        A(f"s_cbranch_scc1 L_bail")
        A(f"s_waitcnt vmcnt(2)")
        A.forget()
        check()
        A(f"s_branch L_{name}loop")
        A.label(f"L_{name}ok")
        A.forget()
        if cnt: cnt()
    PB = V_AK; RD = V_VX
    A(f"s_mov_b32 s{S_KEEP}, s{S_PLD}")
    A(f"s_mov_b32 s{S_EX}, s{S_POI}")
    A(f"s_mov_b32 s{S_EX+1}, s{S_VM}")
    A(f"s_mov_b32 s{S_PUB}, s{S_B1}")
    A(f"s_mov_b32 s{S_MPZ}, s{S_B2}")
    A(f"s_mov_b32 s{S_B2}, s{S_B0}")
    A(f"s_mov_b32 s{S_B0}, s{S_PUB}")
    A(f"s_mov_b32 s{S_B1}, s{S_MPZ}")
    A(f"s_xor_b32 s{S_PAR}, s{S_PAR}, 8192")
    A(f"s_add_u32 s{S_STEP}, s{S_STEP}, 1")
    A(f"s_add_u32 s{S_VM}, s{S_VM}, {32*4096}")
    A(f"s_mov_b32 s{S_T0}, s{S_R0}")
    A(f"s_mov_b32 s{S_R0}, s{S_R1}")
    A(f"s_mov_b32 s{S_R1}, s{S_R2}")
    A(f"s_mov_b32 s{S_R2}, s{S_T0}")
    for x in step_scalars(): A(x)
    if 'merged' in opt:
        A(f"s_cmp_ge_u32 s{S_FLG}, 128")
        A(f"s_cbranch_scc0 L_kvslow")
        A.label("L_kvok")
        A(f"s_add_u32 s{S_T0}, s{S_STEP}, 2")
        A(f"s_lshr_b32 s{S_T0}, s{S_T0}, 3")
        A(f"s_min_u32 s{S_T0}, s{S_T0}, 7")
        A(f"s_lshl_b32 s{S_T0}, s{S_T0}, 7")
        A(f"s_add_u32 s{S_FOFF}, s{S_T0}, {F_KV}")
    for x in zero(V_AQ, 8): A(x)
    for x in extra_delay: A(x)
    def h1load(q):
        A(f"buffer_load_dwordx4 v[{PB+4*q}:{PB+4*q+3}], v{V_PL}, {WSR}, s{S_KEEP} offen offset:{1024*q} sc1")
    if 'vdet' not in opt: stamp(8)
    h1load(0); h1load(1)
    def h1mid(i):
        if i == 0: A(f"v_mfma_f32_16x16x32_bf16 {vr(RD,4)}, {vr(CAR,4)}, {vr(PB,4)}, 0")
        else: A(f"v_mfma_f32_16x16x32_bf16 {vr(RD,4)}, {vr(CAR,4)}, {vr(PB+4,4)}, {vr(RD,4)}")
    poll2("h1", PB, h1load, mid=h1mid, st=(None if "vdet" in opt else 9), gap=["s_nop 0"] * g1)
    A("s_nop 2")
    if timing: A(f"s_add_u32 s{S_TACC+16}, s{S_TACC+16}, s{S_TO}")
    if 'rt' in opt: A(f"s_add_u32 s64, s64, s{S_TO}")
    stamp(10)
    for ror in (4, 8):
        for r in range(4):
            A(f"v_add_f32_dpp v{RD+r}, v{RD+r}, v{RD+r} row_ror:{ror} row_mask:0xf bank_mask:0xf")
    A(f"v_cvt_pk_bf16_f32 v{RD}, v{RD}, v{RD+1}")
    A(f"v_cvt_pk_bf16_f32 v{RD+1}, v{RD+2}, v{RD+3}")
    A(f"v_min_u32 v{RD}, -2, v{RD}")
    A(f"v_min_u32 v{RD+1}, -2, v{RD+1}")
    A(f"s_mov_b64 exec, 0xffffffff")
    A(f"buffer_store_dwordx2 v[{RD}:{RD+1}], v{V_MS}, {WSR}, s{S_PUB} offen")
    A(f"v_mov_b64 v[{RD+2}:{RD+3}], -1")
    A(f"buffer_store_dwordx2 v[{RD+2}:{RD+3}], v{V_MS}, {WSR}, s{S_MPZ} offen")
    A(f"s_mov_b64 exec, -1")
    for x in extra_delay2: A(x)
    def stage_mem():
        ML = V_S + 4
        def h2load(q):
            so = S_MSL if q == 0 else S_MPO
            A(f"buffer_load_dwordx4 v[{ML+4*q}:{ML+4*q+3}], v{V_MW}, {WSR}, s{so} offen sc1")
        if 'vdet' not in opt: stamp(11)
        h2load(0); h2load(1)
        poll2("h2", ML, h2load, st=(None if "vdet" in opt else 12), gap=["s_nop 0"] * g2)
        if timing: A(f"s_add_u32 s{S_TACC+17}, s{S_TACC+17}, s{S_TO}")
        if 'rt' in opt: A(f"s_add_u32 s65, s65, s{S_TO}")
        stamp(13)
        A(f"ds_write_b128 v{V_MW}, v[{ML}:{ML+3}]")
        A(f"ds_write_b128 v{V_MW}, v[{ML+4}:{ML+7}] offset:1024")
    stage_mem()
    for x in zero(V_AK, 8): A(x)
    A("@wait_writes")
    if 'steps' in opt:
        A(f"s_lshl_b32 s58, s{S_H}, 2")
        A(f"s_add_u32 s58, s58, s{S_WV}")
        A(f"s_lshl_b32 s58, s58, 6")
        A(f"s_add_u32 s58, s58, s{S_STEP}")
        A(f"s_lshl_b32 s58, s58, 2")
        A(f"s_add_u32 s58, s58, {WS_TIME - 4}")
        A(f"v_mov_b32 v{V_T}, s56")
        A(f"v_mov_b32 v{V_T+1}, 0")
        A(f"s_mov_b64 exec, 1")
        A(f"buffer_store_dword v{V_T}, v{V_T+1}, {WSR}, s58 offen")
        A(f"s_mov_b64 exec, -1")
    stamp(14)
    stamp_acc()
    A("s_barrier")
    A.settle()
    A.forget()
    A("s_branch L_step")
    if 'merged' in opt:
        A.label("L_kvslow")
        A(f"s_mov_b32 s{S_TO}, 0")
        A.label("L_kvslow2")
        A(f"buffer_load_dword v{V_T+1}, off, {WSR}, s{S_FOFF} sc1")
        A(f"s_add_u32 s{S_TO}, s{S_TO}, 1")
        A(f"s_cmp_gt_u32 s{S_TO}, 0x100000")
        A(f"s_cbranch_scc1 L_bail")
        A("s_waitcnt vmcnt(0)")
        A(f"v_cmp_gt_u32 vcc, 128, v{V_T+1}")
        A(f"s_cbranch_vccnz L_kvslow2")
        A.forget()
        A("s_branch L_kvok")
    A.label("L_last")
    if 'diag' in opt: dstamp(A, 7, True)
    A.settle()
    A(f"v_min_u32 v{V_AV+3}, -2, v{V_AV+6}")
    A(f"v_min_u32 v{V_AV+2}, -2, v{V_AV+2}")
    A(f"buffer_store_dwordx4 v[{V_AV}:{V_AV+3}], v{V_VMS}, {WSR}, s{S_VM} offen sc1")
    if 'rt' in opt:
        A.raw("    s_memtime s[60:61]")
        A.raw("    s_memrealtime s[62:63]")
        A.raw("    s_waitcnt lgkmcnt(0)")
        A(f"s_sub_u32 s56, s60, s56")
        A(f"s_sub_u32 s58, s62, s58")
        A(f"s_lshl_b32 s{S_T0}, s{S_H}, 2")
        A(f"s_add_u32 s{S_T0}, s{S_T0}, s{S_WV}")
        A(f"s_lshl_b32 s{S_T0}, s{S_T0}, 7")
        A(f"s_add_u32 s{S_T0}, s{S_T0}, {WS_TIME}")
        A(f"s_mov_b64 exec, 1")
        for k, r in enumerate((56, 58, 64, 65)):
            A(f"v_mov_b32 v{V_MK+1}, s{r}")
            A(f"v_mov_b32 v{V_MK}, {4*k}")
            A(f"buffer_store_dword v{V_MK+1}, v{V_MK}, {WSR}, s{S_T0} offen")
        A(f"s_mov_b64 exec, -1")
    A.wait(vm=0)
    if 'merged' in opt:
        A("s_barrier")
        A(f"s_cmp_lg_u32 s{S_WV}, 0")
        A(f"s_cbranch_scc1 L_end")
        A(f"v_mov_b32 v{V_T+1}, 64")
        A(f"s_mov_b64 exec, 1")
        A(f"buffer_store_dword v{V_T+1}, off, {WSR}, s{S_POFF} sc1")
        A.wait(vm=0)
    if timing:
        A(f"s_lshl_b32 s{S_T0}, s{S_H}, 2")
        A(f"s_add_u32 s{S_T0}, s{S_T0}, s{S_WV}")
        A(f"s_lshl_b32 s{S_T0}, s{S_T0}, 7")
        A(f"s_add_u32 s{S_T0}, s{S_T0}, {WS_TIME}")
        A(f"s_mov_b64 exec, 1")
        for k in range(18):
            A(f"v_mov_b32 v{V_T+1}, s{S_TACC+k}")
            A(f"v_mov_b32 v{V_T}, {4*k}")
            A(f"buffer_store_dword v{V_T+1}, v{V_T}, {WSR}, s{S_T0} offen")
        A.wait(vm=0)
    A("s_branch L_end")
    A.label("L_bail")
    A(f"s_mov_b64 exec, 1")
    A(f"v_mov_b32 v{V_T}, 60")
    A(f"v_mov_b32 v{V_T+1}, 0xdead")
    A(f"buffer_store_dword v{V_T+1}, v{V_T}, s[{S_DBG}:{S_DBG+3}], 0 offen")
    A.wait(vm=0)
    A.label("L_end")
```

```python
import sys
from asmlib import *
from layout import *
from gemm import *
from ln import *
import ao
from ao import *
import chain
from chain import srd, emit_chain, S_PW, S_WS, S_DBG, S_H, S_WV, S_T2, L_X
from gen_gemm_test import khead, kdesc

KNAME = "parallel_sum__memory_aug_recurrent_mem_tr__mixer_channel_mlp__prompt_kernel"
T_KV = 128
T_H = T_KV + 224
T_Q = T_H + 56
T_M2 = T_Q + 128
NT2 = T_M2 + 64
KVT = 128
NYP = 4
HOLD_FROM = 600; HOLD_CNT = 128
PREF = 0
P_X = 72; P_B2 = 74; P_OUT = 76; P_W2 = 78; P_WO = 80
W_TASK = 28; W_NEXT = 29; W_TO = 82; W_T = 83; W_T2 = 84; W_SIG = 85; W_PAR = 86; W_PREV = 87; W_NP = 88; W_INC = 90; W_KIND = 91; W_INI = 93; W_LAST = 96
INIT_TICKET = 64
LNT = 16
WSR = "s[4:7]"; DBG = "s[12:15]"
LDS_BC = 163840 - 16

def spin(A, name, load, cmp_fail, limit=0x200000):
    A(f"s_cmp_lg_u32 s{G_WV}, 0")
    A(f"s_cbranch_scc1 L_{name}_j")
    A(f"s_mov_b32 s{W_TO}, 0")
    A.label(f"L_{name}_p")
    A(load)
    A(f"s_add_u32 s{W_TO}, s{W_TO}, 1")
    A(f"s_cmp_gt_u32 s{W_TO}, {limit}")
    A(f"s_cbranch_scc1 L_wbail")
    A("s_waitcnt vmcnt(0)")
    A(cmp_fail)
    A(f"s_cbranch_vccz L_{name}_j")
    A("s_sleep 2")
    A(f"s_branch L_{name}_p")
    A.label(f"L_{name}_j")
    A.forget()
    A("s_barrier")

def wait_ws_ge(A, name, soff, val):
    spin(A, name, f"buffer_load_dword v31, off, {WSR}, s{soff} sc1", f"v_cmp_gt_u32 vcc, {val}, v31")

def signal_ws(A, name, soff, inc=None):
    A("s_waitcnt vmcnt(0)")
    A.forget()
    A("s_barrier")
    A(f"s_cmp_lg_u32 s{G_WV}, 0")
    A(f"s_cbranch_scc1 L_{name}_s")
    A(f"s_cmp_lg_u32 s{W_INI}, 0")
    A(f"s_cbranch_scc1 L_{name}_i")
    A(f"s_mov_b32 s{W_TO}, 0")
    A.label(f"L_{name}_ip")
    A(f"buffer_load_dword v31, off, {DBG}, 0 offset:{D_INIT} sc1")
    A(f"s_add_u32 s{W_TO}, s{W_TO}, 1")
    A(f"s_cmp_gt_u32 s{W_TO}, 0x200000")
    A("s_cbranch_scc1 L_wbail")
    A("s_waitcnt vmcnt(0)")
    A("v_cmp_eq_u32 vcc, 0, v31")
    A(f"s_cbranch_vccnz L_{name}_ip")
    A(f"s_mov_b32 s{W_INI}, 1")
    A.label(f"L_{name}_i")
    A("v_mov_b32 v31, 1" if inc is None else f"v_mov_b32 v31, s{inc}")
    A("s_mov_b64 exec, 1")
    A(f"buffer_atomic_add v31, off, {WSR}, s{soff}")
    A("s_mov_b64 exec, -1")
    A.label(f"L_{name}_s")
    A.forget()

def fetch_ticket(A, name, dbg_off, dst, soff=None):
    A(f"s_cmp_lg_u32 s{G_WV}, 0")
    A(f"s_cbranch_scc1 L_{name}_t")
    A("v_mov_b32 v31, 1")
    A("s_mov_b64 exec, 1")
    A(f"buffer_atomic_add v31, off, {DBG}, {0 if soff is None else 's%d' % soff} offset:{dbg_off} sc0")
    A("s_waitcnt vmcnt(0)")
    A(f"v_mov_b32 v30, {LDS_BC}")
    A("ds_write_b32 v30, v31")
    A("s_waitcnt lgkmcnt(0)")
    A("s_mov_b64 exec, -1")
    A.label(f"L_{name}_t")
    A.forget()
    A("s_barrier")
    A(f"v_mov_b32 v30, {LDS_BC}")
    A("ds_read_b32 v31, v30")
    A.wait(lg=0)
    A(f"v_readfirstlane_b32 s{dst}, v31")
    A("s_barrier")

def prog_wait(A):
    saved = [set(x) for x in A.vm]; savedl = [set(x) for x in A.lgkm]
    A(f"s_cmp_lg_u32 s{G_WV}, 0")
    A("s_cbranch_scc1 L_ap_j")
    A(f"s_lshl_b32 s{W_T2}, s{O_KC}, 9")
    A(f"s_add_u32 s{W_T2}, s{W_T2}, {F_PROG}")
    A(f"v_and_b32 v30, 3, v{OV_L}")
    A("v_lshlrev_b32 v30, 7, v30")
    A(f"s_mov_b32 s{W_TO}, 0")
    A.label("L_ap_p")
    A.auto = False
    A(f"buffer_load_dword v31, v30, {WSR}, s{W_T2} offen sc1")
    A.auto = True
    A(f"s_add_u32 s{W_TO}, s{W_TO}, 1")
    A(f"s_cmp_gt_u32 s{W_TO}, 0x400000")
    A("s_cbranch_scc1 L_wbail")
    A("s_waitcnt vmcnt(0)")
    A(f"v_cmp_ge_u32 vcc, s{O_SEG}, v31")
    A("s_cbranch_vccz L_ap_j")
    A("s_sleep 2")
    A("s_branch L_ap_p")
    A.label("L_ap_j")
    A.vm = saved; A.lgkm = savedl
    A("s_barrier")

def red_flag_addrs(A, seg_sreg):
    A(f"s_lshl_b32 s{W_T}, s{seg_sreg}, 2")
    A(f"s_add_u32 s{W_T}, s{W_T}, s{O_NC}")
    A(f"s_lshl_b32 s{W_T}, s{W_T}, 7")
    A(f"s_add_u32 s{W_T}, s{W_T}, {F_R}")
    A(f"s_lshr_b32 s{W_T2}, s{seg_sreg}, 3")
    A(f"s_lshl_b32 s{W_T2}, s{W_T2}, 7")
    A(f"s_add_u32 s{W_T2}, s{W_T2}, {F_Y}")
    A(f"v_and_b32 v28, 1, v{OV_L}")
    A("v_cmp_eq_u32 vcc, 0, v28")
    A(f"v_mov_b32 v30, s{W_T2}")
    A(f"v_mov_b32 v29, s{W_T}")
    A("v_cndmask_b32 v30, v30, v29, vcc")
    A("v_mov_b32 v29, 8")
    A("v_mov_b32 v28, 8")
    A("v_cndmask_b32 v29, v29, v28, vcc")

def ao_reduce(A, seg_sreg, tag, wait=True):
    t0 = OV_T; t1 = OV_T + 1
    if wait:
        red_flag_addrs(A, seg_sreg)
        if wait == 'data': A("v_mov_b32 v28, 0"); A(f"v_and_b32 v27, 1, v{OV_L}"); A("v_cmp_eq_u32 vcc, 0, v27"); A("v_cndmask_b32 v29, v29, v28, vcc")
        A(f"s_mov_b32 s{W_TO}, 0")
        A.label(f"L_rw{tag}")
        A(f"buffer_load_dword v31, v30, {WSR}, 0 offen sc1")
        A(f"s_add_u32 s{W_TO}, s{W_TO}, 1")
        A(f"s_cmp_gt_u32 s{W_TO}, 0x400000")
        A("s_cbranch_scc1 L_wbail")
        A("s_waitcnt vmcnt(0)")
        A("v_cmp_gt_u32 vcc, v29, v31")
        A.forget()
        A(f"s_cbranch_vccnz L_rw{tag}")
    A(f"s_lshl_b32 s{W_T}, s{seg_sreg}, 2")
    A(f"s_add_u32 s{W_T}, s{W_T}, s{O_NC}")
    A(f"s_lshl_b32 s{W_T}, s{W_T}, 17")
    A(f"s_add_u32 s{W_T}, s{W_T}, {WS_PART}")
    A(f"s_lshl_b32 s{O_T0}, s{O_KC}, 2")
    A(f"s_add_u32 s{O_T0}, s{O_T0}, s{O_WV}")
    A(f"s_lshl_b32 s{O_T1}, s{O_T0}, 9")
    A(f"s_add_u32 s{W_T}, s{W_T}, s{O_T1}")
    A(f"v_lshlrev_b32 v{t0}, 3, v{OV_L}")
    R = OV_Q
    def ploads():
        for kc in range(8):
            A(f"s_add_u32 s{O_T1}, s{W_T}, {kc*16384}")
            A(f"buffer_load_dwordx2 v[{R+2*kc}:{R+2*kc+1}], v{t0}, {WSR}, s{O_T1} offen sc1")
    if wait == 'data':
        A(f"s_mov_b32 s{W_TO}, 0")
        A.label(f"L_rd{tag}")
        ploads()
        A(f"s_add_u32 s{W_TO}, s{W_TO}, 1")
        A(f"s_cmp_gt_u32 s{W_TO}, 0x400000")
        A("s_cbranch_scc1 L_wbail")
        A.wait(vm=0)
        A(f"v_max3_u32 v{t1}, v{R}, v{R+1}, v{R+2}")
        for i in range(3, 15, 2): A(f"v_max3_u32 v{t1}, v{t1}, v{R+i}, v{R+i+1}")
        A(f"v_max_u32 v{t1}, v{t1}, v{R+15}")
        A(f"v_cmp_eq_u32 vcc, -1, v{t1}")
        A(f"s_cbranch_vccnz L_rd{tag}")
        A.forget()
    else:
        ploads()
    A(f"s_lshl_b32 s{O_T1}, s{seg_sreg}, 5")
    A(f"s_add_u32 s{O_T0}, s{O_T0}, s{O_T1}")
    A(f"s_lshl_b32 s{O_T1}, s{O_T0}, 11")
    A(f"s_lshl_b32 s{O_T2}, s{O_NC}, 9")
    A(f"s_add_u32 s{O_T1}, s{O_T1}, s{O_T2}")
    A(f"s_add_u32 s{O_T1}, s{O_T1}, {WS_Y}")
    for pl in range(NYP):
        A(f"buffer_load_dwordx2 v[{R+16+2*pl}:{R+17+2*pl}], v{t0}, {WSR}, s{O_T1} offen sc1")
        if pl < NYP - 1: A(f"s_add_u32 s{O_T1}, s{O_T1}, {4*MB}")
    A(f"v_lshlrev_b32 v{t1}, 2, v{OV_L}")
    A(f"s_lshl_b32 s{O_T1}, s{O_T0}, 10")
    A(f"s_lshl_b32 s{O_T2}, s{O_NC}, 8")
    A(f"s_add_u32 s{O_T1}, s{O_T1}, s{O_T2}")
    A(f"buffer_load_dword v{R+24}, v{t1}, s[56:59], s{O_T1} offen")
    A(f"buffer_load_dword v{R+25}, v{t1}, s[60:63], s{O_T2} offen")
    A(f"v_pk_add_f32 v[{R}:{R+1}], v[{R}:{R+1}], v[{R+2}:{R+3}]")
    for k in range(2, 8 + NYP):
        A(f"v_pk_add_f32 v[{R}:{R+1}], v[{R}:{R+1}], v[{R+2*k}:{R+2*k+1}]")
    for src in (R + 24, R + 25):
        A(f"v_lshlrev_b32 v{R+26}, 16, v{src}")
        A(f"v_and_b32 v{R+27}, 0xffff0000, v{src}")
        A(f"v_pk_add_f32 v[{R}:{R+1}], v[{R}:{R+1}], v[{R+26}:{R+27}]")
    A(f"v_cvt_pk_bf16_f32 v{R}, v{R}, v{R+1}")
    A(f"buffer_store_dword v{R}, v{t1}, s[64:67], s{O_T1} offen")

def dstamp(A, idx, diag, sreg_idx=None, cyc=False):
    if not diag: return
    lb = A.newlabel("L_ds")
    A.raw("    s_memtime s[98:99]" if cyc else "    s_memrealtime s[98:99]")
    A.raw("    s_waitcnt lgkmcnt(0)")
    A(f"s_cmp_lg_u32 s27, 0")
    A(f"s_cbranch_scc1 {lb}")
    A(f"s_lshl_b32 s100, s2, 9")
    if sreg_idx is not None:
        A(f"s_lshl_b32 s101, s{sreg_idx}, 2")
        A(f"s_add_u32 s100, s100, s101")
    A(f"s_add_u32 s100, s100, {WS_TIME + 4*idx}")
    A("v_mov_b32 v30, s98")
    A("s_mov_b64 exec, 1")
    A(f"buffer_store_dword v30, off, s[4:7], s100")
    A("s_mov_b64 exec, -1")
    A.vm.pop()
    A.label(lb)

def main_kernel(d1, d2, g1, g2, NPAR=6, diag=0):
    A = Asm()
    A("s_cmp_ge_u32 s2, 256")
    A("s_cbranch_scc1 L_end")
    A(f"s_load_dwordx2 s[{S_PW}:{S_PW+1}], s[0:1], {KA_WQ}")
    A(f"s_load_dwordx2 s[{S_PW+2}:{S_PW+3}], s[0:1], {KA_WK}")
    A(f"s_load_dwordx2 s[{S_PW+4}:{S_PW+5}], s[0:1], {KA_WV}")
    A(f"s_load_dwordx2 s[{S_PW+6}:{S_PW+7}], s[0:1], {KA_WO}")
    A(f"s_load_dwordx2 s[{S_PW+8}:{S_PW+9}], s[0:1], {KA_MEM0}")
    A(f"s_load_dwordx2 s[52:53], s[0:1], {KA_DBG}")
    A(f"s_load_dwordx2 s[54:55], s[0:1], {KA_WS}")
    A(f"s_load_dwordx2 s[56:57], s[0:1], {KA_X}")
    A(f"s_getreg_b32 s{S_T2}, hwreg(HW_REG_XCC_ID)")
    A(f"v_lshrrev_b32 v1, 6, v0")
    A(f"v_readfirstlane_b32 s{S_WV}, v1")
    A.wait(lg=0)
    srd(A, S_WS, 54, WS_SIZE)
    srd(A, S_DBG, 52, 256)
    A(f"s_and_b32 s60, s{S_T2}, 15")
    dstamp(A, 0, diag)
    A("s_cmp_lg_u32 s2, 0")
    A("s_cbranch_scc1 L_noinit")
    for i in range(4): A(f"v_mov_b32 v{60+i}, 0")
    A("v_lshlrev_b32 v64, 4, v0")
    for i in range(FLAG_BYTES // 4096):
        A(f"s_mov_b32 s61, {WS_FLAG + i*4096}")
        A(f"buffer_store_dwordx4 v[60:63], v64, {WSR}, s61 offen sc1")
    A.label("L_noinit")
    A.forget()
    A(f"s_cmp_eq_u32 s60, 0")
    A(f"s_cselect_b32 s29, {D_CTK}, {D_WTK}")
    fetch_ticket(A, "tk", 0, S_H, soff=29)
    A("s_cmp_lg_u32 s2, 0")
    A("s_cbranch_scc1 L_noinit2")
    A("s_waitcnt vmcnt(0)")
    A("s_barrier")
    A(f"s_cmp_lg_u32 s{S_WV}, 0")
    A("s_cbranch_scc1 L_noinit2")
    A("v_mov_b32 v64, 1")
    A("s_mov_b64 exec, 1")
    A(f"buffer_store_dword v64, off, {DBG}, 0 offset:{D_INIT} sc1")
    A("s_mov_b64 exec, -1")
    A.label("L_noinit2")
    A.forget()
    A(f"s_cmp_lg_u32 s60, 0")
    A("s_cbranch_scc1 L_worker")
    A(f"s_cmp_ge_u32 s{S_H}, 32")
    A("s_cbranch_scc1 L_xs")
    emit_chain(A, d1=d1, d2=d2, g1=g1, g2=g2, opt=('merged',) + (('diag',) if diag else ()) + (('nostep',) if diag == 2 else ()), dstamp=dstamp)
    A("s_endpgm")

    A.label("L_xs")
    fetch_ticket(A, "xtk", D_WTK, S_H)
    A.label("L_worker")
    A.forget()
    A(f"s_mov_b32 s{W_TASK}, s{S_H}")
    A(f"s_mov_b32 s{P_WO}, s{S_PW+6}"); A(f"s_mov_b32 s{P_WO+1}, s{S_PW+7}")
    A(f"s_mov_b32 s{P_X}, s56"); A(f"s_mov_b32 s{P_X+1}, s57")
    A(f"s_load_dwordx2 s[22:23], s[0:1], {KA_W1}")
    A(f"s_load_dwordx2 s[24:25], s[0:1], {KA_B1}")
    A(f"s_load_dwordx2 s[{P_B2}:{P_B2+1}], s[0:1], {KA_B2}")
    A(f"s_load_dwordx2 s[{P_OUT}:{P_OUT+1}], s[0:1], {KA_OUT}")
    A(f"s_load_dwordx2 s[{P_W2}:{P_W2+1}], s[0:1], {KA_W2}")
    A.wait(lg=0)
    srd(A, G_SRDX, 24, 1792 * 2)
    gemm_setup_lane(A)
    A(f"s_mov_b32 s{W_INI}, 1")
    if PREF:
        A(f"s_cmp_lt_u32 s{W_TASK}, 160")
        A("s_cbranch_scc1 L_nopref")
        A(f"s_cmp_ge_u32 s{W_TASK}, 224")
        A("s_cbranch_scc1 L_nopref")
        A(f"s_sub_u32 s30, s{W_TASK}, 160")
        A("s_lshl_b32 s30, s30, 14")
        A(f"s_lshl_b32 s31, s{G_WV}, 12")
        A("s_add_u32 s30, s30, s31")
        A(f"v_lshlrev_b32 v32, 4, v{GV_LANE}")
        blocks = [(16,0),(16,1),(16,2),(18,0),(18,1),(18,2),(20,0),(20,1),(20,2),(P_WO,0),(P_WO,1),(P_WO,2),(P_WO,3),(16,3),(18,3),(20,3)]
        n = 0
        for (ptr, mb) in blocks:
            srd(A, 8, ptr, 4194304)
            A(f"s_add_u32 s31, s30, {mb << 20}")
            for q in range(4):
                r = 36 + 4 * (n % 16); n += 1
                A.auto = False
                A(f"buffer_load_dwordx4 v[{r}:{r+3}], v32, s[8:11], s31 offen offset:{q*1024}")
                A.auto = True
            if len(A.vm) > 48: A.wait(vm=32)
        A.wait(vm=0)
        A.label("L_nopref")
        A.forget()
    assert (64 - TAIL_SEG) * 32 * 4096 == 96 * 8192
    A(f"s_cmp_lt_u32 s{W_TASK}, 128")
    A("s_cbranch_scc1 L_nokvp")
    A(f"s_cmp_ge_u32 s{W_TASK}, 224")
    A("s_cbranch_scc1 L_nokvp")
    for i in range(4): A(f"v_mov_b32 v{32+i}, -1")
    A("v_lshlrev_b32 v36, 4, v0")
    A(f"s_sub_u32 s30, s{W_TASK}, 128")
    A("s_lshl_b32 s30, s30, 13")
    A(f"s_add_u32 s30, s30, {WS_KVM + TAIL_SEG*32*4096}")
    A(f"buffer_store_dwordx4 v[32:35], v36, {WSR}, s30 offen sc1")
    A("s_add_u32 s30, s30, 4096")
    A(f"buffer_store_dwordx4 v[32:35], v36, {WSR}, s30 offen sc1")
    A.label("L_nokvp")
    A.forget()
    A(f"s_cmp_ge_u32 s{W_TASK}, 128")
    A("s_cbranch_scc1 L_noln")
    srd(A, 8, P_X, 2048 * 512 * 2)
    A(f"s_lshl_b32 s30, s{W_TASK}, 4")
    A(f"s_lshl_b32 s31, s{G_WV}, 2")
    A("s_add_u32 s30, s30, s31")
    emit_ln_rows(A, 8, 4, 30, 4, GV_LANE, SO=94)
    A("s_waitcnt vmcnt(0)")
    A.forget()
    A("s_barrier")
    A.label("L_noln")
    A(f"s_cmp_lg_u32 s{G_WV}, 0")
    A("s_cbranch_scc1 L_lnsig")
    A(f"s_mov_b32 s62, 0")
    A.label("L_ln_ip")
    A(f"buffer_load_dword v31, off, {DBG}, 0 offset:{D_INIT} sc1")
    A("s_add_u32 s62, s62, 1")
    A("s_cmp_gt_u32 s62, 0x200000")
    A("s_cbranch_scc1 L_wbail")
    A("s_waitcnt vmcnt(0)")
    A("v_cmp_eq_u32 vcc, 0, v31")
    A("s_cbranch_vccnz L_ln_ip")
    A(f"s_cmp_ge_u32 s{W_TASK}, 128")
    A("s_cbranch_scc1 L_lnsig")
    A(f"s_lshr_b32 s30, s{W_TASK}, 4")
    A("s_lshl_b32 s30, s30, 7")
    A(f"s_add_u32 s30, s30, {F_LN}")
    A("v_mov_b32 v31, 1")
    A("s_mov_b64 exec, 1")
    A(f"buffer_atomic_add v31, off, {WSR}, s30")
    A("s_mov_b64 exec, -1")
    A.label("L_lnsig")
    A.forget()
    dstamp(A, 1, diag)
    A(f"s_mov_b32 s89, 0")
    A.label("L_g1_next")
    A(f"s_cmp_ge_u32 s{W_TASK}, {NT2}")
    A("s_cbranch_scc1 L_ao_role")
    A(f"s_cmp_ge_u32 s{W_TASK}, {T_M2}")
    A("s_cbranch_scc1 L_m2")
    t = W_TASK
    A(f"s_mov_b32 s{G_LDA}, 1024")
    A(f"s_mov_b32 s{G_NST}, 8")
    A(f"s_mov_b32 s{G_SZA}, {WS_SIZE}")
    A(f"s_mov_b32 s{G_SRDA}, s4"); A(f"s_mov_b32 s{G_SRDA+1}, s5"); A(f"s_mov_b32 s{G_SRDA+3}, 0x20000")
    A(f"s_mov_b32 s{G_SRDC}, s4"); A(f"s_mov_b32 s{G_SRDC+1}, s5"); A(f"s_mov_b32 s{G_SRDC+2}, {WS_SIZE}"); A(f"s_mov_b32 s{G_SRDC+3}, 0x20000")
    A(f"s_mov_b32 s{G_SRDB+3}, 0x20000")
    A(f"s_mov_b32 s{W_INC}, 1")
    A(f"s_cmp_ge_u32 s{t}, {T_Q}")
    A("s_cbranch_scc1 L_dec_q")
    A(f"s_cmp_ge_u32 s{t}, {T_H}")
    A("s_cbranch_scc1 L_dec_h")
    A(f"s_mov_b32 s{G_LDB}, 8192")
    A(f"s_mov_b32 s{G_SZB}, 4194304")
    A(f"s_mov_b32 s{G_LDC}, 8192")
    A(f"s_cmp_lt_u32 s{t}, {T_KV}")
    A("s_cbranch_scc1 L_kv_small")
    A(f"s_sub_u32 s{W_T}, s{t}, {T_KV - 32}")
    A(f"s_and_b32 s{G_T1}, s{W_T}, 15")
    A(f"s_lshl_b32 s{G_BOFF}, s{G_T1}, 9")
    A(f"s_lshl_b32 s{G_T2}, s{G_T1}, 14")
    A(f"s_bfe_u32 s{W_KIND}, s{W_T}, 0x10004")
    A(f"s_lshr_b32 s{W_T2}, s{W_T}, 5")
    A(f"s_lshl_b32 s{W_T}, s{W_T2}, 1")
    A(f"s_mov_b32 s{W_INC}, 4")
    A("s_branch L_kv_common")
    A.label("L_kv_small")
    A(f"s_and_b32 s{G_T1}, s{t}, 31")
    A(f"s_lshl_b32 s{G_BOFF}, s{G_T1}, 8")
    A(f"s_lshl_b32 s{G_T2}, s{G_T1}, 13")
    A(f"s_bfe_u32 s{W_KIND}, s{t}, 0x10005")
    A(f"s_lshr_b32 s{W_T}, s{t}, 6")
    A(f"s_mov_b32 s{W_T2}, 0")
    A.label("L_kv_common")
    A(f"s_lshl_b32 s{G_AOFF}, s{W_T}, 17")
    A(f"s_add_u32 s{G_AOFF}, s{G_AOFF}, {WS_XN}")
    A(f"s_lshl_b32 s{W_SIG}, s{W_T2}, 7")
    A(f"s_add_u32 s{W_SIG}, s{W_SIG}, {F_KV}")
    A(f"s_lshl_b32 s{G_COFF}, s{W_T}, 20")
    A(f"s_cmp_eq_u32 s{W_KIND}, 1")
    A("s_cbranch_scc1 L_dec_v")
    A(f"s_mov_b32 s{G_SRDB}, s18"); A(f"s_and_b32 s{G_SRDB+1}, s19, 0xffff")
    A(f"s_add_u32 s{G_COFF}, s{G_COFF}, s{G_BOFF}")
    A(f"s_add_u32 s{G_COFF}, s{G_COFF}, {WS_KX}")
    A("s_branch L_lnwait")
    A.label("L_dec_v")
    A(f"s_mov_b32 s{G_SRDB}, s20"); A(f"s_and_b32 s{G_SRDB+1}, s21, 0xffff")
    A(f"s_add_u32 s{G_COFF}, s{G_COFF}, s{G_T2}")
    A(f"s_add_u32 s{G_COFF}, s{G_COFF}, {WS_VT}")
    A("s_branch L_lnwait")
    A.label("L_dec_q")
    A(f"s_sub_u32 s{W_T}, s{t}, {T_Q}")
    A(f"s_and_b32 s{G_T1}, s{W_T}, 15")
    A(f"s_lshr_b32 s{W_T2}, s{W_T}, 4")
    A(f"s_mov_b32 s{G_LDB}, 8192")
    A(f"s_mov_b32 s{G_SZB}, 4194304")
    A(f"s_lshl_b32 s{G_BOFF}, s{G_T1}, 9")
    A(f"s_mov_b32 s{G_LDC}, 8192")
    A(f"s_lshl_b32 s{G_AOFF}, s{W_T2}, 18")
    A(f"s_add_u32 s{G_AOFF}, s{G_AOFF}, {WS_XN}")
    A(f"s_mov_b32 s{G_SRDB}, s16"); A(f"s_and_b32 s{G_SRDB+1}, s17, 0xffff")
    A(f"s_lshl_b32 s{G_COFF}, s{W_T2}, 21")
    A(f"s_add_u32 s{G_COFF}, s{G_COFF}, s{G_BOFF}")
    A(f"s_add_u32 s{G_COFF}, s{G_COFF}, {WS_QX}")
    A(f"s_lshl_b32 s{W_SIG}, s{W_T2}, 7")
    A(f"s_add_u32 s{W_SIG}, s{W_SIG}, {F_Q}")
    A(f"s_mov_b32 s{W_KIND}, 0")
    A("s_branch L_lnwait")
    A.label("L_dec_h")
    A(f"s_sub_u32 s{G_T1}, s{t}, {T_H}")
    A(f"s_mul_i32 s{W_T2}, s{G_T1}, 37")
    A(f"s_lshr_b32 s{W_T2}, s{W_T2}, 8")
    A(f"s_mul_i32 s{G_T2}, s{W_T2}, 7")
    A(f"s_sub_u32 s{G_T1}, s{G_T1}, s{G_T2}")
    A(f"s_lshl_b32 s{G_AOFF}, s{W_T2}, 18")
    A(f"s_add_u32 s{G_AOFF}, s{G_AOFF}, {WS_XN}")
    A(f"s_mov_b32 s{G_LDB}, 3584")
    A(f"s_mov_b32 s{G_SZB}, {512*1792*2}")
    A(f"s_lshl_b32 s{G_BOFF}, s{G_T1}, 9")
    A(f"s_mov_b32 s{G_AUX}, s{G_BOFF}")
    A(f"s_mov_b32 s{G_SRDB}, s22"); A(f"s_and_b32 s{G_SRDB+1}, s23, 0xffff")
    A(f"s_mov_b32 s{G_LDC}, 3584")
    A(f"s_mul_i32 s{G_COFF}, s{W_T2}, {256*3584}")
    A(f"s_add_u32 s{G_COFF}, s{G_COFF}, s{G_BOFF}")
    A(f"s_add_u32 s{G_COFF}, s{G_COFF}, {WS_HB}")
    A(f"s_lshl_b32 s{W_SIG}, s{W_T2}, 7")
    A(f"s_add_u32 s{W_SIG}, s{W_SIG}, {F_H}")
    A(f"s_mov_b32 s{W_KIND}, 2")
    A.label("L_lnwait")
    A(f"s_cmp_lt_u32 s{t}, {HOLD_FROM}")
    A("s_cbranch_scc1 L_nohold")
    A(f"s_mov_b32 s30, {F_KV}")
    wait_ws_ge(A, "hold", 30, HOLD_CNT)
    A.label("L_nohold")
    A.forget()
    A(f"s_lshl_b32 s30, s{W_T2}, 7")
    A(f"s_add_u32 s30, s30, {F_LN}")
    wait_ws_ge(A, "lnw", 30, LNT)
    A(f"s_cmp_eq_u32 s{W_KIND}, 2")
    A("s_cbranch_scc1 L_task_h")
    A(f"s_cmp_lt_u32 s{t}, {T_KV}")
    A("s_cbranch_scc1 L_small")
    A(f"s_cmp_eq_u32 s{W_KIND}, 1")
    A("s_cbranch_scc1 L_task_v")
    A("s_branch L_task_k")
    A.label("L_small")
    A(f"s_cmp_eq_u32 s{W_KIND}, 1")
    A("s_cbranch_scc1 L_task_vs")
    A("s_branch L_task_ks")
    def run(tag, wT, epi, MI=4, halfB=False):
        A.label(f"L_task_{tag}")
        A.forget()
        if diag: A("s_lshl_b32 s92, s89, 2")
        dstamp(A, 96, diag, 92)
        gemm_task_addr(A, MI, halfB)
        gemm_start(A, sc1A=True, MI=MI)
        gemm_main(A, tag, wT, sc1A=True, MI=MI)
        dstamp(A, 97, diag, 92)
        epi()
        A.label(f"L_eskip_{tag}")
        A.forget()
        dstamp(A, 98, diag, 92)
        signal_ws(A, f"sg{tag}", W_SIG, inc=W_INC)
        dstamp(A, 80, diag, 89)
        A("s_add_u32 s89, s89, 1")
        A("s_branch L_fetch")
    run("ks", True, lambda: epi_rowmajor(A, MI=2, skip="L_eskip_ks"), MI=2, halfB=True)
    run("vs", False, lambda: epi_vt(A, MI=2, skip="L_eskip_vs"), MI=2, halfB=True)
    run("k", True, lambda: epi_rowmajor(A))
    run("v", False, lambda: epi_vt(A))
    run("h", True, lambda: epi_rowmajor(A, gelu=True))
    A.label("L_m2")
    A.forget()
    A(f"s_sub_u32 s{W_T}, s{W_TASK}, {T_M2}")
    A(f"s_lshr_b32 s{W_T2}, s{W_T}, 3")
    A(f"s_lshl_b32 s{W_T2}, s{W_T2}, 7")
    A(f"s_add_u32 s{W_SIG}, s{W_T2}, {F_Y}")
    A(f"s_add_u32 s{W_T2}, s{W_T2}, {F_H}")
    wait_ws_ge(A, "hw", W_T2, 7)
    A(f"s_mov_b32 s{W_INC}, 1")
    A(f"s_mov_b32 s{G_LDA}, 3584")
    A(f"s_mov_b32 s{G_NST}, 7")
    A(f"s_mov_b32 s{G_SZA}, {WS_SIZE}")
    A(f"s_mov_b32 s{G_SRDA}, s4"); A(f"s_mov_b32 s{G_SRDA+1}, s5"); A(f"s_mov_b32 s{G_SRDA+3}, 0x20000")
    A(f"s_mov_b32 s{G_SRDC}, s4"); A(f"s_mov_b32 s{G_SRDC+1}, s5"); A(f"s_mov_b32 s{G_SRDC+2}, {WS_SIZE}"); A(f"s_mov_b32 s{G_SRDC+3}, 0x20000")
    A(f"s_mov_b32 s{G_SRDB}, s{P_W2}"); A(f"s_and_b32 s{G_SRDB+1}, s{P_W2+1}, 0xffff"); A(f"s_mov_b32 s{G_SRDB+3}, 0x20000")
    A(f"s_mov_b32 s{G_LDB}, 1024")
    A(f"s_mov_b32 s{G_SZB}, {1792*512*2}")
    A(f"s_mov_b32 s{G_LDC}, 2048")
    A(f"s_and_b32 s{G_T0}, s{W_T}, 3")
    A(f"s_bfe_u32 s{G_T1}, s{W_T}, 0x10002")
    A(f"s_lshr_b32 s{G_T2}, s{W_T}, 3")
    A(f"s_mul_i32 s{G_AOFF}, s{G_T2}, {256*3584}")
    A(f"s_mul_i32 s{G_AUX}, s{G_T0}, 896")
    A(f"s_add_u32 s{G_AOFF}, s{G_AOFF}, s{G_AUX}")
    A(f"s_add_u32 s{G_AOFF}, s{G_AOFF}, {WS_HB}")
    A(f"s_mul_i32 s{G_BOFF}, s{G_T0}, {448*1024}")
    A(f"s_lshl_b32 s{G_AUX}, s{G_T1}, 9")
    A(f"s_add_u32 s{G_BOFF}, s{G_BOFF}, s{G_AUX}")
    A(f"s_lshl_b32 s{G_COFF}, s{G_T0}, 22")
    A(f"s_lshl_b32 s{G_AUX}, s{G_T2}, 19")
    A(f"s_add_u32 s{G_COFF}, s{G_COFF}, s{G_AUX}")
    A(f"s_lshl_b32 s{G_AUX}, s{G_T1}, 10")
    A(f"s_add_u32 s{G_COFF}, s{G_COFF}, s{G_AUX}")
    A(f"s_add_u32 s{G_COFF}, s{G_COFF}, {WS_Y}")
    run("m2", True, lambda: epi_f32(A))
    A.label("L_fetch")
    A.forget()
    fetch_ticket(A, "nxt", D_WTK, W_TASK)
    A("s_branch L_g1_next")

    A.label("L_ao_role")
    A.forget()
    spin(A, "ini", f"buffer_load_dword v31, off, {DBG}, 0 offset:{D_INIT} sc1", "v_cmp_eq_u32 vcc, 0, v31")
    fetch_ticket(A, "aot", D_AO, W_TASK)
    A(f"s_cmp_ge_u32 s{W_TASK}, {32*NPAR}")
    A("s_cbranch_scc1 L_end")
    A(f"s_and_b32 s{O_KC}, s{W_TASK}, 7")
    A(f"s_bfe_u32 s{O_NC}, s{W_TASK}, 0x20003")
    A(f"s_lshr_b32 s{O_SEG}, s{W_TASK}, 5")
    srd(A, 56, P_X, 2048 * 512 * 2); srd(A, 60, P_B2, 1024); srd(A, 64, P_OUT, 2048 * 512 * 2)
    dstamp(A, 10, diag)
    ao_prologue(A, P_WO)
    dstamp(A, 11, diag)
    A(f"s_sub_u32 s{W_T}, 63, s{O_SEG}")
    A(f"s_mul_i32 s{W_T2}, s{W_T}, {(65536 + NPAR - 1) // NPAR}")
    A(f"s_lshr_b32 s{W_T2}, s{W_T2}, 16")
    A(f"s_mul_i32 s{W_T2}, s{W_T2}, {NPAR}")
    A(f"s_add_u32 s{W_LAST}, s{W_T2}, s{O_SEG}")
    A(f"s_lshl_b32 s{W_T}, s{W_LAST}, 2")
    A(f"s_add_u32 s{W_T}, s{W_T}, s{O_NC}")
    A(f"s_lshl_b32 s{W_T}, s{W_T}, 3")
    A(f"s_add_u32 s{W_T}, s{W_T}, s{O_KC}")
    A(f"s_lshl_b32 s{W_T}, s{W_T}, 14")
    A(f"s_add_u32 s{W_T}, s{W_T}, {WS_PART}")
    for i in range(4): A(f"v_mov_b32 v{32+i}, -1")
    A("v_lshlrev_b32 v36, 4, v0")
    for i in range(4):
        A(f"s_add_u32 s{W_T2}, s{W_T}, {i*4096}")
        A(f"buffer_store_dwordx4 v[32:35], v36, {WSR}, s{W_T2} offen sc1")
    A.wait(vm=0)
    A(f"s_mov_b32 s{W_PREV}, s{O_SEG}")
    A(f"s_mov_b32 s{W_NP}, -1")
    A.label("L_ao_loop")
    A.forget()
    A(f"s_lshr_b32 s{W_T}, s{O_SEG}, 3")
    A(f"s_cmp_eq_u32 s{W_T}, s{W_NP}")
    A("s_cbranch_scc1 L_ao_rbok")
    A(f"s_mov_b32 s{W_NP}, s{W_T}")
    A(f"s_lshl_b32 s{W_T}, s{W_T}, 7")
    A(f"s_add_u32 s{W_T2}, s{W_T}, {F_Q}")
    wait_ws_ge(A, "aq", W_T2, 16)
    A(f"s_add_u32 s{W_T2}, s{W_T}, {F_KV}")
    wait_ws_ge(A, "ak", W_T2, KVT)
    A.label("L_ao_rbok")
    A.forget()
    ao_segment(A, prog_wait=lambda: prog_wait(A))
    A(f"s_cmp_eq_u32 s{O_SEG}, s{W_LAST}")
    A("s_cbranch_scc1 L_ao_nosig")
    A(f"s_lshl_b32 s{W_T}, s{O_SEG}, 2")
    A(f"s_add_u32 s{W_T}, s{W_T}, s{O_NC}")
    A(f"s_lshl_b32 s{W_T}, s{W_T}, 7")
    A(f"s_add_u32 s{W_SIG}, s{W_T}, {F_R}")
    signal_ws(A, "sgr", W_SIG)
    A.label("L_ao_nosig")
    A.forget()
    dstamp(A, 16, diag, O_SEG)
    A(f"s_add_u32 s{O_SEG}, s{O_SEG}, {NPAR}")
    A.label("L_ao_red")
    A.forget()
    A(f"s_add_u32 s{W_T}, s{W_PREV}, {NPAR}")
    A(f"s_cmp_ge_u32 s{W_T}, s{O_SEG}")
    A("s_cbranch_scc1 L_ao_rdone")
    red_flag_addrs(A, W_PREV)
    A(f"buffer_load_dword v31, v30, {WSR}, 0 offen sc1")
    A("s_waitcnt vmcnt(0)")
    A(f"v_cmp_gt_u32 vcc, v29, v31")
    A.forget()
    A("s_cbranch_vccnz L_ao_rdone")
    ao_reduce(A, W_PREV, "a", wait=False)
    A(f"s_add_u32 s{W_PREV}, s{W_PREV}, {NPAR}")
    A.settle()
    A("s_branch L_ao_red")
    A.label("L_ao_rdone")
    A.forget()
    A(f"s_cmp_lt_u32 s{O_SEG}, 64")
    A.settle()
    A("s_cbranch_scc1 L_ao_loop")
    A.label("L_ao_fin")
    A.forget()
    A(f"s_cmp_ge_u32 s{W_PREV}, s{W_LAST}")
    A("s_cbranch_scc1 L_ao_lastred")
    ao_reduce(A, W_PREV, "b", wait=True)
    A(f"s_add_u32 s{W_PREV}, s{W_PREV}, {NPAR}")
    A.settle()
    A("s_branch L_ao_fin")
    A.label("L_ao_lastred")
    A.forget()
    ao_reduce(A, W_PREV, "c", wait='data')
    A.label("L_ao_end")
    A("s_waitcnt vmcnt(0)")
    dstamp(A, 12, diag)
    A("s_endpgm")
    A.label("L_wbail")
    A("s_mov_b64 exec, 1")
    A("v_mov_b32 v31, 0xbeef")
    A(f"buffer_store_dword v31, off, {DBG}, 0 offset:56")
    A("s_waitcnt vmcnt(0)")
    A("s_endpgm")
    return A.text()

if __name__ == "__main__":
    kw = dict(d1=40, d2=45, g1=20, g2=20)
    for a in sys.argv[2:]:
        k, v = a.split('=')
        if k in ('HOLD_FROM', 'HOLD_CNT', 'PREF'): globals()[k] = int(v)
        else: kw[k] = int(v)
    hdr = open('parallel_sum__memory_aug_recurrent_mem_tr__mixer_channel_mlp__prompt.s.ref').read().split('; Override launch')[0]
    txt = hdr + f"; @launch kernel={KNAME} grid=(256,1,1) block=(256,1,1) lds=163840\n"
    txt += '.amdgcn_target "amdgcn-amd-amdhsa--gfx950"\n.text\n'
    txt += khead(KNAME) + main_kernel(**kw)
    txt += '.section .rodata,"a"\n.p2align 6\n' + kdesc(KNAME)
    open(sys.argv[1], "w").write(txt)
```

```python
from asmlib import *
from layout import *
import math, struct

L_WL   = 0
L_MEMB = 131072
L_KXB  = L_MEMB + 8192
L_X    = L_MEMB + 24576
L_OB   = L_X + 4096
L_CA   = L_OB + 2048
L_DUM  = L_CA + 1024
LDS_TOTAL = 163840
PSLOT = 262144

S_WS = 4; S_W = 8; S_DBG = 12
S_PW = 16
S_H = 26; S_WV = 27; S_STEP = 28; S_T0 = 29; S_T1 = 30; S_T2 = 31
S_C = 32
S_PAR = 34
S_PST0 = 35; S_PST1 = 36; S_PLD = 37; S_POI = 38; S_MSL = 39; S_MPO = 40
S_KXA = 41; S_KXB = 42; S_M0A = 43; S_M0B = 44; S_VT = 45; S_KM = 46; S_VM = 47
S_TO = 48
S_R0 = 8; S_R1 = 9; S_R2 = 10
S_EX = 50
S_TM = 52
S_TACC = 54
S_STAMP = 72

V_IDX, V_WL0, V_WL1, V_MEM, V_XW, V_XR, V_OW, V_PS, V_PL, V_MS, V_MW, V_KXG, V_VVT, V_KMS, V_VMS = range(1, 16)
V_T = 16
V_MK = 20
V_SB = 52
V_AQ = 68; V_AK = 76; V_AV = 84
V_XF = 92
V_S = 108
V_VX = 120

def wreg(X, c, f):
    idx = X * 12 + c * 4 + f
    return ar(8 * idx, 8) if idx < 32 else vr(128 + 8 * (idx - 32), 8)
def wreg_part(X, c, f, p):
    idx = X * 12 + c * 4 + f
    return ar(8 * idx + 2 * p, 2) if idx < 32 else vr(128 + 8 * (idx - 32) + 2 * p, 2)

def srd(A, s, ptr, size):
    A(f"s_mov_b32 s{s}, s{ptr}")
    A(f"s_and_b32 s{s+1}, s{ptr+1}, 0xffff")
    A(f"s_mov_b32 s{s+2}, {size}")
    A(f"s_mov_b32 s{s+3}, 0x20000")

WSR = f"s[{S_WS}:{S_WS+3}]"

def poll_with_shadow(A, poll, name, regs, loadfn, pre_ok, shadow):
    orig = A.wait
    state = {'done': False}
    def w(vm=None, lg=None):
        if not state['done']:
            state['done'] = True
            shadow()
        orig(vm, lg)
    A.wait = w
    try:
        poll(name, regs, loadfn, pre_ok)
    finally:
        A.wait = orig

def emit_chain(A, timing=False, nsteps=64, opt=(), d1=0, d2=0, hodelay=8, kxpos=(14, 22), g1=12, g2=12, dstamp=None):
    extra_delay = ["s_nop 0"] * d1
    extra_delay2 = ["s_nop 0"] * d2
    lane = 17; t0 = 18; t1 = 19
    def pst(k):
        if 'pro' in opt: A.raw(f"    s_memrealtime s[{72+2*k}:{73+2*k}]")
    pst(1)
    A(f"v_and_b32 v{lane}, 63, v0")
    DQ = V_MK
    DO = V_MK + 2
    TRA = V_MK + 6
    TRO = V_MK + 8
    TMP = V_SB
    a = V_MK + 12; b = V_MK + 13; c_ = V_MK + 14; d_ = V_MK + 15
    A(f"v_lshrrev_b32 v{a}, 4, v{lane}")
    A(f"v_bfe_u32 v{b}, v{lane}, 1, 3")
    A(f"v_xor_b32 v{c_}, v{b}, v{a}")
    A(f"v_and_b32 v{d_}, 1, v{lane}")
    A(f"v_lshl_or_b32 v{c_}, v{c_}, 1, v{d_}")
    A(f"v_lshlrev_b32 v{c_}, 4, v{c_}")
    A(f"v_lshl_or_b32 v{DQ}, v{a}, 13, v{c_}")
    A(f"v_xor_b32 v{DQ+1}, 128, v{DQ}")
    A(f"v_and_b32 v{c_}, 1, v{a}")
    A(f"v_xor_b32 v{c_}, v{b}, v{c_}")
    A(f"v_lshl_or_b32 v{c_}, v{c_}, 1, v{d_}")
    A(f"v_lshrrev_b32 v{b}, 2, v{c_}")
    A(f"v_lshlrev_b32 v{b}, 8, v{b}")
    A(f"v_and_b32 v{c_}, 3, v{c_}")
    A(f"v_lshl_or_b32 v{b}, v{c_}, 5, v{b}")
    A(f"v_lshl_or_b32 v{DO}, v{a}, 10, v{b}")
    A(f"v_xor_b32 v{DO+1}, 256, v{DO}")
    A(f"v_xor_b32 v{DO+2}, 512, v{DO}")
    A(f"v_xor_b32 v{DO+3}, 768, v{DO}")
    A(f"v_bfe_u32 v{b}, v{lane}, 4, 1")
    A(f"v_bfe_u32 v{c_}, v{lane}, 3, 1")
    A(f"v_lshl_or_b32 v{b}, v{c_}, 1, v{b}")
    A(f"v_bfe_u32 v{c_}, v{lane}, 2, 1")
    A(f"v_lshl_or_b32 v{b}, v{c_}, 2, v{b}")
    A(f"v_bfe_u32 v{c_}, v{lane}, 5, 1")
    A(f"v_lshl_or_b32 v{c_}, v{c_}, 4, v{b}")
    A(f"v_lshlrev_b32 v{c_}, 8, v{c_}")
    A(f"v_and_b32 v{d_}, 3, v{lane}")
    A(f"v_lshl_or_b32 v{c_}, v{d_}, 3, v{c_}")
    A(f"s_lshl_b32 s{S_T0}, s{S_WV}, 1")
    A(f"v_xor_b32 v{b}, s{S_T0}, v{b}")
    A(f"v_lshl_or_b32 v{TRA}, v{b}, 5, v{c_}")
    A(f"v_xor_b32 v{TRA+1}, 32, v{TRA}")
    A(f"v_bfe_u32 v{b}, v{lane}, 5, 1")
    A(f"v_lshlrev_b32 v{b}, 4, v{b}")
    A(f"v_bfe_u32 v{c_}, v{lane}, 4, 1")
    A(f"v_lshl_or_b32 v{b}, v{c_}, 2, v{b}")
    A(f"v_lshlrev_b32 v{t0}, 1, v{c_}")
    A(f"v_bfe_u32 v{c_}, v{lane}, 2, 1")
    A(f"v_or_b32 v{b}, v{b}, v{c_}")
    A(f"v_or_b32 v{t0}, v{t0}, v{c_}")
    A(f"v_bfe_u32 v{c_}, v{lane}, 3, 1")
    A(f"v_lshl_or_b32 v{b}, v{c_}, 3, v{b}")
    A(f"v_lshl_or_b32 v{t0}, v{c_}, 2, v{t0}")
    A(f"v_lshlrev_b32 v{b}, 8, v{b}")
    A(f"v_and_b32 v{c_}, 1, v{lane}")
    A(f"v_lshl_or_b32 v{b}, v{c_}, 4, v{b}")
    A(f"v_bfe_u32 v{c_}, v{lane}, 1, 1")
    A(f"v_or_b32 v{c_}, s{S_T0}, v{c_}")
    A(f"v_xor_b32 v{c_}, v{c_}, v{t0}")
    A(f"v_lshl_or_b32 v{TRO}, v{c_}, 5, v{b}")
    A(f"v_add_u32 v{TRO+1}, 8, v{TRO}")

    A(f"v_bfe_u32 v{t0}, v{lane}, 1, 1")
    A(f"v_lshlrev_b32 v{t0}, 1, v{t0}")
    A(f"v_lshrrev_b32 v{t1}, 4, v{lane}")
    A(f"v_add_u32 v{t0}, v{t0}, v{t1}")
    A(f"v_lshlrev_b32 v{t0}, 4, v{t0}")
    A(f"v_and_b32 v{t1}, 1, v{lane}")
    A(f"v_lshl_or_b32 v{t0}, v{t1}, 3, v{t0}")
    A(f"s_lshl_b32 s{S_T0}, s{S_H}, 8")
    A(f"s_lshl_b32 s{S_T1}, s{S_WV}, 6")
    A(f"s_add_u32 s{S_T0}, s{S_T0}, s{S_T1}")
    A(f"v_bfe_u32 v{t1}, v{lane}, 2, 2")
    A(f"v_lshl_or_b32 v{t0}, v{t1}, 13, v{t0}")
    A(f"v_add_u32 v{V_MS}, s{S_T0}, v{t0}")
    srd(A, S_W, S_PW + 8, 8192)
    A(f"v_lshrrev_b32 v{t0}, 4, v{lane}")
    A(f"v_and_b32 v{t0}, 1, v{t0}")
    A(f"v_lshlrev_b32 v{t0}, 10, v{t0}")
    A(f"v_and_b32 v{t1}, 3, v{lane}")
    A(f"v_lshl_or_b32 v{t0}, v{t1}, 1, v{t0}")
    A(f"s_lshl_b32 s{S_T0}, s{S_WV}, 11")
    A(f"s_lshl_b32 s{S_T1}, s{S_H}, 5")
    A(f"s_add_u32 s{S_T0}, s{S_T0}, s{S_T1}")
    M0R = V_S + 4
    MT = V_S
    for j in range(4):
        A(f"buffer_load_ushort v{MT+j}, v{t0}, s[{S_W}:{S_W+3}], s{S_T0} offen offset:{8*j}")
    P = V_XF
    for i in range(4): A(f"v_mov_b32 v{P+i}, -1")
    A(f"v_lshlrev_b32 v{t0}, 4, v0")
    A(f"s_lshl_b32 s{S_T0}, s{S_H}, 13")
    A(f"s_add_u32 s{S_T0}, s{S_T0}, {WS_PBUF}")
    for slot in range(3):
        for i in range(2):
            A(f"s_add_u32 s{S_T1}, s{S_T0}, {slot*PSLOT + i*4096}")
            A(f"buffer_store_dwordx4 v[{P}:{P+3}], v{t0}, {WSR}, s{S_T1} offen")
    A(f"v_cmp_gt_u32 vcc, 16, v0")
    A(f"s_and_saveexec_b64 s[{S_EX}:{S_EX+1}], vcc")
    A(f"s_cbranch_execz L_nomp")
    A(f"s_lshl_b32 s{S_T0}, s{S_H}, 8")
    A(f"s_add_u32 s{S_T0}, s{S_T0}, {WS_MBUF}")
    for sl in (1, 2):
        for cp in range(4):
            A(f"s_add_u32 s{S_T1}, s{S_T0}, {sl*32768 + cp*8192}")
            A(f"buffer_store_dwordx4 v[{P}:{P+3}], v{t0}, {WSR}, s{S_T1} offen")
    A.label("L_nomp")
    A(f"s_mov_b64 exec, s[{S_EX}:{S_EX+1}]")
    A.vm = []

    S_WR = 61
    if 'rot1' in opt:
        A(f"s_add_u32 s{S_WR}, s{S_WV}, s{S_H}")
        A(f"s_and_b32 s{S_WR}, s{S_WR}, 3")
    elif 'rot2' in opt:
        A(f"s_lshr_b32 s{S_WR}, s{S_H}, 2")
        A(f"s_add_u32 s{S_WR}, s{S_WR}, s{S_WV}")
        A(f"s_and_b32 s{S_WR}, s{S_WR}, 3")
    else:
        A(f"s_mov_b32 s{S_WR}, s{S_WV}")
    order = [(X, c) for X in range(4) for c in range(3)] + [(X, 3) for X in range(4)]
    slot_of = {}
    for i, (X, c) in enumerate(order[:12]): slot_of[(X, c)] = i % 5
    for X in range(4): slot_of[(X, 3)] = X
    def issue(X, c):
        srd(A, S_W, S_PW + 2 * X, 4194304)
        slot = slot_of[(X, c)]
        if X < 3:
            A(f"s_lshl_b32 s{S_T0}, s{S_WR}, 18")
            A(f"s_lshl_b32 s{S_T1}, s{S_H}, 8")
            A(f"s_add_u32 s{S_T0}, s{S_T0}, s{S_T1}")
            A(f"s_add_u32 s{S_T0}, s{S_T0}, {128*c*8192}")
            step = 4 * 8192
        else:
            A(f"s_lshl_b32 s{S_T0}, s{S_WR}, 15")
            A(f"s_lshl_b32 s{S_T1}, s{S_H}, 17")
            A(f"s_add_u32 s{S_T0}, s{S_T0}, s{S_T1}")
            A(f"s_add_u32 s{S_T0}, s{S_T0}, {(c >> 1) * 128 + (c & 1) * 16}")
            step = 4 * 1024
        A(f"s_lshl_b32 s{S_T1}, s{S_WR}, 13")
        A(f"s_add_u32 s{S_T1}, s{S_T1}, {slot*32768}")
        for i in range(8):
            D = DQ + (i & 1) if X < 3 else DO + (i & 3)
            A(f"s_mov_b32 m0, s{S_T1}")
            A(f"buffer_load_dwordx4 v{D}, s[{S_W}:{S_W+3}], s{S_T0} offen lds")
            if i < 7:
                A(f"s_add_u32 s{S_T0}, s{S_T0}, {step}")
                A(f"s_add_u32 s{S_T1}, s{S_T1}, 1024")
    pst(2)
    if 'diag' in opt:
        dstamp(A, 14, True)
    if 'diag' in opt and 'nostep' not in opt:
        A.raw("    s_getreg_b32 s98, hwreg(HW_REG_HW_ID)")
        A(f"s_lshl_b32 s98, s98, 8"); A(f"s_or_b32 s98, s98, s{S_H}")
        lb = A.newlabel("L_dh")
        A(f"s_cmp_lg_u32 s27, 0"); A(f"s_cbranch_scc1 {lb}")
        A(f"s_lshl_b32 s100, s2, 9"); A(f"s_add_u32 s100, s100, {WS_TIME + 4*15}")
        A("v_mov_b32 v30, s98"); A("s_mov_b64 exec, 1"); A("buffer_store_dword v30, off, s[4:7], s100"); A("s_mov_b64 exec, -1"); A.vm.pop(); A.label(lb)
    A(f"s_lshl_b32 s{S_T0}, s{S_WV}, 13")
    A(f"v_lshlrev_b32 v{t0}, 4, v{lane}")
    A(f"v_add_u32 v{V_WL0}, s{S_T0}, v{t0}")
    A(f"v_add_u32 v{V_WL1}, 0x10000, v{V_WL0}")
    issued = []
    for k in range(5):
        issue(*order[k]); issued.append(order[k])
    if 'nopf' not in opt:
        A.raw("    s_getpc_b64 s[56:57]")
        A.raw("L_pc0:")
        A.raw("    s_add_u32 s56, s56, L_step-L_pc0")
        A.raw("    s_addc_u32 s57, s57, 0")
        A(f"v_lshlrev_b32 v{V_AQ}, 4, v{lane}")
        A(f"s_lshl_b32 s{S_T0}, s{S_WV}, 11")
        A(f"v_add_u32 v{V_AQ}, s{S_T0}, v{V_AQ}")
        A(f"global_load_dwordx4 v[{V_AK}:{V_AK+3}], v{V_AQ}, s[56:57]")
        A(f"global_load_dwordx4 v[{V_AK+4}:{V_AK+7}], v{V_AQ}, s[56:57] offset:1024")
    A.raw(f"    s_waitcnt vmcnt({40 if 'nopf' in opt else 42})")
    _sv = A.vm; A.vm = []
    A(f"v_lshl_or_b32 v{M0R}, v{MT+1}, 16, v{MT}")
    A(f"v_lshl_or_b32 v{M0R+1}, v{MT+3}, 16, v{MT+2}")
    A(f"s_mov_b32 s{S_T0}, {WS_MBUF}")
    A(f"s_mov_b64 exec, 0xffffffff")
    A(f"buffer_store_dwordx2 v[{M0R}:{M0R+1}], v{V_MS}, {WSR}, s{S_T0} offen")
    A(f"s_mov_b64 exec, -1")
    A.vm = _sv
    follow = {0: order[5], 1: order[6], 2: order[7], 3: order[8], 4: order[9], 5: order[10], 6: order[11],
              7: (2, 3), 8: (3, 3), 10: (0, 3), 11: (1, 3)}
    def trreads(X, slot, f, dst_fn):
        t = f & 1; ksp = f >> 1
        base = slot * 32768
        TR = TRA if X < 3 else TRO
        breg = TR + t
        if base >= 32768:
            A(f"v_add_u32 v{t1}, {base}, v{TR+t}")
            breg = t1
        for tp in range(4):
            if X < 3: imm = (64 * ksp + 32 * (tp >> 1) + 8 * (tp & 1)) * 256
            else: imm = (64 * ksp + 32 * (tp >> 1) + 2 * (tp & 1)) * 256
            A(f"ds_read_b64_tr_b16 {dst_fn(tp)}, v{breg} offset:{imm}")
    extra_ops = [0]
    def consume_wait(ch):
        pos = issued.index(ch)
        n_after = len(issued) - 1 - pos
        A.wait(vm=8 * n_after)
        A("s_barrier")
    def relayout(X):
        consume_wait((X, 3))
        for f in range(4):
            trreads(X, X, f, lambda tp: vr(TMP + 8 * f + 2 * tp, 2))
        A.wait(lg=0)
        A("s_barrier")
        base = V_WL0 if X < 2 else V_WL1
        for f in range(4):
            for hh in range(2):
                A(f"ds_write_b128 v{base}, v[{TMP+8*f+4*hh}:{TMP+8*f+4*hh+3}] offset:{(X&1)*32768 + f*2048 + hh*1024}")
        A.wait(lg=0)
    for i, (X, c) in enumerate(order[:12]):
        consume_wait((X, c))
        if i == 0: pst(3)
        if i == 4: pst(4)
        if i == 8: pst(5)
        if i == 5:
            A(f"s_cmp_lg_u32 s{S_WV}, 0")
            A(f"s_cbranch_scc1 L_rdy_skip")
            A(f"v_mov_b32 v{t1}, 1")
            A(f"s_mov_b64 exec, 1")
            A(f"buffer_atomic_add v{t1}, off, s[{S_DBG}:{S_DBG+3}], 0 offset:36")
            A(f"s_mov_b64 exec, -1")
            A.vm.pop()
            A.label("L_rdy_skip")
        for f in range(4):
            trreads(X, slot_of[(X, c)], f, lambda tp: wreg_part(X, c, f, tp))
        A.wait(lg=0)
        A("s_barrier")
        if i in follow:
            issue(*follow[i]); issued.append(follow[i])
        if i == 10:
            A(f"buffer_load_dword v{V_AV}, off, s[{S_DBG}:{S_DBG+3}], 0 offset:36 sc1")
            A(f"buffer_load_dword v{V_AV+1}, off, s[{S_DBG}:{S_DBG+3}], 0 offset:{D_INIT} sc1")
            extra_ops[0] = 2
        if i == 11:
            relayout(2); relayout(3)
    pst(6)
    if 'diag' in opt: dstamp(A, 10, True); dstamp(A, 203, True) if 'nostep' in opt else None
    def S(x): A(x)
    S(f"v_bfe_u32 v{t0}, v{lane}, 1, 1")
    S(f"v_mov_b32 v{V_IDX}, 0x4444")
    S(f"v_mov_b32 v{t1}, 0xeeee")
    S(f"v_cmp_ne_u32 vcc, 0, v{t0}")
    S(f"v_cndmask_b32 v{V_IDX}, v{V_IDX}, v{t1}, vcc")
    S(f"s_lshl_b32 s{S_T0}, s{S_WV}, 13")
    S(f"v_lshlrev_b32 v{t0}, 4, v{lane}")
    S(f"v_add_u32 v{V_WL0}, s{S_T0}, v{t0}")
    S(f"v_add_u32 v{V_WL1}, 0x10000, v{V_WL0}")
    S(f"v_add_u32 v{V_MEM}, {L_MEMB}, v{t0}")
    S(f"s_lshl_b32 s{S_T0}, s{S_WV}, 11")
    S(f"v_add_u32 v{V_MW}, s{S_T0}, v{V_MEM}")
    S(f"s_lshl_b32 s{S_T1}, s{S_H}, 13")
    S(f"s_add_u32 s{S_T0}, s{S_T0}, s{S_T1}")
    S(f"v_add_u32 v{V_PL}, s{S_T0}, v{t0}")
    S(f"v_and_b32 v{t0}, 15, v{lane}")
    S(f"v_lshlrev_b32 v{t0}, 5, v{t0}")
    S(f"v_lshrrev_b32 v{t1}, 4, v{lane}")
    S(f"v_lshl_or_b32 v{t0}, v{t1}, 3, v{t0}")
    S(f"v_bfe_u32 v{t1}, v{lane}, 3, 1")
    S(f"v_lshlrev_b32 v{t1}, 7, v{t1}")
    S(f"v_xor_b32 v{t0}, v{t0}, v{t1}")
    S(f"s_lshl_b32 s{S_T0}, s{S_WV}, 10")
    S(f"s_add_u32 s{S_T0}, s{S_T0}, {L_X}")
    S(f"v_add_u32 v{V_XW}, s{S_T0}, v{t0}")
    S(f"v_lshrrev_b32 v{t0}, 4, v{lane}")
    S(f"v_lshlrev_b32 v{t0}, 3, v{t0}")
    S(f"v_bfe_u32 v{t1}, v{lane}, 2, 2")
    S(f"v_or_b32 v{t0}, v{t0}, v{t1}")
    S(f"v_lshlrev_b32 v{t0}, 5, v{t0}")
    S(f"v_and_b32 v{t1}, 3, v{lane}")
    S(f"v_lshl_or_b32 v{t0}, v{t1}, 3, v{t0}")
    S(f"v_bfe_u32 v{t1}, v{lane}, 4, 1")
    S(f"v_lshlrev_b32 v{t1}, 7, v{t1}")
    S(f"v_xor_b32 v{t0}, v{t0}, v{t1}")
    S(f"v_add_u32 v{V_XR}, {L_X}, v{t0}")
    S(f"v_xor_b32 v{V_KMS}, 128, v{t0}")
    S(f"v_add_u32 v{V_KMS}, {L_X}, v{V_KMS}")
    S(f"v_and_b32 v{t0}, 13, v{lane}")
    S(f"v_bfe_u32 v{t1}, v{lane}, 5, 1")
    S(f"v_lshl_or_b32 v{t0}, v{t1}, 1, v{t0}")
    S(f"v_lshlrev_b32 v{t0}, 4, v{t0}")
    S(f"v_bfe_u32 v{t1}, v{lane}, 4, 1")
    S(f"v_lshl_or_b32 v{t0}, v{t1}, 3, v{t0}")
    S(f"s_lshl_b32 s{S_T0}, s{S_WV}, 9")
    S(f"s_add_u32 s{S_T0}, s{S_T0}, {L_OB}")
    S(f"v_add_u32 v{V_OW}, s{S_T0}, v{t0}")
    S(f"v_mov_b32 v{t0}, {L_DUM}")
    S(f"v_and_b32 v{t1}, 2, v{lane}")
    S(f"v_cmp_ne_u32 vcc, 0, v{t1}")
    S(f"v_cndmask_b32 v{V_OW}, v{V_OW}, v{t0}, vcc")
    S(f"v_bfe_u32 v{t0}, v{lane}, 2, 2")
    S(f"v_lshlrev_b32 v{t0}, 13, v{t0}")
    S(f"v_lshrrev_b32 v{t1}, 4, v{lane}")
    S(f"v_lshl_or_b32 v{t0}, v{t1}, 11, v{t0}")
    S(f"v_and_b32 v{t1}, 3, v{lane}")
    S(f"v_lshl_or_b32 v{t0}, v{t1}, 4, v{t0}")
    S(f"s_lshl_b32 s{S_T0}, s{S_H}, 6")
    S(f"v_add_u32 v{V_PS}, s{S_T0}, v{t0}")
    S(f"v_and_b32 v{t0}, 15, v{lane}")
    S(f"v_lshlrev_b32 v{t0}, 13, v{t0}")
    S(f"v_lshrrev_b32 v{t1}, 4, v{lane}")
    S(f"v_lshl_or_b32 v{t0}, v{t1}, 4, v{t0}")
    S(f"s_lshl_b32 s{S_T0}, s{S_H}, 8")
    S(f"s_lshr_b32 s{S_T1}, s{S_WV}, 1")
    S(f"s_lshl_b32 s{S_T1}, s{S_T1}, 17")
    S(f"s_add_u32 s{S_T0}, s{S_T0}, s{S_T1}")
    S(f"s_and_b32 s{S_T1}, s{S_WV}, 1")
    S(f"s_lshl_b32 s{S_T1}, s{S_T1}, 7")
    S(f"s_add_u32 s{S_T0}, s{S_T0}, s{S_T1}")
    S(f"v_add_u32 v{V_KXG}, s{S_T0}, v{t0}")
    S(f"v_and_b32 v{t0}, 15, v{lane}")
    S(f"v_lshlrev_b32 v{t0}, 6, v{t0}")
    S(f"v_lshrrev_b32 v{t1}, 4, v{lane}")
    S(f"v_lshl_or_b32 v{t0}, v{t1}, 4, v{t0}")
    S(f"s_lshl_b32 s{S_T0}, s{S_H}, 13")
    S(f"s_lshl_b32 s{S_T1}, s{S_WV}, 11")
    S(f"s_add_u32 s{S_T0}, s{S_T0}, s{S_T1}")
    S(f"v_add_u32 v{V_VVT}, s{S_T0}, v{t0}")
    S(f"v_lshlrev_b32 v{t0}, 4, v{lane}")
    S(f"s_lshl_b32 s{S_T0}, s{S_H}, 12")
    S(f"s_lshl_b32 s{S_T1}, s{S_WV}, 10")
    S(f"s_add_u32 s{S_T0}, s{S_T0}, s{S_T1}")
    S(f"v_add_u32 v{V_VMS}, s{S_T0}, v{t0}")
    c = (128 ** -0.5) * math.log2(math.e)
    cbits = hex(struct.unpack('<I', struct.pack('<f', c))[0])
    S(f"s_mov_b32 s{S_C}, {cbits}")
    S(f"s_mov_b32 s{S_C+1}, {cbits}")

    CA = V_AK
    A(f"v_and_b32 v{a}, 15, v{lane}")
    A(f"v_mov_b32 v{b}, 0x3f80")
    A(f"v_mov_b32 v{c_}, 0x3f800000")
    A(f"v_cmp_gt_u32 vcc, 4, v{a}")
    A(f"v_cndmask_b32 v{b}, v{c_}, v{b}, vcc")
    A(f"v_cmp_gt_u32 vcc, 8, v{a}")
    A(f"v_cndmask_b32 v{b}, 0, v{b}, vcc")
    A(f"v_and_b32 v{a}, 3, v{a}")
    for i in range(4):
        A(f"v_cmp_eq_u32 vcc, {i}, v{a}")
        A(f"v_cndmask_b32 v{CA+i}, 0, v{b}, vcc")
    A(f"s_lshl_b32 s{S_M0A}, s{S_WV}, 11")
    A(f"s_add_u32 s{S_M0A}, s{S_M0A}, {L_KXB}")
    A(f"s_mov_b32 s{S_KXA}, {WS_KX}")
    def kx0():
        A(f"s_mov_b32 m0, s{S_M0A}")
        A(f"buffer_load_dwordx4 v{V_KXG}, {WSR}, s{S_KXA} offen sc1 lds")
        A(f"s_add_u32 s{S_T0}, s{S_M0A}, 1024")
        A(f"s_add_u32 s{S_T1}, s{S_KXA}, 64")
        A(f"s_mov_b32 m0, s{S_T0}")
        A(f"buffer_load_dwordx4 v{V_KXG}, {WSR}, s{S_T1} offen sc1 lds")
    if 'merged' not in opt: kx0()
    A.wait(vm=0)
    A.vm = []
    A(f"ds_write_b128 v{V_MEM}, v[{CA}:{CA+3}] offset:{L_CA-L_MEMB}")
    A.wait(lg=0)
    A("s_barrier")
    A(f"v_cmp_gt_u32 vcc, 32, v{V_AV}")
    A(f"s_cbranch_vccz L_rdy_done")
    A(f"s_mov_b32 s{S_TO}, 0")
    A(f"v_mov_b32 v{t0}, 36")
    A.label("L_rdy_poll")
    A(f"buffer_load_dword v{t1}, v{t0}, s[{S_DBG}:{S_DBG+3}], 0 offen sc1")
    A(f"s_add_u32 s{S_TO}, s{S_TO}, 1")
    A(f"s_cmp_gt_u32 s{S_TO}, 0x40000")
    A(f"s_cbranch_scc1 L_bail")
    A.wait(vm=0)
    A(f"v_cmp_gt_u32 vcc, 32, v{t1}")
    A(f"s_cbranch_vccnz L_rdy_poll")
    A.label("L_rdy_done")
    A.forget()
    if 'merged' in opt:
        A(f"v_cmp_ne_u32 vcc, 0, v{V_AV+1}")
        A(f"s_cbranch_vccnz L_ci_done")
        A(f"s_mov_b32 s{S_TO}, 0")
        A.label("L_ci_poll")
        A(f"buffer_load_dword v{t1}, off, s[{S_DBG}:{S_DBG+3}], 0 offset:{D_INIT} sc1")
        A(f"s_add_u32 s{S_TO}, s{S_TO}, 1")
        A(f"s_cmp_gt_u32 s{S_TO}, 0x100000")
        A(f"s_cbranch_scc1 L_bail")
        A.wait(vm=0)
        A(f"v_cmp_eq_u32 vcc, 0, v{t1}")
        A(f"s_cbranch_vccnz L_ci_poll")
        A.label("L_ci_done")
        A.forget()
    pst(7)
    if 'diag' in opt: dstamp(A, 11, True)
    for X in range(2):
        for f in range(4):
            trreads(X, X, f, lambda tp: vr(TMP + 8 * f + 2 * tp, 2))
        A.wait(lg=0)
        A("s_barrier")
        for f in range(4):
            for hh in range(2):
                A(f"ds_write_b128 v{V_WL0}, v[{TMP+8*f+4*hh}:{TMP+8*f+4*hh+3}] offset:{(X&1)*32768 + f*2048 + hh*1024}")
        A.wait(lg=0)
    if 'diag' in opt: dstamp(A, 204 if 'nostep' in opt else 12, True)
    if 'merged' in opt:
        A(f"s_mov_b32 s{S_T0}, {F_KV}")
        A(f"s_mov_b32 s{S_TO}, 0")
        A.label("L_ck_poll")
        A(f"buffer_load_dword v{t1}, off, {WSR}, s{S_T0} sc1")
        A(f"s_add_u32 s{S_TO}, s{S_TO}, 1")
        A(f"s_cmp_gt_u32 s{S_TO}, 0x100000")
        A(f"s_cbranch_scc1 L_bail")
        A.wait(vm=0)
        A(f"v_cmp_gt_u32 vcc, 128, v{t1}")
        A(f"s_cbranch_vccnz L_ck_poll")
        A.forget()
        if 'diag' in opt: dstamp(A, 13, True)
        kx0()


    A("s_waitcnt vmcnt(0)")
    A("s_barrier")
    pst(8)
    if 'diag' in opt: dstamp(A, 5, True)
    pst(9)
    if 'pro' in opt:
        A.raw("    s_waitcnt lgkmcnt(0)")
        A(f"s_lshl_b32 s{S_T0}, s{S_H}, 2")
        A(f"s_add_u32 s{S_T0}, s{S_T0}, s{S_WV}")
        A(f"s_lshl_b32 s{S_T0}, s{S_T0}, 7")
        A(f"s_add_u32 s{S_T0}, s{S_T0}, {WS_TIME}")
        A(f"s_mov_b64 exec, 1")
        for k in range(10):
            A(f"v_mov_b32 v{V_T+1}, s{72+2*k}")
            A(f"v_mov_b32 v{V_T}, {4*k}")
            A(f"buffer_store_dword v{V_T+1}, v{V_T}, {WSR}, s{S_T0} offen")
        A(f"s_mov_b64 exec, -1")
        A.wait(vm=0)
    S_MA = 16; S_MB = 18; S_MT = 20
    S_PUB = 22; S_MPZ = 23; S_KEEP = 24; S_B0 = 11; S_B1 = 25; S_B2 = 49; S_HC = 46
    A(f"s_mov_b32 s{S_STEP}, 0")
    A(f"s_mov_b32 s{S_PAR}, 0")
    A(f"s_mov_b32 s{S_VT}, {WS_VT - 32*8192}")
    A(f"s_and_b32 s{S_HC}, s{S_H}, 3")
    A(f"s_lshl_b32 s{S_HC}, s{S_HC}, 13")
    A(f"s_sub_u32 s{S_HC}, s{S_HC}, {L_MEMB}")
    A(f"s_mov_b32 s{S_B0}, {WS_MBUF}")
    A(f"s_mov_b32 s{S_B1}, {WS_MBUF + 32768}")
    A(f"s_mov_b32 s{S_B2}, {WS_MBUF + 65536}")
    A(f"s_mov_b32 s{S_VM}, {WS_KVM}")
    S_FLG = 53; S_FOFF = 52; S_POFF = 54; S_CHK = 55
    if 'merged' in opt:
        A(f"s_mov_b32 s{S_FOFF}, {F_KV}")
        A(f"s_lshl_b32 s{S_POFF}, s{S_H}, 7")
        A(f"s_add_u32 s{S_POFF}, s{S_POFF}, {F_PROG}")
    A(f"s_mov_b32 s{S_EX+1}, {WS_KVM + 64*32*4096}")
    A(f"s_mov_b32 s{S_R0}, {WS_PBUF}")
    A(f"s_mov_b32 s{S_R1}, {WS_PBUF + PSLOT}")
    A(f"s_mov_b32 s{S_R2}, {WS_PBUF + 2*PSLOT}")
    def zero(r, n): return [f"v_mov_b64 v[{r+i}:{r+i+1}], 0" for i in range(0, n, 2)]
    def step_scalars():
        o = []
        o.append(f"s_mov_b32 s{S_PLD}, s{S_R0}")
        o.append(f"s_mov_b32 s{S_POI}, s{S_R2}")
        o.append(f"s_lshl_b32 s{S_T1}, s{S_WV}, 16")
        o.append(f"s_add_u32 s{S_PST0}, s{S_PLD}, s{S_T1}")
        o.append(f"s_add_u32 s{S_PST1}, s{S_PST0}, 32768")
        o.append(f"s_add_u32 s{S_MSL}, s{S_B0}, s{S_HC}")
        o.append(f"s_add_u32 s{S_MPO}, s{S_MSL}, 1024")
        o.append(f"s_add_u32 s{S_VT}, s{S_VT}, {32*8192}")
        o.append(f"s_add_u32 s{S_KXA}, s{S_KXA}, {32*8192}")
        o.append(f"s_add_u32 s{S_KXB}, s{S_KXA}, 64")
        o.append(f"s_xor_b32 s{S_M0A}, s{S_M0A}, {L_KXB ^ (L_KXB + 8192)}")
        o.append(f"s_add_u32 s{S_M0B}, s{S_M0A}, 1024")
        o.append(f"v_add_u32 v0, s{S_PAR}, v{V_MEM}")
        return o
    for x in zero(V_AQ, 24): A(x)
    for x in step_scalars(): A(x)
    A(f"buffer_load_dwordx4 v[{V_S+4}:{V_S+7}], v{V_MW}, {WSR}, s{S_MSL} offen sc1")
    A(f"buffer_load_dwordx4 v[{V_S+8}:{V_S+11}], v{V_MW}, {WSR}, s{S_MPO} offen sc1")
    A(f"ds_write_b128 v{V_MW}, v[{V_S+4}:{V_S+7}]")
    A(f"ds_write_b128 v{V_MW}, v[{V_S+8}:{V_S+11}] offset:1024")
    A.wait(lg=0)
    A("s_barrier")
    def sbload(buf, X, f):
        base = V_WL0 if X < 2 else V_WL1
        r = V_SB + 8 * buf
        return [f"ds_read_b128 v[{r}:{r+3}], v{base} offset:{(X&1)*32768 + f*2048}",
                f"ds_read_b128 v[{r+4}:{r+7}], v{base} offset:{(X&1)*32768 + f*2048 + 1024}"]
    for s_ in sbload(0, 0, 0) + sbload(1, 0, 1): A(s_)
    if timing:
        for i in range(18): A(f"s_mov_b32 s{S_TACC+i}, 0")
    A.wait(lg=0)
    A.settle()
    A.forget()

    NST = 15
    def stamp(k):
        if timing: A.raw(f"    {'s_memrealtime' if ('abs' in opt and 'absm' not in opt) else 's_memtime'} s[{S_STAMP+2*k}:{S_STAMP+2*k+1}]")
    def stamp_acc():
        if timing and 'abs' in opt:
            A.raw("    s_waitcnt lgkmcnt(0)")
            lb = A.newlabel("L_abs")
            A(f"s_cmp_lg_u32 s{S_STEP}, 31")
            A(f"s_cbranch_scc1 {lb}")
            for k in range(NST):
                A(f"s_mov_b32 s{S_TACC+k}, s{S_STAMP+2*k}")
            A.label(lb)
            return
        if timing:
            A.raw("    s_waitcnt lgkmcnt(0)")
            A(f"s_sub_u32 s{S_T2}, s{S_STAMP}, s{S_TM}")
            A(f"s_add_u32 s{S_TACC}, s{S_TACC}, s{S_T2}")
            for k in range(1, NST):
                A(f"s_sub_u32 s{S_T2}, s{S_STAMP+2*k}, s{S_STAMP+2*(k-1)}")
                A(f"s_add_u32 s{S_TACC+k}, s{S_TACC+k}, s{S_T2}")
            A(f"s_mov_b32 s{S_TM}, s{S_STAMP+2*(NST-1)}")
    def M(ks): return vr(V_MK + 4 * ks, 4)
    def mload(ks, sc=""):
        return f"ds_read_b128 {M(ks)}, v{V_MEM} offset:{ks*1024}"
    def pack(acc, t, dst):
        return [f"v_pk_add_f32 v[{acc+4*t}:{acc+4*t+1}], v[{acc+4*t}:{acc+4*t+1}], v[{acc+4*t+2}:{acc+4*t+3}]",
                f"v_cvt_pk_bf16_f32 v{dst}, v{acc+4*t}, v{acc+4*t+1}"]

    if 'diag' in opt: dstamp(A, 6, True)
    pre_barrier = []
    sfx = ['']
    if 'rt' in opt:
        A.raw("    s_memtime s[56:57]")
        A.raw("    s_memrealtime s[58:59]")
        A.raw("    s_waitcnt lgkmcnt(0)")
        A("s_mov_b32 s64, 0"); A("s_mov_b32 s65, 0")
    if timing:
        A(f"s_memtime s[{S_TM}:{S_TM+1}]")
        A.wait(lg=0)
    A.label("L_step")
    if 'diag' in opt: dstamp(A, 16, True, S_STEP)
    if 'steps' in opt:
        A.raw("    s_memtime s[56:57]")
    stamp(0)
    morder = [6, 0, 1, 2, 7, 3, 4, 5]
    npre = 8
    for ks in morder: A(mload(ks))
    if 'merged' in opt:
        A(f"s_add_u32 s{S_T0}, s{S_STEP}, 2")
        A(f"s_and_b32 s{S_CHK}, s{S_T0}, 7")
        A(f"s_cmp_lg_u32 s{S_CHK}, 0")
        A(f"s_cbranch_scc1 L_noflag")
        A(f"buffer_load_dword v{V_S}, off, {WSR}, s{S_FOFF} sc1")
        A.vm.pop()
        A.label("L_noflag")
    if 'noload' not in opt and 'novt' not in opt:
        A(f"buffer_load_dwordx4 v[{V_VX}:{V_VX+3}], v{V_VVT}, {WSR}, s{S_VT} offen sc1")
        A(f"buffer_load_dwordx4 v[{V_VX+4}:{V_VX+7}], v{V_VVT}, {WSR}, s{S_VT} offen offset:1024 sc1")
    A(f"buffer_store_dwordx4 v[{V_AV}:{V_AV+3}], v{V_VMS}, {WSR}, s{S_EX+1} offen" + ("" if 'nopub' in opt else " sc1"))
    if 'merged' in opt:
        A(f"s_and_b32 s{S_T0}, s{S_STEP}, 3")
        A(f"s_or_b32 s{S_T0}, s{S_T0}, s{S_WV}")
        A(f"s_cmp_lg_u32 s{S_T0}, 0")
        A(f"s_cbranch_scc1 L_noprog")
        A(f"s_sub_u32 s{S_T0}, s{S_STEP}, 1")
        A(f"s_max_i32 s{S_T0}, s{S_T0}, 0")
        A(f"v_mov_b32 v{V_T+1}, s{S_T0}")
        A(f"s_mov_b64 exec, 1")
        A(f"buffer_store_dword v{V_T+1}, off, {WSR}, s{S_POFF} sc1")
        A(f"s_mov_b64 exec, -1")
        A.vm.pop()
        A.label("L_noprog")
    late_zero = zero(V_AV, 8)
    SL = [(0,0),(0,1),(1,0),(1,1),(0,2),(0,3),(1,2),(1,3),(2,0),(2,1),(2,2),(2,3)]
    RL = [(X, t, ks) for ks in range(6) for X in (0, 1) for t in (0, 1)]
    ACC = {0: V_AQ, 1: V_AK, 2: V_AV}
    CHK = V_T + 1
    qk = []
    ri = 0
    for pos in range(32):
        if pos % 4 == 0:
            X, f = SL[pos // 4]; qk.append(('S', X, f & 1, 6 + (f >> 1), pos // 4))
        else:
            X, t, ks = RL[ri]; ri += 1; qk.append(('R', X, t, ks, None))
    def mf(e):
        kind, X, t, ks, si = e
        d = vr(ACC[X] + 4 * t, 4)
        bsrc = vr(V_SB + 8 * (si & 1), 8) if kind == 'S' else wreg(X, ks >> 1, (ks & 1) * 2 + t)
        return f"v_smfmac_f32_16x16x64_bf16 {d}, {M(ks)}, {bsrc}, v{V_IDX}"
    def qk_pass(loads):
        fill = {p: [] for p in range(32)}
        for p in range(0, 32, 4):
            si = p // 4
            fill[p] += sbload(si & 1, *SL[si + 2])
        first_use = {}
        for p, e in enumerate(qk):
            first_use.setdefault(e[3], p)
        if loads:
            rem = morder[npre:]
            for i, ks in enumerate(rem): fill[1 + 5 * i].append(mload(ks))
        for i, x in enumerate(late_zero): fill[9 + 4 * i].append(x)
        if 'noload' not in opt and 'nokx' not in opt:
            pa, pb = kxpos
            fill[pa - 1] += [f"s_mov_b32 m0, s{S_M0A}"]
            fill[pa] += [f"buffer_load_dwordx4 v{V_KXG}, {WSR}, s{S_KXA} offen sc1 lds"]
            fill[pb - 1] += [f"s_mov_b32 m0, s{S_M0B}"]
            fill[pb] += [f"buffer_load_dwordx4 v{V_KXG}, {WSR}, s{S_KXB} offen sc1 lds"]
        for p in range(32):
            A(mf(qk[p]))
            if p == 0 and loads: stamp(1)
            for x in fill[p]: A(x)
    qk_pass(True)
    A.label("L_v")
    stamp(2)
    seq = []
    seqR = [(0,0),(1,0),(0,1),(1,1),(0,2),(1,2),(0,3),(1,3),(0,4),(1,4),(0,5),(1,5)]
    ri = 0
    for pos in range(16):
        if pos % 4 == 0:
            f = pos // 4; seq.append(('S', 2, f & 1, 6 + (f >> 1), 8 + f))
        else:
            t, ks = seqR[ri]; ri += 1; seq.append(('R', 2, t, ks, None))
    fill = {p: [] for p in range(16)}
    fill[0] += sbload(0, *SL[10]); fill[4] += sbload(1, *SL[11])
    fill[1] += pack(V_AQ, 0, V_AQ + 2)[:1] + pack(V_AQ, 1, V_AQ + 6)[:1]
    fill[2] += pack(V_AQ, 0, V_AQ + 2)[1:] + pack(V_AQ, 1, V_AQ + 6)[1:] + [f"ds_write2_b32 v{V_XW}, v{V_AQ+2}, v{V_AQ+6} offset0:0 offset1:128"]
    fill[3] += pack(V_AK, 0, V_AK + 2)[:1] + pack(V_AK, 1, V_AK + 6)[:1]
    fill[4] += pack(V_AK, 0, V_AK + 2)[1:] + pack(V_AK, 1, V_AK + 6)[1:] + [f"ds_write2_b32 v{V_XW}, v{V_AK+2}, v{V_AK+6} offset0:1 offset1:129"]
    fill[5] += [f"v_mov_b32 v{V_T}, v{V_AK+2}", f"v_mov_b32 v{V_T+1}, v{V_AK+6}"]
    fill[7] += ["@wait_writes", "s_barrier"]
    xf = []
    for ks in range(4):
        for hh in range(2):
            xf.append(f"ds_read_b64_tr_b16 v[{V_XF+4*ks+2*hh}:{V_XF+4*ks+2*hh+1}], v{V_XR if hh == 0 else V_KMS} offset:{ks*1024}")
    last = {}
    for p, e in enumerate(seq): last[e[3]] = p
    free_order = sorted(last, key=lambda k: last[k])
    kxr = {}
    kxr[(0, 0)] = vr(V_AQ, 4); kxr[(0, 1)] = vr(V_AQ + 4, 4); kxr[(0, 2)] = vr(V_AK, 4); kxr[(0, 3)] = vr(V_AK + 4, 4)
    for kk in range(4): kxr[(1, kk)] = M(free_order[kk])
    def kxload(T, kk): return f"ds_read_b128 {kxr[(T, kk)]}, v0 offset:{8192 + (T*4+kk)*1024}"
    fill[7] += xf[0:2]; fill[8] += xf[2:4]; fill[9] += xf[4:6]; fill[10] += xf[6:8]
    fill[11] += [kxload(0, 0), kxload(0, 1)]; fill[13] += [kxload(0, 2)]; fill[14] += [kxload(0, 3)]
    assert last[free_order[3]] <= 13
    for p in range(16):
        A(mf(seq[p]))
        for x in fill[p]:
            if x == "s_barrier" and 'vdet' in opt: stamp(8)
            if x == "@wait_writes" and 'vdet' in opt: stamp(11)
            A(x)
            if x == "s_barrier" and 'vdet' in opt: stamp(9)
        if p == 11 and 'vdet' in opt: stamp(12)
    stamp(3)
    A.raw(f"    s_waitcnt vmcnt({(1 if 'noload' in opt else 3 if ('novt' in opt or 'nokx' in opt) else 5) + (1 if 'steps' in opt else 0)})")
    if 'merged' in opt:
        A(f"s_mov_b32 s{S_FLG}, 128")
        A(f"s_cmp_lg_u32 s{S_CHK}, 0")
        A(f"s_cbranch_scc1 L_norfl")
        A(f"v_readfirstlane_b32 s{S_FLG}, v{V_S}")
        A.label("L_norfl")
    S0, S1, S2 = V_S, V_S + 4, V_S + 8
    def tm(dst, a_, ks, first):
        cc = "0" if first else vr(dst, 4)
        return f"v_mfma_f32_16x16x32_bf16 {vr(dst,4)}, {a_}, {vr(V_XF+4*ks,4)}, {cc}"
    seqT = [(S0, None, k) for k in range(4)] + [(S1, 0, k) for k in range(4)] + [(S2, 1, k) for k in range(4)]
    fill = {p: [] for p in range(12)}
    ONr = V_MK + 4 * free_order[4]
    LD = V_MK + 4 * free_order[5]
    fill[0] += [kxload(1, 0), kxload(1, 1)]; fill[1] += [kxload(1, 2), kxload(1, 3)]
    fill[7] += [f"v_mov_b32 v{ONr}, 0x3f803f80", f"v_mov_b32 v{ONr+1}, 0x3f803f80"]
    fill[8] += [f"v_mov_b32 v{ONr+2}, 0x3f803f80", f"v_mov_b32 v{ONr+3}, 0x3f803f80"]
    fill[2] += pack(V_AV, 0, V_AV + 2)[:1] + pack(V_AV, 1, V_AV + 6)[:1]
    fill[3] += pack(V_AV, 0, V_AV + 2)[1:] + pack(V_AV, 1, V_AV + 6)[1:]
    fill[4] += [f"v_mov_b32 v{V_AV+3}, 0", f"v_mov_b32 v{V_AV+7}, 0"]
    fill[5] += [f"v_min_u32 v{V_AV}, -2, v{V_T}", f"v_min_u32 v{V_AV+1}, -2, v{V_T+1}"]
    Tt = V_T + 1; Ls = V_T + 2; Mx = V_T + 3
    fill[9] += [f"v_max3_f32 v{Mx}, v{S0+2}, v{S0+3}, v{S1}"]
    fill[10] += [f"v_max3_f32 v{Mx}, v{Mx}, v{S1+1}, v{S1+2}"]
    fill[11] += [f"v_max_f32 v{Mx}, v{Mx}, v{S1+3}"]
    for p, (dst, T, kk) in enumerate(seqT):
        a_ = vr(V_XF + 4 * kk, 4) if T is None else kxr[(T, kk)]
        A(tm(dst, a_, kk, kk == 0))
        for x in fill[p]: A(x)
    stamp(4)
    A(f"s_cmp_eq_u32 s{S_STEP}, {nsteps-1}")
    A(f"s_cbranch_scc1 L_last")
    A(f"v_max3_f32 v{Mx}, v{Mx}, v{S2}, v{S2+1}")
    A(f"v_max3_f32 v{Tt}, v{Mx}, v{S2+2}, v{S2+3}")
    A(f"v_max3_f32 v{Mx}, v{Mx}, v{S2+2}, v{S2+3}")
    sbo = sbload(0, 3, 0) + sbload(1, 3, 1)
    A(sbo[0])
    A(f"v_permlane16_swap_b32 v{Mx}, v{Tt}")
    A(sbo[1])
    A(f"v_max_f32 v{Ls}, v{Mx}, v{Tt}")
    A(f"v_max_f32 v{Mx}, v{Mx}, v{Tt}")
    A(sbo[2])
    A(sbo[3])
    A(f"v_permlane32_swap_b32 v{Mx}, v{Ls}")
    A(f"v_max_f32 v{Mx}, v{Mx}, v{Ls}")
    A(f"v_mul_f32 v{Mx}, s{S_C}, v{Mx}")
    def pkf(r): return f"v_pk_fma_f32 v[{r}:{r+1}], v[{r}:{r+1}], s[{S_C}:{S_C+1}], v[{Mx-1}:{Mx}] op_sel:[0,0,1] op_sel_hi:[1,1,1] neg_lo:[0,0,1] neg_hi:[0,0,1]"
    for r in (S1, S1 + 2, S2, S2 + 2, S0 + 2): A(pkf(r))
    P12 = V_AQ; P0 = V_AQ + 4; OT = V_AK
    for r in range(S1, S1 + 4): A(f"v_exp_f32 v{r}, v{r}")
    A(f"v_exp_f32 v{S2}, v{S2}")
    A(f"v_exp_f32 v{S2+1}, v{S2+1}")
    A(f"v_cvt_pk_bf16_f32 v{P12}, v{S1}, v{S1+1}")
    A(f"v_exp_f32 v{S2+2}, v{S2+2}")
    A(f"v_cvt_pk_bf16_f32 v{P12+1}, v{S1+2}, v{S1+3}")
    A(f"v_exp_f32 v{S2+3}, v{S2+3}")
    A(f"v_cvt_pk_bf16_f32 v{P12+2}, v{S2}, v{S2+1}")
    A(f"v_exp_f32 v{S0+2}, v{S0+2}")
    A(f"v_cvt_pk_bf16_f32 v{P12+3}, v{S2+2}, v{S2+3}")
    A(f"v_exp_f32 v{S0+3}, v{S0+3}")
    A(f"v_mov_b32 v{P0+1}, 0")
    A(f"v_mfma_f32_16x16x32_bf16 {vr(LD,4)}, {vr(ONr,4)}, {vr(P12,4)}, 0")
    A(f"v_cvt_pk_bf16_f32 v{P0}, v{S0+2}, v{S0+3}")
    for t in range(2):
        A(f"v_mfma_f32_16x16x32_bf16 {vr(OT+4*t,4)}, {vr(V_VX+4*t,4)}, {vr(P12,4)}, 0")
    PO2 = V_S + 4
    for i in range(0, 4, 2): A(f"v_mov_b64 v[{PO2+i}:{PO2+i+1}], -1")
    A(f"v_mfma_f32_16x16x16_bf16 {vr(LD,4)}, {vr(ONr,2)}, {vr(P0,2)}, {vr(LD,4)}")
    for t in range(2):
        A(f"v_mfma_f32_16x16x16_bf16 {vr(OT+4*t,4)}, {vr(V_AV+4*t+2,2)}, {vr(P0,2)}, {vr(OT+4*t,4)}")
    A(f"v_min_u32 v{V_AV+3}, -2, v{V_AV+6}")
    A(f"v_min_u32 v{V_AV+2}, -2, v{V_AV+2}")
    A(f"v_rcp_f32 v{Ls}, v{LD}")
    for r in range(0, 8, 2):
        A(f"v_pk_mul_f32 v[{OT+r}:{OT+r+1}], v[{OT+r}:{OT+r+1}], v[{Ls}:{Ls+1}] op_sel_hi:[1,0]")
    for t in range(2):
        A(f"v_cvt_pk_bf16_f32 v{OT+4*t}, v{OT+4*t}, v{OT+4*t+1}")
        A(f"v_cvt_pk_bf16_f32 v{OT+4*t+1}, v{OT+4*t+2}, v{OT+4*t+3}")
        A(f"ds_write_b64 v{V_OW}, v[{OT+4*t}:{OT+4*t+1}] offset:{t*256}")
    A("@wait_writes")
    stamp(5)
    A("s_barrier")
    OF = V_VX
    A(f"ds_read_b128 {vr(OF,4)}, v{V_MEM} offset:{L_OB-L_MEMB}")
    A(f"ds_read_b128 {vr(OF+4,4)}, v{V_MEM} offset:{L_OB-L_MEMB+1024}")
    A(f"buffer_store_dwordx4 v[{PO2}:{PO2+3}], v{V_PL}, {WSR}, s{S_POI} offen")
    A(f"buffer_store_dwordx4 v[{PO2}:{PO2+3}], v{V_PL}, {WSR}, s{S_POI} offen offset:1024")
    for x in zero(V_MK, 32): A(x)
    stamp(6)
    oseq = [('S',6,0,0),('R',0,0),('R',0,1),('R',1,0),('S',7,0,1),('R',1,1),('R',2,0),('R',2,1),
            ('S',6,1,2),('R',3,0),('R',3,1),('R',4,0),('S',7,1,3),('R',4,1),('R',5,0),('R',5,1)]
    PQ = V_AQ
    def ppack(tile):
        a0 = V_MK + 4 * tile
        return [f"v_pk_add_f32 v[{a0}:{a0+1}], v[{a0}:{a0+1}], v[{a0+2}:{a0+3}]",
                f"v_cvt_pk_bf16_f32 v{PQ+tile}, v{a0}, v{a0+1}"]
    fill = {p: [] for p in range(16)}
    fill[0] += sbload(0, 3, 2); fill[4] += sbload(1, 3, 3); fill[8] += sbload(0, 0, 0); fill[12] += sbload(1, 0, 1)
    CAR = V_S
    fill[1] += [f"ds_read_b128 {vr(CAR,4)}, v{V_MEM} offset:{L_CA-L_MEMB}"]
    fill[6] += ppack(0); fill[9] += ppack(1); fill[11] += ppack(2); fill[13] += ppack(3)
    fill[14] += [f"buffer_store_dwordx4 v[{PQ}:{PQ+3}], v{V_PS}, {WSR}, s{S_PST0} offen"]
    fill[15] += ppack(6)
    for p, e in enumerate(oseq):
        tile, ks = e[1], e[2]
        bsrc = vr(V_SB + 8 * (e[3] & 1), 8) if e[0] == 'S' else wreg(3, tile >> 1, ks * 2 + (tile & 1))
        A(f"v_smfmac_f32_16x16x64_bf16 {vr(V_MK+4*tile,4)}, {vr(OF+4*ks,4)}, {bsrc}, v{V_IDX}")
        for x in fill[p]: A(x)
    for tl in (7, 4, 5):
        for x in ppack(tl): A(x)
    A(f"buffer_store_dwordx4 v[{PQ+4}:{PQ+7}], v{V_PS}, {WSR}, s{S_PST1} offen")
    stamp(7)
    ta = V_T + 1; tb = V_T + 2
    def poll2(name, regs, loadfn, mid=None, cnt=None, st=None, gap=()):
        def check():
            A(f"v_max3_u32 v{ta}, v{regs}, v{regs+1}, v{regs+2}")
            A(f"v_max3_u32 v{tb}, v{regs+4}, v{regs+5}, v{regs+6}")
            A(f"v_max_u32 v{ta}, v{ta}, v{regs+3}")
            if mid: mid(0)
            A(f"v_max_u32 v{tb}, v{tb}, v{regs+7}")
            if mid: mid(1)
            A(f"v_cmp_eq_u32 s[{S_MA}:{S_MA+1}], -1, v{ta}")
            A(f"v_cmp_eq_u32 s[{S_MB}:{S_MB+1}], -1, v{tb}")
            A(f"s_or_b64 s[{S_MT}:{S_MT+1}], s[{S_MA}:{S_MA+1}], s[{S_MB}:{S_MB+1}]")
            A(f"s_cbranch_scc0 L_{name}ok")
        def round_():
            A(f"s_or_b32 s{S_MA}, s{S_MA}, 1")
            A(f"s_or_b32 s{S_MB}, s{S_MB}, 1")
            A.auto = False
            A(f"s_mov_b64 exec, s[{S_MA}:{S_MA+1}]")
            loadfn(0)
            A(f"s_mov_b64 exec, s[{S_MB}:{S_MB+1}]")
            loadfn(1)
            A(f"s_mov_b64 exec, -1")
            A.auto = True
        A(f"s_mov_b32 s{S_TO}, 0")
        for x in gap: A(x)
        A.auto = False
        loadfn(0); loadfn(1)
        A.auto = True
        A(f"s_waitcnt vmcnt(2)")
        if st is not None: stamp(st)
        A.forget()
        check()
        A.label(f"L_{name}loop")
        round_()
        A(f"s_add_u32 s{S_TO}, s{S_TO}, 1")
        A(f"s_cmp_gt_u32 s{S_TO}, 0x40000")
        A(f"s_cbranch_scc1 L_bail")
        A(f"s_waitcnt vmcnt(2)")
        A.forget()
        check()
        A(f"s_branch L_{name}loop")
        A.label(f"L_{name}ok")
        A.forget()
        if cnt: cnt()
    PB = V_AK; RD = V_VX
    A(f"s_mov_b32 s{S_KEEP}, s{S_PLD}")
    A(f"s_mov_b32 s{S_EX}, s{S_POI}")
    A(f"s_mov_b32 s{S_EX+1}, s{S_VM}")
    A(f"s_mov_b32 s{S_PUB}, s{S_B1}")
    A(f"s_mov_b32 s{S_MPZ}, s{S_B2}")
    A(f"s_mov_b32 s{S_B2}, s{S_B0}")
    A(f"s_mov_b32 s{S_B0}, s{S_PUB}")
    A(f"s_mov_b32 s{S_B1}, s{S_MPZ}")
    A(f"s_xor_b32 s{S_PAR}, s{S_PAR}, 8192")
    A(f"s_add_u32 s{S_STEP}, s{S_STEP}, 1")
    A(f"s_add_u32 s{S_VM}, s{S_VM}, {32*4096}")
    A(f"s_mov_b32 s{S_T0}, s{S_R0}")
    A(f"s_mov_b32 s{S_R0}, s{S_R1}")
    A(f"s_mov_b32 s{S_R1}, s{S_R2}")
    A(f"s_mov_b32 s{S_R2}, s{S_T0}")
    for x in step_scalars(): A(x)
    if 'merged' in opt:
        A(f"s_cmp_ge_u32 s{S_FLG}, 128")
        A(f"s_cbranch_scc0 L_kvslow")
        A.label("L_kvok")
        A(f"s_add_u32 s{S_T0}, s{S_STEP}, 2")
        A(f"s_lshr_b32 s{S_T0}, s{S_T0}, 3")
        A(f"s_min_u32 s{S_T0}, s{S_T0}, 7")
        A(f"s_lshl_b32 s{S_T0}, s{S_T0}, 7")
        A(f"s_add_u32 s{S_FOFF}, s{S_T0}, {F_KV}")
    for x in zero(V_AQ, 8): A(x)
    for x in extra_delay: A(x)
    def h1load(q):
        A(f"buffer_load_dwordx4 v[{PB+4*q}:{PB+4*q+3}], v{V_PL}, {WSR}, s{S_KEEP} offen offset:{1024*q} sc1")
    if 'vdet' not in opt: stamp(8)
    h1load(0); h1load(1)
    def h1mid(i):
        if i == 0: A(f"v_mfma_f32_16x16x32_bf16 {vr(RD,4)}, {vr(CAR,4)}, {vr(PB,4)}, 0")
        else: A(f"v_mfma_f32_16x16x32_bf16 {vr(RD,4)}, {vr(CAR,4)}, {vr(PB+4,4)}, {vr(RD,4)}")
    poll2("h1", PB, h1load, mid=h1mid, st=(None if "vdet" in opt else 9), gap=["s_nop 0"] * g1)
    A("s_nop 2")
    if timing: A(f"s_add_u32 s{S_TACC+16}, s{S_TACC+16}, s{S_TO}")
    if 'rt' in opt: A(f"s_add_u32 s64, s64, s{S_TO}")
    stamp(10)
    for ror in (4, 8):
        for r in range(4):
            A(f"v_add_f32_dpp v{RD+r}, v{RD+r}, v{RD+r} row_ror:{ror} row_mask:0xf bank_mask:0xf")
    A(f"v_cvt_pk_bf16_f32 v{RD}, v{RD}, v{RD+1}")
    A(f"v_cvt_pk_bf16_f32 v{RD+1}, v{RD+2}, v{RD+3}")
    A(f"v_min_u32 v{RD}, -2, v{RD}")
    A(f"v_min_u32 v{RD+1}, -2, v{RD+1}")
    A(f"s_mov_b64 exec, 0xffffffff")
    A(f"buffer_store_dwordx2 v[{RD}:{RD+1}], v{V_MS}, {WSR}, s{S_PUB} offen")
    A(f"v_mov_b64 v[{RD+2}:{RD+3}], -1")
    A(f"buffer_store_dwordx2 v[{RD+2}:{RD+3}], v{V_MS}, {WSR}, s{S_MPZ} offen")
    A(f"s_mov_b64 exec, -1")
    for x in extra_delay2: A(x)
    def stage_mem():
        ML = V_S + 4
        def h2load(q):
            so = S_MSL if q == 0 else S_MPO
            A(f"buffer_load_dwordx4 v[{ML+4*q}:{ML+4*q+3}], v{V_MW}, {WSR}, s{so} offen sc1")
        if 'vdet' not in opt: stamp(11)
        h2load(0); h2load(1)
        poll2("h2", ML, h2load, st=(None if "vdet" in opt else 12), gap=["s_nop 0"] * g2)
        if timing: A(f"s_add_u32 s{S_TACC+17}, s{S_TACC+17}, s{S_TO}")
        if 'rt' in opt: A(f"s_add_u32 s65, s65, s{S_TO}")
        stamp(13)
        A(f"ds_write_b128 v{V_MW}, v[{ML}:{ML+3}]")
        A(f"ds_write_b128 v{V_MW}, v[{ML+4}:{ML+7}] offset:1024")
    stage_mem()
    for x in zero(V_AK, 8): A(x)
    A("@wait_writes")
    if 'steps' in opt:
        A(f"s_lshl_b32 s58, s{S_H}, 2")
        A(f"s_add_u32 s58, s58, s{S_WV}")
        A(f"s_lshl_b32 s58, s58, 6")
        A(f"s_add_u32 s58, s58, s{S_STEP}")
        A(f"s_lshl_b32 s58, s58, 2")
        A(f"s_add_u32 s58, s58, {WS_TIME - 4}")
        A(f"v_mov_b32 v{V_T}, s56")
        A(f"v_mov_b32 v{V_T+1}, 0")
        A(f"s_mov_b64 exec, 1")
        A(f"buffer_store_dword v{V_T}, v{V_T+1}, {WSR}, s58 offen")
        A(f"s_mov_b64 exec, -1")
    stamp(14)
    stamp_acc()
    A("s_barrier")
    A.settle()
    A.forget()
    A("s_branch L_step")
    if 'merged' in opt:
        A.label("L_kvslow")
        A(f"s_mov_b32 s{S_TO}, 0")
        A.label("L_kvslow2")
        A(f"buffer_load_dword v{V_T+1}, off, {WSR}, s{S_FOFF} sc1")
        A(f"s_add_u32 s{S_TO}, s{S_TO}, 1")
        A(f"s_cmp_gt_u32 s{S_TO}, 0x100000")
        A(f"s_cbranch_scc1 L_bail")
        A("s_waitcnt vmcnt(0)")
        A(f"v_cmp_gt_u32 vcc, 128, v{V_T+1}")
        A(f"s_cbranch_vccnz L_kvslow2")
        A.forget()
        A("s_branch L_kvok")
    A.label("L_last")
    if 'diag' in opt: dstamp(A, 7, True)
    A.settle()
    A(f"v_min_u32 v{V_AV+3}, -2, v{V_AV+6}")
    A(f"v_min_u32 v{V_AV+2}, -2, v{V_AV+2}")
    A(f"buffer_store_dwordx4 v[{V_AV}:{V_AV+3}], v{V_VMS}, {WSR}, s{S_VM} offen sc1")
    if 'rt' in opt:
        A.raw("    s_memtime s[60:61]")
        A.raw("    s_memrealtime s[62:63]")
        A.raw("    s_waitcnt lgkmcnt(0)")
        A(f"s_sub_u32 s56, s60, s56")
        A(f"s_sub_u32 s58, s62, s58")
        A(f"s_lshl_b32 s{S_T0}, s{S_H}, 2")
        A(f"s_add_u32 s{S_T0}, s{S_T0}, s{S_WV}")
        A(f"s_lshl_b32 s{S_T0}, s{S_T0}, 7")
        A(f"s_add_u32 s{S_T0}, s{S_T0}, {WS_TIME}")
        A(f"s_mov_b64 exec, 1")
        for k, r in enumerate((56, 58, 64, 65)):
            A(f"v_mov_b32 v{V_MK+1}, s{r}")
            A(f"v_mov_b32 v{V_MK}, {4*k}")
            A(f"buffer_store_dword v{V_MK+1}, v{V_MK}, {WSR}, s{S_T0} offen")
        A(f"s_mov_b64 exec, -1")
    A.wait(vm=0)
    if 'merged' in opt:
        A("s_barrier")
        A(f"s_cmp_lg_u32 s{S_WV}, 0")
        A(f"s_cbranch_scc1 L_end")
        A(f"v_mov_b32 v{V_T+1}, 64")
        A(f"s_mov_b64 exec, 1")
        A(f"buffer_store_dword v{V_T+1}, off, {WSR}, s{S_POFF} sc1")
        A.wait(vm=0)
    if timing:
        A(f"s_lshl_b32 s{S_T0}, s{S_H}, 2")
        A(f"s_add_u32 s{S_T0}, s{S_T0}, s{S_WV}")
        A(f"s_lshl_b32 s{S_T0}, s{S_T0}, 7")
        A(f"s_add_u32 s{S_T0}, s{S_T0}, {WS_TIME}")
        A(f"s_mov_b64 exec, 1")
        for k in range(18):
            A(f"v_mov_b32 v{V_T+1}, s{S_TACC+k}")
            A(f"v_mov_b32 v{V_T}, {4*k}")
            A(f"buffer_store_dword v{V_T+1}, v{V_T}, {WSR}, s{S_T0} offen")
        A.wait(vm=0)
    A("s_branch L_end")
    A.label("L_bail")
    A(f"s_mov_b64 exec, 1")
    A(f"v_mov_b32 v{V_T}, 60")
    A(f"v_mov_b32 v{V_T+1}, 0xdead")
    A(f"buffer_store_dword v{V_T+1}, v{V_T}, s[{S_DBG}:{S_DBG+3}], 0 offen")
    A.wait(vm=0)
    A.label("L_end")
```

```python
import sys
from asmlib import *
from layout import *
from gemm import *
from ln import *
import ao
from ao import *
import chain
from chain import srd, emit_chain, S_PW, S_WS, S_DBG, S_H, S_WV, S_T2, L_X
from gen_gemm_test import khead, kdesc

DIAG3 = [False]
KNAME = "parallel_sum__memory_aug_recurrent_mem_tr__mixer_channel_mlp__prompt_kernel"
T_KV = 128
T_H = T_KV + 224
T_Q = T_H + 56
T_M2 = T_Q + 128
NT2 = T_M2 + 64
KVT = 128
NYP = 4
HOLD_FROM = 600; HOLD_CNT = 128
PREF = 0
P_X = 72; P_B2 = 74; P_OUT = 76; P_W2 = 78; P_WO = 80
W_TASK = 28; W_NEXT = 29; W_TO = 82; W_T = 83; W_T2 = 84; W_SIG = 85; W_PAR = 86; W_PREV = 87; W_NP = 88; W_INC = 90; W_KIND = 91; W_INI = 93; W_LAST = 96
INIT_TICKET = 64
LNT = 16
WSR = "s[4:7]"; DBG = "s[12:15]"
LDS_BC = 163840 - 16

def spin(A, name, load, cmp_fail, limit=0x200000):
    A(f"s_cmp_lg_u32 s{G_WV}, 0")
    A(f"s_cbranch_scc1 L_{name}_j")
    A(f"s_mov_b32 s{W_TO}, 0")
    A.label(f"L_{name}_p")
    A(load)
    A(f"s_add_u32 s{W_TO}, s{W_TO}, 1")
    A(f"s_cmp_gt_u32 s{W_TO}, {limit}")
    A(f"s_cbranch_scc1 L_wbail")
    A("s_waitcnt vmcnt(0)")
    A(cmp_fail)
    A(f"s_cbranch_vccz L_{name}_j")
    A("s_sleep 2")
    A(f"s_branch L_{name}_p")
    A.label(f"L_{name}_j")
    A.forget()
    A("s_barrier")

def wait_ws_ge(A, name, soff, val):
    spin(A, name, f"buffer_load_dword v31, off, {WSR}, s{soff} sc1", f"v_cmp_gt_u32 vcc, {val}, v31")

def signal_ws(A, name, soff, inc=None):
    A("s_waitcnt vmcnt(0)")
    A.forget()
    A("s_barrier")
    A(f"s_cmp_lg_u32 s{G_WV}, 0")
    A(f"s_cbranch_scc1 L_{name}_s")
    A(f"s_cmp_lg_u32 s{W_INI}, 0")
    A(f"s_cbranch_scc1 L_{name}_i")
    A(f"s_mov_b32 s{W_TO}, 0")
    A.label(f"L_{name}_ip")
    A(f"buffer_load_dword v31, off, {DBG}, 0 offset:{D_INIT} sc1")
    A(f"s_add_u32 s{W_TO}, s{W_TO}, 1")
    A(f"s_cmp_gt_u32 s{W_TO}, 0x200000")
    A("s_cbranch_scc1 L_wbail")
    A("s_waitcnt vmcnt(0)")
    A("v_cmp_eq_u32 vcc, 0, v31")
    A(f"s_cbranch_vccnz L_{name}_ip")
    A(f"s_mov_b32 s{W_INI}, 1")
    A.label(f"L_{name}_i")
    A("v_mov_b32 v31, 1" if inc is None else f"v_mov_b32 v31, s{inc}")
    A("s_mov_b64 exec, 1")
    A(f"buffer_atomic_add v31, off, {WSR}, s{soff}")
    A("s_mov_b64 exec, -1")
    A.label(f"L_{name}_s")
    A.forget()

def fetch_ticket(A, name, dbg_off, dst, soff=None):
    A(f"s_cmp_lg_u32 s{G_WV}, 0")
    A(f"s_cbranch_scc1 L_{name}_t")
    A("v_mov_b32 v31, 1")
    A("s_mov_b64 exec, 1")
    A(f"buffer_atomic_add v31, off, {DBG}, {0 if soff is None else 's%d' % soff} offset:{dbg_off} sc0")
    A("s_waitcnt vmcnt(0)")
    A(f"v_mov_b32 v30, {LDS_BC}")
    A("ds_write_b32 v30, v31")
    A("s_waitcnt lgkmcnt(0)")
    A("s_mov_b64 exec, -1")
    A.label(f"L_{name}_t")
    A.forget()
    A("s_barrier")
    A(f"v_mov_b32 v30, {LDS_BC}")
    A("ds_read_b32 v31, v30")
    A.wait(lg=0)
    A(f"v_readfirstlane_b32 s{dst}, v31")
    A("s_barrier")

def prog_wait(A):
    saved = [set(x) for x in A.vm]; savedl = [set(x) for x in A.lgkm]
    A(f"s_cmp_lg_u32 s{G_WV}, 0")
    A("s_cbranch_scc1 L_ap_j")
    A(f"s_lshl_b32 s{W_T2}, s{O_KC}, 9")
    A(f"s_add_u32 s{W_T2}, s{W_T2}, {F_PROG}")
    A(f"v_and_b32 v30, 3, v{OV_L}")
    A("v_lshlrev_b32 v30, 7, v30")
    A(f"s_mov_b32 s{W_TO}, 0")
    A.label("L_ap_p")
    A.auto = False
    A(f"buffer_load_dword v31, v30, {WSR}, s{W_T2} offen sc1")
    A.auto = True
    A(f"s_add_u32 s{W_TO}, s{W_TO}, 1")
    A(f"s_cmp_gt_u32 s{W_TO}, 0x400000")
    A("s_cbranch_scc1 L_wbail")
    A("s_waitcnt vmcnt(0)")
    A(f"v_cmp_ge_u32 vcc, s{O_SEG}, v31")
    A("s_cbranch_vccz L_ap_j")
    A("s_sleep 2")
    A("s_branch L_ap_p")
    A.label("L_ap_j")
    A.vm = saved; A.lgkm = savedl
    A("s_barrier")

def red_flag_addrs(A, seg_sreg):
    A(f"s_lshl_b32 s{W_T}, s{seg_sreg}, 2")
    A(f"s_add_u32 s{W_T}, s{W_T}, s{O_NC}")
    A(f"s_lshl_b32 s{W_T}, s{W_T}, 7")
    A(f"s_add_u32 s{W_T}, s{W_T}, {F_R}")
    A(f"s_lshr_b32 s{W_T2}, s{seg_sreg}, 3")
    A(f"s_lshl_b32 s{W_T2}, s{W_T2}, 7")
    A(f"s_add_u32 s{W_T2}, s{W_T2}, {F_Y}")
    A(f"v_and_b32 v28, 1, v{OV_L}")
    A("v_cmp_eq_u32 vcc, 0, v28")
    A(f"v_mov_b32 v30, s{W_T2}")
    A(f"v_mov_b32 v29, s{W_T}")
    A("v_cndmask_b32 v30, v30, v29, vcc")
    A("v_mov_b32 v29, 8")
    A("v_mov_b32 v28, 8")
    A("v_cndmask_b32 v29, v29, v28, vcc")

def ao_reduce(A, seg_sreg, tag, wait=True):
    t0 = OV_T; t1 = OV_T + 1
    if wait:
        red_flag_addrs(A, seg_sreg)
        if wait == 'data': A("v_mov_b32 v28, 0"); A(f"v_and_b32 v27, 1, v{OV_L}"); A("v_cmp_eq_u32 vcc, 0, v27"); A("v_cndmask_b32 v29, v29, v28, vcc")
        A(f"s_mov_b32 s{W_TO}, 0")
        A.label(f"L_rw{tag}")
        A(f"buffer_load_dword v31, v30, {WSR}, 0 offen sc1")
        A(f"s_add_u32 s{W_TO}, s{W_TO}, 1")
        A(f"s_cmp_gt_u32 s{W_TO}, 0x400000")
        A("s_cbranch_scc1 L_wbail")
        A("s_waitcnt vmcnt(0)")
        A("v_cmp_gt_u32 vcc, v29, v31")
        A.forget()
        A(f"s_cbranch_vccnz L_rw{tag}")
    A(f"s_lshl_b32 s{W_T}, s{seg_sreg}, 2")
    A(f"s_add_u32 s{W_T}, s{W_T}, s{O_NC}")
    A(f"s_lshl_b32 s{W_T}, s{W_T}, 17")
    A(f"s_add_u32 s{W_T}, s{W_T}, {WS_PART}")
    A(f"s_lshl_b32 s{O_T0}, s{O_KC}, 2")
    A(f"s_add_u32 s{O_T0}, s{O_T0}, s{O_WV}")
    A(f"s_lshl_b32 s{O_T1}, s{O_T0}, 9")
    A(f"s_add_u32 s{W_T}, s{W_T}, s{O_T1}")
    A(f"v_lshlrev_b32 v{t0}, 3, v{OV_L}")
    R = OV_Q
    def ploads():
        for kc in range(8):
            A(f"s_add_u32 s{O_T1}, s{W_T}, {kc*16384}")
            A(f"buffer_load_dwordx2 v[{R+2*kc}:{R+2*kc+1}], v{t0}, {WSR}, s{O_T1} offen sc1")
    if wait == 'data':
        A(f"s_mov_b32 s{W_TO}, 0")
        A.label(f"L_rd{tag}")
        ploads()
        A(f"s_add_u32 s{W_TO}, s{W_TO}, 1")
        A(f"s_cmp_gt_u32 s{W_TO}, 0x400000")
        A("s_cbranch_scc1 L_wbail")
        A.wait(vm=0)
        A(f"v_max3_u32 v{t1}, v{R}, v{R+1}, v{R+2}")
        for i in range(3, 15, 2): A(f"v_max3_u32 v{t1}, v{t1}, v{R+i}, v{R+i+1}")
        A(f"v_max_u32 v{t1}, v{t1}, v{R+15}")
        A(f"v_cmp_eq_u32 vcc, -1, v{t1}")
        A(f"s_cbranch_vccnz L_rd{tag}")
        A.forget()
    else:
        ploads()
    A(f"s_lshl_b32 s{O_T1}, s{seg_sreg}, 5")
    A(f"s_add_u32 s{O_T0}, s{O_T0}, s{O_T1}")
    A(f"s_lshl_b32 s{O_T1}, s{O_T0}, 11")
    A(f"s_lshl_b32 s{O_T2}, s{O_NC}, 9")
    A(f"s_add_u32 s{O_T1}, s{O_T1}, s{O_T2}")
    A(f"s_add_u32 s{O_T1}, s{O_T1}, {WS_Y}")
    for pl in range(NYP):
        A(f"buffer_load_dwordx2 v[{R+16+2*pl}:{R+17+2*pl}], v{t0}, {WSR}, s{O_T1} offen sc1")
        if pl < NYP - 1: A(f"s_add_u32 s{O_T1}, s{O_T1}, {4*MB}")
    A(f"v_lshlrev_b32 v{t1}, 2, v{OV_L}")
    A(f"s_lshl_b32 s{O_T1}, s{O_T0}, 10")
    A(f"s_lshl_b32 s{O_T2}, s{O_NC}, 8")
    A(f"s_add_u32 s{O_T1}, s{O_T1}, s{O_T2}")
    A(f"buffer_load_dword v{R+24}, v{t1}, s[56:59], s{O_T1} offen")
    A(f"buffer_load_dword v{R+25}, v{t1}, s[60:63], s{O_T2} offen")
    A(f"v_pk_add_f32 v[{R}:{R+1}], v[{R}:{R+1}], v[{R+2}:{R+3}]")
    for k in range(2, 8 + NYP):
        A(f"v_pk_add_f32 v[{R}:{R+1}], v[{R}:{R+1}], v[{R+2*k}:{R+2*k+1}]")
    for src in (R + 24, R + 25):
        A(f"v_lshlrev_b32 v{R+26}, 16, v{src}")
        A(f"v_and_b32 v{R+27}, 0xffff0000, v{src}")
        A(f"v_pk_add_f32 v[{R}:{R+1}], v[{R}:{R+1}], v[{R+26}:{R+27}]")
    A(f"v_cvt_pk_bf16_f32 v{R}, v{R}, v{R+1}")
    A(f"buffer_store_dword v{R}, v{t1}, s[64:67], s{O_T1} offen")

DBGMAP = {0: 2, 14: 3, 10: 4, 13: 5, 6: 6, 7: 7, 12: 8, 1: 10}
def dstamp(A, idx, diag, sreg_idx=None, cyc=False):
    if not diag: return
    if DIAG3[0]:
        if idx not in DBGMAP or sreg_idx is not None or cyc: return
        lb = A.newlabel("L_ds")
        A.raw("    s_memrealtime s[98:99]")
        A.raw("    s_waitcnt lgkmcnt(0)")
        A(f"s_cmp_lg_u32 s27, 0")
        A(f"s_cbranch_scc1 {lb}")
        A("v_mov_b32 v30, s98")
        A("s_mov_b64 exec, 1")
        if idx == 0:
            A("v_not_b32 v30, v30")
        A(f"buffer_atomic_umax v30, off, s[12:15], 0 offset:{4*DBGMAP[idx]}")
        A("s_mov_b64 exec, -1")
        A.vm.pop()
        A.label(lb)
        return
    lb = A.newlabel("L_ds")
    A.raw("    s_memtime s[98:99]" if cyc else "    s_memrealtime s[98:99]")
    A.raw("    s_waitcnt lgkmcnt(0)")
    A(f"s_cmp_lg_u32 s27, 0")
    A(f"s_cbranch_scc1 {lb}")
    A(f"s_lshl_b32 s100, s2, 9")
    if sreg_idx is not None:
        A(f"s_lshl_b32 s101, s{sreg_idx}, 2")
        A(f"s_add_u32 s100, s100, s101")
    A(f"s_add_u32 s100, s100, {WS_TIME + 4*idx}")
    A("v_mov_b32 v30, s98")
    A("s_mov_b64 exec, 1")
    A(f"buffer_store_dword v30, off, s[4:7], s100")
    A("s_mov_b64 exec, -1")
    A.vm.pop()
    A.label(lb)

def main_kernel(d1, d2, g1, g2, NPAR=6, diag=0):
    DIAG3[0] = (diag == 3)
    A = Asm()
    A("s_cmp_ge_u32 s2, 256")
    A("s_cbranch_scc1 L_end")
    A(f"s_load_dwordx2 s[{S_PW}:{S_PW+1}], s[0:1], {KA_WQ}")
    A(f"s_load_dwordx2 s[{S_PW+2}:{S_PW+3}], s[0:1], {KA_WK}")
    A(f"s_load_dwordx2 s[{S_PW+4}:{S_PW+5}], s[0:1], {KA_WV}")
    A(f"s_load_dwordx2 s[{S_PW+6}:{S_PW+7}], s[0:1], {KA_WO}")
    A(f"s_load_dwordx2 s[{S_PW+8}:{S_PW+9}], s[0:1], {KA_MEM0}")
    A(f"s_load_dwordx2 s[52:53], s[0:1], {KA_DBG}")
    A(f"s_load_dwordx2 s[54:55], s[0:1], {KA_WS}")
    A(f"s_load_dwordx2 s[56:57], s[0:1], {KA_X}")
    A(f"s_getreg_b32 s{S_T2}, hwreg(HW_REG_XCC_ID)")
    A(f"v_lshrrev_b32 v1, 6, v0")
    A(f"v_readfirstlane_b32 s{S_WV}, v1")
    A.wait(lg=0)
    srd(A, S_WS, 54, WS_SIZE)
    srd(A, S_DBG, 52, 256)
    A(f"s_and_b32 s60, s{S_T2}, 15")
    dstamp(A, 0, diag)
    A("s_cmp_lg_u32 s2, 0")
    A("s_cbranch_scc1 L_noinit")
    for i in range(4): A(f"v_mov_b32 v{60+i}, 0")
    A("v_lshlrev_b32 v64, 4, v0")
    for i in range(FLAG_BYTES // 4096):
        A(f"s_mov_b32 s61, {WS_FLAG + i*4096}")
        A(f"buffer_store_dwordx4 v[60:63], v64, {WSR}, s61 offen sc1")
    A.label("L_noinit")
    A.forget()
    A(f"s_cmp_eq_u32 s60, 0")
    A(f"s_cselect_b32 s29, {D_CTK}, {D_WTK}")
    fetch_ticket(A, "tk", 0, S_H, soff=29)
    A("s_cmp_lg_u32 s2, 0")
    A("s_cbranch_scc1 L_noinit2")
    A("s_waitcnt vmcnt(0)")
    A("s_barrier")
    A(f"s_cmp_lg_u32 s{S_WV}, 0")
    A("s_cbranch_scc1 L_noinit2")
    A("v_mov_b32 v64, 1")
    A("s_mov_b64 exec, 1")
    A(f"buffer_store_dword v64, off, {DBG}, 0 offset:{D_INIT} sc1")
    A("s_mov_b64 exec, -1")
    A.label("L_noinit2")
    A.forget()
    A(f"s_cmp_lg_u32 s60, 0")
    A("s_cbranch_scc1 L_worker")
    A(f"s_cmp_ge_u32 s{S_H}, 32")
    A("s_cbranch_scc1 L_xs")
    emit_chain(A, d1=d1, d2=d2, g1=g1, g2=g2, opt=('merged',) + (('diag',) if diag else ()) + (('nostep',) if diag in (2, 3) else ()), dstamp=dstamp)
    A("s_endpgm")

    A.label("L_xs")
    fetch_ticket(A, "xtk", D_WTK, S_H)
    A.label("L_worker")
    A.forget()
    A(f"s_mov_b32 s{W_TASK}, s{S_H}")
    A(f"s_mov_b32 s{P_WO}, s{S_PW+6}"); A(f"s_mov_b32 s{P_WO+1}, s{S_PW+7}")
    A(f"s_mov_b32 s{P_X}, s56"); A(f"s_mov_b32 s{P_X+1}, s57")
    A(f"s_load_dwordx2 s[22:23], s[0:1], {KA_W1}")
    A(f"s_load_dwordx2 s[24:25], s[0:1], {KA_B1}")
    A(f"s_load_dwordx2 s[{P_B2}:{P_B2+1}], s[0:1], {KA_B2}")
    A(f"s_load_dwordx2 s[{P_OUT}:{P_OUT+1}], s[0:1], {KA_OUT}")
    A(f"s_load_dwordx2 s[{P_W2}:{P_W2+1}], s[0:1], {KA_W2}")
    A.wait(lg=0)
    srd(A, G_SRDX, 24, 1792 * 2)
    gemm_setup_lane(A)
    A(f"s_mov_b32 s{W_INI}, 1")
    if PREF:
        A(f"s_cmp_lt_u32 s{W_TASK}, 160")
        A("s_cbranch_scc1 L_nopref")
        A(f"s_cmp_ge_u32 s{W_TASK}, 224")
        A("s_cbranch_scc1 L_nopref")
        A(f"s_sub_u32 s30, s{W_TASK}, 160")
        A("s_lshl_b32 s30, s30, 14")
        A(f"s_lshl_b32 s31, s{G_WV}, 12")
        A("s_add_u32 s30, s30, s31")
        A(f"v_lshlrev_b32 v32, 4, v{GV_LANE}")
        blocks = [(16,0),(16,1),(16,2),(18,0),(18,1),(18,2),(20,0),(20,1),(20,2),(P_WO,0),(P_WO,1),(P_WO,2),(P_WO,3),(16,3),(18,3),(20,3)]
        n = 0
        for (ptr, mb) in blocks:
            srd(A, 8, ptr, 4194304)
            A(f"s_add_u32 s31, s30, {mb << 20}")
            for q in range(4):
                r = 36 + 4 * (n % 16); n += 1
                A.auto = False
                A(f"buffer_load_dwordx4 v[{r}:{r+3}], v32, s[8:11], s31 offen offset:{q*1024}")
                A.auto = True
            if len(A.vm) > 48: A.wait(vm=32)
        A.wait(vm=0)
        A.label("L_nopref")
        A.forget()
    assert (64 - TAIL_SEG) * 32 * 4096 == 96 * 8192
    A(f"s_cmp_lt_u32 s{W_TASK}, 128")
    A("s_cbranch_scc1 L_nokvp")
    A(f"s_cmp_ge_u32 s{W_TASK}, 224")
    A("s_cbranch_scc1 L_nokvp")
    for i in range(4): A(f"v_mov_b32 v{32+i}, -1")
    A("v_lshlrev_b32 v36, 4, v0")
    A(f"s_sub_u32 s30, s{W_TASK}, 128")
    A("s_lshl_b32 s30, s30, 13")
    A(f"s_add_u32 s30, s30, {WS_KVM + TAIL_SEG*32*4096}")
    A(f"buffer_store_dwordx4 v[32:35], v36, {WSR}, s30 offen sc1")
    A("s_add_u32 s30, s30, 4096")
    A(f"buffer_store_dwordx4 v[32:35], v36, {WSR}, s30 offen sc1")
    A.label("L_nokvp")
    A.forget()
    A(f"s_cmp_ge_u32 s{W_TASK}, 128")
    A("s_cbranch_scc1 L_noln")
    srd(A, 8, P_X, 2048 * 512 * 2)
    A(f"s_lshl_b32 s30, s{W_TASK}, 4")
    A(f"s_lshl_b32 s31, s{G_WV}, 2")
    A("s_add_u32 s30, s30, s31")
    emit_ln_rows(A, 8, 4, 30, 4, GV_LANE, SO=94)
    A("s_waitcnt vmcnt(0)")
    A.forget()
    A("s_barrier")
    A.label("L_noln")
    A(f"s_cmp_lg_u32 s{G_WV}, 0")
    A("s_cbranch_scc1 L_lnsig")
    A(f"s_mov_b32 s62, 0")
    A.label("L_ln_ip")
    A(f"buffer_load_dword v31, off, {DBG}, 0 offset:{D_INIT} sc1")
    A("s_add_u32 s62, s62, 1")
    A("s_cmp_gt_u32 s62, 0x200000")
    A("s_cbranch_scc1 L_wbail")
    A("s_waitcnt vmcnt(0)")
    A("v_cmp_eq_u32 vcc, 0, v31")
    A("s_cbranch_vccnz L_ln_ip")
    A(f"s_cmp_ge_u32 s{W_TASK}, 128")
    A("s_cbranch_scc1 L_lnsig")
    A(f"s_lshr_b32 s30, s{W_TASK}, 4")
    A("s_lshl_b32 s30, s30, 7")
    A(f"s_add_u32 s30, s30, {F_LN}")
    A("v_mov_b32 v31, 1")
    A("s_mov_b64 exec, 1")
    A(f"buffer_atomic_add v31, off, {WSR}, s30")
    A("s_mov_b64 exec, -1")
    A.label("L_lnsig")
    A.forget()
    dstamp(A, 1, diag)
    A(f"s_mov_b32 s89, 0")
    A.label("L_g1_next")
    A(f"s_cmp_ge_u32 s{W_TASK}, {NT2}")
    A("s_cbranch_scc1 L_ao_role")
    A(f"s_cmp_ge_u32 s{W_TASK}, {T_M2}")
    A("s_cbranch_scc1 L_m2")
    t = W_TASK
    A(f"s_mov_b32 s{G_LDA}, 1024")
    A(f"s_mov_b32 s{G_NST}, 8")
    A(f"s_mov_b32 s{G_SZA}, {WS_SIZE}")
    A(f"s_mov_b32 s{G_SRDA}, s4"); A(f"s_mov_b32 s{G_SRDA+1}, s5"); A(f"s_mov_b32 s{G_SRDA+3}, 0x20000")
    A(f"s_mov_b32 s{G_SRDC}, s4"); A(f"s_mov_b32 s{G_SRDC+1}, s5"); A(f"s_mov_b32 s{G_SRDC+2}, {WS_SIZE}"); A(f"s_mov_b32 s{G_SRDC+3}, 0x20000")
    A(f"s_mov_b32 s{G_SRDB+3}, 0x20000")
    A(f"s_mov_b32 s{W_INC}, 1")
    A(f"s_cmp_ge_u32 s{t}, {T_Q}")
    A("s_cbranch_scc1 L_dec_q")
    A(f"s_cmp_ge_u32 s{t}, {T_H}")
    A("s_cbranch_scc1 L_dec_h")
    A(f"s_mov_b32 s{G_LDB}, 8192")
    A(f"s_mov_b32 s{G_SZB}, 4194304")
    A(f"s_mov_b32 s{G_LDC}, 8192")
    A(f"s_cmp_lt_u32 s{t}, {T_KV}")
    A("s_cbranch_scc1 L_kv_small")
    A(f"s_sub_u32 s{W_T}, s{t}, {T_KV - 32}")
    A(f"s_and_b32 s{G_T1}, s{W_T}, 15")
    A(f"s_lshl_b32 s{G_BOFF}, s{G_T1}, 9")
    A(f"s_lshl_b32 s{G_T2}, s{G_T1}, 14")
    A(f"s_bfe_u32 s{W_KIND}, s{W_T}, 0x10004")
    A(f"s_lshr_b32 s{W_T2}, s{W_T}, 5")
    A(f"s_lshl_b32 s{W_T}, s{W_T2}, 1")
    A(f"s_mov_b32 s{W_INC}, 4")
    A("s_branch L_kv_common")
    A.label("L_kv_small")
    A(f"s_and_b32 s{G_T1}, s{t}, 31")
    A(f"s_lshl_b32 s{G_BOFF}, s{G_T1}, 8")
    A(f"s_lshl_b32 s{G_T2}, s{G_T1}, 13")
    A(f"s_bfe_u32 s{W_KIND}, s{t}, 0x10005")
    A(f"s_lshr_b32 s{W_T}, s{t}, 6")
    A(f"s_mov_b32 s{W_T2}, 0")
    A.label("L_kv_common")
    A(f"s_lshl_b32 s{G_AOFF}, s{W_T}, 17")
    A(f"s_add_u32 s{G_AOFF}, s{G_AOFF}, {WS_XN}")
    A(f"s_lshl_b32 s{W_SIG}, s{W_T2}, 7")
    A(f"s_add_u32 s{W_SIG}, s{W_SIG}, {F_KV}")
    A(f"s_lshl_b32 s{G_COFF}, s{W_T}, 20")
    A(f"s_cmp_eq_u32 s{W_KIND}, 1")
    A("s_cbranch_scc1 L_dec_v")
    A(f"s_mov_b32 s{G_SRDB}, s18"); A(f"s_and_b32 s{G_SRDB+1}, s19, 0xffff")
    A(f"s_add_u32 s{G_COFF}, s{G_COFF}, s{G_BOFF}")
    A(f"s_add_u32 s{G_COFF}, s{G_COFF}, {WS_KX}")
    A("s_branch L_lnwait")
    A.label("L_dec_v")
    A(f"s_mov_b32 s{G_SRDB}, s20"); A(f"s_and_b32 s{G_SRDB+1}, s21, 0xffff")
    A(f"s_add_u32 s{G_COFF}, s{G_COFF}, s{G_T2}")
    A(f"s_add_u32 s{G_COFF}, s{G_COFF}, {WS_VT}")
    A("s_branch L_lnwait")
    A.label("L_dec_q")
    A(f"s_sub_u32 s{W_T}, s{t}, {T_Q}")
    A(f"s_and_b32 s{G_T1}, s{W_T}, 15")
    A(f"s_lshr_b32 s{W_T2}, s{W_T}, 4")
    A(f"s_mov_b32 s{G_LDB}, 8192")
    A(f"s_mov_b32 s{G_SZB}, 4194304")
    A(f"s_lshl_b32 s{G_BOFF}, s{G_T1}, 9")
    A(f"s_mov_b32 s{G_LDC}, 8192")
    A(f"s_lshl_b32 s{G_AOFF}, s{W_T2}, 18")
    A(f"s_add_u32 s{G_AOFF}, s{G_AOFF}, {WS_XN}")
    A(f"s_mov_b32 s{G_SRDB}, s16"); A(f"s_and_b32 s{G_SRDB+1}, s17, 0xffff")
    A(f"s_lshl_b32 s{G_COFF}, s{W_T2}, 21")
    A(f"s_add_u32 s{G_COFF}, s{G_COFF}, s{G_BOFF}")
    A(f"s_add_u32 s{G_COFF}, s{G_COFF}, {WS_QX}")
    A(f"s_lshl_b32 s{W_SIG}, s{W_T2}, 7")
    A(f"s_add_u32 s{W_SIG}, s{W_SIG}, {F_Q}")
    A(f"s_mov_b32 s{W_KIND}, 0")
    A("s_branch L_lnwait")
    A.label("L_dec_h")
    A(f"s_sub_u32 s{G_T1}, s{t}, {T_H}")
    A(f"s_mul_i32 s{W_T2}, s{G_T1}, 37")
    A(f"s_lshr_b32 s{W_T2}, s{W_T2}, 8")
    A(f"s_mul_i32 s{G_T2}, s{W_T2}, 7")
    A(f"s_sub_u32 s{G_T1}, s{G_T1}, s{G_T2}")
    A(f"s_lshl_b32 s{G_AOFF}, s{W_T2}, 18")
    A(f"s_add_u32 s{G_AOFF}, s{G_AOFF}, {WS_XN}")
    A(f"s_mov_b32 s{G_LDB}, 3584")
    A(f"s_mov_b32 s{G_SZB}, {512*1792*2}")
    A(f"s_lshl_b32 s{G_BOFF}, s{G_T1}, 9")
    A(f"s_mov_b32 s{G_AUX}, s{G_BOFF}")
    A(f"s_mov_b32 s{G_SRDB}, s22"); A(f"s_and_b32 s{G_SRDB+1}, s23, 0xffff")
    A(f"s_mov_b32 s{G_LDC}, 3584")
    A(f"s_mul_i32 s{G_COFF}, s{W_T2}, {256*3584}")
    A(f"s_add_u32 s{G_COFF}, s{G_COFF}, s{G_BOFF}")
    A(f"s_add_u32 s{G_COFF}, s{G_COFF}, {WS_HB}")
    A(f"s_lshl_b32 s{W_SIG}, s{W_T2}, 7")
    A(f"s_add_u32 s{W_SIG}, s{W_SIG}, {F_H}")
    A(f"s_mov_b32 s{W_KIND}, 2")
    A.label("L_lnwait")
    A(f"s_cmp_lt_u32 s{t}, {HOLD_FROM}")
    A("s_cbranch_scc1 L_nohold")
    A(f"s_mov_b32 s30, {F_KV}")
    wait_ws_ge(A, "hold", 30, HOLD_CNT)
    A.label("L_nohold")
    A.forget()
    A(f"s_lshl_b32 s30, s{W_T2}, 7")
    A(f"s_add_u32 s30, s30, {F_LN}")
    wait_ws_ge(A, "lnw", 30, LNT)
    A(f"s_cmp_eq_u32 s{W_KIND}, 2")
    A("s_cbranch_scc1 L_task_h")
    A(f"s_cmp_lt_u32 s{t}, {T_KV}")
    A("s_cbranch_scc1 L_small")
    A(f"s_cmp_eq_u32 s{W_KIND}, 1")
    A("s_cbranch_scc1 L_task_v")
    A("s_branch L_task_k")
    A.label("L_small")
    A(f"s_cmp_eq_u32 s{W_KIND}, 1")
    A("s_cbranch_scc1 L_task_vs")
    A("s_branch L_task_ks")
    def run(tag, wT, epi, MI=4, halfB=False):
        A.label(f"L_task_{tag}")
        A.forget()
        if diag: A("s_lshl_b32 s92, s89, 2")
        dstamp(A, 96, diag, 92)
        gemm_task_addr(A, MI, halfB)
        gemm_start(A, sc1A=True, MI=MI)
        gemm_main(A, tag, wT, sc1A=True, MI=MI)
        dstamp(A, 97, diag, 92)
        epi()
        A.label(f"L_eskip_{tag}")
        A.forget()
        dstamp(A, 98, diag, 92)
        signal_ws(A, f"sg{tag}", W_SIG, inc=W_INC)
        dstamp(A, 80, diag, 89)
        A("s_add_u32 s89, s89, 1")
        A("s_branch L_fetch")
    run("ks", True, lambda: epi_rowmajor(A, MI=2, skip="L_eskip_ks"), MI=2, halfB=True)
    run("vs", False, lambda: epi_vt(A, MI=2, skip="L_eskip_vs"), MI=2, halfB=True)
    run("k", True, lambda: epi_rowmajor(A))
    run("v", False, lambda: epi_vt(A))
    run("h", True, lambda: epi_rowmajor(A, gelu=True))
    A.label("L_m2")
    A.forget()
    A(f"s_sub_u32 s{W_T}, s{W_TASK}, {T_M2}")
    A(f"s_lshr_b32 s{W_T2}, s{W_T}, 3")
    A(f"s_lshl_b32 s{W_T2}, s{W_T2}, 7")
    A(f"s_add_u32 s{W_SIG}, s{W_T2}, {F_Y}")
    A(f"s_add_u32 s{W_T2}, s{W_T2}, {F_H}")
    wait_ws_ge(A, "hw", W_T2, 7)
    A(f"s_mov_b32 s{W_INC}, 1")
    A(f"s_mov_b32 s{G_LDA}, 3584")
    A(f"s_mov_b32 s{G_NST}, 7")
    A(f"s_mov_b32 s{G_SZA}, {WS_SIZE}")
    A(f"s_mov_b32 s{G_SRDA}, s4"); A(f"s_mov_b32 s{G_SRDA+1}, s5"); A(f"s_mov_b32 s{G_SRDA+3}, 0x20000")
    A(f"s_mov_b32 s{G_SRDC}, s4"); A(f"s_mov_b32 s{G_SRDC+1}, s5"); A(f"s_mov_b32 s{G_SRDC+2}, {WS_SIZE}"); A(f"s_mov_b32 s{G_SRDC+3}, 0x20000")
    A(f"s_mov_b32 s{G_SRDB}, s{P_W2}"); A(f"s_and_b32 s{G_SRDB+1}, s{P_W2+1}, 0xffff"); A(f"s_mov_b32 s{G_SRDB+3}, 0x20000")
    A(f"s_mov_b32 s{G_LDB}, 1024")
    A(f"s_mov_b32 s{G_SZB}, {1792*512*2}")
    A(f"s_mov_b32 s{G_LDC}, 2048")
    A(f"s_and_b32 s{G_T0}, s{W_T}, 3")
    A(f"s_bfe_u32 s{G_T1}, s{W_T}, 0x10002")
    A(f"s_lshr_b32 s{G_T2}, s{W_T}, 3")
    A(f"s_mul_i32 s{G_AOFF}, s{G_T2}, {256*3584}")
    A(f"s_mul_i32 s{G_AUX}, s{G_T0}, 896")
    A(f"s_add_u32 s{G_AOFF}, s{G_AOFF}, s{G_AUX}")
    A(f"s_add_u32 s{G_AOFF}, s{G_AOFF}, {WS_HB}")
    A(f"s_mul_i32 s{G_BOFF}, s{G_T0}, {448*1024}")
    A(f"s_lshl_b32 s{G_AUX}, s{G_T1}, 9")
    A(f"s_add_u32 s{G_BOFF}, s{G_BOFF}, s{G_AUX}")
    A(f"s_lshl_b32 s{G_COFF}, s{G_T0}, 22")
    A(f"s_lshl_b32 s{G_AUX}, s{G_T2}, 19")
    A(f"s_add_u32 s{G_COFF}, s{G_COFF}, s{G_AUX}")
    A(f"s_lshl_b32 s{G_AUX}, s{G_T1}, 10")
    A(f"s_add_u32 s{G_COFF}, s{G_COFF}, s{G_AUX}")
    A(f"s_add_u32 s{G_COFF}, s{G_COFF}, {WS_Y}")
    run("m2", True, lambda: epi_f32(A))
    A.label("L_fetch")
    A.forget()
    fetch_ticket(A, "nxt", D_WTK, W_TASK)
    A("s_branch L_g1_next")

    A.label("L_ao_role")
    A.forget()
    spin(A, "ini", f"buffer_load_dword v31, off, {DBG}, 0 offset:{D_INIT} sc1", "v_cmp_eq_u32 vcc, 0, v31")
    fetch_ticket(A, "aot", D_AO, W_TASK)
    A(f"s_cmp_ge_u32 s{W_TASK}, {32*NPAR}")
    A("s_cbranch_scc1 L_end")
    A(f"s_and_b32 s{O_KC}, s{W_TASK}, 7")
    A(f"s_bfe_u32 s{O_NC}, s{W_TASK}, 0x20003")
    A(f"s_lshr_b32 s{O_SEG}, s{W_TASK}, 5")
    srd(A, 56, P_X, 2048 * 512 * 2); srd(A, 60, P_B2, 1024); srd(A, 64, P_OUT, 2048 * 512 * 2)
    dstamp(A, 10, diag)
    ao_prologue(A, P_WO)
    dstamp(A, 11, diag)
    A(f"s_sub_u32 s{W_T}, 63, s{O_SEG}")
    A(f"s_mul_i32 s{W_T2}, s{W_T}, {(65536 + NPAR - 1) // NPAR}")
    A(f"s_lshr_b32 s{W_T2}, s{W_T2}, 16")
    A(f"s_mul_i32 s{W_T2}, s{W_T2}, {NPAR}")
    A(f"s_add_u32 s{W_LAST}, s{W_T2}, s{O_SEG}")
    A(f"s_lshl_b32 s{W_T}, s{W_LAST}, 2")
    A(f"s_add_u32 s{W_T}, s{W_T}, s{O_NC}")
    A(f"s_lshl_b32 s{W_T}, s{W_T}, 3")
    A(f"s_add_u32 s{W_T}, s{W_T}, s{O_KC}")
    A(f"s_lshl_b32 s{W_T}, s{W_T}, 14")
    A(f"s_add_u32 s{W_T}, s{W_T}, {WS_PART}")
    for i in range(4): A(f"v_mov_b32 v{32+i}, -1")
    A("v_lshlrev_b32 v36, 4, v0")
    for i in range(4):
        A(f"s_add_u32 s{W_T2}, s{W_T}, {i*4096}")
        A(f"buffer_store_dwordx4 v[32:35], v36, {WSR}, s{W_T2} offen sc1")
    A.wait(vm=0)
    A(f"s_mov_b32 s{W_PREV}, s{O_SEG}")
    A(f"s_mov_b32 s{W_NP}, -1")
    A.label("L_ao_loop")
    A.forget()
    A(f"s_lshr_b32 s{W_T}, s{O_SEG}, 3")
    A(f"s_cmp_eq_u32 s{W_T}, s{W_NP}")
    A("s_cbranch_scc1 L_ao_rbok")
    A(f"s_mov_b32 s{W_NP}, s{W_T}")
    A(f"s_lshl_b32 s{W_T}, s{W_T}, 7")
    A(f"s_add_u32 s{W_T2}, s{W_T}, {F_Q}")
    wait_ws_ge(A, "aq", W_T2, 16)
    A(f"s_add_u32 s{W_T2}, s{W_T}, {F_KV}")
    wait_ws_ge(A, "ak", W_T2, KVT)
    A.label("L_ao_rbok")
    A.forget()
    ao_segment(A, prog_wait=lambda: prog_wait(A))
    A(f"s_cmp_eq_u32 s{O_SEG}, s{W_LAST}")
    A("s_cbranch_scc1 L_ao_nosig")
    A(f"s_lshl_b32 s{W_T}, s{O_SEG}, 2")
    A(f"s_add_u32 s{W_T}, s{W_T}, s{O_NC}")
    A(f"s_lshl_b32 s{W_T}, s{W_T}, 7")
    A(f"s_add_u32 s{W_SIG}, s{W_T}, {F_R}")
    signal_ws(A, "sgr", W_SIG)
    A.label("L_ao_nosig")
    A.forget()
    dstamp(A, 16, diag, O_SEG)
    A(f"s_add_u32 s{O_SEG}, s{O_SEG}, {NPAR}")
    A.label("L_ao_red")
    A.forget()
    A(f"s_add_u32 s{W_T}, s{W_PREV}, {NPAR}")
    A(f"s_cmp_ge_u32 s{W_T}, s{O_SEG}")
    A("s_cbranch_scc1 L_ao_rdone")
    red_flag_addrs(A, W_PREV)
    A(f"buffer_load_dword v31, v30, {WSR}, 0 offen sc1")
    A("s_waitcnt vmcnt(0)")
    A(f"v_cmp_gt_u32 vcc, v29, v31")
    A.forget()
    A("s_cbranch_vccnz L_ao_rdone")
    ao_reduce(A, W_PREV, "a", wait=False)
    A(f"s_add_u32 s{W_PREV}, s{W_PREV}, {NPAR}")
    A.settle()
    A("s_branch L_ao_red")
    A.label("L_ao_rdone")
    A.forget()
    A(f"s_cmp_lt_u32 s{O_SEG}, 64")
    A.settle()
    A("s_cbranch_scc1 L_ao_loop")
    A.label("L_ao_fin")
    A.forget()
    A(f"s_cmp_ge_u32 s{W_PREV}, s{W_LAST}")
    A("s_cbranch_scc1 L_ao_lastred")
    ao_reduce(A, W_PREV, "b", wait=True)
    A(f"s_add_u32 s{W_PREV}, s{W_PREV}, {NPAR}")
    A.settle()
    A("s_branch L_ao_fin")
    A.label("L_ao_lastred")
    A.forget()
    ao_reduce(A, W_PREV, "c", wait='data')
    A.label("L_ao_end")
    A("s_waitcnt vmcnt(0)")
    dstamp(A, 12, diag)
    A("s_endpgm")
    A.label("L_wbail")
    A("s_mov_b64 exec, 1")
    A("v_mov_b32 v31, 0xbeef")
    A(f"buffer_store_dword v31, off, {DBG}, 0 offset:56")
    A("s_waitcnt vmcnt(0)")
    A("s_endpgm")
    return A.text()

if __name__ == "__main__":
    kw = dict(d1=40, d2=45, g1=20, g2=20)
    for a in sys.argv[2:]:
        k, v = a.split('=')
        if k in ('HOLD_FROM', 'HOLD_CNT', 'PREF'): globals()[k] = int(v)
        else: kw[k] = int(v)
    hdr = open('parallel_sum__memory_aug_recurrent_mem_tr__mixer_channel_mlp__prompt.s.ref').read().split('; Override launch')[0]
    txt = hdr + f"; @launch kernel={KNAME} grid=(256,1,1) block=(256,1,1) lds=163840\n"
    txt += '.amdgcn_target "amdgcn-amd-amdhsa--gfx950"\n.text\n'
    txt += khead(KNAME) + main_kernel(**kw)
    txt += '.section .rodata,"a"\n.p2align 6\n' + kdesc(KNAME)
    open(sys.argv[1], "w").write(txt)
```

```python
import sys
from asmlib import *
from layout import *
from gemm import *
from ln import *
import ao
from ao import *
import chain
from chain import srd, emit_chain, S_PW, S_WS, S_DBG, S_H, S_WV, S_T2, L_X
from gen_gemm_test import khead, kdesc

DIAG3 = [False]
KNAME = "parallel_sum__memory_aug_recurrent_mem_tr__mixer_channel_mlp__prompt_kernel"
T_KV = 128
T_H = T_KV + 224
T_Q = T_H + 56
T_M2 = T_Q + 128
NT2 = T_M2 + 64
KVT = 128
NYP = 4
HOLD_FROM = 600; HOLD_CNT = 128
PREF = 0
PREF_ORDER = (18, 20, 80)
WARM = 0
WARM_CODE_KB = 32
P_X = 72; P_B2 = 74; P_OUT = 76; P_W2 = 78; P_WO = 80
W_TASK = 28; W_NEXT = 29; W_TO = 82; W_T = 83; W_T2 = 84; W_SIG = 85; W_PAR = 86; W_PREV = 87; W_NP = 88; W_INC = 90; W_KIND = 91; W_INI = 93; W_LAST = 96
INIT_TICKET = 64
LNT = 16
WSR = "s[4:7]"; DBG = "s[12:15]"
LDS_BC = 163840 - 16

def spin(A, name, load, cmp_fail, limit=0x200000):
    A(f"s_cmp_lg_u32 s{G_WV}, 0")
    A(f"s_cbranch_scc1 L_{name}_j")
    A(f"s_mov_b32 s{W_TO}, 0")
    A.label(f"L_{name}_p")
    A(load)
    A(f"s_add_u32 s{W_TO}, s{W_TO}, 1")
    A(f"s_cmp_gt_u32 s{W_TO}, {limit}")
    A(f"s_cbranch_scc1 L_wbail")
    A("s_waitcnt vmcnt(0)")
    A(cmp_fail)
    A(f"s_cbranch_vccz L_{name}_j")
    A("s_sleep 2")
    A(f"s_branch L_{name}_p")
    A.label(f"L_{name}_j")
    A.forget()
    A("s_barrier")

def wait_ws_ge(A, name, soff, val):
    spin(A, name, f"buffer_load_dword v31, off, {WSR}, s{soff} sc1", f"v_cmp_gt_u32 vcc, {val}, v31")

def signal_ws(A, name, soff, inc=None):
    A("s_waitcnt vmcnt(0)")
    A.forget()
    A("s_barrier")
    A(f"s_cmp_lg_u32 s{G_WV}, 0")
    A(f"s_cbranch_scc1 L_{name}_s")
    A(f"s_cmp_lg_u32 s{W_INI}, 0")
    A(f"s_cbranch_scc1 L_{name}_i")
    A(f"s_mov_b32 s{W_TO}, 0")
    A.label(f"L_{name}_ip")
    A(f"buffer_load_dword v31, off, {DBG}, 0 offset:{D_INIT} sc1")
    A(f"s_add_u32 s{W_TO}, s{W_TO}, 1")
    A(f"s_cmp_gt_u32 s{W_TO}, 0x200000")
    A("s_cbranch_scc1 L_wbail")
    A("s_waitcnt vmcnt(0)")
    A("v_cmp_eq_u32 vcc, 0, v31")
    A(f"s_cbranch_vccnz L_{name}_ip")
    A(f"s_mov_b32 s{W_INI}, 1")
    A.label(f"L_{name}_i")
    A("v_mov_b32 v31, 1" if inc is None else f"v_mov_b32 v31, s{inc}")
    A("s_mov_b64 exec, 1")
    A(f"buffer_atomic_add v31, off, {WSR}, s{soff}")
    A("s_mov_b64 exec, -1")
    A.label(f"L_{name}_s")
    A.forget()

def fetch_ticket(A, name, dbg_off, dst, soff=None):
    A(f"s_cmp_lg_u32 s{G_WV}, 0")
    A(f"s_cbranch_scc1 L_{name}_t")
    A("v_mov_b32 v31, 1")
    A("s_mov_b64 exec, 1")
    A(f"buffer_atomic_add v31, off, {DBG}, {0 if soff is None else 's%d' % soff} offset:{dbg_off} sc0")
    A("s_waitcnt vmcnt(0)")
    A(f"v_mov_b32 v30, {LDS_BC}")
    A("ds_write_b32 v30, v31")
    A("s_waitcnt lgkmcnt(0)")
    A("s_mov_b64 exec, -1")
    A.label(f"L_{name}_t")
    A.forget()
    A("s_barrier")
    A(f"v_mov_b32 v30, {LDS_BC}")
    A("ds_read_b32 v31, v30")
    A.wait(lg=0)
    A(f"v_readfirstlane_b32 s{dst}, v31")
    A("s_barrier")

def prog_wait(A):
    saved = [set(x) for x in A.vm]; savedl = [set(x) for x in A.lgkm]
    A(f"s_cmp_lg_u32 s{G_WV}, 0")
    A("s_cbranch_scc1 L_ap_j")
    A(f"s_lshl_b32 s{W_T2}, s{O_KC}, 9")
    A(f"s_add_u32 s{W_T2}, s{W_T2}, {F_PROG}")
    A(f"v_and_b32 v30, 3, v{OV_L}")
    A("v_lshlrev_b32 v30, 7, v30")
    A(f"s_mov_b32 s{W_TO}, 0")
    A.label("L_ap_p")
    A.auto = False
    A(f"buffer_load_dword v31, v30, {WSR}, s{W_T2} offen sc1")
    A.auto = True
    A(f"s_add_u32 s{W_TO}, s{W_TO}, 1")
    A(f"s_cmp_gt_u32 s{W_TO}, 0x400000")
    A("s_cbranch_scc1 L_wbail")
    A("s_waitcnt vmcnt(0)")
    A(f"v_cmp_ge_u32 vcc, s{O_SEG}, v31")
    A("s_cbranch_vccz L_ap_j")
    A("s_sleep 2")
    A("s_branch L_ap_p")
    A.label("L_ap_j")
    A.vm = saved; A.lgkm = savedl
    A("s_barrier")

def red_flag_addrs(A, seg_sreg):
    A(f"s_lshl_b32 s{W_T}, s{seg_sreg}, 2")
    A(f"s_add_u32 s{W_T}, s{W_T}, s{O_NC}")
    A(f"s_lshl_b32 s{W_T}, s{W_T}, 7")
    A(f"s_add_u32 s{W_T}, s{W_T}, {F_R}")
    A(f"s_lshr_b32 s{W_T2}, s{seg_sreg}, 3")
    A(f"s_lshl_b32 s{W_T2}, s{W_T2}, 7")
    A(f"s_add_u32 s{W_T2}, s{W_T2}, {F_Y}")
    A(f"v_and_b32 v28, 1, v{OV_L}")
    A("v_cmp_eq_u32 vcc, 0, v28")
    A(f"v_mov_b32 v30, s{W_T2}")
    A(f"v_mov_b32 v29, s{W_T}")
    A("v_cndmask_b32 v30, v30, v29, vcc")
    A("v_mov_b32 v29, 8")
    A("v_mov_b32 v28, 8")
    A("v_cndmask_b32 v29, v29, v28, vcc")

def ao_reduce(A, seg_sreg, tag, wait=True):
    t0 = OV_T; t1 = OV_T + 1
    if wait:
        red_flag_addrs(A, seg_sreg)
        if wait == 'data': A("v_mov_b32 v28, 0"); A(f"v_and_b32 v27, 1, v{OV_L}"); A("v_cmp_eq_u32 vcc, 0, v27"); A("v_cndmask_b32 v29, v29, v28, vcc")
        A(f"s_mov_b32 s{W_TO}, 0")
        A.label(f"L_rw{tag}")
        A(f"buffer_load_dword v31, v30, {WSR}, 0 offen sc1")
        A(f"s_add_u32 s{W_TO}, s{W_TO}, 1")
        A(f"s_cmp_gt_u32 s{W_TO}, 0x400000")
        A("s_cbranch_scc1 L_wbail")
        A("s_waitcnt vmcnt(0)")
        A("v_cmp_gt_u32 vcc, v29, v31")
        A.forget()
        A(f"s_cbranch_vccnz L_rw{tag}")
    A(f"s_lshl_b32 s{W_T}, s{seg_sreg}, 2")
    A(f"s_add_u32 s{W_T}, s{W_T}, s{O_NC}")
    A(f"s_lshl_b32 s{W_T}, s{W_T}, 17")
    A(f"s_add_u32 s{W_T}, s{W_T}, {WS_PART}")
    A(f"s_lshl_b32 s{O_T0}, s{O_KC}, 2")
    A(f"s_add_u32 s{O_T0}, s{O_T0}, s{O_WV}")
    A(f"s_lshl_b32 s{O_T1}, s{O_T0}, 9")
    A(f"s_add_u32 s{W_T}, s{W_T}, s{O_T1}")
    A(f"v_lshlrev_b32 v{t0}, 3, v{OV_L}")
    R = OV_Q
    def ploads():
        for kc in range(8):
            A(f"s_add_u32 s{O_T1}, s{W_T}, {kc*16384}")
            A(f"buffer_load_dwordx2 v[{R+2*kc}:{R+2*kc+1}], v{t0}, {WSR}, s{O_T1} offen sc1")
    if wait == 'data':
        A(f"s_mov_b32 s{W_TO}, 0")
        A.label(f"L_rd{tag}")
        ploads()
        A(f"s_add_u32 s{W_TO}, s{W_TO}, 1")
        A(f"s_cmp_gt_u32 s{W_TO}, 0x400000")
        A("s_cbranch_scc1 L_wbail")
        A.wait(vm=0)
        A(f"v_max3_u32 v{t1}, v{R}, v{R+1}, v{R+2}")
        for i in range(3, 15, 2): A(f"v_max3_u32 v{t1}, v{t1}, v{R+i}, v{R+i+1}")
        A(f"v_max_u32 v{t1}, v{t1}, v{R+15}")
        A(f"v_cmp_eq_u32 vcc, -1, v{t1}")
        A(f"s_cbranch_vccnz L_rd{tag}")
        A.forget()
    else:
        ploads()
    A(f"s_lshl_b32 s{O_T1}, s{seg_sreg}, 5")
    A(f"s_add_u32 s{O_T0}, s{O_T0}, s{O_T1}")
    A(f"s_lshl_b32 s{O_T1}, s{O_T0}, 11")
    A(f"s_lshl_b32 s{O_T2}, s{O_NC}, 9")
    A(f"s_add_u32 s{O_T1}, s{O_T1}, s{O_T2}")
    A(f"s_add_u32 s{O_T1}, s{O_T1}, {WS_Y}")
    for pl in range(NYP):
        A(f"buffer_load_dwordx2 v[{R+16+2*pl}:{R+17+2*pl}], v{t0}, {WSR}, s{O_T1} offen sc1")
        if pl < NYP - 1: A(f"s_add_u32 s{O_T1}, s{O_T1}, {4*MB}")
    A(f"v_lshlrev_b32 v{t1}, 2, v{OV_L}")
    A(f"s_lshl_b32 s{O_T1}, s{O_T0}, 10")
    A(f"s_lshl_b32 s{O_T2}, s{O_NC}, 8")
    A(f"s_add_u32 s{O_T1}, s{O_T1}, s{O_T2}")
    A(f"buffer_load_dword v{R+24}, v{t1}, s[56:59], s{O_T1} offen")
    A(f"buffer_load_dword v{R+25}, v{t1}, s[60:63], s{O_T2} offen")
    A(f"v_pk_add_f32 v[{R}:{R+1}], v[{R}:{R+1}], v[{R+2}:{R+3}]")
    for k in range(2, 8 + NYP):
        A(f"v_pk_add_f32 v[{R}:{R+1}], v[{R}:{R+1}], v[{R+2*k}:{R+2*k+1}]")
    for src in (R + 24, R + 25):
        A(f"v_lshlrev_b32 v{R+26}, 16, v{src}")
        A(f"v_and_b32 v{R+27}, 0xffff0000, v{src}")
        A(f"v_pk_add_f32 v[{R}:{R+1}], v[{R}:{R+1}], v[{R+26}:{R+27}]")
    A(f"v_cvt_pk_bf16_f32 v{R}, v{R}, v{R+1}")
    A(f"buffer_store_dword v{R}, v{t1}, s[64:67], s{O_T1} offen")

DBGMAP = {0: 2, 14: 3, 10: 4, 13: 5, 6: 6, 7: 7, 12: 8, 1: 10}
def dstamp(A, idx, diag, sreg_idx=None, cyc=False):
    if not diag: return
    if DIAG3[0]:
        if idx not in DBGMAP or sreg_idx is not None or cyc: return
        lb = A.newlabel("L_ds")
        A.raw("    s_memrealtime s[98:99]")
        A.raw("    s_waitcnt lgkmcnt(0)")
        A(f"s_cmp_lg_u32 s27, 0")
        A(f"s_cbranch_scc1 {lb}")
        A("v_mov_b32 v30, s98")
        A("s_mov_b64 exec, 1")
        if idx == 0:
            A("v_not_b32 v30, v30")
        A(f"buffer_atomic_umax v30, off, s[12:15], 0 offset:{4*DBGMAP[idx]}")
        A("s_mov_b64 exec, -1")
        A.vm.pop()
        A.label(lb)
        return
    lb = A.newlabel("L_ds")
    A.raw("    s_memtime s[98:99]" if cyc else "    s_memrealtime s[98:99]")
    A.raw("    s_waitcnt lgkmcnt(0)")
    A(f"s_cmp_lg_u32 s27, 0")
    A(f"s_cbranch_scc1 {lb}")
    A(f"s_lshl_b32 s100, s2, 9")
    if sreg_idx is not None:
        A(f"s_lshl_b32 s101, s{sreg_idx}, 2")
        A(f"s_add_u32 s100, s100, s101")
    A(f"s_add_u32 s100, s100, {WS_TIME + 4*idx}")
    A("v_mov_b32 v30, s98")
    A("s_mov_b64 exec, 1")
    A(f"buffer_store_dword v30, off, s[4:7], s100")
    A("s_mov_b64 exec, -1")
    A.vm.pop()
    A.label(lb)

def main_kernel(d1, d2, g1, g2, NPAR=6, diag=0):
    DIAG3[0] = (diag == 3)
    A = Asm()
    A("s_cmp_ge_u32 s2, 256")
    A("s_cbranch_scc1 L_end")
    A(f"s_load_dwordx2 s[{S_PW}:{S_PW+1}], s[0:1], {KA_WQ}")
    A(f"s_load_dwordx2 s[{S_PW+2}:{S_PW+3}], s[0:1], {KA_WK}")
    A(f"s_load_dwordx2 s[{S_PW+4}:{S_PW+5}], s[0:1], {KA_WV}")
    A(f"s_load_dwordx2 s[{S_PW+6}:{S_PW+7}], s[0:1], {KA_WO}")
    A(f"s_load_dwordx2 s[{S_PW+8}:{S_PW+9}], s[0:1], {KA_MEM0}")
    A(f"s_load_dwordx2 s[52:53], s[0:1], {KA_DBG}")
    A(f"s_load_dwordx2 s[54:55], s[0:1], {KA_WS}")
    A(f"s_load_dwordx2 s[56:57], s[0:1], {KA_X}")
    A(f"s_getreg_b32 s{S_T2}, hwreg(HW_REG_XCC_ID)")
    A(f"v_lshrrev_b32 v1, 6, v0")
    A(f"v_readfirstlane_b32 s{S_WV}, v1")
    A.wait(lg=0)
    srd(A, S_WS, 54, WS_SIZE)
    srd(A, S_DBG, 52, 256)
    A(f"s_and_b32 s60, s{S_T2}, 15")
    dstamp(A, 0, diag)
    if WARM:
        A("v_and_b32 v70, 63, v0")
        A("v_lshlrev_b32 v70, 21, v70")
        A(f"buffer_load_dword v71, v70, {WSR}, 0 offen")
        A(f"s_mov_b32 s62, {128*MB}")
        A(f"buffer_load_dword v72, v70, {WSR}, s62 offen")
        n = 73
        for ptr, size in ((S_PW, 4194304), (S_PW+2, 4194304), (S_PW+4, 4194304), (S_PW+6, 4194304), (56, 2097152)):
            srd(A, 8, ptr, size)
            A(f"buffer_load_dword v{n}, v70, s[8:11], 0 offen"); n += 1
        A.raw("    s_getpc_b64 s[62:63]")
        A.raw("L_pcw:")
        A.raw("    s_add_u32 s62, s62, L_worker-L_pcw")
        A.raw("    s_addc_u32 s63, s63, 0")
        A("v_lshlrev_b32 v70, 4, v0")
        for i in range(WARM_CODE_KB // 4):
            if i: A.raw("    s_add_u32 s62, s62, 4096"); A.raw("    s_addc_u32 s63, s63, 0")
            A.auto = False
            A(f"global_load_dwordx4 v[80:83], v70, s[62:63]")
            A.auto = True
        A.vm = []
    A("s_cmp_lg_u32 s2, 0")
    A("s_cbranch_scc1 L_noinit")
    for i in range(4): A(f"v_mov_b32 v{60+i}, 0")
    A("v_lshlrev_b32 v64, 4, v0")
    for i in range(FLAG_BYTES // 4096):
        A(f"s_mov_b32 s61, {WS_FLAG + i*4096}")
        A(f"buffer_store_dwordx4 v[60:63], v64, {WSR}, s61 offen sc1")
    A.label("L_noinit")
    A.forget()
    A(f"s_cmp_eq_u32 s60, 0")
    A(f"s_cselect_b32 s29, {D_CTK}, {D_WTK}")
    fetch_ticket(A, "tk", 0, S_H, soff=29)
    A("s_cmp_lg_u32 s2, 0")
    A("s_cbranch_scc1 L_noinit2")
    A("s_waitcnt vmcnt(0)")
    A("s_barrier")
    A(f"s_cmp_lg_u32 s{S_WV}, 0")
    A("s_cbranch_scc1 L_noinit2")
    A("v_mov_b32 v64, 1")
    A("s_mov_b64 exec, 1")
    A(f"buffer_store_dword v64, off, {DBG}, 0 offset:{D_INIT} sc1")
    A("s_mov_b64 exec, -1")
    A.label("L_noinit2")
    A.forget()
    A(f"s_cmp_lg_u32 s60, 0")
    A("s_cbranch_scc1 L_worker")
    A(f"s_cmp_ge_u32 s{S_H}, 32")
    A("s_cbranch_scc1 L_xs")
    emit_chain(A, d1=d1, d2=d2, g1=g1, g2=g2, opt=('merged',) + (('diag',) if diag else ()) + (('nostep',) if diag in (2, 3) else ()), dstamp=dstamp)
    A("s_endpgm")

    A.label("L_xs")
    fetch_ticket(A, "xtk", D_WTK, S_H)
    A.label("L_worker")
    A.forget()
    A(f"s_mov_b32 s{W_TASK}, s{S_H}")
    A(f"s_mov_b32 s{P_WO}, s{S_PW+6}"); A(f"s_mov_b32 s{P_WO+1}, s{S_PW+7}")
    A(f"s_mov_b32 s{P_X}, s56"); A(f"s_mov_b32 s{P_X+1}, s57")
    A(f"s_load_dwordx2 s[22:23], s[0:1], {KA_W1}")
    A(f"s_load_dwordx2 s[24:25], s[0:1], {KA_B1}")
    A(f"s_load_dwordx2 s[{P_B2}:{P_B2+1}], s[0:1], {KA_B2}")
    A(f"s_load_dwordx2 s[{P_OUT}:{P_OUT+1}], s[0:1], {KA_OUT}")
    A(f"s_load_dwordx2 s[{P_W2}:{P_W2+1}], s[0:1], {KA_W2}")
    A.wait(lg=0)
    srd(A, G_SRDX, 24, 1792 * 2)
    gemm_setup_lane(A)
    A(f"s_mov_b32 s{W_INI}, 1")
    if PREF:
        A(f"s_cmp_lt_u32 s{W_TASK}, 128")
        A("s_cbranch_scc1 L_nopref")
        A(f"s_cmp_ge_u32 s{W_TASK}, 224")
        A("s_cbranch_scc1 L_nopref")
        A(f"s_sub_u32 s30, s{W_TASK}, 128")
        A("s_lshl_b32 s30, s30, 13")
        A(f"s_lshl_b32 s31, s{G_WV}, 11")
        A("s_add_u32 s30, s30, s31")
        A(f"v_lshlrev_b32 v32, 4, v{GV_LANE}")
        n = 0
        for ptr in PREF_ORDER:
            srd(A, 8, ptr, 4194304)
            for rep in range(6):
                A(f"s_add_u32 s31, s30, {rep * 96 * 8192}")
                for q in range(2):
                    r = 36 + 4 * (n % 16); n += 1
                    A.auto = False
                    A(f"buffer_load_dwordx4 v[{r}:{r+3}], v32, s[8:11], s31 offen offset:{q*1024}")
                    A.auto = True
        A.wait(vm=0)
        A.label("L_nopref")
        A.forget()
    assert (64 - TAIL_SEG) * 32 * 4096 == 96 * 8192
    A(f"s_cmp_lt_u32 s{W_TASK}, 128")
    A("s_cbranch_scc1 L_nokvp")
    A(f"s_cmp_ge_u32 s{W_TASK}, 224")
    A("s_cbranch_scc1 L_nokvp")
    for i in range(4): A(f"v_mov_b32 v{32+i}, -1")
    A("v_lshlrev_b32 v36, 4, v0")
    A(f"s_sub_u32 s30, s{W_TASK}, 128")
    A("s_lshl_b32 s30, s30, 13")
    A(f"s_add_u32 s30, s30, {WS_KVM + TAIL_SEG*32*4096}")
    A(f"buffer_store_dwordx4 v[32:35], v36, {WSR}, s30 offen sc1")
    A("s_add_u32 s30, s30, 4096")
    A(f"buffer_store_dwordx4 v[32:35], v36, {WSR}, s30 offen sc1")
    A.label("L_nokvp")
    A.forget()
    A(f"s_cmp_ge_u32 s{W_TASK}, 128")
    A("s_cbranch_scc1 L_noln")
    srd(A, 8, P_X, 2048 * 512 * 2)
    A(f"s_lshl_b32 s30, s{W_TASK}, 4")
    A(f"s_lshl_b32 s31, s{G_WV}, 2")
    A("s_add_u32 s30, s30, s31")
    emit_ln_rows(A, 8, 4, 30, 4, GV_LANE, SO=94)
    A("s_waitcnt vmcnt(0)")
    A.forget()
    A("s_barrier")
    A.label("L_noln")
    A(f"s_cmp_lg_u32 s{G_WV}, 0")
    A("s_cbranch_scc1 L_lnsig")
    A(f"s_mov_b32 s62, 0")
    A.label("L_ln_ip")
    A(f"buffer_load_dword v31, off, {DBG}, 0 offset:{D_INIT} sc1")
    A("s_add_u32 s62, s62, 1")
    A("s_cmp_gt_u32 s62, 0x200000")
    A("s_cbranch_scc1 L_wbail")
    A("s_waitcnt vmcnt(0)")
    A("v_cmp_eq_u32 vcc, 0, v31")
    A("s_cbranch_vccnz L_ln_ip")
    A(f"s_cmp_ge_u32 s{W_TASK}, 128")
    A("s_cbranch_scc1 L_lnsig")
    A(f"s_lshr_b32 s30, s{W_TASK}, 4")
    A("s_lshl_b32 s30, s30, 7")
    A(f"s_add_u32 s30, s30, {F_LN}")
    A("v_mov_b32 v31, 1")
    A("s_mov_b64 exec, 1")
    A(f"buffer_atomic_add v31, off, {WSR}, s30")
    A("s_mov_b64 exec, -1")
    A.label("L_lnsig")
    A.forget()
    dstamp(A, 1, diag)
    A(f"s_mov_b32 s89, 0")
    A.label("L_g1_next")
    A(f"s_cmp_ge_u32 s{W_TASK}, {NT2}")
    A("s_cbranch_scc1 L_ao_role")
    A(f"s_cmp_ge_u32 s{W_TASK}, {T_M2}")
    A("s_cbranch_scc1 L_m2")
    t = W_TASK
    A(f"s_mov_b32 s{G_LDA}, 1024")
    A(f"s_mov_b32 s{G_NST}, 8")
    A(f"s_mov_b32 s{G_SZA}, {WS_SIZE}")
    A(f"s_mov_b32 s{G_SRDA}, s4"); A(f"s_mov_b32 s{G_SRDA+1}, s5"); A(f"s_mov_b32 s{G_SRDA+3}, 0x20000")
    A(f"s_mov_b32 s{G_SRDC}, s4"); A(f"s_mov_b32 s{G_SRDC+1}, s5"); A(f"s_mov_b32 s{G_SRDC+2}, {WS_SIZE}"); A(f"s_mov_b32 s{G_SRDC+3}, 0x20000")
    A(f"s_mov_b32 s{G_SRDB+3}, 0x20000")
    A(f"s_mov_b32 s{W_INC}, 1")
    A(f"s_cmp_ge_u32 s{t}, {T_Q}")
    A("s_cbranch_scc1 L_dec_q")
    A(f"s_cmp_ge_u32 s{t}, {T_H}")
    A("s_cbranch_scc1 L_dec_h")
    A(f"s_mov_b32 s{G_LDB}, 8192")
    A(f"s_mov_b32 s{G_SZB}, 4194304")
    A(f"s_mov_b32 s{G_LDC}, 8192")
    A(f"s_cmp_lt_u32 s{t}, {T_KV}")
    A("s_cbranch_scc1 L_kv_small")
    A(f"s_sub_u32 s{W_T}, s{t}, {T_KV - 32}")
    A(f"s_and_b32 s{G_T1}, s{W_T}, 15")
    A(f"s_lshl_b32 s{G_BOFF}, s{G_T1}, 9")
    A(f"s_lshl_b32 s{G_T2}, s{G_T1}, 14")
    A(f"s_bfe_u32 s{W_KIND}, s{W_T}, 0x10004")
    A(f"s_lshr_b32 s{W_T2}, s{W_T}, 5")
    A(f"s_lshl_b32 s{W_T}, s{W_T2}, 1")
    A(f"s_mov_b32 s{W_INC}, 4")
    A("s_branch L_kv_common")
    A.label("L_kv_small")
    A(f"s_and_b32 s{G_T1}, s{t}, 31")
    A(f"s_lshl_b32 s{G_BOFF}, s{G_T1}, 8")
    A(f"s_lshl_b32 s{G_T2}, s{G_T1}, 13")
    A(f"s_bfe_u32 s{W_KIND}, s{t}, 0x10005")
    A(f"s_lshr_b32 s{W_T}, s{t}, 6")
    A(f"s_mov_b32 s{W_T2}, 0")
    A.label("L_kv_common")
    A(f"s_lshl_b32 s{G_AOFF}, s{W_T}, 17")
    A(f"s_add_u32 s{G_AOFF}, s{G_AOFF}, {WS_XN}")
    A(f"s_lshl_b32 s{W_SIG}, s{W_T2}, 7")
    A(f"s_add_u32 s{W_SIG}, s{W_SIG}, {F_KV}")
    A(f"s_lshl_b32 s{G_COFF}, s{W_T}, 20")
    A(f"s_cmp_eq_u32 s{W_KIND}, 1")
    A("s_cbranch_scc1 L_dec_v")
    A(f"s_mov_b32 s{G_SRDB}, s18"); A(f"s_and_b32 s{G_SRDB+1}, s19, 0xffff")
    A(f"s_add_u32 s{G_COFF}, s{G_COFF}, s{G_BOFF}")
    A(f"s_add_u32 s{G_COFF}, s{G_COFF}, {WS_KX}")
    A("s_branch L_lnwait")
    A.label("L_dec_v")
    A(f"s_mov_b32 s{G_SRDB}, s20"); A(f"s_and_b32 s{G_SRDB+1}, s21, 0xffff")
    A(f"s_add_u32 s{G_COFF}, s{G_COFF}, s{G_T2}")
    A(f"s_add_u32 s{G_COFF}, s{G_COFF}, {WS_VT}")
    A("s_branch L_lnwait")
    A.label("L_dec_q")
    A(f"s_sub_u32 s{W_T}, s{t}, {T_Q}")
    A(f"s_and_b32 s{G_T1}, s{W_T}, 15")
    A(f"s_lshr_b32 s{W_T2}, s{W_T}, 4")
    A(f"s_mov_b32 s{G_LDB}, 8192")
    A(f"s_mov_b32 s{G_SZB}, 4194304")
    A(f"s_lshl_b32 s{G_BOFF}, s{G_T1}, 9")
    A(f"s_mov_b32 s{G_LDC}, 8192")
    A(f"s_lshl_b32 s{G_AOFF}, s{W_T2}, 18")
    A(f"s_add_u32 s{G_AOFF}, s{G_AOFF}, {WS_XN}")
    A(f"s_mov_b32 s{G_SRDB}, s16"); A(f"s_and_b32 s{G_SRDB+1}, s17, 0xffff")
    A(f"s_lshl_b32 s{G_COFF}, s{W_T2}, 21")
    A(f"s_add_u32 s{G_COFF}, s{G_COFF}, s{G_BOFF}")
    A(f"s_add_u32 s{G_COFF}, s{G_COFF}, {WS_QX}")
    A(f"s_lshl_b32 s{W_SIG}, s{W_T2}, 7")
    A(f"s_add_u32 s{W_SIG}, s{W_SIG}, {F_Q}")
    A(f"s_mov_b32 s{W_KIND}, 0")
    A("s_branch L_lnwait")
    A.label("L_dec_h")
    A(f"s_sub_u32 s{G_T1}, s{t}, {T_H}")
    A(f"s_mul_i32 s{W_T2}, s{G_T1}, 37")
    A(f"s_lshr_b32 s{W_T2}, s{W_T2}, 8")
    A(f"s_mul_i32 s{G_T2}, s{W_T2}, 7")
    A(f"s_sub_u32 s{G_T1}, s{G_T1}, s{G_T2}")
    A(f"s_lshl_b32 s{G_AOFF}, s{W_T2}, 18")
    A(f"s_add_u32 s{G_AOFF}, s{G_AOFF}, {WS_XN}")
    A(f"s_mov_b32 s{G_LDB}, 3584")
    A(f"s_mov_b32 s{G_SZB}, {512*1792*2}")
    A(f"s_lshl_b32 s{G_BOFF}, s{G_T1}, 9")
    A(f"s_mov_b32 s{G_AUX}, s{G_BOFF}")
    A(f"s_mov_b32 s{G_SRDB}, s22"); A(f"s_and_b32 s{G_SRDB+1}, s23, 0xffff")
    A(f"s_mov_b32 s{G_LDC}, 3584")
    A(f"s_mul_i32 s{G_COFF}, s{W_T2}, {256*3584}")
    A(f"s_add_u32 s{G_COFF}, s{G_COFF}, s{G_BOFF}")
    A(f"s_add_u32 s{G_COFF}, s{G_COFF}, {WS_HB}")
    A(f"s_lshl_b32 s{W_SIG}, s{W_T2}, 7")
    A(f"s_add_u32 s{W_SIG}, s{W_SIG}, {F_H}")
    A(f"s_mov_b32 s{W_KIND}, 2")
    A.label("L_lnwait")
    A(f"s_cmp_lt_u32 s{t}, {HOLD_FROM}")
    A("s_cbranch_scc1 L_nohold")
    A(f"s_mov_b32 s30, {F_KV}")
    wait_ws_ge(A, "hold", 30, HOLD_CNT)
    A.label("L_nohold")
    A.forget()
    A(f"s_lshl_b32 s30, s{W_T2}, 7")
    A(f"s_add_u32 s30, s30, {F_LN}")
    wait_ws_ge(A, "lnw", 30, LNT)
    A(f"s_cmp_eq_u32 s{W_KIND}, 2")
    A("s_cbranch_scc1 L_task_h")
    A(f"s_cmp_lt_u32 s{t}, {T_KV}")
    A("s_cbranch_scc1 L_small")
    A(f"s_cmp_eq_u32 s{W_KIND}, 1")
    A("s_cbranch_scc1 L_task_v")
    A("s_branch L_task_k")
    A.label("L_small")
    A(f"s_cmp_eq_u32 s{W_KIND}, 1")
    A("s_cbranch_scc1 L_task_vs")
    A("s_branch L_task_ks")
    def run(tag, wT, epi, MI=4, halfB=False):
        A.label(f"L_task_{tag}")
        A.forget()
        if diag: A("s_lshl_b32 s92, s89, 2")
        dstamp(A, 96, diag, 92)
        gemm_task_addr(A, MI, halfB)
        gemm_start(A, sc1A=True, MI=MI)
        gemm_main(A, tag, wT, sc1A=True, MI=MI)
        dstamp(A, 97, diag, 92)
        epi()
        A.label(f"L_eskip_{tag}")
        A.forget()
        dstamp(A, 98, diag, 92)
        signal_ws(A, f"sg{tag}", W_SIG, inc=W_INC)
        dstamp(A, 80, diag, 89)
        A("s_add_u32 s89, s89, 1")
        A("s_branch L_fetch")
    run("ks", True, lambda: epi_rowmajor(A, MI=2, skip="L_eskip_ks"), MI=2, halfB=True)
    run("vs", False, lambda: epi_vt(A, MI=2, skip="L_eskip_vs"), MI=2, halfB=True)
    run("k", True, lambda: epi_rowmajor(A))
    run("v", False, lambda: epi_vt(A))
    run("h", True, lambda: epi_rowmajor(A, gelu=True))
    A.label("L_m2")
    A.forget()
    A(f"s_sub_u32 s{W_T}, s{W_TASK}, {T_M2}")
    A(f"s_lshr_b32 s{W_T2}, s{W_T}, 3")
    A(f"s_lshl_b32 s{W_T2}, s{W_T2}, 7")
    A(f"s_add_u32 s{W_SIG}, s{W_T2}, {F_Y}")
    A(f"s_add_u32 s{W_T2}, s{W_T2}, {F_H}")
    wait_ws_ge(A, "hw", W_T2, 7)
    A(f"s_mov_b32 s{W_INC}, 1")
    A(f"s_mov_b32 s{G_LDA}, 3584")
    A(f"s_mov_b32 s{G_NST}, 7")
    A(f"s_mov_b32 s{G_SZA}, {WS_SIZE}")
    A(f"s_mov_b32 s{G_SRDA}, s4"); A(f"s_mov_b32 s{G_SRDA+1}, s5"); A(f"s_mov_b32 s{G_SRDA+3}, 0x20000")
    A(f"s_mov_b32 s{G_SRDC}, s4"); A(f"s_mov_b32 s{G_SRDC+1}, s5"); A(f"s_mov_b32 s{G_SRDC+2}, {WS_SIZE}"); A(f"s_mov_b32 s{G_SRDC+3}, 0x20000")
    A(f"s_mov_b32 s{G_SRDB}, s{P_W2}"); A(f"s_and_b32 s{G_SRDB+1}, s{P_W2+1}, 0xffff"); A(f"s_mov_b32 s{G_SRDB+3}, 0x20000")
    A(f"s_mov_b32 s{G_LDB}, 1024")
    A(f"s_mov_b32 s{G_SZB}, {1792*512*2}")
    A(f"s_mov_b32 s{G_LDC}, 2048")
    A(f"s_and_b32 s{G_T0}, s{W_T}, 3")
    A(f"s_bfe_u32 s{G_T1}, s{W_T}, 0x10002")
    A(f"s_lshr_b32 s{G_T2}, s{W_T}, 3")
    A(f"s_mul_i32 s{G_AOFF}, s{G_T2}, {256*3584}")
    A(f"s_mul_i32 s{G_AUX}, s{G_T0}, 896")
    A(f"s_add_u32 s{G_AOFF}, s{G_AOFF}, s{G_AUX}")
    A(f"s_add_u32 s{G_AOFF}, s{G_AOFF}, {WS_HB}")
    A(f"s_mul_i32 s{G_BOFF}, s{G_T0}, {448*1024}")
    A(f"s_lshl_b32 s{G_AUX}, s{G_T1}, 9")
    A(f"s_add_u32 s{G_BOFF}, s{G_BOFF}, s{G_AUX}")
    A(f"s_lshl_b32 s{G_COFF}, s{G_T0}, 22")
    A(f"s_lshl_b32 s{G_AUX}, s{G_T2}, 19")
    A(f"s_add_u32 s{G_COFF}, s{G_COFF}, s{G_AUX}")
    A(f"s_lshl_b32 s{G_AUX}, s{G_T1}, 10")
    A(f"s_add_u32 s{G_COFF}, s{G_COFF}, s{G_AUX}")
    A(f"s_add_u32 s{G_COFF}, s{G_COFF}, {WS_Y}")
    run("m2", True, lambda: epi_f32(A))
    A.label("L_fetch")
    A.forget()
    fetch_ticket(A, "nxt", D_WTK, W_TASK)
    A("s_branch L_g1_next")

    A.label("L_ao_role")
    A.forget()
    spin(A, "ini", f"buffer_load_dword v31, off, {DBG}, 0 offset:{D_INIT} sc1", "v_cmp_eq_u32 vcc, 0, v31")
    fetch_ticket(A, "aot", D_AO, W_TASK)
    A(f"s_cmp_ge_u32 s{W_TASK}, {32*NPAR}")
    A("s_cbranch_scc1 L_end")
    A(f"s_and_b32 s{O_KC}, s{W_TASK}, 7")
    A(f"s_bfe_u32 s{O_NC}, s{W_TASK}, 0x20003")
    A(f"s_lshr_b32 s{O_SEG}, s{W_TASK}, 5")
    srd(A, 56, P_X, 2048 * 512 * 2); srd(A, 60, P_B2, 1024); srd(A, 64, P_OUT, 2048 * 512 * 2)
    dstamp(A, 10, diag)
    ao_prologue(A, P_WO)
    dstamp(A, 11, diag)
    A(f"s_sub_u32 s{W_T}, 63, s{O_SEG}")
    A(f"s_mul_i32 s{W_T2}, s{W_T}, {(65536 + NPAR - 1) // NPAR}")
    A(f"s_lshr_b32 s{W_T2}, s{W_T2}, 16")
    A(f"s_mul_i32 s{W_T2}, s{W_T2}, {NPAR}")
    A(f"s_add_u32 s{W_LAST}, s{W_T2}, s{O_SEG}")
    A(f"s_lshl_b32 s{W_T}, s{W_LAST}, 2")
    A(f"s_add_u32 s{W_T}, s{W_T}, s{O_NC}")
    A(f"s_lshl_b32 s{W_T}, s{W_T}, 3")
    A(f"s_add_u32 s{W_T}, s{W_T}, s{O_KC}")
    A(f"s_lshl_b32 s{W_T}, s{W_T}, 14")
    A(f"s_add_u32 s{W_T}, s{W_T}, {WS_PART}")
    for i in range(4): A(f"v_mov_b32 v{32+i}, -1")
    A("v_lshlrev_b32 v36, 4, v0")
    for i in range(4):
        A(f"s_add_u32 s{W_T2}, s{W_T}, {i*4096}")
        A(f"buffer_store_dwordx4 v[32:35], v36, {WSR}, s{W_T2} offen sc1")
    A.wait(vm=0)
    A(f"s_mov_b32 s{W_PREV}, s{O_SEG}")
    A(f"s_mov_b32 s{W_NP}, -1")
    A.label("L_ao_loop")
    A.forget()
    A(f"s_lshr_b32 s{W_T}, s{O_SEG}, 3")
    A(f"s_cmp_eq_u32 s{W_T}, s{W_NP}")
    A("s_cbranch_scc1 L_ao_rbok")
    A(f"s_mov_b32 s{W_NP}, s{W_T}")
    A(f"s_lshl_b32 s{W_T}, s{W_T}, 7")
    A(f"s_add_u32 s{W_T2}, s{W_T}, {F_Q}")
    wait_ws_ge(A, "aq", W_T2, 16)
    A(f"s_add_u32 s{W_T2}, s{W_T}, {F_KV}")
    wait_ws_ge(A, "ak", W_T2, KVT)
    A.label("L_ao_rbok")
    A.forget()
    ao_segment(A, prog_wait=lambda: prog_wait(A))
    A(f"s_cmp_eq_u32 s{O_SEG}, s{W_LAST}")
    A("s_cbranch_scc1 L_ao_nosig")
    A(f"s_lshl_b32 s{W_T}, s{O_SEG}, 2")
    A(f"s_add_u32 s{W_T}, s{W_T}, s{O_NC}")
    A(f"s_lshl_b32 s{W_T}, s{W_T}, 7")
    A(f"s_add_u32 s{W_SIG}, s{W_T}, {F_R}")
    signal_ws(A, "sgr", W_SIG)
    A.label("L_ao_nosig")
    A.forget()
    dstamp(A, 16, diag, O_SEG)
    A(f"s_add_u32 s{O_SEG}, s{O_SEG}, {NPAR}")
    A.label("L_ao_red")
    A.forget()
    A(f"s_add_u32 s{W_T}, s{W_PREV}, {NPAR}")
    A(f"s_cmp_ge_u32 s{W_T}, s{O_SEG}")
    A("s_cbranch_scc1 L_ao_rdone")
    red_flag_addrs(A, W_PREV)
    A(f"buffer_load_dword v31, v30, {WSR}, 0 offen sc1")
    A("s_waitcnt vmcnt(0)")
    A(f"v_cmp_gt_u32 vcc, v29, v31")
    A.forget()
    A("s_cbranch_vccnz L_ao_rdone")
    ao_reduce(A, W_PREV, "a", wait=False)
    A(f"s_add_u32 s{W_PREV}, s{W_PREV}, {NPAR}")
    A.settle()
    A("s_branch L_ao_red")
    A.label("L_ao_rdone")
    A.forget()
    A(f"s_cmp_lt_u32 s{O_SEG}, 64")
    A.settle()
    A("s_cbranch_scc1 L_ao_loop")
    A.label("L_ao_fin")
    A.forget()
    A(f"s_cmp_ge_u32 s{W_PREV}, s{W_LAST}")
    A("s_cbranch_scc1 L_ao_lastred")
    ao_reduce(A, W_PREV, "b", wait=True)
    A(f"s_add_u32 s{W_PREV}, s{W_PREV}, {NPAR}")
    A.settle()
    A("s_branch L_ao_fin")
    A.label("L_ao_lastred")
    A.forget()
    ao_reduce(A, W_PREV, "c", wait='data')
    A.label("L_ao_end")
    A("s_waitcnt vmcnt(0)")
    dstamp(A, 12, diag)
    A("s_endpgm")
    A.label("L_wbail")
    A("s_mov_b64 exec, 1")
    A("v_mov_b32 v31, 0xbeef")
    A(f"buffer_store_dword v31, off, {DBG}, 0 offset:56")
    A("s_waitcnt vmcnt(0)")
    A("s_endpgm")
    return A.text()

if __name__ == "__main__":
    kw = dict(d1=40, d2=45, g1=20, g2=20)
    for a in sys.argv[2:]:
        k, v = a.split('=')
        if k in ('HOLD_FROM', 'HOLD_CNT', 'PREF', 'WARM', 'WARM_CODE_KB'): globals()[k] = int(v)
        else: kw[k] = int(v)
    hdr = open('parallel_sum__memory_aug_recurrent_mem_tr__mixer_channel_mlp__prompt.s.ref').read().split('; Override launch')[0]
    txt = hdr + f"; @launch kernel={KNAME} grid=(256,1,1) block=(256,1,1) lds=163840\n"
    txt += '.amdgcn_target "amdgcn-amd-amdhsa--gfx950"\n.text\n'
    txt += khead(KNAME) + main_kernel(**kw)
    txt += '.section .rodata,"a"\n.p2align 6\n' + kdesc(KNAME)
    open(sys.argv[1], "w").write(txt)
```

```python
import sys
from asmlib import *
from layout import *
from gemm import *
from ln import *
import ao
from ao import *
import chain
from chain import srd, emit_chain, S_PW, S_WS, S_DBG, S_H, S_WV, S_T2, L_X
from gen_gemm_test import khead, kdesc

DIAG3 = [False]
KNAME = "parallel_sum__memory_aug_recurrent_mem_tr__mixer_channel_mlp__prompt_kernel"
T_KV = 128
T_H = T_KV + 224
T_Q = T_H + 56
T_M2 = T_Q + 128
NT2 = T_M2 + 64
KVT = 128
NYP = 4
HOLD_FROM = 600; HOLD_CNT = 128
PREF = 0
PREF_ORDER = (18, 20, 80)
WARM = 0
WARM_CODE_KB = 32
P_X = 72; P_B2 = 74; P_OUT = 76; P_W2 = 78; P_WO = 80
W_TASK = 28; W_NEXT = 29; W_TO = 82; W_T = 83; W_T2 = 84; W_SIG = 85; W_PAR = 86; W_PREV = 87; W_NP = 88; W_INC = 90; W_KIND = 91; W_INI = 93; W_LAST = 96
INIT_TICKET = 64
LNT = 16
WSR = "s[4:7]"; DBG = "s[12:15]"
LDS_BC = 163840 - 16

def spin(A, name, load, cmp_fail, limit=0x200000):
    A(f"s_cmp_lg_u32 s{G_WV}, 0")
    A(f"s_cbranch_scc1 L_{name}_j")
    A(f"s_mov_b32 s{W_TO}, 0")
    A.label(f"L_{name}_p")
    A(load)
    A(f"s_add_u32 s{W_TO}, s{W_TO}, 1")
    A(f"s_cmp_gt_u32 s{W_TO}, {limit}")
    A(f"s_cbranch_scc1 L_wbail")
    A("s_waitcnt vmcnt(0)")
    A(cmp_fail)
    A(f"s_cbranch_vccz L_{name}_j")
    A("s_sleep 2")
    A(f"s_branch L_{name}_p")
    A.label(f"L_{name}_j")
    A.forget()
    A("s_barrier")

def wait_ws_ge(A, name, soff, val):
    spin(A, name, f"buffer_load_dword v31, off, {WSR}, s{soff} sc1", f"v_cmp_gt_u32 vcc, {val}, v31")

def signal_ws(A, name, soff, inc=None):
    A("s_waitcnt vmcnt(0)")
    A.forget()
    A("s_barrier")
    A(f"s_cmp_lg_u32 s{G_WV}, 0")
    A(f"s_cbranch_scc1 L_{name}_s")
    A(f"s_cmp_lg_u32 s{W_INI}, 0")
    A(f"s_cbranch_scc1 L_{name}_i")
    A(f"s_mov_b32 s{W_TO}, 0")
    A.label(f"L_{name}_ip")
    A(f"buffer_load_dword v31, off, {DBG}, 0 offset:{D_INIT} sc1")
    A(f"s_add_u32 s{W_TO}, s{W_TO}, 1")
    A(f"s_cmp_gt_u32 s{W_TO}, 0x200000")
    A("s_cbranch_scc1 L_wbail")
    A("s_waitcnt vmcnt(0)")
    A("v_cmp_eq_u32 vcc, 0, v31")
    A(f"s_cbranch_vccnz L_{name}_ip")
    A(f"s_mov_b32 s{W_INI}, 1")
    A.label(f"L_{name}_i")
    A("v_mov_b32 v31, 1" if inc is None else f"v_mov_b32 v31, s{inc}")
    A("s_mov_b64 exec, 1")
    A(f"buffer_atomic_add v31, off, {WSR}, s{soff}")
    A("s_mov_b64 exec, -1")
    A.label(f"L_{name}_s")
    A.forget()

def fetch_ticket(A, name, dbg_off, dst, soff=None):
    A(f"s_cmp_lg_u32 s{G_WV}, 0")
    A(f"s_cbranch_scc1 L_{name}_t")
    A("v_mov_b32 v31, 1")
    A("s_mov_b64 exec, 1")
    A(f"buffer_atomic_add v31, off, {DBG}, {0 if soff is None else 's%d' % soff} offset:{dbg_off} sc0")
    A("s_waitcnt vmcnt(0)")
    A(f"v_mov_b32 v30, {LDS_BC}")
    A("ds_write_b32 v30, v31")
    A("s_waitcnt lgkmcnt(0)")
    A("s_mov_b64 exec, -1")
    A.label(f"L_{name}_t")
    A.forget()
    A("s_barrier")
    A(f"v_mov_b32 v30, {LDS_BC}")
    A("ds_read_b32 v31, v30")
    A.wait(lg=0)
    A(f"v_readfirstlane_b32 s{dst}, v31")
    A("s_barrier")

def prog_wait(A):
    saved = [set(x) for x in A.vm]; savedl = [set(x) for x in A.lgkm]
    A(f"s_cmp_lg_u32 s{G_WV}, 0")
    A("s_cbranch_scc1 L_ap_j")
    A(f"s_lshl_b32 s{W_T2}, s{O_KC}, 9")
    A(f"s_add_u32 s{W_T2}, s{W_T2}, {F_PROG}")
    A(f"v_and_b32 v30, 3, v{OV_L}")
    A("v_lshlrev_b32 v30, 7, v30")
    A(f"s_mov_b32 s{W_TO}, 0")
    A.label("L_ap_p")
    A.auto = False
    A(f"buffer_load_dword v31, v30, {WSR}, s{W_T2} offen sc1")
    A.auto = True
    A(f"s_add_u32 s{W_TO}, s{W_TO}, 1")
    A(f"s_cmp_gt_u32 s{W_TO}, 0x400000")
    A("s_cbranch_scc1 L_wbail")
    A("s_waitcnt vmcnt(0)")
    A(f"v_cmp_ge_u32 vcc, s{O_SEG}, v31")
    A("s_cbranch_vccz L_ap_j")
    A("s_sleep 2")
    A("s_branch L_ap_p")
    A.label("L_ap_j")
    A.vm = saved; A.lgkm = savedl
    A("s_barrier")

def red_flag_addrs(A, seg_sreg):
    A(f"s_lshl_b32 s{W_T}, s{seg_sreg}, 2")
    A(f"s_add_u32 s{W_T}, s{W_T}, s{O_NC}")
    A(f"s_lshl_b32 s{W_T}, s{W_T}, 7")
    A(f"s_add_u32 s{W_T}, s{W_T}, {F_R}")
    A(f"s_lshr_b32 s{W_T2}, s{seg_sreg}, 3")
    A(f"s_lshl_b32 s{W_T2}, s{W_T2}, 7")
    A(f"s_add_u32 s{W_T2}, s{W_T2}, {F_Y}")
    A(f"v_and_b32 v28, 1, v{OV_L}")
    A("v_cmp_eq_u32 vcc, 0, v28")
    A(f"v_mov_b32 v30, s{W_T2}")
    A(f"v_mov_b32 v29, s{W_T}")
    A("v_cndmask_b32 v30, v30, v29, vcc")
    A("v_mov_b32 v29, 8")
    A("v_mov_b32 v28, 8")
    A("v_cndmask_b32 v29, v29, v28, vcc")

def ao_reduce(A, seg_sreg, tag, wait=True):
    t0 = OV_T; t1 = OV_T + 1
    if wait:
        red_flag_addrs(A, seg_sreg)
        if wait == 'data': A("v_mov_b32 v28, 0"); A(f"v_and_b32 v27, 1, v{OV_L}"); A("v_cmp_eq_u32 vcc, 0, v27"); A("v_cndmask_b32 v29, v29, v28, vcc")
        A(f"s_mov_b32 s{W_TO}, 0")
        A.label(f"L_rw{tag}")
        A(f"buffer_load_dword v31, v30, {WSR}, 0 offen sc1")
        A(f"s_add_u32 s{W_TO}, s{W_TO}, 1")
        A(f"s_cmp_gt_u32 s{W_TO}, 0x400000")
        A("s_cbranch_scc1 L_wbail")
        A("s_waitcnt vmcnt(0)")
        A("v_cmp_gt_u32 vcc, v29, v31")
        A.forget()
        A(f"s_cbranch_vccnz L_rw{tag}")
    A(f"s_lshl_b32 s{W_T}, s{seg_sreg}, 2")
    A(f"s_add_u32 s{W_T}, s{W_T}, s{O_NC}")
    A(f"s_lshl_b32 s{W_T}, s{W_T}, 17")
    A(f"s_add_u32 s{W_T}, s{W_T}, {WS_PART}")
    A(f"s_lshl_b32 s{O_T0}, s{O_KC}, 2")
    A(f"s_add_u32 s{O_T0}, s{O_T0}, s{O_WV}")
    A(f"s_lshl_b32 s{O_T1}, s{O_T0}, 9")
    A(f"s_add_u32 s{W_T}, s{W_T}, s{O_T1}")
    A(f"v_lshlrev_b32 v{t0}, 3, v{OV_L}")
    R = OV_Q
    def ploads():
        for kc in range(8):
            A(f"s_add_u32 s{O_T1}, s{W_T}, {kc*16384}")
            A(f"buffer_load_dwordx2 v[{R+2*kc}:{R+2*kc+1}], v{t0}, {WSR}, s{O_T1} offen sc1")
    if wait == 'data':
        A(f"s_mov_b32 s{W_TO}, 0")
        A.label(f"L_rd{tag}")
        ploads()
        A(f"s_add_u32 s{W_TO}, s{W_TO}, 1")
        A(f"s_cmp_gt_u32 s{W_TO}, 0x400000")
        A("s_cbranch_scc1 L_wbail")
        A.wait(vm=0)
        A(f"v_max3_u32 v{t1}, v{R}, v{R+1}, v{R+2}")
        for i in range(3, 15, 2): A(f"v_max3_u32 v{t1}, v{t1}, v{R+i}, v{R+i+1}")
        A(f"v_max_u32 v{t1}, v{t1}, v{R+15}")
        A(f"v_cmp_eq_u32 vcc, -1, v{t1}")
        A(f"s_cbranch_vccnz L_rd{tag}")
        A.forget()
    else:
        ploads()
    A(f"s_lshl_b32 s{O_T1}, s{seg_sreg}, 5")
    A(f"s_add_u32 s{O_T0}, s{O_T0}, s{O_T1}")
    A(f"s_lshl_b32 s{O_T1}, s{O_T0}, 11")
    A(f"s_lshl_b32 s{O_T2}, s{O_NC}, 9")
    A(f"s_add_u32 s{O_T1}, s{O_T1}, s{O_T2}")
    A(f"s_add_u32 s{O_T1}, s{O_T1}, {WS_Y}")
    for pl in range(NYP):
        A(f"buffer_load_dwordx2 v[{R+16+2*pl}:{R+17+2*pl}], v{t0}, {WSR}, s{O_T1} offen sc1")
        if pl < NYP - 1: A(f"s_add_u32 s{O_T1}, s{O_T1}, {4*MB}")
    A(f"v_lshlrev_b32 v{t1}, 2, v{OV_L}")
    A(f"s_lshl_b32 s{O_T1}, s{O_T0}, 10")
    A(f"s_lshl_b32 s{O_T2}, s{O_NC}, 8")
    A(f"s_add_u32 s{O_T1}, s{O_T1}, s{O_T2}")
    A(f"buffer_load_dword v{R+24}, v{t1}, s[56:59], s{O_T1} offen")
    A(f"buffer_load_dword v{R+25}, v{t1}, s[60:63], s{O_T2} offen")
    A(f"v_pk_add_f32 v[{R}:{R+1}], v[{R}:{R+1}], v[{R+2}:{R+3}]")
    for k in range(2, 8 + NYP):
        A(f"v_pk_add_f32 v[{R}:{R+1}], v[{R}:{R+1}], v[{R+2*k}:{R+2*k+1}]")
    for src in (R + 24, R + 25):
        A(f"v_lshlrev_b32 v{R+26}, 16, v{src}")
        A(f"v_and_b32 v{R+27}, 0xffff0000, v{src}")
        A(f"v_pk_add_f32 v[{R}:{R+1}], v[{R}:{R+1}], v[{R+26}:{R+27}]")
    A(f"v_cvt_pk_bf16_f32 v{R}, v{R}, v{R+1}")
    A(f"buffer_store_dword v{R}, v{t1}, s[64:67], s{O_T1} offen")

DBGMAP = {0: 2, 14: 3, 13: 5, 6: 6, 7: 7, 12: 8, 1: 10, 200: 1, 201: 11, 202: 12, 203: 13, 204: 4}
def dstamp(A, idx, diag, sreg_idx=None, cyc=False):
    if not diag: return
    if DIAG3[0]:
        if idx not in DBGMAP or sreg_idx is not None or cyc: return
        lb = A.newlabel("L_ds")
        A.raw("    s_memrealtime s[98:99]")
        A.raw("    s_waitcnt lgkmcnt(0)")
        A(f"s_cmp_lg_u32 s27, 0")
        A(f"s_cbranch_scc1 {lb}")
        A("v_mov_b32 v30, s98")
        A("s_mov_b64 exec, 1")
        if idx == 0:
            A("v_not_b32 v30, v30")
        A(f"buffer_atomic_umax v30, off, s[12:15], 0 offset:{4*DBGMAP[idx]}")
        A("s_mov_b64 exec, -1")
        A.vm.pop()
        A.label(lb)
        return
    lb = A.newlabel("L_ds")
    A.raw("    s_memtime s[98:99]" if cyc else "    s_memrealtime s[98:99]")
    A.raw("    s_waitcnt lgkmcnt(0)")
    A(f"s_cmp_lg_u32 s27, 0")
    A(f"s_cbranch_scc1 {lb}")
    A(f"s_lshl_b32 s100, s2, 9")
    if sreg_idx is not None:
        A(f"s_lshl_b32 s101, s{sreg_idx}, 2")
        A(f"s_add_u32 s100, s100, s101")
    A(f"s_add_u32 s100, s100, {WS_TIME + 4*idx}")
    A("v_mov_b32 v30, s98")
    A("s_mov_b64 exec, 1")
    A(f"buffer_store_dword v30, off, s[4:7], s100")
    A("s_mov_b64 exec, -1")
    A.vm.pop()
    A.label(lb)

def main_kernel(d1, d2, g1, g2, NPAR=6, diag=0):
    DIAG3[0] = (diag == 3)
    A = Asm()
    A("s_cmp_ge_u32 s2, 256")
    A("s_cbranch_scc1 L_end")
    A(f"s_load_dwordx2 s[{S_PW}:{S_PW+1}], s[0:1], {KA_WQ}")
    A(f"s_load_dwordx2 s[{S_PW+2}:{S_PW+3}], s[0:1], {KA_WK}")
    A(f"s_load_dwordx2 s[{S_PW+4}:{S_PW+5}], s[0:1], {KA_WV}")
    A(f"s_load_dwordx2 s[{S_PW+6}:{S_PW+7}], s[0:1], {KA_WO}")
    A(f"s_load_dwordx2 s[{S_PW+8}:{S_PW+9}], s[0:1], {KA_MEM0}")
    A(f"s_load_dwordx2 s[52:53], s[0:1], {KA_DBG}")
    A(f"s_load_dwordx2 s[54:55], s[0:1], {KA_WS}")
    A(f"s_load_dwordx2 s[56:57], s[0:1], {KA_X}")
    A(f"s_getreg_b32 s{S_T2}, hwreg(HW_REG_XCC_ID)")
    A(f"v_lshrrev_b32 v1, 6, v0")
    A(f"v_readfirstlane_b32 s{S_WV}, v1")
    A.wait(lg=0)
    srd(A, S_WS, 54, WS_SIZE)
    srd(A, S_DBG, 52, 256)
    A(f"s_and_b32 s60, s{S_T2}, 15")
    dstamp(A, 0, diag)
    if WARM:
        A("v_and_b32 v70, 63, v0")
        A("v_lshlrev_b32 v70, 21, v70")
        A(f"buffer_load_dword v71, v70, {WSR}, 0 offen")
        A(f"s_mov_b32 s62, {128*MB}")
        A(f"buffer_load_dword v72, v70, {WSR}, s62 offen")
        n = 73
        for ptr, size in ((S_PW, 4194304), (S_PW+2, 4194304), (S_PW+4, 4194304), (S_PW+6, 4194304), (56, 2097152)):
            srd(A, 8, ptr, size)
            A(f"buffer_load_dword v{n}, v70, s[8:11], 0 offen"); n += 1
        A.raw("    s_getpc_b64 s[62:63]")
        A.raw("L_pcw:")
        A.raw("    s_add_u32 s62, s62, L_worker-L_pcw")
        A.raw("    s_addc_u32 s63, s63, 0")
        A("v_lshlrev_b32 v70, 4, v0")
        for i in range(WARM_CODE_KB // 4):
            if i: A.raw("    s_add_u32 s62, s62, 4096"); A.raw("    s_addc_u32 s63, s63, 0")
            A.auto = False
            A(f"global_load_dwordx4 v[80:83], v70, s[62:63]")
            A.auto = True
        A.vm = []
    A("s_cmp_lg_u32 s2, 0")
    A("s_cbranch_scc1 L_noinit")
    for i in range(4): A(f"v_mov_b32 v{60+i}, 0")
    A("v_lshlrev_b32 v64, 4, v0")
    for i in range(FLAG_BYTES // 4096):
        A(f"s_mov_b32 s61, {WS_FLAG + i*4096}")
        A(f"buffer_store_dwordx4 v[60:63], v64, {WSR}, s61 offen sc1")
    A.label("L_noinit")
    A.forget()
    A(f"s_cmp_eq_u32 s60, 0")
    A(f"s_cselect_b32 s29, {D_CTK}, {D_WTK}")
    fetch_ticket(A, "tk", 0, S_H, soff=29)
    A("s_cmp_lg_u32 s2, 0")
    A("s_cbranch_scc1 L_noinit2")
    A("s_waitcnt vmcnt(0)")
    A("s_barrier")
    A(f"s_cmp_lg_u32 s{S_WV}, 0")
    A("s_cbranch_scc1 L_noinit2")
    A("v_mov_b32 v64, 1")
    A("s_mov_b64 exec, 1")
    A(f"buffer_store_dword v64, off, {DBG}, 0 offset:{D_INIT} sc1")
    A("s_mov_b64 exec, -1")
    A.label("L_noinit2")
    A.forget()
    A(f"s_cmp_lg_u32 s60, 0")
    A("s_cbranch_scc1 L_worker")
    A(f"s_cmp_ge_u32 s{S_H}, 32")
    A("s_cbranch_scc1 L_xs")
    emit_chain(A, d1=d1, d2=d2, g1=g1, g2=g2, opt=('merged',) + (('diag',) if diag else ()) + (('nostep',) if diag in (2, 3) else ()), dstamp=dstamp)
    A("s_endpgm")

    A.label("L_xs")
    fetch_ticket(A, "xtk", D_WTK, S_H)
    A.label("L_worker")
    A.forget()
    A(f"s_mov_b32 s{W_TASK}, s{S_H}")
    A(f"s_mov_b32 s{P_WO}, s{S_PW+6}"); A(f"s_mov_b32 s{P_WO+1}, s{S_PW+7}")
    A(f"s_mov_b32 s{P_X}, s56"); A(f"s_mov_b32 s{P_X+1}, s57")
    A(f"s_load_dwordx2 s[22:23], s[0:1], {KA_W1}")
    A(f"s_load_dwordx2 s[24:25], s[0:1], {KA_B1}")
    A(f"s_load_dwordx2 s[{P_B2}:{P_B2+1}], s[0:1], {KA_B2}")
    A(f"s_load_dwordx2 s[{P_OUT}:{P_OUT+1}], s[0:1], {KA_OUT}")
    A(f"s_load_dwordx2 s[{P_W2}:{P_W2+1}], s[0:1], {KA_W2}")
    A.wait(lg=0)
    srd(A, G_SRDX, 24, 1792 * 2)
    gemm_setup_lane(A)
    A(f"s_mov_b32 s{W_INI}, 1")
    if PREF:
        A(f"s_cmp_lt_u32 s{W_TASK}, 128")
        A("s_cbranch_scc1 L_nopref")
        A(f"s_cmp_ge_u32 s{W_TASK}, 224")
        A("s_cbranch_scc1 L_nopref")
        A(f"s_sub_u32 s30, s{W_TASK}, 128")
        A("s_lshl_b32 s30, s30, 13")
        A(f"s_lshl_b32 s31, s{G_WV}, 11")
        A("s_add_u32 s30, s30, s31")
        A(f"v_lshlrev_b32 v32, 4, v{GV_LANE}")
        n = 0
        for ptr in PREF_ORDER:
            srd(A, 8, ptr, 4194304)
            for rep in range(6):
                A(f"s_add_u32 s31, s30, {rep * 96 * 8192}")
                for q in range(2):
                    r = 36 + 4 * (n % 16); n += 1
                    A.auto = False
                    A(f"buffer_load_dwordx4 v[{r}:{r+3}], v32, s[8:11], s31 offen offset:{q*1024}")
                    A.auto = True
        A.wait(vm=0)
        A.label("L_nopref")
        A.forget()
    assert (64 - TAIL_SEG) * 32 * 4096 == 96 * 8192
    A(f"s_cmp_lt_u32 s{W_TASK}, 128")
    A("s_cbranch_scc1 L_nokvp")
    A(f"s_cmp_ge_u32 s{W_TASK}, 224")
    A("s_cbranch_scc1 L_nokvp")
    for i in range(4): A(f"v_mov_b32 v{32+i}, -1")
    A("v_lshlrev_b32 v36, 4, v0")
    A(f"s_sub_u32 s30, s{W_TASK}, 128")
    A("s_lshl_b32 s30, s30, 13")
    A(f"s_add_u32 s30, s30, {WS_KVM + TAIL_SEG*32*4096}")
    A(f"buffer_store_dwordx4 v[32:35], v36, {WSR}, s30 offen sc1")
    A("s_add_u32 s30, s30, 4096")
    A(f"buffer_store_dwordx4 v[32:35], v36, {WSR}, s30 offen sc1")
    A.label("L_nokvp")
    A.forget()
    A(f"s_cmp_ge_u32 s{W_TASK}, 128")
    A("s_cbranch_scc1 L_noln")
    srd(A, 8, P_X, 2048 * 512 * 2)
    A(f"s_lshl_b32 s30, s{W_TASK}, 4")
    A(f"s_lshl_b32 s31, s{G_WV}, 2")
    A("s_add_u32 s30, s30, s31")
    emit_ln_rows(A, 8, 4, 30, 4, GV_LANE, SO=94)
    A("s_waitcnt vmcnt(0)")
    A.forget()
    A("s_barrier")
    A.label("L_noln")
    A(f"s_cmp_lg_u32 s{G_WV}, 0")
    A("s_cbranch_scc1 L_lnsig")
    A(f"s_mov_b32 s62, 0")
    A.label("L_ln_ip")
    A(f"buffer_load_dword v31, off, {DBG}, 0 offset:{D_INIT} sc1")
    A("s_add_u32 s62, s62, 1")
    A("s_cmp_gt_u32 s62, 0x200000")
    A("s_cbranch_scc1 L_wbail")
    A("s_waitcnt vmcnt(0)")
    A("v_cmp_eq_u32 vcc, 0, v31")
    A("s_cbranch_vccnz L_ln_ip")
    A(f"s_cmp_ge_u32 s{W_TASK}, 128")
    A("s_cbranch_scc1 L_lnsig")
    A(f"s_lshr_b32 s30, s{W_TASK}, 4")
    A("s_lshl_b32 s30, s30, 7")
    A(f"s_add_u32 s30, s30, {F_LN}")
    A("v_mov_b32 v31, 1")
    A("s_mov_b64 exec, 1")
    A(f"buffer_atomic_add v31, off, {WSR}, s30")
    A("s_mov_b64 exec, -1")
    A.label("L_lnsig")
    A.forget()
    dstamp(A, 1, diag)
    A(f"s_mov_b32 s89, 0")
    A.label("L_g1_next")
    A(f"s_cmp_ge_u32 s{W_TASK}, {NT2}")
    A("s_cbranch_scc1 L_ao_role")
    A(f"s_cmp_ge_u32 s{W_TASK}, {T_M2}")
    A("s_cbranch_scc1 L_m2")
    t = W_TASK
    A(f"s_mov_b32 s{G_LDA}, 1024")
    A(f"s_mov_b32 s{G_NST}, 8")
    A(f"s_mov_b32 s{G_SZA}, {WS_SIZE}")
    A(f"s_mov_b32 s{G_SRDA}, s4"); A(f"s_mov_b32 s{G_SRDA+1}, s5"); A(f"s_mov_b32 s{G_SRDA+3}, 0x20000")
    A(f"s_mov_b32 s{G_SRDC}, s4"); A(f"s_mov_b32 s{G_SRDC+1}, s5"); A(f"s_mov_b32 s{G_SRDC+2}, {WS_SIZE}"); A(f"s_mov_b32 s{G_SRDC+3}, 0x20000")
    A(f"s_mov_b32 s{G_SRDB+3}, 0x20000")
    A(f"s_mov_b32 s{W_INC}, 1")
    A(f"s_cmp_ge_u32 s{t}, {T_Q}")
    A("s_cbranch_scc1 L_dec_q")
    A(f"s_cmp_ge_u32 s{t}, {T_H}")
    A("s_cbranch_scc1 L_dec_h")
    A(f"s_mov_b32 s{G_LDB}, 8192")
    A(f"s_mov_b32 s{G_SZB}, 4194304")
    A(f"s_mov_b32 s{G_LDC}, 8192")
    A(f"s_cmp_lt_u32 s{t}, {T_KV}")
    A("s_cbranch_scc1 L_kv_small")
    A(f"s_sub_u32 s{W_T}, s{t}, {T_KV - 32}")
    A(f"s_and_b32 s{G_T1}, s{W_T}, 15")
    A(f"s_lshl_b32 s{G_BOFF}, s{G_T1}, 9")
    A(f"s_lshl_b32 s{G_T2}, s{G_T1}, 14")
    A(f"s_bfe_u32 s{W_KIND}, s{W_T}, 0x10004")
    A(f"s_lshr_b32 s{W_T2}, s{W_T}, 5")
    A(f"s_lshl_b32 s{W_T}, s{W_T2}, 1")
    A(f"s_mov_b32 s{W_INC}, 4")
    A("s_branch L_kv_common")
    A.label("L_kv_small")
    A(f"s_and_b32 s{G_T1}, s{t}, 31")
    A(f"s_lshl_b32 s{G_BOFF}, s{G_T1}, 8")
    A(f"s_lshl_b32 s{G_T2}, s{G_T1}, 13")
    A(f"s_bfe_u32 s{W_KIND}, s{t}, 0x10005")
    A(f"s_lshr_b32 s{W_T}, s{t}, 6")
    A(f"s_mov_b32 s{W_T2}, 0")
    A.label("L_kv_common")
    A(f"s_lshl_b32 s{G_AOFF}, s{W_T}, 17")
    A(f"s_add_u32 s{G_AOFF}, s{G_AOFF}, {WS_XN}")
    A(f"s_lshl_b32 s{W_SIG}, s{W_T2}, 7")
    A(f"s_add_u32 s{W_SIG}, s{W_SIG}, {F_KV}")
    A(f"s_lshl_b32 s{G_COFF}, s{W_T}, 20")
    A(f"s_cmp_eq_u32 s{W_KIND}, 1")
    A("s_cbranch_scc1 L_dec_v")
    A(f"s_mov_b32 s{G_SRDB}, s18"); A(f"s_and_b32 s{G_SRDB+1}, s19, 0xffff")
    A(f"s_add_u32 s{G_COFF}, s{G_COFF}, s{G_BOFF}")
    A(f"s_add_u32 s{G_COFF}, s{G_COFF}, {WS_KX}")
    A("s_branch L_lnwait")
    A.label("L_dec_v")
    A(f"s_mov_b32 s{G_SRDB}, s20"); A(f"s_and_b32 s{G_SRDB+1}, s21, 0xffff")
    A(f"s_add_u32 s{G_COFF}, s{G_COFF}, s{G_T2}")
    A(f"s_add_u32 s{G_COFF}, s{G_COFF}, {WS_VT}")
    A("s_branch L_lnwait")
    A.label("L_dec_q")
    A(f"s_sub_u32 s{W_T}, s{t}, {T_Q}")
    A(f"s_and_b32 s{G_T1}, s{W_T}, 15")
    A(f"s_lshr_b32 s{W_T2}, s{W_T}, 4")
    A(f"s_mov_b32 s{G_LDB}, 8192")
    A(f"s_mov_b32 s{G_SZB}, 4194304")
    A(f"s_lshl_b32 s{G_BOFF}, s{G_T1}, 9")
    A(f"s_mov_b32 s{G_LDC}, 8192")
    A(f"s_lshl_b32 s{G_AOFF}, s{W_T2}, 18")
    A(f"s_add_u32 s{G_AOFF}, s{G_AOFF}, {WS_XN}")
    A(f"s_mov_b32 s{G_SRDB}, s16"); A(f"s_and_b32 s{G_SRDB+1}, s17, 0xffff")
    A(f"s_lshl_b32 s{G_COFF}, s{W_T2}, 21")
    A(f"s_add_u32 s{G_COFF}, s{G_COFF}, s{G_BOFF}")
    A(f"s_add_u32 s{G_COFF}, s{G_COFF}, {WS_QX}")
    A(f"s_lshl_b32 s{W_SIG}, s{W_T2}, 7")
    A(f"s_add_u32 s{W_SIG}, s{W_SIG}, {F_Q}")
    A(f"s_mov_b32 s{W_KIND}, 0")
    A("s_branch L_lnwait")
    A.label("L_dec_h")
    A(f"s_sub_u32 s{G_T1}, s{t}, {T_H}")
    A(f"s_mul_i32 s{W_T2}, s{G_T1}, 37")
    A(f"s_lshr_b32 s{W_T2}, s{W_T2}, 8")
    A(f"s_mul_i32 s{G_T2}, s{W_T2}, 7")
    A(f"s_sub_u32 s{G_T1}, s{G_T1}, s{G_T2}")
    A(f"s_lshl_b32 s{G_AOFF}, s{W_T2}, 18")
    A(f"s_add_u32 s{G_AOFF}, s{G_AOFF}, {WS_XN}")
    A(f"s_mov_b32 s{G_LDB}, 3584")
    A(f"s_mov_b32 s{G_SZB}, {512*1792*2}")
    A(f"s_lshl_b32 s{G_BOFF}, s{G_T1}, 9")
    A(f"s_mov_b32 s{G_AUX}, s{G_BOFF}")
    A(f"s_mov_b32 s{G_SRDB}, s22"); A(f"s_and_b32 s{G_SRDB+1}, s23, 0xffff")
    A(f"s_mov_b32 s{G_LDC}, 3584")
    A(f"s_mul_i32 s{G_COFF}, s{W_T2}, {256*3584}")
    A(f"s_add_u32 s{G_COFF}, s{G_COFF}, s{G_BOFF}")
    A(f"s_add_u32 s{G_COFF}, s{G_COFF}, {WS_HB}")
    A(f"s_lshl_b32 s{W_SIG}, s{W_T2}, 7")
    A(f"s_add_u32 s{W_SIG}, s{W_SIG}, {F_H}")
    A(f"s_mov_b32 s{W_KIND}, 2")
    A.label("L_lnwait")
    A(f"s_cmp_lt_u32 s{t}, {HOLD_FROM}")
    A("s_cbranch_scc1 L_nohold")
    A(f"s_mov_b32 s30, {F_KV}")
    wait_ws_ge(A, "hold", 30, HOLD_CNT)
    A.label("L_nohold")
    A.forget()
    A(f"s_lshl_b32 s30, s{W_T2}, 7")
    A(f"s_add_u32 s30, s30, {F_LN}")
    wait_ws_ge(A, "lnw", 30, LNT)
    A(f"s_cmp_eq_u32 s{W_KIND}, 2")
    A("s_cbranch_scc1 L_task_h")
    A(f"s_cmp_lt_u32 s{t}, {T_KV}")
    A("s_cbranch_scc1 L_small")
    A(f"s_cmp_eq_u32 s{W_KIND}, 1")
    A("s_cbranch_scc1 L_task_v")
    A("s_branch L_task_k")
    A.label("L_small")
    A(f"s_cmp_eq_u32 s{W_KIND}, 1")
    A("s_cbranch_scc1 L_task_vs")
    A("s_branch L_task_ks")
    def run(tag, wT, epi, MI=4, halfB=False):
        A.label(f"L_task_{tag}")
        A.forget()
        if diag: A("s_lshl_b32 s92, s89, 2")
        dstamp(A, 96, diag, 92)
        if halfB and DIAG3[0]: dstamp(A, 200, diag)
        gemm_task_addr(A, MI, halfB)
        gemm_start(A, sc1A=True, MI=MI)
        gemm_main(A, tag, wT, sc1A=True, MI=MI)
        dstamp(A, 97, diag, 92)
        if halfB and DIAG3[0]: dstamp(A, 201, diag)
        epi()
        A.label(f"L_eskip_{tag}")
        A.forget()
        dstamp(A, 98, diag, 92)
        signal_ws(A, f"sg{tag}", W_SIG, inc=W_INC)
        dstamp(A, 80, diag, 89)
        if halfB and DIAG3[0]: dstamp(A, 202, diag)
        A("s_add_u32 s89, s89, 1")
        A("s_branch L_fetch")
    run("ks", True, lambda: epi_rowmajor(A, MI=2, skip="L_eskip_ks"), MI=2, halfB=True)
    run("vs", False, lambda: epi_vt(A, MI=2, skip="L_eskip_vs"), MI=2, halfB=True)
    run("k", True, lambda: epi_rowmajor(A))
    run("v", False, lambda: epi_vt(A))
    run("h", True, lambda: epi_rowmajor(A, gelu=True))
    A.label("L_m2")
    A.forget()
    A(f"s_sub_u32 s{W_T}, s{W_TASK}, {T_M2}")
    A(f"s_lshr_b32 s{W_T2}, s{W_T}, 3")
    A(f"s_lshl_b32 s{W_T2}, s{W_T2}, 7")
    A(f"s_add_u32 s{W_SIG}, s{W_T2}, {F_Y}")
    A(f"s_add_u32 s{W_T2}, s{W_T2}, {F_H}")
    wait_ws_ge(A, "hw", W_T2, 7)
    A(f"s_mov_b32 s{W_INC}, 1")
    A(f"s_mov_b32 s{G_LDA}, 3584")
    A(f"s_mov_b32 s{G_NST}, 7")
    A(f"s_mov_b32 s{G_SZA}, {WS_SIZE}")
    A(f"s_mov_b32 s{G_SRDA}, s4"); A(f"s_mov_b32 s{G_SRDA+1}, s5"); A(f"s_mov_b32 s{G_SRDA+3}, 0x20000")
    A(f"s_mov_b32 s{G_SRDC}, s4"); A(f"s_mov_b32 s{G_SRDC+1}, s5"); A(f"s_mov_b32 s{G_SRDC+2}, {WS_SIZE}"); A(f"s_mov_b32 s{G_SRDC+3}, 0x20000")
    A(f"s_mov_b32 s{G_SRDB}, s{P_W2}"); A(f"s_and_b32 s{G_SRDB+1}, s{P_W2+1}, 0xffff"); A(f"s_mov_b32 s{G_SRDB+3}, 0x20000")
    A(f"s_mov_b32 s{G_LDB}, 1024")
    A(f"s_mov_b32 s{G_SZB}, {1792*512*2}")
    A(f"s_mov_b32 s{G_LDC}, 2048")
    A(f"s_and_b32 s{G_T0}, s{W_T}, 3")
    A(f"s_bfe_u32 s{G_T1}, s{W_T}, 0x10002")
    A(f"s_lshr_b32 s{G_T2}, s{W_T}, 3")
    A(f"s_mul_i32 s{G_AOFF}, s{G_T2}, {256*3584}")
    A(f"s_mul_i32 s{G_AUX}, s{G_T0}, 896")
    A(f"s_add_u32 s{G_AOFF}, s{G_AOFF}, s{G_AUX}")
    A(f"s_add_u32 s{G_AOFF}, s{G_AOFF}, {WS_HB}")
    A(f"s_mul_i32 s{G_BOFF}, s{G_T0}, {448*1024}")
    A(f"s_lshl_b32 s{G_AUX}, s{G_T1}, 9")
    A(f"s_add_u32 s{G_BOFF}, s{G_BOFF}, s{G_AUX}")
    A(f"s_lshl_b32 s{G_COFF}, s{G_T0}, 22")
    A(f"s_lshl_b32 s{G_AUX}, s{G_T2}, 19")
    A(f"s_add_u32 s{G_COFF}, s{G_COFF}, s{G_AUX}")
    A(f"s_lshl_b32 s{G_AUX}, s{G_T1}, 10")
    A(f"s_add_u32 s{G_COFF}, s{G_COFF}, s{G_AUX}")
    A(f"s_add_u32 s{G_COFF}, s{G_COFF}, {WS_Y}")
    run("m2", True, lambda: epi_f32(A))
    A.label("L_fetch")
    A.forget()
    fetch_ticket(A, "nxt", D_WTK, W_TASK)
    A("s_branch L_g1_next")

    A.label("L_ao_role")
    A.forget()
    spin(A, "ini", f"buffer_load_dword v31, off, {DBG}, 0 offset:{D_INIT} sc1", "v_cmp_eq_u32 vcc, 0, v31")
    fetch_ticket(A, "aot", D_AO, W_TASK)
    A(f"s_cmp_ge_u32 s{W_TASK}, {32*NPAR}")
    A("s_cbranch_scc1 L_end")
    A(f"s_and_b32 s{O_KC}, s{W_TASK}, 7")
    A(f"s_bfe_u32 s{O_NC}, s{W_TASK}, 0x20003")
    A(f"s_lshr_b32 s{O_SEG}, s{W_TASK}, 5")
    srd(A, 56, P_X, 2048 * 512 * 2); srd(A, 60, P_B2, 1024); srd(A, 64, P_OUT, 2048 * 512 * 2)
    dstamp(A, 10, diag)
    ao_prologue(A, P_WO)
    dstamp(A, 11, diag)
    A(f"s_sub_u32 s{W_T}, 63, s{O_SEG}")
    A(f"s_mul_i32 s{W_T2}, s{W_T}, {(65536 + NPAR - 1) // NPAR}")
    A(f"s_lshr_b32 s{W_T2}, s{W_T2}, 16")
    A(f"s_mul_i32 s{W_T2}, s{W_T2}, {NPAR}")
    A(f"s_add_u32 s{W_LAST}, s{W_T2}, s{O_SEG}")
    A(f"s_lshl_b32 s{W_T}, s{W_LAST}, 2")
    A(f"s_add_u32 s{W_T}, s{W_T}, s{O_NC}")
    A(f"s_lshl_b32 s{W_T}, s{W_T}, 3")
    A(f"s_add_u32 s{W_T}, s{W_T}, s{O_KC}")
    A(f"s_lshl_b32 s{W_T}, s{W_T}, 14")
    A(f"s_add_u32 s{W_T}, s{W_T}, {WS_PART}")
    for i in range(4): A(f"v_mov_b32 v{32+i}, -1")
    A("v_lshlrev_b32 v36, 4, v0")
    for i in range(4):
        A(f"s_add_u32 s{W_T2}, s{W_T}, {i*4096}")
        A(f"buffer_store_dwordx4 v[32:35], v36, {WSR}, s{W_T2} offen sc1")
    A.wait(vm=0)
    A(f"s_mov_b32 s{W_PREV}, s{O_SEG}")
    A(f"s_mov_b32 s{W_NP}, -1")
    A.label("L_ao_loop")
    A.forget()
    A(f"s_lshr_b32 s{W_T}, s{O_SEG}, 3")
    A(f"s_cmp_eq_u32 s{W_T}, s{W_NP}")
    A("s_cbranch_scc1 L_ao_rbok")
    A(f"s_mov_b32 s{W_NP}, s{W_T}")
    A(f"s_lshl_b32 s{W_T}, s{W_T}, 7")
    A(f"s_add_u32 s{W_T2}, s{W_T}, {F_Q}")
    wait_ws_ge(A, "aq", W_T2, 16)
    A(f"s_add_u32 s{W_T2}, s{W_T}, {F_KV}")
    wait_ws_ge(A, "ak", W_T2, KVT)
    A.label("L_ao_rbok")
    A.forget()
    ao_segment(A, prog_wait=lambda: prog_wait(A))
    A(f"s_cmp_eq_u32 s{O_SEG}, s{W_LAST}")
    A("s_cbranch_scc1 L_ao_nosig")
    A(f"s_lshl_b32 s{W_T}, s{O_SEG}, 2")
    A(f"s_add_u32 s{W_T}, s{W_T}, s{O_NC}")
    A(f"s_lshl_b32 s{W_T}, s{W_T}, 7")
    A(f"s_add_u32 s{W_SIG}, s{W_T}, {F_R}")
    signal_ws(A, "sgr", W_SIG)
    A.label("L_ao_nosig")
    A.forget()
    dstamp(A, 16, diag, O_SEG)
    A(f"s_add_u32 s{O_SEG}, s{O_SEG}, {NPAR}")
    A.label("L_ao_red")
    A.forget()
    A(f"s_add_u32 s{W_T}, s{W_PREV}, {NPAR}")
    A(f"s_cmp_ge_u32 s{W_T}, s{O_SEG}")
    A("s_cbranch_scc1 L_ao_rdone")
    red_flag_addrs(A, W_PREV)
    A(f"buffer_load_dword v31, v30, {WSR}, 0 offen sc1")
    A("s_waitcnt vmcnt(0)")
    A(f"v_cmp_gt_u32 vcc, v29, v31")
    A.forget()
    A("s_cbranch_vccnz L_ao_rdone")
    ao_reduce(A, W_PREV, "a", wait=False)
    A(f"s_add_u32 s{W_PREV}, s{W_PREV}, {NPAR}")
    A.settle()
    A("s_branch L_ao_red")
    A.label("L_ao_rdone")
    A.forget()
    A(f"s_cmp_lt_u32 s{O_SEG}, 64")
    A.settle()
    A("s_cbranch_scc1 L_ao_loop")
    A.label("L_ao_fin")
    A.forget()
    A(f"s_cmp_ge_u32 s{W_PREV}, s{W_LAST}")
    A("s_cbranch_scc1 L_ao_lastred")
    ao_reduce(A, W_PREV, "b", wait=True)
    A(f"s_add_u32 s{W_PREV}, s{W_PREV}, {NPAR}")
    A.settle()
    A("s_branch L_ao_fin")
    A.label("L_ao_lastred")
    A.forget()
    ao_reduce(A, W_PREV, "c", wait='data')
    A.label("L_ao_end")
    A("s_waitcnt vmcnt(0)")
    dstamp(A, 12, diag)
    A("s_endpgm")
    A.label("L_wbail")
    A("s_mov_b64 exec, 1")
    A("v_mov_b32 v31, 0xbeef")
    A(f"buffer_store_dword v31, off, {DBG}, 0 offset:56")
    A("s_waitcnt vmcnt(0)")
    A("s_endpgm")
    return A.text()

if __name__ == "__main__":
    kw = dict(d1=40, d2=45, g1=20, g2=20)
    for a in sys.argv[2:]:
        k, v = a.split('=')
        if k in ('HOLD_FROM', 'HOLD_CNT', 'PREF', 'WARM', 'WARM_CODE_KB'): globals()[k] = int(v)
        else: kw[k] = int(v)
    hdr = open('parallel_sum__memory_aug_recurrent_mem_tr__mixer_channel_mlp__prompt.s.ref').read().split('; Override launch')[0]
    txt = hdr + f"; @launch kernel={KNAME} grid=(256,1,1) block=(256,1,1) lds=163840\n"
    txt += '.amdgcn_target "amdgcn-amd-amdhsa--gfx950"\n.text\n'
    txt += khead(KNAME) + main_kernel(**kw)
    txt += '.section .rodata,"a"\n.p2align 6\n' + kdesc(KNAME)
    open(sys.argv[1], "w").write(txt)
```

```python
import sys
from asmlib import *
from layout import *
from gemm import *
from ln import *
import ao
from ao import *
import chain
from chain import srd, emit_chain, S_PW, S_WS, S_DBG, S_H, S_WV, S_T2, L_X
from gen_gemm_test import khead, kdesc

DIAG3 = [False]
KNAME = "parallel_sum__memory_aug_recurrent_mem_tr__mixer_channel_mlp__prompt_kernel"
T_KV = 128
T_H = T_KV + 224
T_Q = T_H + 56
T_M2 = T_Q + 128
NT2 = T_M2 + 64
KVT = 128
NYP = 4
HOLD_FROM = 600; HOLD_CNT = 128
PREF = 0
PREF_ORDER = (16, 18, 20, 80)
PF0 = 16
WARM = 0
WARM_CODE_KB = 32
P_X = 72; P_B2 = 74; P_OUT = 76; P_W2 = 78; P_WO = 80
W_TASK = 28; W_NEXT = 29; W_TO = 82; W_T = 83; W_T2 = 84; W_SIG = 85; W_PAR = 86; W_PREV = 87; W_NP = 88; W_INC = 90; W_KIND = 91; W_INI = 93; W_LAST = 96
INIT_TICKET = 64
LNT = 16
WSR = "s[4:7]"; DBG = "s[12:15]"
LDS_BC = 163840 - 16

def spin(A, name, load, cmp_fail, limit=0x200000):
    A(f"s_cmp_lg_u32 s{G_WV}, 0")
    A(f"s_cbranch_scc1 L_{name}_j")
    A(f"s_mov_b32 s{W_TO}, 0")
    A.label(f"L_{name}_p")
    A(load)
    A(f"s_add_u32 s{W_TO}, s{W_TO}, 1")
    A(f"s_cmp_gt_u32 s{W_TO}, {limit}")
    A(f"s_cbranch_scc1 L_wbail")
    A("s_waitcnt vmcnt(0)")
    A(cmp_fail)
    A(f"s_cbranch_vccz L_{name}_j")
    A("s_sleep 2")
    A(f"s_branch L_{name}_p")
    A.label(f"L_{name}_j")
    A.forget()
    A("s_barrier")

def wait_ws_ge(A, name, soff, val):
    spin(A, name, f"buffer_load_dword v31, off, {WSR}, s{soff} sc1", f"v_cmp_gt_u32 vcc, {val}, v31")

def signal_ws(A, name, soff, inc=None):
    A("s_waitcnt vmcnt(0)")
    A.forget()
    A("s_barrier")
    A(f"s_cmp_lg_u32 s{G_WV}, 0")
    A(f"s_cbranch_scc1 L_{name}_s")
    A(f"s_cmp_lg_u32 s{W_INI}, 0")
    A(f"s_cbranch_scc1 L_{name}_i")
    A(f"s_mov_b32 s{W_TO}, 0")
    A.label(f"L_{name}_ip")
    A(f"buffer_load_dword v31, off, {DBG}, 0 offset:{D_INIT} sc1")
    A(f"s_add_u32 s{W_TO}, s{W_TO}, 1")
    A(f"s_cmp_gt_u32 s{W_TO}, 0x200000")
    A("s_cbranch_scc1 L_wbail")
    A("s_waitcnt vmcnt(0)")
    A("v_cmp_eq_u32 vcc, 0, v31")
    A(f"s_cbranch_vccnz L_{name}_ip")
    A(f"s_mov_b32 s{W_INI}, 1")
    A.label(f"L_{name}_i")
    A("v_mov_b32 v31, 1" if inc is None else f"v_mov_b32 v31, s{inc}")
    A("s_mov_b64 exec, 1")
    A(f"buffer_atomic_add v31, off, {WSR}, s{soff}")
    A("s_mov_b64 exec, -1")
    A.label(f"L_{name}_s")
    A.forget()

def fetch_ticket(A, name, dbg_off, dst, soff=None):
    A(f"s_cmp_lg_u32 s{G_WV}, 0")
    A(f"s_cbranch_scc1 L_{name}_t")
    A("v_mov_b32 v31, 1")
    A("s_mov_b64 exec, 1")
    A(f"buffer_atomic_add v31, off, {DBG}, {0 if soff is None else 's%d' % soff} offset:{dbg_off} sc0")
    A("s_waitcnt vmcnt(0)")
    A(f"v_mov_b32 v30, {LDS_BC}")
    A("ds_write_b32 v30, v31")
    A("s_waitcnt lgkmcnt(0)")
    A("s_mov_b64 exec, -1")
    A.label(f"L_{name}_t")
    A.forget()
    A("s_barrier")
    A(f"v_mov_b32 v30, {LDS_BC}")
    A("ds_read_b32 v31, v30")
    A.wait(lg=0)
    A(f"v_readfirstlane_b32 s{dst}, v31")
    A("s_barrier")

def prog_wait(A):
    saved = [set(x) for x in A.vm]; savedl = [set(x) for x in A.lgkm]
    A(f"s_cmp_lg_u32 s{G_WV}, 0")
    A("s_cbranch_scc1 L_ap_j")
    A(f"s_lshl_b32 s{W_T2}, s{O_KC}, 9")
    A(f"s_add_u32 s{W_T2}, s{W_T2}, {F_PROG}")
    A(f"v_and_b32 v30, 3, v{OV_L}")
    A("v_lshlrev_b32 v30, 7, v30")
    A(f"s_mov_b32 s{W_TO}, 0")
    A.label("L_ap_p")
    A.auto = False
    A(f"buffer_load_dword v31, v30, {WSR}, s{W_T2} offen sc1")
    A.auto = True
    A(f"s_add_u32 s{W_TO}, s{W_TO}, 1")
    A(f"s_cmp_gt_u32 s{W_TO}, 0x400000")
    A("s_cbranch_scc1 L_wbail")
    A("s_waitcnt vmcnt(0)")
    A(f"v_cmp_ge_u32 vcc, s{O_SEG}, v31")
    A("s_cbranch_vccz L_ap_j")
    A("s_sleep 2")
    A("s_branch L_ap_p")
    A.label("L_ap_j")
    A.vm = saved; A.lgkm = savedl
    A("s_barrier")

def red_flag_addrs(A, seg_sreg):
    A(f"s_lshl_b32 s{W_T}, s{seg_sreg}, 2")
    A(f"s_add_u32 s{W_T}, s{W_T}, s{O_NC}")
    A(f"s_lshl_b32 s{W_T}, s{W_T}, 7")
    A(f"s_add_u32 s{W_T}, s{W_T}, {F_R}")
    A(f"s_lshr_b32 s{W_T2}, s{seg_sreg}, 3")
    A(f"s_lshl_b32 s{W_T2}, s{W_T2}, 7")
    A(f"s_add_u32 s{W_T2}, s{W_T2}, {F_Y}")
    A(f"v_and_b32 v28, 1, v{OV_L}")
    A("v_cmp_eq_u32 vcc, 0, v28")
    A(f"v_mov_b32 v30, s{W_T2}")
    A(f"v_mov_b32 v29, s{W_T}")
    A("v_cndmask_b32 v30, v30, v29, vcc")
    A("v_mov_b32 v29, 8")
    A("v_mov_b32 v28, 8")
    A("v_cndmask_b32 v29, v29, v28, vcc")

def ao_reduce(A, seg_sreg, tag, wait=True):
    t0 = OV_T; t1 = OV_T + 1
    if wait:
        red_flag_addrs(A, seg_sreg)
        if wait == 'data': A("v_mov_b32 v28, 0"); A(f"v_and_b32 v27, 1, v{OV_L}"); A("v_cmp_eq_u32 vcc, 0, v27"); A("v_cndmask_b32 v29, v29, v28, vcc")
        A(f"s_mov_b32 s{W_TO}, 0")
        A.label(f"L_rw{tag}")
        A(f"buffer_load_dword v31, v30, {WSR}, 0 offen sc1")
        A(f"s_add_u32 s{W_TO}, s{W_TO}, 1")
        A(f"s_cmp_gt_u32 s{W_TO}, 0x400000")
        A("s_cbranch_scc1 L_wbail")
        A("s_waitcnt vmcnt(0)")
        A("v_cmp_gt_u32 vcc, v29, v31")
        A.forget()
        A(f"s_cbranch_vccnz L_rw{tag}")
    A(f"s_lshl_b32 s{W_T}, s{seg_sreg}, 2")
    A(f"s_add_u32 s{W_T}, s{W_T}, s{O_NC}")
    A(f"s_lshl_b32 s{W_T}, s{W_T}, 17")
    A(f"s_add_u32 s{W_T}, s{W_T}, {WS_PART}")
    A(f"s_lshl_b32 s{O_T0}, s{O_KC}, 2")
    A(f"s_add_u32 s{O_T0}, s{O_T0}, s{O_WV}")
    A(f"s_lshl_b32 s{O_T1}, s{O_T0}, 9")
    A(f"s_add_u32 s{W_T}, s{W_T}, s{O_T1}")
    A(f"v_lshlrev_b32 v{t0}, 3, v{OV_L}")
    R = OV_Q
    def ploads():
        for kc in range(8):
            A(f"s_add_u32 s{O_T1}, s{W_T}, {kc*16384}")
            A(f"buffer_load_dwordx2 v[{R+2*kc}:{R+2*kc+1}], v{t0}, {WSR}, s{O_T1} offen sc1")
    if wait == 'data':
        A(f"s_mov_b32 s{W_TO}, 0")
        A.label(f"L_rd{tag}")
        ploads()
        A(f"s_add_u32 s{W_TO}, s{W_TO}, 1")
        A(f"s_cmp_gt_u32 s{W_TO}, 0x400000")
        A("s_cbranch_scc1 L_wbail")
        A.wait(vm=0)
        A(f"v_max3_u32 v{t1}, v{R}, v{R+1}, v{R+2}")
        for i in range(3, 15, 2): A(f"v_max3_u32 v{t1}, v{t1}, v{R+i}, v{R+i+1}")
        A(f"v_max_u32 v{t1}, v{t1}, v{R+15}")
        A(f"v_cmp_eq_u32 vcc, -1, v{t1}")
        A(f"s_cbranch_vccnz L_rd{tag}")
        A.forget()
    else:
        ploads()
    A(f"s_lshl_b32 s{O_T1}, s{seg_sreg}, 5")
    A(f"s_add_u32 s{O_T0}, s{O_T0}, s{O_T1}")
    A(f"s_lshl_b32 s{O_T1}, s{O_T0}, 11")
    A(f"s_lshl_b32 s{O_T2}, s{O_NC}, 9")
    A(f"s_add_u32 s{O_T1}, s{O_T1}, s{O_T2}")
    A(f"s_add_u32 s{O_T1}, s{O_T1}, {WS_Y}")
    for pl in range(NYP):
        A(f"buffer_load_dwordx2 v[{R+16+2*pl}:{R+17+2*pl}], v{t0}, {WSR}, s{O_T1} offen sc1")
        if pl < NYP - 1: A(f"s_add_u32 s{O_T1}, s{O_T1}, {4*MB}")
    A(f"v_lshlrev_b32 v{t1}, 2, v{OV_L}")
    A(f"s_lshl_b32 s{O_T1}, s{O_T0}, 10")
    A(f"s_lshl_b32 s{O_T2}, s{O_NC}, 8")
    A(f"s_add_u32 s{O_T1}, s{O_T1}, s{O_T2}")
    A(f"buffer_load_dword v{R+24}, v{t1}, s[56:59], s{O_T1} offen")
    A(f"buffer_load_dword v{R+25}, v{t1}, s[60:63], s{O_T2} offen")
    A(f"v_pk_add_f32 v[{R}:{R+1}], v[{R}:{R+1}], v[{R+2}:{R+3}]")
    for k in range(2, 8 + NYP):
        A(f"v_pk_add_f32 v[{R}:{R+1}], v[{R}:{R+1}], v[{R+2*k}:{R+2*k+1}]")
    for src in (R + 24, R + 25):
        A(f"v_lshlrev_b32 v{R+26}, 16, v{src}")
        A(f"v_and_b32 v{R+27}, 0xffff0000, v{src}")
        A(f"v_pk_add_f32 v[{R}:{R+1}], v[{R}:{R+1}], v[{R+26}:{R+27}]")
    A(f"v_cvt_pk_bf16_f32 v{R}, v{R}, v{R+1}")
    A(f"buffer_store_dword v{R}, v{t1}, s[64:67], s{O_T1} offen")

DBGMAP = {0: 2, 14: 3, 13: 5, 6: 6, 7: 7, 12: 8, 1: 10, 200: 1, 201: 11, 202: 12, 203: 13, 204: 4}
def dstamp(A, idx, diag, sreg_idx=None, cyc=False):
    if not diag: return
    if DIAG3[0]:
        if idx not in DBGMAP or sreg_idx is not None or cyc: return
        lb = A.newlabel("L_ds")
        A.raw("    s_memrealtime s[98:99]")
        A.raw("    s_waitcnt lgkmcnt(0)")
        A(f"s_cmp_lg_u32 s27, 0")
        A(f"s_cbranch_scc1 {lb}")
        A("v_mov_b32 v30, s98")
        A("s_mov_b64 exec, 1")
        if idx == 0:
            A("v_not_b32 v30, v30")
        A(f"buffer_atomic_umax v30, off, s[12:15], 0 offset:{4*DBGMAP[idx]}")
        A("s_mov_b64 exec, -1")
        A.vm.pop()
        A.label(lb)
        return
    lb = A.newlabel("L_ds")
    A.raw("    s_memtime s[98:99]" if cyc else "    s_memrealtime s[98:99]")
    A.raw("    s_waitcnt lgkmcnt(0)")
    A(f"s_cmp_lg_u32 s27, 0")
    A(f"s_cbranch_scc1 {lb}")
    A(f"s_lshl_b32 s100, s2, 9")
    if sreg_idx is not None:
        A(f"s_lshl_b32 s101, s{sreg_idx}, 2")
        A(f"s_add_u32 s100, s100, s101")
    A(f"s_add_u32 s100, s100, {WS_TIME + 4*idx}")
    A("v_mov_b32 v30, s98")
    A("s_mov_b64 exec, 1")
    A(f"buffer_store_dword v30, off, s[4:7], s100")
    A("s_mov_b64 exec, -1")
    A.vm.pop()
    A.label(lb)

def main_kernel(d1, d2, g1, g2, NPAR=6, diag=0):
    DIAG3[0] = (diag == 3)
    A = Asm()
    A("s_cmp_ge_u32 s2, 256")
    A("s_cbranch_scc1 L_end")
    A(f"s_load_dwordx2 s[{S_PW}:{S_PW+1}], s[0:1], {KA_WQ}")
    A(f"s_load_dwordx2 s[{S_PW+2}:{S_PW+3}], s[0:1], {KA_WK}")
    A(f"s_load_dwordx2 s[{S_PW+4}:{S_PW+5}], s[0:1], {KA_WV}")
    A(f"s_load_dwordx2 s[{S_PW+6}:{S_PW+7}], s[0:1], {KA_WO}")
    A(f"s_load_dwordx2 s[{S_PW+8}:{S_PW+9}], s[0:1], {KA_MEM0}")
    A(f"s_load_dwordx2 s[52:53], s[0:1], {KA_DBG}")
    A(f"s_load_dwordx2 s[54:55], s[0:1], {KA_WS}")
    A(f"s_load_dwordx2 s[56:57], s[0:1], {KA_X}")
    A(f"s_getreg_b32 s{S_T2}, hwreg(HW_REG_XCC_ID)")
    A(f"v_lshrrev_b32 v1, 6, v0")
    A(f"v_readfirstlane_b32 s{S_WV}, v1")
    A.wait(lg=0)
    srd(A, S_WS, 54, WS_SIZE)
    srd(A, S_DBG, 52, 256)
    A(f"s_and_b32 s60, s{S_T2}, 15")
    dstamp(A, 0, diag)
    if WARM:
        A("v_and_b32 v70, 63, v0")
        A("v_lshlrev_b32 v70, 21, v70")
        A(f"buffer_load_dword v71, v70, {WSR}, 0 offen")
        A(f"s_mov_b32 s62, {128*MB}")
        A(f"buffer_load_dword v72, v70, {WSR}, s62 offen")
        n = 73
        for ptr, size in ((S_PW, 4194304), (S_PW+2, 4194304), (S_PW+4, 4194304), (S_PW+6, 4194304), (56, 2097152)):
            srd(A, 8, ptr, size)
            A(f"buffer_load_dword v{n}, v70, s[8:11], 0 offen"); n += 1
        A.raw("    s_getpc_b64 s[62:63]")
        A.raw("L_pcw:")
        A.raw("    s_add_u32 s62, s62, L_worker-L_pcw")
        A.raw("    s_addc_u32 s63, s63, 0")
        A("v_lshlrev_b32 v70, 4, v0")
        for i in range(WARM_CODE_KB // 4):
            if i: A.raw("    s_add_u32 s62, s62, 4096"); A.raw("    s_addc_u32 s63, s63, 0")
            A.auto = False
            A(f"global_load_dwordx4 v[80:83], v70, s[62:63]")
            A.auto = True
        A.vm = []
    A("s_cmp_lg_u32 s2, 0")
    A("s_cbranch_scc1 L_noinit")
    for i in range(4): A(f"v_mov_b32 v{60+i}, 0")
    A("v_lshlrev_b32 v64, 4, v0")
    for i in range(FLAG_BYTES // 4096):
        A(f"s_mov_b32 s61, {WS_FLAG + i*4096}")
        A(f"buffer_store_dwordx4 v[60:63], v64, {WSR}, s61 offen sc1")
    A.label("L_noinit")
    A.forget()
    A(f"s_cmp_eq_u32 s60, 0")
    A(f"s_cselect_b32 s29, {D_CTK}, {D_WTK}")
    fetch_ticket(A, "tk", 0, S_H, soff=29)
    A("s_cmp_lg_u32 s2, 0")
    A("s_cbranch_scc1 L_noinit2")
    A("s_waitcnt vmcnt(0)")
    A("s_barrier")
    A(f"s_cmp_lg_u32 s{S_WV}, 0")
    A("s_cbranch_scc1 L_noinit2")
    A("v_mov_b32 v64, 1")
    A("s_mov_b64 exec, 1")
    A(f"buffer_store_dword v64, off, {DBG}, 0 offset:{D_INIT} sc1")
    A("s_mov_b64 exec, -1")
    A.label("L_noinit2")
    A.forget()
    A(f"s_cmp_lg_u32 s60, 0")
    A("s_cbranch_scc1 L_worker")
    A(f"s_cmp_ge_u32 s{S_H}, 32")
    A("s_cbranch_scc1 L_xs")
    emit_chain(A, d1=d1, d2=d2, g1=g1, g2=g2, opt=('merged',) + (('diag',) if diag else ()) + (('nostep',) if diag in (2, 3) else ()), dstamp=dstamp)
    A("s_endpgm")

    A.label("L_xs")
    fetch_ticket(A, "xtk", D_WTK, S_H)
    A.label("L_worker")
    A.forget()
    A(f"s_mov_b32 s{W_TASK}, s{S_H}")
    A(f"s_mov_b32 s{P_WO}, s{S_PW+6}"); A(f"s_mov_b32 s{P_WO+1}, s{S_PW+7}")
    A(f"s_mov_b32 s{P_X}, s56"); A(f"s_mov_b32 s{P_X+1}, s57")
    A(f"s_load_dwordx2 s[22:23], s[0:1], {KA_W1}")
    A(f"s_load_dwordx2 s[24:25], s[0:1], {KA_B1}")
    A(f"s_load_dwordx2 s[{P_B2}:{P_B2+1}], s[0:1], {KA_B2}")
    A(f"s_load_dwordx2 s[{P_OUT}:{P_OUT+1}], s[0:1], {KA_OUT}")
    A(f"s_load_dwordx2 s[{P_W2}:{P_W2+1}], s[0:1], {KA_W2}")
    A.wait(lg=0)
    srd(A, G_SRDX, 24, 1792 * 2)
    gemm_setup_lane(A)
    A(f"s_mov_b32 s{W_INI}, 1")
    if PREF:
        NPF = 224 - PF0
        A(f"s_cmp_lt_u32 s{W_TASK}, {PF0}")
        A("s_cbranch_scc1 L_nopref")
        A(f"s_cmp_ge_u32 s{W_TASK}, 224")
        A("s_cbranch_scc1 L_nopref")
        A(f"s_sub_u32 s30, s{W_TASK}, {PF0}")
        A("s_lshl_b32 s30, s30, 13")
        A(f"s_lshl_b32 s31, s{G_WV}, 11")
        A("s_add_u32 s30, s30, s31")
        A(f"v_lshlrev_b32 v32, 4, v{GV_LANE}")
        n = 0
        for ptr in PREF_ORDER:
            srd(A, 8, ptr, 4194304)
            for rep in range((512 + NPF - 1) // NPF):
                A(f"s_add_u32 s31, s30, {rep * NPF * 8192}")
                for q in range(2):
                    r = 36 + 4 * (n % 16); n += 1
                    A.auto = False
                    A(f"buffer_load_dwordx4 v[{r}:{r+3}], v32, s[8:11], s31 offen offset:{q*1024}")
                    A.auto = True
            if len(A.vm) > 40: A.wait(vm=16)
        A.wait(vm=0)
        A.label("L_nopref")
        A.forget()
    assert (64 - TAIL_SEG) * 32 * 4096 == 96 * 8192
    A(f"s_cmp_lt_u32 s{W_TASK}, 128")
    A("s_cbranch_scc1 L_nokvp")
    A(f"s_cmp_ge_u32 s{W_TASK}, 224")
    A("s_cbranch_scc1 L_nokvp")
    for i in range(4): A(f"v_mov_b32 v{32+i}, -1")
    A("v_lshlrev_b32 v36, 4, v0")
    A(f"s_sub_u32 s30, s{W_TASK}, 128")
    A("s_lshl_b32 s30, s30, 13")
    A(f"s_add_u32 s30, s30, {WS_KVM + TAIL_SEG*32*4096}")
    A(f"buffer_store_dwordx4 v[32:35], v36, {WSR}, s30 offen sc1")
    A("s_add_u32 s30, s30, 4096")
    A(f"buffer_store_dwordx4 v[32:35], v36, {WSR}, s30 offen sc1")
    A.label("L_nokvp")
    A.forget()
    A(f"s_cmp_ge_u32 s{W_TASK}, 128")
    A("s_cbranch_scc1 L_noln")
    srd(A, 8, P_X, 2048 * 512 * 2)
    A(f"s_lshl_b32 s30, s{W_TASK}, 4")
    A(f"s_lshl_b32 s31, s{G_WV}, 2")
    A("s_add_u32 s30, s30, s31")
    emit_ln_rows(A, 8, 4, 30, 4, GV_LANE, SO=94)
    A("s_waitcnt vmcnt(0)")
    A.forget()
    A("s_barrier")
    A.label("L_noln")
    A(f"s_cmp_lg_u32 s{G_WV}, 0")
    A("s_cbranch_scc1 L_lnsig")
    A(f"s_mov_b32 s62, 0")
    A.label("L_ln_ip")
    A(f"buffer_load_dword v31, off, {DBG}, 0 offset:{D_INIT} sc1")
    A("s_add_u32 s62, s62, 1")
    A("s_cmp_gt_u32 s62, 0x200000")
    A("s_cbranch_scc1 L_wbail")
    A("s_waitcnt vmcnt(0)")
    A("v_cmp_eq_u32 vcc, 0, v31")
    A("s_cbranch_vccnz L_ln_ip")
    A(f"s_cmp_ge_u32 s{W_TASK}, 128")
    A("s_cbranch_scc1 L_lnsig")
    A(f"s_lshr_b32 s30, s{W_TASK}, 4")
    A("s_lshl_b32 s30, s30, 7")
    A(f"s_add_u32 s30, s30, {F_LN}")
    A("v_mov_b32 v31, 1")
    A("s_mov_b64 exec, 1")
    A(f"buffer_atomic_add v31, off, {WSR}, s30")
    A("s_mov_b64 exec, -1")
    A.label("L_lnsig")
    A.forget()
    dstamp(A, 1, diag)
    A(f"s_mov_b32 s89, 0")
    A.label("L_g1_next")
    A(f"s_cmp_ge_u32 s{W_TASK}, {NT2}")
    A("s_cbranch_scc1 L_ao_role")
    A(f"s_cmp_ge_u32 s{W_TASK}, {T_M2}")
    A("s_cbranch_scc1 L_m2")
    t = W_TASK
    A(f"s_mov_b32 s{G_LDA}, 1024")
    A(f"s_mov_b32 s{G_NST}, 8")
    A(f"s_mov_b32 s{G_SZA}, {WS_SIZE}")
    A(f"s_mov_b32 s{G_SRDA}, s4"); A(f"s_mov_b32 s{G_SRDA+1}, s5"); A(f"s_mov_b32 s{G_SRDA+3}, 0x20000")
    A(f"s_mov_b32 s{G_SRDC}, s4"); A(f"s_mov_b32 s{G_SRDC+1}, s5"); A(f"s_mov_b32 s{G_SRDC+2}, {WS_SIZE}"); A(f"s_mov_b32 s{G_SRDC+3}, 0x20000")
    A(f"s_mov_b32 s{G_SRDB+3}, 0x20000")
    A(f"s_mov_b32 s{W_INC}, 1")
    A(f"s_cmp_ge_u32 s{t}, {T_Q}")
    A("s_cbranch_scc1 L_dec_q")
    A(f"s_cmp_ge_u32 s{t}, {T_H}")
    A("s_cbranch_scc1 L_dec_h")
    A(f"s_mov_b32 s{G_LDB}, 8192")
    A(f"s_mov_b32 s{G_SZB}, 4194304")
    A(f"s_mov_b32 s{G_LDC}, 8192")
    A(f"s_cmp_lt_u32 s{t}, {T_KV}")
    A("s_cbranch_scc1 L_kv_small")
    A(f"s_sub_u32 s{W_T}, s{t}, {T_KV - 32}")
    A(f"s_and_b32 s{G_T1}, s{W_T}, 15")
    A(f"s_lshl_b32 s{G_BOFF}, s{G_T1}, 9")
    A(f"s_lshl_b32 s{G_T2}, s{G_T1}, 14")
    A(f"s_bfe_u32 s{W_KIND}, s{W_T}, 0x10004")
    A(f"s_lshr_b32 s{W_T2}, s{W_T}, 5")
    A(f"s_lshl_b32 s{W_T}, s{W_T2}, 1")
    A(f"s_mov_b32 s{W_INC}, 4")
    A("s_branch L_kv_common")
    A.label("L_kv_small")
    A(f"s_and_b32 s{G_T1}, s{t}, 31")
    A(f"s_lshl_b32 s{G_BOFF}, s{G_T1}, 8")
    A(f"s_lshl_b32 s{G_T2}, s{G_T1}, 13")
    A(f"s_bfe_u32 s{W_KIND}, s{t}, 0x10005")
    A(f"s_lshr_b32 s{W_T}, s{t}, 6")
    A(f"s_mov_b32 s{W_T2}, 0")
    A.label("L_kv_common")
    A(f"s_lshl_b32 s{G_AOFF}, s{W_T}, 17")
    A(f"s_add_u32 s{G_AOFF}, s{G_AOFF}, {WS_XN}")
    A(f"s_lshl_b32 s{W_SIG}, s{W_T2}, 7")
    A(f"s_add_u32 s{W_SIG}, s{W_SIG}, {F_KV}")
    A(f"s_lshl_b32 s{G_COFF}, s{W_T}, 20")
    A(f"s_cmp_eq_u32 s{W_KIND}, 1")
    A("s_cbranch_scc1 L_dec_v")
    A(f"s_mov_b32 s{G_SRDB}, s18"); A(f"s_and_b32 s{G_SRDB+1}, s19, 0xffff")
    A(f"s_add_u32 s{G_COFF}, s{G_COFF}, s{G_BOFF}")
    A(f"s_add_u32 s{G_COFF}, s{G_COFF}, {WS_KX}")
    A("s_branch L_lnwait")
    A.label("L_dec_v")
    A(f"s_mov_b32 s{G_SRDB}, s20"); A(f"s_and_b32 s{G_SRDB+1}, s21, 0xffff")
    A(f"s_add_u32 s{G_COFF}, s{G_COFF}, s{G_T2}")
    A(f"s_add_u32 s{G_COFF}, s{G_COFF}, {WS_VT}")
    A("s_branch L_lnwait")
    A.label("L_dec_q")
    A(f"s_sub_u32 s{W_T}, s{t}, {T_Q}")
    A(f"s_and_b32 s{G_T1}, s{W_T}, 15")
    A(f"s_lshr_b32 s{W_T2}, s{W_T}, 4")
    A(f"s_mov_b32 s{G_LDB}, 8192")
    A(f"s_mov_b32 s{G_SZB}, 4194304")
    A(f"s_lshl_b32 s{G_BOFF}, s{G_T1}, 9")
    A(f"s_mov_b32 s{G_LDC}, 8192")
    A(f"s_lshl_b32 s{G_AOFF}, s{W_T2}, 18")
    A(f"s_add_u32 s{G_AOFF}, s{G_AOFF}, {WS_XN}")
    A(f"s_mov_b32 s{G_SRDB}, s16"); A(f"s_and_b32 s{G_SRDB+1}, s17, 0xffff")
    A(f"s_lshl_b32 s{G_COFF}, s{W_T2}, 21")
    A(f"s_add_u32 s{G_COFF}, s{G_COFF}, s{G_BOFF}")
    A(f"s_add_u32 s{G_COFF}, s{G_COFF}, {WS_QX}")
    A(f"s_lshl_b32 s{W_SIG}, s{W_T2}, 7")
    A(f"s_add_u32 s{W_SIG}, s{W_SIG}, {F_Q}")
    A(f"s_mov_b32 s{W_KIND}, 0")
    A("s_branch L_lnwait")
    A.label("L_dec_h")
    A(f"s_sub_u32 s{G_T1}, s{t}, {T_H}")
    A(f"s_mul_i32 s{W_T2}, s{G_T1}, 37")
    A(f"s_lshr_b32 s{W_T2}, s{W_T2}, 8")
    A(f"s_mul_i32 s{G_T2}, s{W_T2}, 7")
    A(f"s_sub_u32 s{G_T1}, s{G_T1}, s{G_T2}")
    A(f"s_lshl_b32 s{G_AOFF}, s{W_T2}, 18")
    A(f"s_add_u32 s{G_AOFF}, s{G_AOFF}, {WS_XN}")
    A(f"s_mov_b32 s{G_LDB}, 3584")
    A(f"s_mov_b32 s{G_SZB}, {512*1792*2}")
    A(f"s_lshl_b32 s{G_BOFF}, s{G_T1}, 9")
    A(f"s_mov_b32 s{G_AUX}, s{G_BOFF}")
    A(f"s_mov_b32 s{G_SRDB}, s22"); A(f"s_and_b32 s{G_SRDB+1}, s23, 0xffff")
    A(f"s_mov_b32 s{G_LDC}, 3584")
    A(f"s_mul_i32 s{G_COFF}, s{W_T2}, {256*3584}")
    A(f"s_add_u32 s{G_COFF}, s{G_COFF}, s{G_BOFF}")
    A(f"s_add_u32 s{G_COFF}, s{G_COFF}, {WS_HB}")
    A(f"s_lshl_b32 s{W_SIG}, s{W_T2}, 7")
    A(f"s_add_u32 s{W_SIG}, s{W_SIG}, {F_H}")
    A(f"s_mov_b32 s{W_KIND}, 2")
    A.label("L_lnwait")
    A(f"s_cmp_lt_u32 s{t}, {HOLD_FROM}")
    A("s_cbranch_scc1 L_nohold")
    A(f"s_mov_b32 s30, {F_KV}")
    wait_ws_ge(A, "hold", 30, HOLD_CNT)
    A.label("L_nohold")
    A.forget()
    A(f"s_lshl_b32 s30, s{W_T2}, 7")
    A(f"s_add_u32 s30, s30, {F_LN}")
    wait_ws_ge(A, "lnw", 30, LNT)
    A(f"s_cmp_eq_u32 s{W_KIND}, 2")
    A("s_cbranch_scc1 L_task_h")
    A(f"s_cmp_lt_u32 s{t}, {T_KV}")
    A("s_cbranch_scc1 L_small")
    A(f"s_cmp_eq_u32 s{W_KIND}, 1")
    A("s_cbranch_scc1 L_task_v")
    A("s_branch L_task_k")
    A.label("L_small")
    A(f"s_cmp_eq_u32 s{W_KIND}, 1")
    A("s_cbranch_scc1 L_task_vs")
    A("s_branch L_task_ks")
    def run(tag, wT, epi, MI=4, halfB=False):
        A.label(f"L_task_{tag}")
        A.forget()
        if diag: A("s_lshl_b32 s92, s89, 2")
        dstamp(A, 96, diag, 92)
        if halfB and DIAG3[0]: dstamp(A, 200, diag)
        gemm_task_addr(A, MI, halfB)
        gemm_start(A, sc1A=True, MI=MI)
        gemm_main(A, tag, wT, sc1A=True, MI=MI)
        dstamp(A, 97, diag, 92)
        if halfB and DIAG3[0]: dstamp(A, 201, diag)
        epi()
        A.label(f"L_eskip_{tag}")
        A.forget()
        dstamp(A, 98, diag, 92)
        signal_ws(A, f"sg{tag}", W_SIG, inc=W_INC)
        dstamp(A, 80, diag, 89)
        if halfB and DIAG3[0]: dstamp(A, 202, diag)
        A("s_add_u32 s89, s89, 1")
        A("s_branch L_fetch")
    run("ks", True, lambda: epi_rowmajor(A, MI=2, skip="L_eskip_ks"), MI=2, halfB=True)
    run("vs", False, lambda: epi_vt(A, MI=2, skip="L_eskip_vs"), MI=2, halfB=True)
    run("k", True, lambda: epi_rowmajor(A))
    run("v", False, lambda: epi_vt(A))
    run("h", True, lambda: epi_rowmajor(A, gelu=True))
    A.label("L_m2")
    A.forget()
    A(f"s_sub_u32 s{W_T}, s{W_TASK}, {T_M2}")
    A(f"s_lshr_b32 s{W_T2}, s{W_T}, 3")
    A(f"s_lshl_b32 s{W_T2}, s{W_T2}, 7")
    A(f"s_add_u32 s{W_SIG}, s{W_T2}, {F_Y}")
    A(f"s_add_u32 s{W_T2}, s{W_T2}, {F_H}")
    wait_ws_ge(A, "hw", W_T2, 7)
    A(f"s_mov_b32 s{W_INC}, 1")
    A(f"s_mov_b32 s{G_LDA}, 3584")
    A(f"s_mov_b32 s{G_NST}, 7")
    A(f"s_mov_b32 s{G_SZA}, {WS_SIZE}")
    A(f"s_mov_b32 s{G_SRDA}, s4"); A(f"s_mov_b32 s{G_SRDA+1}, s5"); A(f"s_mov_b32 s{G_SRDA+3}, 0x20000")
    A(f"s_mov_b32 s{G_SRDC}, s4"); A(f"s_mov_b32 s{G_SRDC+1}, s5"); A(f"s_mov_b32 s{G_SRDC+2}, {WS_SIZE}"); A(f"s_mov_b32 s{G_SRDC+3}, 0x20000")
    A(f"s_mov_b32 s{G_SRDB}, s{P_W2}"); A(f"s_and_b32 s{G_SRDB+1}, s{P_W2+1}, 0xffff"); A(f"s_mov_b32 s{G_SRDB+3}, 0x20000")
    A(f"s_mov_b32 s{G_LDB}, 1024")
    A(f"s_mov_b32 s{G_SZB}, {1792*512*2}")
    A(f"s_mov_b32 s{G_LDC}, 2048")
    A(f"s_and_b32 s{G_T0}, s{W_T}, 3")
    A(f"s_bfe_u32 s{G_T1}, s{W_T}, 0x10002")
    A(f"s_lshr_b32 s{G_T2}, s{W_T}, 3")
    A(f"s_mul_i32 s{G_AOFF}, s{G_T2}, {256*3584}")
    A(f"s_mul_i32 s{G_AUX}, s{G_T0}, 896")
    A(f"s_add_u32 s{G_AOFF}, s{G_AOFF}, s{G_AUX}")
    A(f"s_add_u32 s{G_AOFF}, s{G_AOFF}, {WS_HB}")
    A(f"s_mul_i32 s{G_BOFF}, s{G_T0}, {448*1024}")
    A(f"s_lshl_b32 s{G_AUX}, s{G_T1}, 9")
    A(f"s_add_u32 s{G_BOFF}, s{G_BOFF}, s{G_AUX}")
    A(f"s_lshl_b32 s{G_COFF}, s{G_T0}, 22")
    A(f"s_lshl_b32 s{G_AUX}, s{G_T2}, 19")
    A(f"s_add_u32 s{G_COFF}, s{G_COFF}, s{G_AUX}")
    A(f"s_lshl_b32 s{G_AUX}, s{G_T1}, 10")
    A(f"s_add_u32 s{G_COFF}, s{G_COFF}, s{G_AUX}")
    A(f"s_add_u32 s{G_COFF}, s{G_COFF}, {WS_Y}")
    run("m2", True, lambda: epi_f32(A))
    A.label("L_fetch")
    A.forget()
    fetch_ticket(A, "nxt", D_WTK, W_TASK)
    A("s_branch L_g1_next")

    A.label("L_ao_role")
    A.forget()
    spin(A, "ini", f"buffer_load_dword v31, off, {DBG}, 0 offset:{D_INIT} sc1", "v_cmp_eq_u32 vcc, 0, v31")
    fetch_ticket(A, "aot", D_AO, W_TASK)
    A(f"s_cmp_ge_u32 s{W_TASK}, {32*NPAR}")
    A("s_cbranch_scc1 L_end")
    A(f"s_and_b32 s{O_KC}, s{W_TASK}, 7")
    A(f"s_bfe_u32 s{O_NC}, s{W_TASK}, 0x20003")
    A(f"s_lshr_b32 s{O_SEG}, s{W_TASK}, 5")
    srd(A, 56, P_X, 2048 * 512 * 2); srd(A, 60, P_B2, 1024); srd(A, 64, P_OUT, 2048 * 512 * 2)
    dstamp(A, 10, diag)
    ao_prologue(A, P_WO)
    dstamp(A, 11, diag)
    A(f"s_sub_u32 s{W_T}, 63, s{O_SEG}")
    A(f"s_mul_i32 s{W_T2}, s{W_T}, {(65536 + NPAR - 1) // NPAR}")
    A(f"s_lshr_b32 s{W_T2}, s{W_T2}, 16")
    A(f"s_mul_i32 s{W_T2}, s{W_T2}, {NPAR}")
    A(f"s_add_u32 s{W_LAST}, s{W_T2}, s{O_SEG}")
    A(f"s_lshl_b32 s{W_T}, s{W_LAST}, 2")
    A(f"s_add_u32 s{W_T}, s{W_T}, s{O_NC}")
    A(f"s_lshl_b32 s{W_T}, s{W_T}, 3")
    A(f"s_add_u32 s{W_T}, s{W_T}, s{O_KC}")
    A(f"s_lshl_b32 s{W_T}, s{W_T}, 14")
    A(f"s_add_u32 s{W_T}, s{W_T}, {WS_PART}")
    for i in range(4): A(f"v_mov_b32 v{32+i}, -1")
    A("v_lshlrev_b32 v36, 4, v0")
    for i in range(4):
        A(f"s_add_u32 s{W_T2}, s{W_T}, {i*4096}")
        A(f"buffer_store_dwordx4 v[32:35], v36, {WSR}, s{W_T2} offen sc1")
    A.wait(vm=0)
    A(f"s_mov_b32 s{W_PREV}, s{O_SEG}")
    A(f"s_mov_b32 s{W_NP}, -1")
    A.label("L_ao_loop")
    A.forget()
    A(f"s_lshr_b32 s{W_T}, s{O_SEG}, 3")
    A(f"s_cmp_eq_u32 s{W_T}, s{W_NP}")
    A("s_cbranch_scc1 L_ao_rbok")
    A(f"s_mov_b32 s{W_NP}, s{W_T}")
    A(f"s_lshl_b32 s{W_T}, s{W_T}, 7")
    A(f"s_add_u32 s{W_T2}, s{W_T}, {F_Q}")
    wait_ws_ge(A, "aq", W_T2, 16)
    A(f"s_add_u32 s{W_T2}, s{W_T}, {F_KV}")
    wait_ws_ge(A, "ak", W_T2, KVT)
    A.label("L_ao_rbok")
    A.forget()
    ao_segment(A, prog_wait=lambda: prog_wait(A))
    A(f"s_cmp_eq_u32 s{O_SEG}, s{W_LAST}")
    A("s_cbranch_scc1 L_ao_nosig")
    A(f"s_lshl_b32 s{W_T}, s{O_SEG}, 2")
    A(f"s_add_u32 s{W_T}, s{W_T}, s{O_NC}")
    A(f"s_lshl_b32 s{W_T}, s{W_T}, 7")
    A(f"s_add_u32 s{W_SIG}, s{W_T}, {F_R}")
    signal_ws(A, "sgr", W_SIG)
    A.label("L_ao_nosig")
    A.forget()
    dstamp(A, 16, diag, O_SEG)
    A(f"s_add_u32 s{O_SEG}, s{O_SEG}, {NPAR}")
    A.label("L_ao_red")
    A.forget()
    A(f"s_add_u32 s{W_T}, s{W_PREV}, {NPAR}")
    A(f"s_cmp_ge_u32 s{W_T}, s{O_SEG}")
    A("s_cbranch_scc1 L_ao_rdone")
    red_flag_addrs(A, W_PREV)
    A(f"buffer_load_dword v31, v30, {WSR}, 0 offen sc1")
    A("s_waitcnt vmcnt(0)")
    A(f"v_cmp_gt_u32 vcc, v29, v31")
    A.forget()
    A("s_cbranch_vccnz L_ao_rdone")
    ao_reduce(A, W_PREV, "a", wait=False)
    A(f"s_add_u32 s{W_PREV}, s{W_PREV}, {NPAR}")
    A.settle()
    A("s_branch L_ao_red")
    A.label("L_ao_rdone")
    A.forget()
    A(f"s_cmp_lt_u32 s{O_SEG}, 64")
    A.settle()
    A("s_cbranch_scc1 L_ao_loop")
    A.label("L_ao_fin")
    A.forget()
    A(f"s_cmp_ge_u32 s{W_PREV}, s{W_LAST}")
    A("s_cbranch_scc1 L_ao_lastred")
    ao_reduce(A, W_PREV, "b", wait=True)
    A(f"s_add_u32 s{W_PREV}, s{W_PREV}, {NPAR}")
    A.settle()
    A("s_branch L_ao_fin")
    A.label("L_ao_lastred")
    A.forget()
    ao_reduce(A, W_PREV, "c", wait='data')
    A.label("L_ao_end")
    A("s_waitcnt vmcnt(0)")
    dstamp(A, 12, diag)
    A("s_endpgm")
    A.label("L_wbail")
    A("s_mov_b64 exec, 1")
    A("v_mov_b32 v31, 0xbeef")
    A(f"buffer_store_dword v31, off, {DBG}, 0 offset:56")
    A("s_waitcnt vmcnt(0)")
    A("s_endpgm")
    return A.text()

if __name__ == "__main__":
    kw = dict(d1=40, d2=45, g1=20, g2=20)
    for a in sys.argv[2:]:
        k, v = a.split('=')
        if k in ('HOLD_FROM', 'HOLD_CNT', 'PREF', 'WARM', 'WARM_CODE_KB', 'PF0'): globals()[k] = int(v)
        else: kw[k] = int(v)
    hdr = open('parallel_sum__memory_aug_recurrent_mem_tr__mixer_channel_mlp__prompt.s.ref').read().split('; Override launch')[0]
    txt = hdr + f"; @launch kernel={KNAME} grid=(256,1,1) block=(256,1,1) lds=163840\n"
    txt += '.amdgcn_target "amdgcn-amd-amdhsa--gfx950"\n.text\n'
    txt += khead(KNAME) + main_kernel(**kw)
    txt += '.section .rodata,"a"\n.p2align 6\n' + kdesc(KNAME)
    open(sys.argv[1], "w").write(txt)
```

```python
from asmlib import *
from layout import *
import math, struct

L_WL   = 0
L_MEMB = 131072
L_KXB  = L_MEMB + 8192
L_X    = L_MEMB + 24576
L_OB   = L_X + 4096
L_CA   = L_OB + 2048
L_DUM  = L_CA + 1024
LDS_TOTAL = 163840
PSLOT = 262144

S_WS = 4; S_W = 8; S_DBG = 12
S_PW = 16
S_H = 26; S_WV = 27; S_STEP = 28; S_T0 = 29; S_T1 = 30; S_T2 = 31
S_C = 32
S_PAR = 34
S_PST0 = 35; S_PST1 = 36; S_PLD = 37; S_POI = 38; S_MSL = 39; S_MPO = 40
S_KXA = 41; S_KXB = 42; S_M0A = 43; S_M0B = 44; S_VT = 45; S_KM = 46; S_VM = 47
S_TO = 48
S_R0 = 8; S_R1 = 9; S_R2 = 10
S_EX = 50
S_TM = 52
S_TACC = 54
S_STAMP = 72

V_IDX, V_WL0, V_WL1, V_MEM, V_XW, V_XR, V_OW, V_PS, V_PL, V_MS, V_MW, V_KXG, V_VVT, V_KMS, V_VMS = range(1, 16)
V_T = 16
V_MK = 20
V_SB = 52
V_AQ = 68; V_AK = 76; V_AV = 84
V_XF = 92
V_S = 108
V_VX = 120

def wreg(X, c, f):
    idx = X * 12 + c * 4 + f
    return ar(8 * idx, 8) if idx < 32 else vr(128 + 8 * (idx - 32), 8)
def wreg_part(X, c, f, p):
    idx = X * 12 + c * 4 + f
    return ar(8 * idx + 2 * p, 2) if idx < 32 else vr(128 + 8 * (idx - 32) + 2 * p, 2)

def srd(A, s, ptr, size):
    A(f"s_mov_b32 s{s}, s{ptr}")
    A(f"s_and_b32 s{s+1}, s{ptr+1}, 0xffff")
    A(f"s_mov_b32 s{s+2}, {size}")
    A(f"s_mov_b32 s{s+3}, 0x20000")

WSR = f"s[{S_WS}:{S_WS+3}]"

def poll_with_shadow(A, poll, name, regs, loadfn, pre_ok, shadow):
    orig = A.wait
    state = {'done': False}
    def w(vm=None, lg=None):
        if not state['done']:
            state['done'] = True
            shadow()
        orig(vm, lg)
    A.wait = w
    try:
        poll(name, regs, loadfn, pre_ok)
    finally:
        A.wait = orig

def emit_chain(A, timing=False, nsteps=64, opt=(), d1=0, d2=0, hodelay=8, kxpos=(14, 22), g1=12, g2=12, dstamp=None):
    extra_delay = ["s_nop 0"] * d1
    extra_delay2 = ["s_nop 0"] * d2
    lane = 17; t0 = 18; t1 = 19
    def pst(k):
        if 'pro' in opt: A.raw(f"    s_memrealtime s[{72+2*k}:{73+2*k}]")
    pst(1)
    A(f"v_and_b32 v{lane}, 63, v0")
    DQ = V_MK
    DO = V_MK + 2
    TRA = V_MK + 6
    TRO = V_MK + 8
    TMP = V_SB
    a = V_MK + 12; b = V_MK + 13; c_ = V_MK + 14; d_ = V_MK + 15
    A(f"v_lshrrev_b32 v{a}, 4, v{lane}")
    A(f"v_bfe_u32 v{b}, v{lane}, 1, 3")
    A(f"v_xor_b32 v{c_}, v{b}, v{a}")
    A(f"v_and_b32 v{d_}, 1, v{lane}")
    A(f"v_lshl_or_b32 v{c_}, v{c_}, 1, v{d_}")
    A(f"v_lshlrev_b32 v{c_}, 4, v{c_}")
    A(f"v_lshl_or_b32 v{DQ}, v{a}, 13, v{c_}")
    A(f"v_xor_b32 v{DQ+1}, 128, v{DQ}")
    A(f"v_and_b32 v{c_}, 1, v{a}")
    A(f"v_xor_b32 v{c_}, v{b}, v{c_}")
    A(f"v_lshl_or_b32 v{c_}, v{c_}, 1, v{d_}")
    A(f"v_lshrrev_b32 v{b}, 2, v{c_}")
    A(f"v_lshlrev_b32 v{b}, 8, v{b}")
    A(f"v_and_b32 v{c_}, 3, v{c_}")
    A(f"v_lshl_or_b32 v{b}, v{c_}, 5, v{b}")
    A(f"v_lshl_or_b32 v{DO}, v{a}, 10, v{b}")
    A(f"v_xor_b32 v{DO+1}, 256, v{DO}")
    A(f"v_xor_b32 v{DO+2}, 512, v{DO}")
    A(f"v_xor_b32 v{DO+3}, 768, v{DO}")
    A(f"v_bfe_u32 v{b}, v{lane}, 4, 1")
    A(f"v_bfe_u32 v{c_}, v{lane}, 3, 1")
    A(f"v_lshl_or_b32 v{b}, v{c_}, 1, v{b}")
    A(f"v_bfe_u32 v{c_}, v{lane}, 2, 1")
    A(f"v_lshl_or_b32 v{b}, v{c_}, 2, v{b}")
    A(f"v_bfe_u32 v{c_}, v{lane}, 5, 1")
    A(f"v_lshl_or_b32 v{c_}, v{c_}, 4, v{b}")
    A(f"v_lshlrev_b32 v{c_}, 8, v{c_}")
    A(f"v_and_b32 v{d_}, 3, v{lane}")
    A(f"v_lshl_or_b32 v{c_}, v{d_}, 3, v{c_}")
    A(f"s_lshl_b32 s{S_T0}, s{S_WV}, 1")
    A(f"v_xor_b32 v{b}, s{S_T0}, v{b}")
    A(f"v_lshl_or_b32 v{TRA}, v{b}, 5, v{c_}")
    A(f"v_xor_b32 v{TRA+1}, 32, v{TRA}")
    A(f"v_bfe_u32 v{b}, v{lane}, 5, 1")
    A(f"v_lshlrev_b32 v{b}, 4, v{b}")
    A(f"v_bfe_u32 v{c_}, v{lane}, 4, 1")
    A(f"v_lshl_or_b32 v{b}, v{c_}, 2, v{b}")
    A(f"v_lshlrev_b32 v{t0}, 1, v{c_}")
    A(f"v_bfe_u32 v{c_}, v{lane}, 2, 1")
    A(f"v_or_b32 v{b}, v{b}, v{c_}")
    A(f"v_or_b32 v{t0}, v{t0}, v{c_}")
    A(f"v_bfe_u32 v{c_}, v{lane}, 3, 1")
    A(f"v_lshl_or_b32 v{b}, v{c_}, 3, v{b}")
    A(f"v_lshl_or_b32 v{t0}, v{c_}, 2, v{t0}")
    A(f"v_lshlrev_b32 v{b}, 8, v{b}")
    A(f"v_and_b32 v{c_}, 1, v{lane}")
    A(f"v_lshl_or_b32 v{b}, v{c_}, 4, v{b}")
    A(f"v_bfe_u32 v{c_}, v{lane}, 1, 1")
    A(f"v_or_b32 v{c_}, s{S_T0}, v{c_}")
    A(f"v_xor_b32 v{c_}, v{c_}, v{t0}")
    A(f"v_lshl_or_b32 v{TRO}, v{c_}, 5, v{b}")
    A(f"v_add_u32 v{TRO+1}, 8, v{TRO}")

    A(f"v_bfe_u32 v{t0}, v{lane}, 1, 1")
    A(f"v_lshlrev_b32 v{t0}, 1, v{t0}")
    A(f"v_lshrrev_b32 v{t1}, 4, v{lane}")
    A(f"v_add_u32 v{t0}, v{t0}, v{t1}")
    A(f"v_lshlrev_b32 v{t0}, 4, v{t0}")
    A(f"v_and_b32 v{t1}, 1, v{lane}")
    A(f"v_lshl_or_b32 v{t0}, v{t1}, 3, v{t0}")
    A(f"s_lshl_b32 s{S_T0}, s{S_H}, 8")
    A(f"s_lshl_b32 s{S_T1}, s{S_WV}, 6")
    A(f"s_add_u32 s{S_T0}, s{S_T0}, s{S_T1}")
    A(f"v_bfe_u32 v{t1}, v{lane}, 2, 2")
    A(f"v_lshl_or_b32 v{t0}, v{t1}, 13, v{t0}")
    A(f"v_add_u32 v{V_MS}, s{S_T0}, v{t0}")
    srd(A, S_W, S_PW + 8, 8192)
    A(f"v_lshrrev_b32 v{t0}, 4, v{lane}")
    A(f"v_and_b32 v{t0}, 1, v{t0}")
    A(f"v_lshlrev_b32 v{t0}, 10, v{t0}")
    A(f"v_and_b32 v{t1}, 3, v{lane}")
    A(f"v_lshl_or_b32 v{t0}, v{t1}, 1, v{t0}")
    A(f"s_lshl_b32 s{S_T0}, s{S_WV}, 11")
    A(f"s_lshl_b32 s{S_T1}, s{S_H}, 5")
    A(f"s_add_u32 s{S_T0}, s{S_T0}, s{S_T1}")
    M0R = V_S + 4
    MT = V_S
    for j in range(4):
        A(f"buffer_load_ushort v{MT+j}, v{t0}, s[{S_W}:{S_W+3}], s{S_T0} offen offset:{8*j}")
    P = V_XF
    for i in range(4): A(f"v_mov_b32 v{P+i}, -1")
    A(f"v_lshlrev_b32 v{t0}, 4, v0")
    A(f"s_lshl_b32 s{S_T0}, s{S_H}, 13")
    A(f"s_add_u32 s{S_T0}, s{S_T0}, {WS_PBUF}")
    for slot in range(3):
        for i in range(2):
            A(f"s_add_u32 s{S_T1}, s{S_T0}, {slot*PSLOT + i*4096}")
            A(f"buffer_store_dwordx4 v[{P}:{P+3}], v{t0}, {WSR}, s{S_T1} offen")
    A(f"v_cmp_gt_u32 vcc, 16, v0")
    A(f"s_and_saveexec_b64 s[{S_EX}:{S_EX+1}], vcc")
    A(f"s_cbranch_execz L_nomp")
    A(f"s_lshl_b32 s{S_T0}, s{S_H}, 8")
    A(f"s_add_u32 s{S_T0}, s{S_T0}, {WS_MBUF}")
    for sl in (1, 2):
        for cp in range(4):
            A(f"s_add_u32 s{S_T1}, s{S_T0}, {sl*32768 + cp*8192}")
            A(f"buffer_store_dwordx4 v[{P}:{P+3}], v{t0}, {WSR}, s{S_T1} offen")
    A.label("L_nomp")
    A(f"s_mov_b64 exec, s[{S_EX}:{S_EX+1}]")
    A.vm = []

    S_WR = 61
    if 'rot1' in opt:
        A(f"s_add_u32 s{S_WR}, s{S_WV}, s{S_H}")
        A(f"s_and_b32 s{S_WR}, s{S_WR}, 3")
    elif 'rot2' in opt:
        A(f"s_lshr_b32 s{S_WR}, s{S_H}, 2")
        A(f"s_add_u32 s{S_WR}, s{S_WR}, s{S_WV}")
        A(f"s_and_b32 s{S_WR}, s{S_WR}, 3")
    else:
        A(f"s_mov_b32 s{S_WR}, s{S_WV}")
    order = [(X, c) for X in range(4) for c in range(3)] + [(X, 3) for X in range(4)]
    slot_of = {}
    for i, (X, c) in enumerate(order[:12]): slot_of[(X, c)] = i % 5
    for X in range(4): slot_of[(X, 3)] = X
    def issue(X, c):
        srd(A, S_W, S_PW + 2 * X, 4194304)
        slot = slot_of[(X, c)]
        if X < 3:
            A(f"s_lshl_b32 s{S_T0}, s{S_WR}, 18")
            A(f"s_lshl_b32 s{S_T1}, s{S_H}, 8")
            A(f"s_add_u32 s{S_T0}, s{S_T0}, s{S_T1}")
            A(f"s_add_u32 s{S_T0}, s{S_T0}, {128*c*8192}")
            step = 4 * 8192
        else:
            A(f"s_lshl_b32 s{S_T0}, s{S_WR}, 15")
            A(f"s_lshl_b32 s{S_T1}, s{S_H}, 17")
            A(f"s_add_u32 s{S_T0}, s{S_T0}, s{S_T1}")
            A(f"s_add_u32 s{S_T0}, s{S_T0}, {(c >> 1) * 128 + (c & 1) * 16}")
            step = 4 * 1024
        A(f"s_lshl_b32 s{S_T1}, s{S_WR}, 13")
        A(f"s_add_u32 s{S_T1}, s{S_T1}, {slot*32768}")
        for i in range(8):
            D = DQ + (i & 1) if X < 3 else DO + (i & 3)
            A(f"s_mov_b32 m0, s{S_T1}")
            A(f"buffer_load_dwordx4 v{D}, s[{S_W}:{S_W+3}], s{S_T0} offen lds")
            if i < 7:
                A(f"s_add_u32 s{S_T0}, s{S_T0}, {step}")
                A(f"s_add_u32 s{S_T1}, s{S_T1}, 1024")
    pst(2)
    if 'diag' in opt:
        dstamp(A, 14, True)
    if 'diag' in opt and 'nostep' not in opt:
        A.raw("    s_getreg_b32 s98, hwreg(HW_REG_HW_ID)")
        A(f"s_lshl_b32 s98, s98, 8"); A(f"s_or_b32 s98, s98, s{S_H}")
        lb = A.newlabel("L_dh")
        A(f"s_cmp_lg_u32 s27, 0"); A(f"s_cbranch_scc1 {lb}")
        A(f"s_lshl_b32 s100, s2, 9"); A(f"s_add_u32 s100, s100, {WS_TIME + 4*15}")
        A("v_mov_b32 v30, s98"); A("s_mov_b64 exec, 1"); A("buffer_store_dword v30, off, s[4:7], s100"); A("s_mov_b64 exec, -1"); A.vm.pop(); A.label(lb)
    A(f"s_lshl_b32 s{S_T0}, s{S_WV}, 13")
    A(f"v_lshlrev_b32 v{t0}, 4, v{lane}")
    A(f"v_add_u32 v{V_WL0}, s{S_T0}, v{t0}")
    A(f"v_add_u32 v{V_WL1}, 0x10000, v{V_WL0}")
    issued = []
    for k in range(5):
        issue(*order[k]); issued.append(order[k])
    if 'nopf' not in opt:
        A.raw("    s_getpc_b64 s[56:57]")
        A.raw("L_pc0:")
        A.raw("    s_add_u32 s56, s56, L_step-L_pc0")
        A.raw("    s_addc_u32 s57, s57, 0")
        A(f"v_lshlrev_b32 v{V_AQ}, 4, v{lane}")
        A(f"s_lshl_b32 s{S_T0}, s{S_WV}, 11")
        A(f"v_add_u32 v{V_AQ}, s{S_T0}, v{V_AQ}")
        A(f"global_load_dwordx4 v[{V_AK}:{V_AK+3}], v{V_AQ}, s[56:57]")
        A(f"global_load_dwordx4 v[{V_AK+4}:{V_AK+7}], v{V_AQ}, s[56:57] offset:1024")
    A.raw(f"    s_waitcnt vmcnt({40 if 'nopf' in opt else 42})")
    _sv = A.vm; A.vm = []
    A(f"v_lshl_or_b32 v{M0R}, v{MT+1}, 16, v{MT}")
    A(f"v_lshl_or_b32 v{M0R+1}, v{MT+3}, 16, v{MT+2}")
    A(f"s_mov_b32 s{S_T0}, {WS_MBUF}")
    A(f"s_mov_b64 exec, 0xffffffff")
    A(f"buffer_store_dwordx2 v[{M0R}:{M0R+1}], v{V_MS}, {WSR}, s{S_T0} offen")
    A(f"s_mov_b64 exec, -1")
    A.vm = _sv
    follow = {0: order[5], 1: order[6], 2: order[7], 3: order[8], 4: order[9], 5: order[10], 6: order[11],
              7: (2, 3), 8: (3, 3), 10: (0, 3), 11: (1, 3)}
    def trreads(X, slot, f, dst_fn):
        t = f & 1; ksp = f >> 1
        base = slot * 32768
        TR = TRA if X < 3 else TRO
        breg = TR + t
        if base >= 32768:
            A(f"v_add_u32 v{t1}, {base}, v{TR+t}")
            breg = t1
        for tp in range(4):
            if X < 3: imm = (64 * ksp + 32 * (tp >> 1) + 8 * (tp & 1)) * 256
            else: imm = (64 * ksp + 32 * (tp >> 1) + 2 * (tp & 1)) * 256
            A(f"ds_read_b64_tr_b16 {dst_fn(tp)}, v{breg} offset:{imm}")
    extra_ops = [0]
    def consume_wait(ch):
        pos = issued.index(ch)
        n_after = len(issued) - 1 - pos
        A.wait(vm=8 * n_after)
        A("s_barrier")
    def relayout(X):
        consume_wait((X, 3))
        for f in range(4):
            trreads(X, X, f, lambda tp: vr(TMP + 8 * f + 2 * tp, 2))
        A.wait(lg=0)
        A("s_barrier")
        base = V_WL0 if X < 2 else V_WL1
        for f in range(4):
            for hh in range(2):
                A(f"ds_write_b128 v{base}, v[{TMP+8*f+4*hh}:{TMP+8*f+4*hh+3}] offset:{(X&1)*32768 + f*2048 + hh*1024}")
        A.wait(lg=0)
    for i, (X, c) in enumerate(order[:12]):
        consume_wait((X, c))
        if i == 0: pst(3)
        if i == 4: pst(4)
        if i == 8: pst(5)
        if i == 5:
            A(f"s_cmp_lg_u32 s{S_WV}, 0")
            A(f"s_cbranch_scc1 L_rdy_skip")
            A(f"v_mov_b32 v{t1}, 1")
            A(f"s_mov_b64 exec, 1")
            A(f"buffer_atomic_add v{t1}, off, s[{S_DBG}:{S_DBG+3}], 0 offset:36")
            A(f"s_mov_b64 exec, -1")
            A.vm.pop()
            A.label("L_rdy_skip")
        for f in range(4):
            trreads(X, slot_of[(X, c)], f, lambda tp: wreg_part(X, c, f, tp))
        A.wait(lg=0)
        A("s_barrier")
        if i in follow:
            issue(*follow[i]); issued.append(follow[i])
        if i == 10:
            A(f"buffer_load_dword v{V_AV}, off, s[{S_DBG}:{S_DBG+3}], 0 offset:36 sc1")
            A(f"buffer_load_dword v{V_AV+1}, off, s[{S_DBG}:{S_DBG+3}], 0 offset:{D_INIT} sc1")
            extra_ops[0] = 2
        if i == 11:
            relayout(2); relayout(3)
    pst(6)
    if 'diag' in opt: dstamp(A, 10, True); dstamp(A, 203, True) if 'nostep' in opt else None
    def S(x): A(x)
    S(f"v_bfe_u32 v{t0}, v{lane}, 1, 1")
    S(f"v_mov_b32 v{V_IDX}, 0x4444")
    S(f"v_mov_b32 v{t1}, 0xeeee")
    S(f"v_cmp_ne_u32 vcc, 0, v{t0}")
    S(f"v_cndmask_b32 v{V_IDX}, v{V_IDX}, v{t1}, vcc")
    S(f"s_lshl_b32 s{S_T0}, s{S_WV}, 13")
    S(f"v_lshlrev_b32 v{t0}, 4, v{lane}")
    S(f"v_add_u32 v{V_WL0}, s{S_T0}, v{t0}")
    S(f"v_add_u32 v{V_WL1}, 0x10000, v{V_WL0}")
    S(f"v_add_u32 v{V_MEM}, {L_MEMB}, v{t0}")
    S(f"s_lshl_b32 s{S_T0}, s{S_WV}, 11")
    S(f"v_add_u32 v{V_MW}, s{S_T0}, v{V_MEM}")
    S(f"s_lshl_b32 s{S_T1}, s{S_H}, 13")
    S(f"s_add_u32 s{S_T0}, s{S_T0}, s{S_T1}")
    S(f"v_add_u32 v{V_PL}, s{S_T0}, v{t0}")
    S(f"v_and_b32 v{t0}, 15, v{lane}")
    S(f"v_lshlrev_b32 v{t0}, 5, v{t0}")
    S(f"v_lshrrev_b32 v{t1}, 4, v{lane}")
    S(f"v_lshl_or_b32 v{t0}, v{t1}, 3, v{t0}")
    S(f"v_bfe_u32 v{t1}, v{lane}, 3, 1")
    S(f"v_lshlrev_b32 v{t1}, 7, v{t1}")
    S(f"v_xor_b32 v{t0}, v{t0}, v{t1}")
    S(f"s_lshl_b32 s{S_T0}, s{S_WV}, 10")
    S(f"s_add_u32 s{S_T0}, s{S_T0}, {L_X}")
    S(f"v_add_u32 v{V_XW}, s{S_T0}, v{t0}")
    S(f"v_lshrrev_b32 v{t0}, 4, v{lane}")
    S(f"v_lshlrev_b32 v{t0}, 3, v{t0}")
    S(f"v_bfe_u32 v{t1}, v{lane}, 2, 2")
    S(f"v_or_b32 v{t0}, v{t0}, v{t1}")
    S(f"v_lshlrev_b32 v{t0}, 5, v{t0}")
    S(f"v_and_b32 v{t1}, 3, v{lane}")
    S(f"v_lshl_or_b32 v{t0}, v{t1}, 3, v{t0}")
    S(f"v_bfe_u32 v{t1}, v{lane}, 4, 1")
    S(f"v_lshlrev_b32 v{t1}, 7, v{t1}")
    S(f"v_xor_b32 v{t0}, v{t0}, v{t1}")
    S(f"v_add_u32 v{V_XR}, {L_X}, v{t0}")
    S(f"v_xor_b32 v{V_KMS}, 128, v{t0}")
    S(f"v_add_u32 v{V_KMS}, {L_X}, v{V_KMS}")
    S(f"v_and_b32 v{t0}, 13, v{lane}")
    S(f"v_bfe_u32 v{t1}, v{lane}, 5, 1")
    S(f"v_lshl_or_b32 v{t0}, v{t1}, 1, v{t0}")
    S(f"v_lshlrev_b32 v{t0}, 4, v{t0}")
    S(f"v_bfe_u32 v{t1}, v{lane}, 4, 1")
    S(f"v_lshl_or_b32 v{t0}, v{t1}, 3, v{t0}")
    S(f"s_lshl_b32 s{S_T0}, s{S_WV}, 9")
    S(f"s_add_u32 s{S_T0}, s{S_T0}, {L_OB}")
    S(f"v_add_u32 v{V_OW}, s{S_T0}, v{t0}")
    S(f"v_mov_b32 v{t0}, {L_DUM}")
    S(f"v_and_b32 v{t1}, 2, v{lane}")
    S(f"v_cmp_ne_u32 vcc, 0, v{t1}")
    S(f"v_cndmask_b32 v{V_OW}, v{V_OW}, v{t0}, vcc")
    S(f"v_bfe_u32 v{t0}, v{lane}, 2, 2")
    S(f"v_lshlrev_b32 v{t0}, 13, v{t0}")
    S(f"v_lshrrev_b32 v{t1}, 4, v{lane}")
    S(f"v_lshl_or_b32 v{t0}, v{t1}, 11, v{t0}")
    S(f"v_and_b32 v{t1}, 3, v{lane}")
    S(f"v_lshl_or_b32 v{t0}, v{t1}, 4, v{t0}")
    S(f"s_lshl_b32 s{S_T0}, s{S_H}, 6")
    S(f"v_add_u32 v{V_PS}, s{S_T0}, v{t0}")
    S(f"v_and_b32 v{t0}, 15, v{lane}")
    S(f"v_lshlrev_b32 v{t0}, 13, v{t0}")
    S(f"v_lshrrev_b32 v{t1}, 4, v{lane}")
    S(f"v_lshl_or_b32 v{t0}, v{t1}, 4, v{t0}")
    S(f"s_lshl_b32 s{S_T0}, s{S_H}, 8")
    S(f"s_lshr_b32 s{S_T1}, s{S_WV}, 1")
    S(f"s_lshl_b32 s{S_T1}, s{S_T1}, 17")
    S(f"s_add_u32 s{S_T0}, s{S_T0}, s{S_T1}")
    S(f"s_and_b32 s{S_T1}, s{S_WV}, 1")
    S(f"s_lshl_b32 s{S_T1}, s{S_T1}, 7")
    S(f"s_add_u32 s{S_T0}, s{S_T0}, s{S_T1}")
    S(f"v_add_u32 v{V_KXG}, s{S_T0}, v{t0}")
    S(f"v_and_b32 v{t0}, 15, v{lane}")
    S(f"v_lshlrev_b32 v{t0}, 6, v{t0}")
    S(f"v_lshrrev_b32 v{t1}, 4, v{lane}")
    S(f"v_lshl_or_b32 v{t0}, v{t1}, 4, v{t0}")
    S(f"s_lshl_b32 s{S_T0}, s{S_H}, 13")
    S(f"s_lshl_b32 s{S_T1}, s{S_WV}, 11")
    S(f"s_add_u32 s{S_T0}, s{S_T0}, s{S_T1}")
    S(f"v_add_u32 v{V_VVT}, s{S_T0}, v{t0}")
    S(f"v_lshlrev_b32 v{t0}, 4, v{lane}")
    S(f"s_lshl_b32 s{S_T0}, s{S_H}, 12")
    S(f"s_lshl_b32 s{S_T1}, s{S_WV}, 10")
    S(f"s_add_u32 s{S_T0}, s{S_T0}, s{S_T1}")
    S(f"v_add_u32 v{V_VMS}, s{S_T0}, v{t0}")
    c = (128 ** -0.5) * math.log2(math.e)
    cbits = hex(struct.unpack('<I', struct.pack('<f', c))[0])
    S(f"s_mov_b32 s{S_C}, {cbits}")
    S(f"s_mov_b32 s{S_C+1}, {cbits}")

    CA = V_AK
    A(f"v_and_b32 v{a}, 15, v{lane}")
    A(f"v_mov_b32 v{b}, 0x3f80")
    A(f"v_mov_b32 v{c_}, 0x3f800000")
    A(f"v_cmp_gt_u32 vcc, 4, v{a}")
    A(f"v_cndmask_b32 v{b}, v{c_}, v{b}, vcc")
    A(f"v_cmp_gt_u32 vcc, 8, v{a}")
    A(f"v_cndmask_b32 v{b}, 0, v{b}, vcc")
    A(f"v_and_b32 v{a}, 3, v{a}")
    for i in range(4):
        A(f"v_cmp_eq_u32 vcc, {i}, v{a}")
        A(f"v_cndmask_b32 v{CA+i}, 0, v{b}, vcc")
    A(f"s_lshl_b32 s{S_M0A}, s{S_WV}, 11")
    A(f"s_add_u32 s{S_M0A}, s{S_M0A}, {L_KXB}")
    A(f"s_mov_b32 s{S_KXA}, {WS_KX}")
    def kx0():
        A(f"s_mov_b32 m0, s{S_M0A}")
        A(f"buffer_load_dwordx4 v{V_KXG}, {WSR}, s{S_KXA} offen sc1 lds")
        A(f"s_add_u32 s{S_T0}, s{S_M0A}, 1024")
        A(f"s_add_u32 s{S_T1}, s{S_KXA}, 64")
        A(f"s_mov_b32 m0, s{S_T0}")
        A(f"buffer_load_dwordx4 v{V_KXG}, {WSR}, s{S_T1} offen sc1 lds")
    if 'merged' not in opt: kx0()
    A.wait(vm=0)
    A.vm = []
    A(f"ds_write_b128 v{V_MEM}, v[{CA}:{CA+3}] offset:{L_CA-L_MEMB}")
    A.wait(lg=0)
    A("s_barrier")
    A(f"v_cmp_gt_u32 vcc, 32, v{V_AV}")
    A(f"s_cbranch_vccz L_rdy_done")
    A(f"s_mov_b32 s{S_TO}, 0")
    A(f"v_mov_b32 v{t0}, 36")
    A.label("L_rdy_poll")
    A(f"buffer_load_dword v{t1}, v{t0}, s[{S_DBG}:{S_DBG+3}], 0 offen sc1")
    A(f"s_add_u32 s{S_TO}, s{S_TO}, 1")
    A(f"s_cmp_gt_u32 s{S_TO}, 0x40000")
    A(f"s_cbranch_scc1 L_bail")
    A.wait(vm=0)
    A(f"v_cmp_gt_u32 vcc, 32, v{t1}")
    A(f"s_cbranch_vccnz L_rdy_poll")
    A.label("L_rdy_done")
    A.forget()
    if 'merged' in opt:
        A(f"v_cmp_ne_u32 vcc, 0, v{V_AV+1}")
        A(f"s_cbranch_vccnz L_ci_done")
        A(f"s_mov_b32 s{S_TO}, 0")
        A.label("L_ci_poll")
        A(f"buffer_load_dword v{t1}, off, s[{S_DBG}:{S_DBG+3}], 0 offset:{D_INIT} sc1")
        A(f"s_add_u32 s{S_TO}, s{S_TO}, 1")
        A(f"s_cmp_gt_u32 s{S_TO}, 0x100000")
        A(f"s_cbranch_scc1 L_bail")
        A.wait(vm=0)
        A(f"v_cmp_eq_u32 vcc, 0, v{t1}")
        A(f"s_cbranch_vccnz L_ci_poll")
        A.label("L_ci_done")
        A.forget()
    pst(7)
    if 'diag' in opt: dstamp(A, 11, True)
    for X in range(2):
        for f in range(4):
            trreads(X, X, f, lambda tp: vr(TMP + 8 * f + 2 * tp, 2))
        A.wait(lg=0)
        A("s_barrier")
        for f in range(4):
            for hh in range(2):
                A(f"ds_write_b128 v{V_WL0}, v[{TMP+8*f+4*hh}:{TMP+8*f+4*hh+3}] offset:{(X&1)*32768 + f*2048 + hh*1024}")
        A.wait(lg=0)
    if 'diag' in opt: dstamp(A, 204 if 'nostep' in opt else 12, True)
    if 'merged' in opt:
        A(f"s_mov_b32 s{S_T0}, {F_KV}")
        A(f"s_mov_b32 s{S_TO}, 0")
        A.label("L_ck_poll")
        A(f"buffer_load_dword v{t1}, off, {WSR}, s{S_T0} sc1")
        A(f"s_add_u32 s{S_TO}, s{S_TO}, 1")
        A(f"s_cmp_gt_u32 s{S_TO}, 0x100000")
        A(f"s_cbranch_scc1 L_bail")
        A.wait(vm=0)
        A(f"v_cmp_gt_u32 vcc, 128, v{t1}")
        A(f"s_cbranch_vccnz L_ck_poll")
        A.forget()
        if 'diag' in opt: dstamp(A, 13, True)
        kx0()


    A("s_waitcnt vmcnt(0)")
    A("s_barrier")
    pst(8)
    if 'diag' in opt: dstamp(A, 5, True)
    pst(9)
    if 'pro' in opt:
        A.raw("    s_waitcnt lgkmcnt(0)")
        A(f"s_lshl_b32 s{S_T0}, s{S_H}, 2")
        A(f"s_add_u32 s{S_T0}, s{S_T0}, s{S_WV}")
        A(f"s_lshl_b32 s{S_T0}, s{S_T0}, 7")
        A(f"s_add_u32 s{S_T0}, s{S_T0}, {WS_TIME}")
        A(f"s_mov_b64 exec, 1")
        for k in range(10):
            A(f"v_mov_b32 v{V_T+1}, s{72+2*k}")
            A(f"v_mov_b32 v{V_T}, {4*k}")
            A(f"buffer_store_dword v{V_T+1}, v{V_T}, {WSR}, s{S_T0} offen")
        A(f"s_mov_b64 exec, -1")
        A.wait(vm=0)
    S_MA = 16; S_MB = 18; S_MT = 20
    S_PUB = 22; S_MPZ = 23; S_KEEP = 24; S_B0 = 11; S_B1 = 25; S_B2 = 49; S_HC = 46
    A(f"s_mov_b32 s{S_STEP}, 0")
    A(f"s_mov_b32 s{S_PAR}, 0")
    A(f"s_mov_b32 s{S_VT}, {WS_VT - 32*8192}")
    A(f"s_and_b32 s{S_HC}, s{S_H}, 3")
    A(f"s_lshl_b32 s{S_HC}, s{S_HC}, 13")
    A(f"s_sub_u32 s{S_HC}, s{S_HC}, {L_MEMB}")
    A(f"s_mov_b32 s{S_B0}, {WS_MBUF}")
    A(f"s_mov_b32 s{S_B1}, {WS_MBUF + 32768}")
    A(f"s_mov_b32 s{S_B2}, {WS_MBUF + 65536}")
    A(f"s_mov_b32 s{S_VM}, {WS_KVM}")
    S_FLG = 53; S_FOFF = 52; S_POFF = 54; S_CHK = 55
    if 'merged' in opt:
        A(f"s_mov_b32 s{S_FOFF}, {F_KV}")
        A(f"s_lshl_b32 s{S_POFF}, s{S_H}, 7")
        A(f"s_add_u32 s{S_POFF}, s{S_POFF}, {F_PROG}")
    A(f"s_mov_b32 s{S_EX+1}, {WS_KVM + 64*32*4096}")
    A(f"s_mov_b32 s{S_R0}, {WS_PBUF}")
    A(f"s_mov_b32 s{S_R1}, {WS_PBUF + PSLOT}")
    A(f"s_mov_b32 s{S_R2}, {WS_PBUF + 2*PSLOT}")
    def zero(r, n): return [f"v_mov_b64 v[{r+i}:{r+i+1}], 0" for i in range(0, n, 2)]
    def step_scalars():
        o = []
        o.append(f"s_mov_b32 s{S_PLD}, s{S_R0}")
        o.append(f"s_mov_b32 s{S_POI}, s{S_R2}")
        o.append(f"s_lshl_b32 s{S_T1}, s{S_WV}, 16")
        o.append(f"s_add_u32 s{S_PST0}, s{S_PLD}, s{S_T1}")
        o.append(f"s_add_u32 s{S_PST1}, s{S_PST0}, 32768")
        o.append(f"s_add_u32 s{S_MSL}, s{S_B0}, s{S_HC}")
        o.append(f"s_add_u32 s{S_MPO}, s{S_MSL}, 1024")
        o.append(f"s_add_u32 s{S_VT}, s{S_VT}, {32*8192}")
        o.append(f"s_add_u32 s{S_KXA}, s{S_KXA}, {32*8192}")
        o.append(f"s_add_u32 s{S_KXB}, s{S_KXA}, 64")
        o.append(f"s_xor_b32 s{S_M0A}, s{S_M0A}, {L_KXB ^ (L_KXB + 8192)}")
        o.append(f"s_add_u32 s{S_M0B}, s{S_M0A}, 1024")
        o.append(f"v_add_u32 v0, s{S_PAR}, v{V_MEM}")
        return o
    for x in zero(V_AQ, 24): A(x)
    for x in step_scalars(): A(x)
    A(f"buffer_load_dwordx4 v[{V_S+4}:{V_S+7}], v{V_MW}, {WSR}, s{S_MSL} offen sc1")
    A(f"buffer_load_dwordx4 v[{V_S+8}:{V_S+11}], v{V_MW}, {WSR}, s{S_MPO} offen sc1")
    A(f"ds_write_b128 v{V_MW}, v[{V_S+4}:{V_S+7}]")
    A(f"ds_write_b128 v{V_MW}, v[{V_S+8}:{V_S+11}] offset:1024")
    A.wait(lg=0)
    A("s_barrier")
    def sbload(buf, X, f):
        base = V_WL0 if X < 2 else V_WL1
        r = V_SB + 8 * buf
        return [f"ds_read_b128 v[{r}:{r+3}], v{base} offset:{(X&1)*32768 + f*2048}",
                f"ds_read_b128 v[{r+4}:{r+7}], v{base} offset:{(X&1)*32768 + f*2048 + 1024}"]
    for s_ in sbload(0, 0, 0) + sbload(1, 0, 1): A(s_)
    if timing:
        for i in range(18): A(f"s_mov_b32 s{S_TACC+i}, 0")
    A.wait(lg=0)
    A.settle()
    A.forget()

    NST = 15
    def stamp(k):
        if timing: A.raw(f"    {'s_memrealtime' if ('abs' in opt and 'absm' not in opt) else 's_memtime'} s[{S_STAMP+2*k}:{S_STAMP+2*k+1}]")
    def stamp_acc():
        if timing and 'abs' in opt:
            A.raw("    s_waitcnt lgkmcnt(0)")
            lb = A.newlabel("L_abs")
            A(f"s_cmp_lg_u32 s{S_STEP}, 31")
            A(f"s_cbranch_scc1 {lb}")
            for k in range(NST):
                A(f"s_mov_b32 s{S_TACC+k}, s{S_STAMP+2*k}")
            A.label(lb)
            return
        if timing:
            A.raw("    s_waitcnt lgkmcnt(0)")
            A(f"s_sub_u32 s{S_T2}, s{S_STAMP}, s{S_TM}")
            A(f"s_add_u32 s{S_TACC}, s{S_TACC}, s{S_T2}")
            for k in range(1, NST):
                A(f"s_sub_u32 s{S_T2}, s{S_STAMP+2*k}, s{S_STAMP+2*(k-1)}")
                A(f"s_add_u32 s{S_TACC+k}, s{S_TACC+k}, s{S_T2}")
            A(f"s_mov_b32 s{S_TM}, s{S_STAMP+2*(NST-1)}")
    def M(ks): return vr(V_MK + 4 * ks, 4)
    def mload(ks, sc=""):
        return f"ds_read_b128 {M(ks)}, v{V_MEM} offset:{ks*1024}"
    def pack(acc, t, dst):
        return [f"v_pk_add_f32 v[{acc+4*t}:{acc+4*t+1}], v[{acc+4*t}:{acc+4*t+1}], v[{acc+4*t+2}:{acc+4*t+3}]",
                f"v_cvt_pk_bf16_f32 v{dst}, v{acc+4*t}, v{acc+4*t+1}"]

    if 'diag' in opt: dstamp(A, 6, True)
    pre_barrier = []
    sfx = ['']
    if 'rt' in opt:
        A.raw("    s_memtime s[56:57]")
        A.raw("    s_memrealtime s[58:59]")
        A.raw("    s_waitcnt lgkmcnt(0)")
        A("s_mov_b32 s64, 0"); A("s_mov_b32 s65, 0")
    if timing:
        A(f"s_memtime s[{S_TM}:{S_TM+1}]")
        A.wait(lg=0)
    A.label("L_step")
    if 'diag' in opt: dstamp(A, 16, True, S_STEP)
    if 'steps' in opt:
        A.raw("    s_memtime s[56:57]")
    stamp(0)
    morder = [6, 0, 1, 2, 7, 3, 4, 5]
    npre = 8
    for ks in morder: A(mload(ks))
    if 'merged' in opt:
        A(f"s_add_u32 s{S_T0}, s{S_STEP}, 2")
        A(f"s_and_b32 s{S_CHK}, s{S_T0}, 7")
        A(f"s_cmp_lg_u32 s{S_CHK}, 0")
        A(f"s_cbranch_scc1 L_noflag")
        A(f"buffer_load_dword v{V_S}, off, {WSR}, s{S_FOFF} sc1")
        A.vm.pop()
        A.label("L_noflag")
    if 'noload' not in opt and 'novt' not in opt:
        A(f"buffer_load_dwordx4 v[{V_VX}:{V_VX+3}], v{V_VVT}, {WSR}, s{S_VT} offen sc1")
        A(f"buffer_load_dwordx4 v[{V_VX+4}:{V_VX+7}], v{V_VVT}, {WSR}, s{S_VT} offen offset:1024 sc1")
    A(f"buffer_store_dwordx4 v[{V_AV}:{V_AV+3}], v{V_VMS}, {WSR}, s{S_EX+1} offen" + ("" if 'nopub' in opt else " sc1"))
    if 'merged' in opt:
        A(f"s_and_b32 s{S_T0}, s{S_STEP}, 3")
        A(f"s_or_b32 s{S_T0}, s{S_T0}, s{S_WV}")
        A(f"s_cmp_lg_u32 s{S_T0}, 0")
        A(f"s_cbranch_scc1 L_noprog")
        A(f"s_sub_u32 s{S_T0}, s{S_STEP}, 1")
        A(f"s_max_i32 s{S_T0}, s{S_T0}, 0")
        A(f"v_mov_b32 v{V_T+1}, s{S_T0}")
        A(f"s_mov_b64 exec, 1")
        A(f"buffer_store_dword v{V_T+1}, off, {WSR}, s{S_POFF} sc1")
        A(f"s_mov_b64 exec, -1")
        A.vm.pop()
        A.label("L_noprog")
    late_zero = zero(V_AV, 8)
    SL = [(0,0),(0,1),(1,0),(1,1),(0,2),(0,3),(1,2),(1,3),(2,0),(2,1),(2,2),(2,3)]
    RL = [(X, t, ks) for ks in range(6) for X in (0, 1) for t in (0, 1)]
    ACC = {0: V_AQ, 1: V_AK, 2: V_AV}
    CHK = V_T + 1
    qk = []
    ri = 0
    for pos in range(32):
        if pos % 4 == 0:
            X, f = SL[pos // 4]; qk.append(('S', X, f & 1, 6 + (f >> 1), pos // 4))
        else:
            X, t, ks = RL[ri]; ri += 1; qk.append(('R', X, t, ks, None))
    def mf(e):
        kind, X, t, ks, si = e
        d = vr(ACC[X] + 4 * t, 4)
        bsrc = vr(V_SB + 8 * (si & 1), 8) if kind == 'S' else wreg(X, ks >> 1, (ks & 1) * 2 + t)
        return f"v_smfmac_f32_16x16x64_bf16 {d}, {M(ks)}, {bsrc}, v{V_IDX}"
    def qk_pass(loads):
        fill = {p: [] for p in range(32)}
        for p in range(0, 32, 4):
            si = p // 4
            fill[p] += sbload(si & 1, *SL[si + 2])
        first_use = {}
        for p, e in enumerate(qk):
            first_use.setdefault(e[3], p)
        if loads:
            rem = morder[npre:]
            for i, ks in enumerate(rem): fill[1 + 5 * i].append(mload(ks))
        for i, x in enumerate(late_zero): fill[9 + 4 * i].append(x)
        if 'noload' not in opt and 'nokx' not in opt:
            pa, pb = kxpos
            fill[pa - 1] += [f"s_mov_b32 m0, s{S_M0A}"]
            fill[pa] += [f"buffer_load_dwordx4 v{V_KXG}, {WSR}, s{S_KXA} offen sc1 lds"]
            fill[pb - 1] += [f"s_mov_b32 m0, s{S_M0B}"]
            fill[pb] += [f"buffer_load_dwordx4 v{V_KXG}, {WSR}, s{S_KXB} offen sc1 lds"]
        for p in range(32):
            A(mf(qk[p]))
            if p == 0 and loads: stamp(1)
            for x in fill[p]: A(x)
    qk_pass(True)
    A.label("L_v")
    stamp(2)
    seq = []
    seqR = [(0,0),(1,0),(0,1),(1,1),(0,2),(1,2),(0,3),(1,3),(0,4),(1,4),(0,5),(1,5)]
    ri = 0
    for pos in range(16):
        if pos % 4 == 0:
            f = pos // 4; seq.append(('S', 2, f & 1, 6 + (f >> 1), 8 + f))
        else:
            t, ks = seqR[ri]; ri += 1; seq.append(('R', 2, t, ks, None))
    fill = {p: [] for p in range(16)}
    fill[0] += sbload(0, *SL[10]); fill[4] += sbload(1, *SL[11])
    fill[1] += pack(V_AQ, 0, V_AQ + 2)[:1] + pack(V_AQ, 1, V_AQ + 6)[:1]
    fill[2] += pack(V_AQ, 0, V_AQ + 2)[1:] + pack(V_AQ, 1, V_AQ + 6)[1:] + [f"ds_write2_b32 v{V_XW}, v{V_AQ+2}, v{V_AQ+6} offset0:0 offset1:128"]
    fill[3] += pack(V_AK, 0, V_AK + 2)[:1] + pack(V_AK, 1, V_AK + 6)[:1]
    fill[4] += pack(V_AK, 0, V_AK + 2)[1:] + pack(V_AK, 1, V_AK + 6)[1:] + [f"ds_write2_b32 v{V_XW}, v{V_AK+2}, v{V_AK+6} offset0:1 offset1:129"]
    fill[5] += [f"v_mov_b32 v{V_T}, v{V_AK+2}", f"v_mov_b32 v{V_T+1}, v{V_AK+6}"]
    fill[7] += ["@wait_writes", "s_barrier"]
    xf = []
    for ks in range(4):
        for hh in range(2):
            xf.append(f"ds_read_b64_tr_b16 v[{V_XF+4*ks+2*hh}:{V_XF+4*ks+2*hh+1}], v{V_XR if hh == 0 else V_KMS} offset:{ks*1024}")
    last = {}
    for p, e in enumerate(seq): last[e[3]] = p
    free_order = sorted(last, key=lambda k: last[k])
    kxr = {}
    kxr[(0, 0)] = vr(V_AQ, 4); kxr[(0, 1)] = vr(V_AQ + 4, 4); kxr[(0, 2)] = vr(V_AK, 4); kxr[(0, 3)] = vr(V_AK + 4, 4)
    for kk in range(4): kxr[(1, kk)] = M(free_order[kk])
    def kxload(T, kk): return f"ds_read_b128 {kxr[(T, kk)]}, v0 offset:{8192 + (T*4+kk)*1024}"
    fill[7] += xf[0:2]; fill[8] += xf[2:4]; fill[9] += xf[4:6]; fill[10] += xf[6:8]
    fill[11] += [kxload(0, 0), kxload(0, 1)]; fill[13] += [kxload(0, 2)]; fill[14] += [kxload(0, 3)]
    assert last[free_order[3]] <= 13
    for p in range(16):
        A(mf(seq[p]))
        for x in fill[p]:
            if x == "s_barrier" and 'vdet' in opt: stamp(8)
            if x == "@wait_writes" and 'vdet' in opt: stamp(11)
            A(x)
            if x == "s_barrier" and 'vdet' in opt: stamp(9)
        if p == 11 and 'vdet' in opt: stamp(12)
    stamp(3)
    A.raw(f"    s_waitcnt vmcnt({(1 if 'noload' in opt else 3 if ('novt' in opt or 'nokx' in opt) else 5) + (1 if 'steps' in opt else 0)})")
    if 'merged' in opt:
        A(f"s_mov_b32 s{S_FLG}, 128")
        A(f"s_cmp_lg_u32 s{S_CHK}, 0")
        A(f"s_cbranch_scc1 L_norfl")
        A(f"v_readfirstlane_b32 s{S_FLG}, v{V_S}")
        A.label("L_norfl")
    S0, S1, S2 = V_S, V_S + 4, V_S + 8
    def tm(dst, a_, ks, first):
        cc = "0" if first else vr(dst, 4)
        return f"v_mfma_f32_16x16x32_bf16 {vr(dst,4)}, {a_}, {vr(V_XF+4*ks,4)}, {cc}"
    seqT = [(S0, None, k) for k in range(4)] + [(S1, 0, k) for k in range(4)] + [(S2, 1, k) for k in range(4)]
    fill = {p: [] for p in range(12)}
    ONr = V_MK + 4 * free_order[4]
    LD = V_MK + 4 * free_order[5]
    fill[0] += [kxload(1, 0), kxload(1, 1)]; fill[1] += [kxload(1, 2), kxload(1, 3)]
    fill[7] += [f"v_mov_b32 v{ONr}, 0x3f803f80", f"v_mov_b32 v{ONr+1}, 0x3f803f80"]
    fill[8] += [f"v_mov_b32 v{ONr+2}, 0x3f803f80", f"v_mov_b32 v{ONr+3}, 0x3f803f80"]
    fill[2] += pack(V_AV, 0, V_AV + 2)[:1] + pack(V_AV, 1, V_AV + 6)[:1]
    fill[3] += pack(V_AV, 0, V_AV + 2)[1:] + pack(V_AV, 1, V_AV + 6)[1:]
    fill[4] += [f"v_mov_b32 v{V_AV+3}, 0", f"v_mov_b32 v{V_AV+7}, 0"]
    fill[5] += [f"v_min_u32 v{V_AV}, -2, v{V_T}", f"v_min_u32 v{V_AV+1}, -2, v{V_T+1}"]
    Tt = V_T + 1; Ls = V_T + 2; Mx = V_T + 3
    fill[9] += [f"v_max3_f32 v{Mx}, v{S0+2}, v{S0+3}, v{S1}"]
    fill[10] += [f"v_max3_f32 v{Mx}, v{Mx}, v{S1+1}, v{S1+2}"]
    fill[11] += [f"v_max_f32 v{Mx}, v{Mx}, v{S1+3}"]
    for p, (dst, T, kk) in enumerate(seqT):
        a_ = vr(V_XF + 4 * kk, 4) if T is None else kxr[(T, kk)]
        A(tm(dst, a_, kk, kk == 0))
        for x in fill[p]: A(x)
    stamp(4)
    A(f"s_cmp_eq_u32 s{S_STEP}, {nsteps-1}")
    A(f"s_cbranch_scc1 L_last")
    A(f"v_max3_f32 v{Mx}, v{Mx}, v{S2}, v{S2+1}")
    A(f"v_max3_f32 v{Tt}, v{Mx}, v{S2+2}, v{S2+3}")
    A(f"v_max3_f32 v{Mx}, v{Mx}, v{S2+2}, v{S2+3}")
    sbo = sbload(0, 3, 0) + sbload(1, 3, 1)
    A(sbo[0])
    A(f"v_permlane16_swap_b32 v{Mx}, v{Tt}")
    A(sbo[1])
    A(f"v_max_f32 v{Ls}, v{Mx}, v{Tt}")
    A(f"v_max_f32 v{Mx}, v{Mx}, v{Tt}")
    A(sbo[2])
    A(sbo[3])
    A(f"v_permlane32_swap_b32 v{Mx}, v{Ls}")
    A(f"v_max_f32 v{Mx}, v{Mx}, v{Ls}")
    A(f"v_mul_f32 v{Mx}, s{S_C}, v{Mx}")
    def pkf(r): return f"v_pk_fma_f32 v[{r}:{r+1}], v[{r}:{r+1}], s[{S_C}:{S_C+1}], v[{Mx-1}:{Mx}] op_sel:[0,0,1] op_sel_hi:[1,1,1] neg_lo:[0,0,1] neg_hi:[0,0,1]"
    for r in (S1, S1 + 2, S2, S2 + 2, S0 + 2): A(pkf(r))
    P12 = V_AQ; P0 = V_AQ + 4; OT = V_AK
    for r in range(S1, S1 + 4): A(f"v_exp_f32 v{r}, v{r}")
    A(f"v_exp_f32 v{S2}, v{S2}")
    A(f"v_exp_f32 v{S2+1}, v{S2+1}")
    A(f"v_cvt_pk_bf16_f32 v{P12}, v{S1}, v{S1+1}")
    A(f"v_exp_f32 v{S2+2}, v{S2+2}")
    A(f"v_cvt_pk_bf16_f32 v{P12+1}, v{S1+2}, v{S1+3}")
    A(f"v_exp_f32 v{S2+3}, v{S2+3}")
    A(f"v_cvt_pk_bf16_f32 v{P12+2}, v{S2}, v{S2+1}")
    A(f"v_exp_f32 v{S0+2}, v{S0+2}")
    A(f"v_cvt_pk_bf16_f32 v{P12+3}, v{S2+2}, v{S2+3}")
    A(f"v_exp_f32 v{S0+3}, v{S0+3}")
    A(f"v_mov_b32 v{P0+1}, 0")
    A(f"v_mfma_f32_16x16x32_bf16 {vr(LD,4)}, {vr(ONr,4)}, {vr(P12,4)}, 0")
    A(f"v_cvt_pk_bf16_f32 v{P0}, v{S0+2}, v{S0+3}")
    for t in range(2):
        A(f"v_mfma_f32_16x16x32_bf16 {vr(OT+4*t,4)}, {vr(V_VX+4*t,4)}, {vr(P12,4)}, 0")
    PO2 = V_S + 4
    for i in range(0, 4, 2): A(f"v_mov_b64 v[{PO2+i}:{PO2+i+1}], -1")
    A(f"v_mfma_f32_16x16x16_bf16 {vr(LD,4)}, {vr(ONr,2)}, {vr(P0,2)}, {vr(LD,4)}")
    for t in range(2):
        A(f"v_mfma_f32_16x16x16_bf16 {vr(OT+4*t,4)}, {vr(V_AV+4*t+2,2)}, {vr(P0,2)}, {vr(OT+4*t,4)}")
    A(f"v_min_u32 v{V_AV+3}, -2, v{V_AV+6}")
    A(f"v_min_u32 v{V_AV+2}, -2, v{V_AV+2}")
    A(f"v_rcp_f32 v{Ls}, v{LD}")
    for r in range(0, 8, 2):
        A(f"v_pk_mul_f32 v[{OT+r}:{OT+r+1}], v[{OT+r}:{OT+r+1}], v[{Ls}:{Ls+1}] op_sel_hi:[1,0]")
    for t in range(2):
        A(f"v_cvt_pk_bf16_f32 v{OT+4*t}, v{OT+4*t}, v{OT+4*t+1}")
        A(f"v_cvt_pk_bf16_f32 v{OT+4*t+1}, v{OT+4*t+2}, v{OT+4*t+3}")
        A(f"ds_write_b64 v{V_OW}, v[{OT+4*t}:{OT+4*t+1}] offset:{t*256}")
    A("@wait_writes")
    stamp(5)
    A("s_barrier")
    OF = V_VX
    A(f"ds_read_b128 {vr(OF,4)}, v{V_MEM} offset:{L_OB-L_MEMB}")
    A(f"ds_read_b128 {vr(OF+4,4)}, v{V_MEM} offset:{L_OB-L_MEMB+1024}")
    A(f"buffer_store_dwordx4 v[{PO2}:{PO2+3}], v{V_PL}, {WSR}, s{S_POI} offen")
    A(f"buffer_store_dwordx4 v[{PO2}:{PO2+3}], v{V_PL}, {WSR}, s{S_POI} offen offset:1024")
    for x in zero(V_MK, 32): A(x)
    stamp(6)
    oseq = [('S',6,0,0),('R',0,0),('R',0,1),('R',1,0),('S',7,0,1),('R',1,1),('R',2,0),('R',2,1),
            ('S',6,1,2),('R',3,0),('R',3,1),('R',4,0),('S',7,1,3),('R',4,1),('R',5,0),('R',5,1)]
    PQ = V_AQ
    def ppack(tile):
        a0 = V_MK + 4 * tile
        return [f"v_pk_add_f32 v[{a0}:{a0+1}], v[{a0}:{a0+1}], v[{a0+2}:{a0+3}]",
                f"v_cvt_pk_bf16_f32 v{PQ+tile}, v{a0}, v{a0+1}"]
    fill = {p: [] for p in range(16)}
    fill[0] += sbload(0, 3, 2); fill[4] += sbload(1, 3, 3); fill[8] += sbload(0, 0, 0); fill[12] += sbload(1, 0, 1)
    CAR = V_S
    fill[1] += [f"ds_read_b128 {vr(CAR,4)}, v{V_MEM} offset:{L_CA-L_MEMB}"]
    fill[6] += ppack(0); fill[9] += ppack(1); fill[11] += ppack(2); fill[13] += ppack(3)
    fill[14] += [f"buffer_store_dwordx4 v[{PQ}:{PQ+3}], v{V_PS}, {WSR}, s{S_PST0} offen"]
    fill[15] += ppack(6)
    for p, e in enumerate(oseq):
        tile, ks = e[1], e[2]
        bsrc = vr(V_SB + 8 * (e[3] & 1), 8) if e[0] == 'S' else wreg(3, tile >> 1, ks * 2 + (tile & 1))
        A(f"v_smfmac_f32_16x16x64_bf16 {vr(V_MK+4*tile,4)}, {vr(OF+4*ks,4)}, {bsrc}, v{V_IDX}")
        for x in fill[p]: A(x)
    for tl in (7, 4, 5):
        for x in ppack(tl): A(x)
    A(f"buffer_store_dwordx4 v[{PQ+4}:{PQ+7}], v{V_PS}, {WSR}, s{S_PST1} offen")
    stamp(7)
    ta = V_T + 1; tb = V_T + 2
    def poll2(name, regs, loadfn, mid=None, cnt=None, st=None, gap=()):
        def check():
            A(f"v_max3_u32 v{ta}, v{regs}, v{regs+1}, v{regs+2}")
            A(f"v_max3_u32 v{tb}, v{regs+4}, v{regs+5}, v{regs+6}")
            A(f"v_max_u32 v{ta}, v{ta}, v{regs+3}")
            if mid: mid(0)
            A(f"v_max_u32 v{tb}, v{tb}, v{regs+7}")
            if mid: mid(1)
            A(f"v_cmp_eq_u32 s[{S_MA}:{S_MA+1}], -1, v{ta}")
            A(f"v_cmp_eq_u32 s[{S_MB}:{S_MB+1}], -1, v{tb}")
            A(f"s_or_b64 s[{S_MT}:{S_MT+1}], s[{S_MA}:{S_MA+1}], s[{S_MB}:{S_MB+1}]")
            A(f"s_cbranch_scc0 L_{name}ok")
        def round_():
            A(f"s_or_b32 s{S_MA}, s{S_MA}, 1")
            A(f"s_or_b32 s{S_MB}, s{S_MB}, 1")
            A.auto = False
            A(f"s_mov_b64 exec, s[{S_MA}:{S_MA+1}]")
            loadfn(0)
            A(f"s_mov_b64 exec, s[{S_MB}:{S_MB+1}]")
            loadfn(1)
            A(f"s_mov_b64 exec, -1")
            A.auto = True
        A(f"s_mov_b32 s{S_TO}, 0")
        if 'ack' in opt and 'ack2' not in opt:
            A(f"s_waitcnt vmcnt(0)")
            if st is not None: stamp(st)
            A.forget()
            check()
            round_()
        else:
            for x in gap: A(x)
            A.auto = False
            loadfn(0); loadfn(1)
            A.auto = True
            A(f"s_waitcnt vmcnt(2)")
            if st is not None: stamp(st)
            A.forget()
            check()
        A.label(f"L_{name}loop")
        round_()
        A(f"s_add_u32 s{S_TO}, s{S_TO}, 1")
        A(f"s_cmp_gt_u32 s{S_TO}, 0x40000")
        A(f"s_cbranch_scc1 L_bail")
        A(f"s_waitcnt vmcnt(2)")
        A.forget()
        check()
        A(f"s_branch L_{name}loop")
        A.label(f"L_{name}ok")
        A.forget()
        if cnt: cnt()
    PB = V_AK; RD = V_VX
    A(f"s_mov_b32 s{S_KEEP}, s{S_PLD}")
    A(f"s_mov_b32 s{S_EX}, s{S_POI}")
    A(f"s_mov_b32 s{S_EX+1}, s{S_VM}")
    A(f"s_mov_b32 s{S_PUB}, s{S_B1}")
    A(f"s_mov_b32 s{S_MPZ}, s{S_B2}")
    A(f"s_mov_b32 s{S_B2}, s{S_B0}")
    A(f"s_mov_b32 s{S_B0}, s{S_PUB}")
    A(f"s_mov_b32 s{S_B1}, s{S_MPZ}")
    A(f"s_xor_b32 s{S_PAR}, s{S_PAR}, 8192")
    A(f"s_add_u32 s{S_STEP}, s{S_STEP}, 1")
    A(f"s_add_u32 s{S_VM}, s{S_VM}, {32*4096}")
    A(f"s_mov_b32 s{S_T0}, s{S_R0}")
    A(f"s_mov_b32 s{S_R0}, s{S_R1}")
    A(f"s_mov_b32 s{S_R1}, s{S_R2}")
    A(f"s_mov_b32 s{S_R2}, s{S_T0}")
    for x in step_scalars(): A(x)
    if 'merged' in opt:
        A(f"s_cmp_ge_u32 s{S_FLG}, 128")
        A(f"s_cbranch_scc0 L_kvslow")
        A.label("L_kvok")
        A(f"s_add_u32 s{S_T0}, s{S_STEP}, 2")
        A(f"s_lshr_b32 s{S_T0}, s{S_T0}, 3")
        A(f"s_min_u32 s{S_T0}, s{S_T0}, 7")
        A(f"s_lshl_b32 s{S_T0}, s{S_T0}, 7")
        A(f"s_add_u32 s{S_FOFF}, s{S_T0}, {F_KV}")
    for x in zero(V_AQ, 8): A(x)
    for x in extra_delay: A(x)
    if 'ack' in opt: A.raw(f"    s_waitcnt vmcnt({1 if 'a1' in opt else 0})")
    def h1load(q):
        A(f"buffer_load_dwordx4 v[{PB+4*q}:{PB+4*q+3}], v{V_PL}, {WSR}, s{S_KEEP} offen offset:{1024*q} sc1")
    if 'vdet' not in opt: stamp(8)
    h1load(0); h1load(1)
    def h1mid(i):
        if i == 0: A(f"v_mfma_f32_16x16x32_bf16 {vr(RD,4)}, {vr(CAR,4)}, {vr(PB,4)}, 0")
        else: A(f"v_mfma_f32_16x16x32_bf16 {vr(RD,4)}, {vr(CAR,4)}, {vr(PB+4,4)}, {vr(RD,4)}")
    poll2("h1", PB, h1load, mid=h1mid, st=(None if "vdet" in opt else 9), gap=["s_nop 0"] * g1)
    A("s_nop 2")
    if timing: A(f"s_add_u32 s{S_TACC+16}, s{S_TACC+16}, s{S_TO}")
    if 'rt' in opt: A(f"s_add_u32 s64, s64, s{S_TO}")
    stamp(10)
    for ror in (4, 8):
        for r in range(4):
            A(f"v_add_f32_dpp v{RD+r}, v{RD+r}, v{RD+r} row_ror:{ror} row_mask:0xf bank_mask:0xf")
    A(f"v_cvt_pk_bf16_f32 v{RD}, v{RD}, v{RD+1}")
    A(f"v_cvt_pk_bf16_f32 v{RD+1}, v{RD+2}, v{RD+3}")
    A(f"v_min_u32 v{RD}, -2, v{RD}")
    A(f"v_min_u32 v{RD+1}, -2, v{RD+1}")
    A(f"s_mov_b64 exec, 0xffffffff")
    A(f"buffer_store_dwordx2 v[{RD}:{RD+1}], v{V_MS}, {WSR}, s{S_PUB} offen")
    A(f"v_mov_b64 v[{RD+2}:{RD+3}], -1")
    A(f"buffer_store_dwordx2 v[{RD+2}:{RD+3}], v{V_MS}, {WSR}, s{S_MPZ} offen")
    A(f"s_mov_b64 exec, -1")
    for x in extra_delay2: A(x)
    if 'ack' in opt: A.raw(f"    s_waitcnt vmcnt({1 if 'a2' in opt else 0})")
    def stage_mem():
        ML = V_S + 4
        def h2load(q):
            so = S_MSL if q == 0 else S_MPO
            A(f"buffer_load_dwordx4 v[{ML+4*q}:{ML+4*q+3}], v{V_MW}, {WSR}, s{so} offen sc1")
        if 'vdet' not in opt: stamp(11)
        h2load(0); h2load(1)
        poll2("h2", ML, h2load, st=(None if "vdet" in opt else 12), gap=["s_nop 0"] * g2)
        if timing: A(f"s_add_u32 s{S_TACC+17}, s{S_TACC+17}, s{S_TO}")
        if 'rt' in opt: A(f"s_add_u32 s65, s65, s{S_TO}")
        stamp(13)
        A(f"ds_write_b128 v{V_MW}, v[{ML}:{ML+3}]")
        A(f"ds_write_b128 v{V_MW}, v[{ML+4}:{ML+7}] offset:1024")
    stage_mem()
    for x in zero(V_AK, 8): A(x)
    A("@wait_writes")
    if 'steps' in opt:
        A(f"s_lshl_b32 s58, s{S_H}, 2")
        A(f"s_add_u32 s58, s58, s{S_WV}")
        A(f"s_lshl_b32 s58, s58, 6")
        A(f"s_add_u32 s58, s58, s{S_STEP}")
        A(f"s_lshl_b32 s58, s58, 2")
        A(f"s_add_u32 s58, s58, {WS_TIME - 4}")
        A(f"v_mov_b32 v{V_T}, s56")
        A(f"v_mov_b32 v{V_T+1}, 0")
        A(f"s_mov_b64 exec, 1")
        A(f"buffer_store_dword v{V_T}, v{V_T+1}, {WSR}, s58 offen")
        A(f"s_mov_b64 exec, -1")
    stamp(14)
    stamp_acc()
    A("s_barrier")
    A.settle()
    A.forget()
    A("s_branch L_step")
    if 'merged' in opt:
        A.label("L_kvslow")
        A(f"s_mov_b32 s{S_TO}, 0")
        A.label("L_kvslow2")
        A(f"buffer_load_dword v{V_T+1}, off, {WSR}, s{S_FOFF} sc1")
        A(f"s_add_u32 s{S_TO}, s{S_TO}, 1")
        A(f"s_cmp_gt_u32 s{S_TO}, 0x100000")
        A(f"s_cbranch_scc1 L_bail")
        A("s_waitcnt vmcnt(0)")
        A(f"v_cmp_gt_u32 vcc, 128, v{V_T+1}")
        A(f"s_cbranch_vccnz L_kvslow2")
        A.forget()
        A("s_branch L_kvok")
    A.label("L_last")
    if 'diag' in opt: dstamp(A, 7, True)
    A.settle()
    A(f"v_min_u32 v{V_AV+3}, -2, v{V_AV+6}")
    A(f"v_min_u32 v{V_AV+2}, -2, v{V_AV+2}")
    A(f"buffer_store_dwordx4 v[{V_AV}:{V_AV+3}], v{V_VMS}, {WSR}, s{S_VM} offen sc1")
    if 'rt' in opt:
        A.raw("    s_memtime s[60:61]")
        A.raw("    s_memrealtime s[62:63]")
        A.raw("    s_waitcnt lgkmcnt(0)")
        A(f"s_sub_u32 s56, s60, s56")
        A(f"s_sub_u32 s58, s62, s58")
        A(f"s_lshl_b32 s{S_T0}, s{S_H}, 2")
        A(f"s_add_u32 s{S_T0}, s{S_T0}, s{S_WV}")
        A(f"s_lshl_b32 s{S_T0}, s{S_T0}, 7")
        A(f"s_add_u32 s{S_T0}, s{S_T0}, {WS_TIME}")
        A(f"s_mov_b64 exec, 1")
        for k, r in enumerate((56, 58, 64, 65)):
            A(f"v_mov_b32 v{V_MK+1}, s{r}")
            A(f"v_mov_b32 v{V_MK}, {4*k}")
            A(f"buffer_store_dword v{V_MK+1}, v{V_MK}, {WSR}, s{S_T0} offen")
        A(f"s_mov_b64 exec, -1")
    A.wait(vm=0)
    if 'merged' in opt:
        A("s_barrier")
        A(f"s_cmp_lg_u32 s{S_WV}, 0")
        A(f"s_cbranch_scc1 L_end")
        A(f"v_mov_b32 v{V_T+1}, 64")
        A(f"s_mov_b64 exec, 1")
        A(f"buffer_store_dword v{V_T+1}, off, {WSR}, s{S_POFF} sc1")
        A.wait(vm=0)
    if timing:
        A(f"s_lshl_b32 s{S_T0}, s{S_H}, 2")
        A(f"s_add_u32 s{S_T0}, s{S_T0}, s{S_WV}")
        A(f"s_lshl_b32 s{S_T0}, s{S_T0}, 7")
        A(f"s_add_u32 s{S_T0}, s{S_T0}, {WS_TIME}")
        A(f"s_mov_b64 exec, 1")
        for k in range(18):
            A(f"v_mov_b32 v{V_T+1}, s{S_TACC+k}")
            A(f"v_mov_b32 v{V_T}, {4*k}")
            A(f"buffer_store_dword v{V_T+1}, v{V_T}, {WSR}, s{S_T0} offen")
        A.wait(vm=0)
    A("s_branch L_end")
    A.label("L_bail")
    A(f"s_mov_b64 exec, 1")
    A(f"v_mov_b32 v{V_T}, 60")
    A(f"v_mov_b32 v{V_T+1}, 0xdead")
    A(f"buffer_store_dword v{V_T+1}, v{V_T}, s[{S_DBG}:{S_DBG+3}], 0 offen")
    A.wait(vm=0)
    A.label("L_end")
```

```python
import sys
from asmlib import *
from layout import *
from gemm import *
from ln import *
import ao
from ao import *
import chain
from chain import srd, emit_chain, S_PW, S_WS, S_DBG, S_H, S_WV, S_T2, L_X
from gen_gemm_test import khead, kdesc

DIAG3 = [False]
KNAME = "parallel_sum__memory_aug_recurrent_mem_tr__mixer_channel_mlp__prompt_kernel"
T_KV = 128
T_H = T_KV + 224
T_Q = T_H + 56
T_M2 = T_Q + 128
NT2 = T_M2 + 64
KVT = 128
NYP = 4
HOLD_FROM = 600; HOLD_CNT = 128
PREF = 1
PREF_ORDER = (18, 20, 80)
PF0 = 128
WARM = 0
WARM_CODE_KB = 32
P_X = 72; P_B2 = 74; P_OUT = 76; P_W2 = 78; P_WO = 80
W_TASK = 28; W_NEXT = 29; W_TO = 82; W_T = 83; W_T2 = 84; W_SIG = 85; W_PAR = 86; W_PREV = 87; W_NP = 88; W_INC = 90; W_KIND = 91; W_INI = 93; W_LAST = 96
INIT_TICKET = 64
LNT = 16
WSR = "s[4:7]"; DBG = "s[12:15]"
LDS_BC = 163840 - 16

def spin(A, name, load, cmp_fail, limit=0x200000):
    A(f"s_cmp_lg_u32 s{G_WV}, 0")
    A(f"s_cbranch_scc1 L_{name}_j")
    A(f"s_mov_b32 s{W_TO}, 0")
    A.label(f"L_{name}_p")
    A(load)
    A(f"s_add_u32 s{W_TO}, s{W_TO}, 1")
    A(f"s_cmp_gt_u32 s{W_TO}, {limit}")
    A(f"s_cbranch_scc1 L_wbail")
    A("s_waitcnt vmcnt(0)")
    A(cmp_fail)
    A(f"s_cbranch_vccz L_{name}_j")
    A("s_sleep 2")
    A(f"s_branch L_{name}_p")
    A.label(f"L_{name}_j")
    A.forget()
    A("s_barrier")

def wait_ws_ge(A, name, soff, val):
    spin(A, name, f"buffer_load_dword v31, off, {WSR}, s{soff} sc1", f"v_cmp_gt_u32 vcc, {val}, v31")

def signal_ws(A, name, soff, inc=None):
    A("s_waitcnt vmcnt(0)")
    A.forget()
    A("s_barrier")
    A(f"s_cmp_lg_u32 s{G_WV}, 0")
    A(f"s_cbranch_scc1 L_{name}_s")
    A(f"s_cmp_lg_u32 s{W_INI}, 0")
    A(f"s_cbranch_scc1 L_{name}_i")
    A(f"s_mov_b32 s{W_TO}, 0")
    A.label(f"L_{name}_ip")
    A(f"buffer_load_dword v31, off, {DBG}, 0 offset:{D_INIT} sc1")
    A(f"s_add_u32 s{W_TO}, s{W_TO}, 1")
    A(f"s_cmp_gt_u32 s{W_TO}, 0x200000")
    A("s_cbranch_scc1 L_wbail")
    A("s_waitcnt vmcnt(0)")
    A("v_cmp_eq_u32 vcc, 0, v31")
    A(f"s_cbranch_vccnz L_{name}_ip")
    A(f"s_mov_b32 s{W_INI}, 1")
    A.label(f"L_{name}_i")
    A("v_mov_b32 v31, 1" if inc is None else f"v_mov_b32 v31, s{inc}")
    A("s_mov_b64 exec, 1")
    A(f"buffer_atomic_add v31, off, {WSR}, s{soff}")
    A("s_mov_b64 exec, -1")
    A.label(f"L_{name}_s")
    A.forget()

def fetch_ticket(A, name, dbg_off, dst, soff=None):
    A(f"s_cmp_lg_u32 s{G_WV}, 0")
    A(f"s_cbranch_scc1 L_{name}_t")
    A("v_mov_b32 v31, 1")
    A("s_mov_b64 exec, 1")
    A(f"buffer_atomic_add v31, off, {DBG}, {0 if soff is None else 's%d' % soff} offset:{dbg_off} sc0")
    A("s_waitcnt vmcnt(0)")
    A(f"v_mov_b32 v30, {LDS_BC}")
    A("ds_write_b32 v30, v31")
    A("s_waitcnt lgkmcnt(0)")
    A("s_mov_b64 exec, -1")
    A.label(f"L_{name}_t")
    A.forget()
    A("s_barrier")
    A(f"v_mov_b32 v30, {LDS_BC}")
    A("ds_read_b32 v31, v30")
    A.wait(lg=0)
    A(f"v_readfirstlane_b32 s{dst}, v31")
    A("s_barrier")

def prog_wait(A):
    saved = [set(x) for x in A.vm]; savedl = [set(x) for x in A.lgkm]
    A(f"s_cmp_lg_u32 s{G_WV}, 0")
    A("s_cbranch_scc1 L_ap_j")
    A(f"s_lshl_b32 s{W_T2}, s{O_KC}, 9")
    A(f"s_add_u32 s{W_T2}, s{W_T2}, {F_PROG}")
    A(f"v_and_b32 v30, 3, v{OV_L}")
    A("v_lshlrev_b32 v30, 7, v30")
    A(f"s_mov_b32 s{W_TO}, 0")
    A.label("L_ap_p")
    A.auto = False
    A(f"buffer_load_dword v31, v30, {WSR}, s{W_T2} offen sc1")
    A.auto = True
    A(f"s_add_u32 s{W_TO}, s{W_TO}, 1")
    A(f"s_cmp_gt_u32 s{W_TO}, 0x400000")
    A("s_cbranch_scc1 L_wbail")
    A("s_waitcnt vmcnt(0)")
    A(f"v_cmp_ge_u32 vcc, s{O_SEG}, v31")
    A("s_cbranch_vccz L_ap_j")
    A("s_sleep 2")
    A("s_branch L_ap_p")
    A.label("L_ap_j")
    A.vm = saved; A.lgkm = savedl
    A("s_barrier")

def red_flag_addrs(A, seg_sreg):
    A(f"s_lshl_b32 s{W_T}, s{seg_sreg}, 2")
    A(f"s_add_u32 s{W_T}, s{W_T}, s{O_NC}")
    A(f"s_lshl_b32 s{W_T}, s{W_T}, 7")
    A(f"s_add_u32 s{W_T}, s{W_T}, {F_R}")
    A(f"s_lshr_b32 s{W_T2}, s{seg_sreg}, 3")
    A(f"s_lshl_b32 s{W_T2}, s{W_T2}, 7")
    A(f"s_add_u32 s{W_T2}, s{W_T2}, {F_Y}")
    A(f"v_and_b32 v28, 1, v{OV_L}")
    A("v_cmp_eq_u32 vcc, 0, v28")
    A(f"v_mov_b32 v30, s{W_T2}")
    A(f"v_mov_b32 v29, s{W_T}")
    A("v_cndmask_b32 v30, v30, v29, vcc")
    A("v_mov_b32 v29, 8")
    A("v_mov_b32 v28, 8")
    A("v_cndmask_b32 v29, v29, v28, vcc")

def ao_reduce(A, seg_sreg, tag, wait=True):
    t0 = OV_T; t1 = OV_T + 1
    if wait:
        red_flag_addrs(A, seg_sreg)
        if wait == 'data': A("v_mov_b32 v28, 0"); A(f"v_and_b32 v27, 1, v{OV_L}"); A("v_cmp_eq_u32 vcc, 0, v27"); A("v_cndmask_b32 v29, v29, v28, vcc")
        A(f"s_mov_b32 s{W_TO}, 0")
        A.label(f"L_rw{tag}")
        A(f"buffer_load_dword v31, v30, {WSR}, 0 offen sc1")
        A(f"s_add_u32 s{W_TO}, s{W_TO}, 1")
        A(f"s_cmp_gt_u32 s{W_TO}, 0x400000")
        A("s_cbranch_scc1 L_wbail")
        A("s_waitcnt vmcnt(0)")
        A("v_cmp_gt_u32 vcc, v29, v31")
        A.forget()
        A(f"s_cbranch_vccnz L_rw{tag}")
    A(f"s_lshl_b32 s{W_T}, s{seg_sreg}, 2")
    A(f"s_add_u32 s{W_T}, s{W_T}, s{O_NC}")
    A(f"s_lshl_b32 s{W_T}, s{W_T}, 17")
    A(f"s_add_u32 s{W_T}, s{W_T}, {WS_PART}")
    A(f"s_lshl_b32 s{O_T0}, s{O_KC}, 2")
    A(f"s_add_u32 s{O_T0}, s{O_T0}, s{O_WV}")
    A(f"s_lshl_b32 s{O_T1}, s{O_T0}, 9")
    A(f"s_add_u32 s{W_T}, s{W_T}, s{O_T1}")
    A(f"v_lshlrev_b32 v{t0}, 3, v{OV_L}")
    R = OV_Q
    def ploads():
        for kc in range(8):
            A(f"s_add_u32 s{O_T1}, s{W_T}, {kc*16384}")
            A(f"buffer_load_dwordx2 v[{R+2*kc}:{R+2*kc+1}], v{t0}, {WSR}, s{O_T1} offen sc1")
    if wait == 'data':
        A(f"s_mov_b32 s{W_TO}, 0")
        A.label(f"L_rd{tag}")
        ploads()
        A(f"s_add_u32 s{W_TO}, s{W_TO}, 1")
        A(f"s_cmp_gt_u32 s{W_TO}, 0x400000")
        A("s_cbranch_scc1 L_wbail")
        A.wait(vm=0)
        A(f"v_max3_u32 v{t1}, v{R}, v{R+1}, v{R+2}")
        for i in range(3, 15, 2): A(f"v_max3_u32 v{t1}, v{t1}, v{R+i}, v{R+i+1}")
        A(f"v_max_u32 v{t1}, v{t1}, v{R+15}")
        A(f"v_cmp_eq_u32 vcc, -1, v{t1}")
        A(f"s_cbranch_vccnz L_rd{tag}")
        A.forget()
    else:
        ploads()
    A(f"s_lshl_b32 s{O_T1}, s{seg_sreg}, 5")
    A(f"s_add_u32 s{O_T0}, s{O_T0}, s{O_T1}")
    A(f"s_lshl_b32 s{O_T1}, s{O_T0}, 11")
    A(f"s_lshl_b32 s{O_T2}, s{O_NC}, 9")
    A(f"s_add_u32 s{O_T1}, s{O_T1}, s{O_T2}")
    A(f"s_add_u32 s{O_T1}, s{O_T1}, {WS_Y}")
    for pl in range(NYP):
        A(f"buffer_load_dwordx2 v[{R+16+2*pl}:{R+17+2*pl}], v{t0}, {WSR}, s{O_T1} offen sc1")
        if pl < NYP - 1: A(f"s_add_u32 s{O_T1}, s{O_T1}, {4*MB}")
    A(f"v_lshlrev_b32 v{t1}, 2, v{OV_L}")
    A(f"s_lshl_b32 s{O_T1}, s{O_T0}, 10")
    A(f"s_lshl_b32 s{O_T2}, s{O_NC}, 8")
    A(f"s_add_u32 s{O_T1}, s{O_T1}, s{O_T2}")
    A(f"buffer_load_dword v{R+24}, v{t1}, s[56:59], s{O_T1} offen")
    A(f"buffer_load_dword v{R+25}, v{t1}, s[60:63], s{O_T2} offen")
    A(f"v_pk_add_f32 v[{R}:{R+1}], v[{R}:{R+1}], v[{R+2}:{R+3}]")
    for k in range(2, 8 + NYP):
        A(f"v_pk_add_f32 v[{R}:{R+1}], v[{R}:{R+1}], v[{R+2*k}:{R+2*k+1}]")
    for src in (R + 24, R + 25):
        A(f"v_lshlrev_b32 v{R+26}, 16, v{src}")
        A(f"v_and_b32 v{R+27}, 0xffff0000, v{src}")
        A(f"v_pk_add_f32 v[{R}:{R+1}], v[{R}:{R+1}], v[{R+26}:{R+27}]")
    A(f"v_cvt_pk_bf16_f32 v{R}, v{R}, v{R+1}")
    A(f"buffer_store_dword v{R}, v{t1}, s[64:67], s{O_T1} offen")

DBGMAP = {0: 2, 14: 3, 13: 5, 6: 6, 7: 7, 12: 8, 1: 10, 200: 1, 201: 11, 202: 12, 203: 13, 204: 4}
def dstamp(A, idx, diag, sreg_idx=None, cyc=False):
    if not diag: return
    if DIAG3[0]:
        if idx not in DBGMAP or sreg_idx is not None or cyc: return
        lb = A.newlabel("L_ds")
        A.raw("    s_memrealtime s[98:99]")
        A.raw("    s_waitcnt lgkmcnt(0)")
        A(f"s_cmp_lg_u32 s27, 0")
        A(f"s_cbranch_scc1 {lb}")
        A("v_mov_b32 v30, s98")
        A("s_mov_b64 exec, 1")
        if idx == 0:
            A("v_not_b32 v30, v30")
        A(f"buffer_atomic_umax v30, off, s[12:15], 0 offset:{4*DBGMAP[idx]}")
        A("s_mov_b64 exec, -1")
        A.vm.pop()
        A.label(lb)
        return
    lb = A.newlabel("L_ds")
    A.raw("    s_memtime s[98:99]" if cyc else "    s_memrealtime s[98:99]")
    A.raw("    s_waitcnt lgkmcnt(0)")
    A(f"s_cmp_lg_u32 s27, 0")
    A(f"s_cbranch_scc1 {lb}")
    A(f"s_lshl_b32 s100, s2, 9")
    if sreg_idx is not None:
        A(f"s_lshl_b32 s101, s{sreg_idx}, 2")
        A(f"s_add_u32 s100, s100, s101")
    A(f"s_add_u32 s100, s100, {WS_TIME + 4*idx}")
    A("v_mov_b32 v30, s98")
    A("s_mov_b64 exec, 1")
    A(f"buffer_store_dword v30, off, s[4:7], s100")
    A("s_mov_b64 exec, -1")
    A.vm.pop()
    A.label(lb)

def main_kernel(d1, d2, g1, g2, NPAR=6, diag=0):
    DIAG3[0] = (diag == 3)
    A = Asm()
    A("s_cmp_ge_u32 s2, 256")
    A("s_cbranch_scc1 L_end")
    A(f"s_load_dwordx2 s[{S_PW}:{S_PW+1}], s[0:1], {KA_WQ}")
    A(f"s_load_dwordx2 s[{S_PW+2}:{S_PW+3}], s[0:1], {KA_WK}")
    A(f"s_load_dwordx2 s[{S_PW+4}:{S_PW+5}], s[0:1], {KA_WV}")
    A(f"s_load_dwordx2 s[{S_PW+6}:{S_PW+7}], s[0:1], {KA_WO}")
    A(f"s_load_dwordx2 s[{S_PW+8}:{S_PW+9}], s[0:1], {KA_MEM0}")
    A(f"s_load_dwordx2 s[52:53], s[0:1], {KA_DBG}")
    A(f"s_load_dwordx2 s[54:55], s[0:1], {KA_WS}")
    A(f"s_load_dwordx2 s[56:57], s[0:1], {KA_X}")
    A(f"s_getreg_b32 s{S_T2}, hwreg(HW_REG_XCC_ID)")
    A(f"v_lshrrev_b32 v1, 6, v0")
    A(f"v_readfirstlane_b32 s{S_WV}, v1")
    A.wait(lg=0)
    srd(A, S_WS, 54, WS_SIZE)
    srd(A, S_DBG, 52, 256)
    A(f"s_and_b32 s60, s{S_T2}, 15")
    dstamp(A, 0, diag)
    if WARM:
        A.raw("    s_getpc_b64 s[62:63]")
        A.raw("L_pcw:")
        A.raw(f"    s_mov_b32 s61, L_worker-L_pcw")
        A("s_cmp_eq_u32 s60, 0")
        A("s_cselect_b32 s61, 0, s61")
        A.raw("    s_add_u32 s62, s62, s61")
        A.raw("    s_addc_u32 s63, s63, 0")
        A("v_lshlrev_b32 v70, 4, v0")
        for i in range(WARM_CODE_KB // 4):
            if i: A.raw("    s_add_u32 s62, s62, 4096"); A.raw("    s_addc_u32 s63, s63, 0")
            A.auto = False
            A(f"global_load_dwordx4 v[80:83], v70, s[62:63]")
            A.auto = True
        A.vm = []
    A("s_cmp_lg_u32 s2, 0")
    A("s_cbranch_scc1 L_noinit")
    for i in range(4): A(f"v_mov_b32 v{60+i}, 0")
    A("v_lshlrev_b32 v64, 4, v0")
    for i in range(FLAG_BYTES // 4096):
        A(f"s_mov_b32 s61, {WS_FLAG + i*4096}")
        A(f"buffer_store_dwordx4 v[60:63], v64, {WSR}, s61 offen sc1")
    A.label("L_noinit")
    A.forget()
    A(f"s_cmp_eq_u32 s60, 0")
    A(f"s_cselect_b32 s29, {D_CTK}, {D_WTK}")
    fetch_ticket(A, "tk", 0, S_H, soff=29)
    A("s_cmp_lg_u32 s2, 0")
    A("s_cbranch_scc1 L_noinit2")
    A("s_waitcnt vmcnt(0)")
    A("s_barrier")
    A(f"s_cmp_lg_u32 s{S_WV}, 0")
    A("s_cbranch_scc1 L_noinit2")
    A("v_mov_b32 v64, 1")
    A("s_mov_b64 exec, 1")
    A(f"buffer_store_dword v64, off, {DBG}, 0 offset:{D_INIT} sc1")
    A("s_mov_b64 exec, -1")
    A.label("L_noinit2")
    A.forget()
    A(f"s_cmp_lg_u32 s60, 0")
    A("s_cbranch_scc1 L_worker")
    A(f"s_cmp_ge_u32 s{S_H}, 32")
    A("s_cbranch_scc1 L_xs")
    emit_chain(A, d1=d1, d2=d2, g1=g1, g2=g2, opt=('merged', 'ack', 'pearly', 'qearly', 'onesV', 'vtq', 'kvq') + (('diag',) if diag else ()) + (('nostep',) if diag in (2, 3) else ()), dstamp=dstamp, kxpos=(22, 27), vbar=7, vtpos=(10, 15), kvpos=5)
    A("s_endpgm")

    A.label("L_xs")
    fetch_ticket(A, "xtk", D_WTK, S_H)
    A.label("L_worker")
    A.forget()
    A(f"s_mov_b32 s{W_TASK}, s{S_H}")
    A(f"s_mov_b32 s{P_WO}, s{S_PW+6}"); A(f"s_mov_b32 s{P_WO+1}, s{S_PW+7}")
    A(f"s_mov_b32 s{P_X}, s56"); A(f"s_mov_b32 s{P_X+1}, s57")
    A(f"s_load_dwordx2 s[22:23], s[0:1], {KA_W1}")
    A(f"s_load_dwordx2 s[24:25], s[0:1], {KA_B1}")
    A(f"s_load_dwordx2 s[{P_B2}:{P_B2+1}], s[0:1], {KA_B2}")
    A(f"s_load_dwordx2 s[{P_OUT}:{P_OUT+1}], s[0:1], {KA_OUT}")
    A(f"s_load_dwordx2 s[{P_W2}:{P_W2+1}], s[0:1], {KA_W2}")
    A.wait(lg=0)
    srd(A, G_SRDX, 24, 1792 * 2)
    gemm_setup_lane(A)
    A(f"s_mov_b32 s{W_INI}, 1")
    if PREF:
        NPF = 224 - PF0
        A(f"s_cmp_lt_u32 s{W_TASK}, {PF0}")
        A("s_cbranch_scc1 L_nopref")
        A(f"s_cmp_ge_u32 s{W_TASK}, 224")
        A("s_cbranch_scc1 L_nopref")
        A(f"s_sub_u32 s30, s{W_TASK}, {PF0}")
        A("s_lshl_b32 s30, s30, 13")
        A(f"s_lshl_b32 s31, s{G_WV}, 11")
        A("s_add_u32 s30, s30, s31")
        A(f"v_lshlrev_b32 v32, 4, v{GV_LANE}")
        n = 0
        for ptr in PREF_ORDER:
            srd(A, 8, ptr, 4194304)
            for rep in range((512 + NPF - 1) // NPF):
                A(f"s_add_u32 s31, s30, {rep * NPF * 8192}")
                for q in range(2):
                    r = 36 + 4 * (n % 16); n += 1
                    A.auto = False
                    A(f"buffer_load_dwordx4 v[{r}:{r+3}], v32, s[8:11], s31 offen offset:{q*1024}")
                    A.auto = True
            if len(A.vm) > 40: A.wait(vm=16)
        A.wait(vm=0)
        A.label("L_nopref")
        A.forget()
    assert (64 - TAIL_SEG) * 32 * 4096 == 96 * 8192
    A(f"s_cmp_lt_u32 s{W_TASK}, 128")
    A("s_cbranch_scc1 L_nokvp")
    A(f"s_cmp_ge_u32 s{W_TASK}, 224")
    A("s_cbranch_scc1 L_nokvp")
    for i in range(4): A(f"v_mov_b32 v{32+i}, -1")
    A("v_lshlrev_b32 v36, 4, v0")
    A(f"s_sub_u32 s30, s{W_TASK}, 128")
    A("s_lshl_b32 s30, s30, 13")
    A(f"s_add_u32 s30, s30, {WS_KVM + TAIL_SEG*32*4096}")
    A(f"buffer_store_dwordx4 v[32:35], v36, {WSR}, s30 offen sc1")
    A("s_add_u32 s30, s30, 4096")
    A(f"buffer_store_dwordx4 v[32:35], v36, {WSR}, s30 offen sc1")
    A.label("L_nokvp")
    A.forget()
    A(f"s_cmp_ge_u32 s{W_TASK}, 128")
    A("s_cbranch_scc1 L_noln")
    srd(A, 8, P_X, 2048 * 512 * 2)
    A(f"s_lshl_b32 s30, s{W_TASK}, 4")
    A(f"s_lshl_b32 s31, s{G_WV}, 2")
    A("s_add_u32 s30, s30, s31")
    emit_ln_rows(A, 8, 4, 30, 4, GV_LANE, SO=94)
    A("s_waitcnt vmcnt(0)")
    A.forget()
    A("s_barrier")
    A.label("L_noln")
    A(f"s_cmp_lg_u32 s{G_WV}, 0")
    A("s_cbranch_scc1 L_lnsig")
    A(f"s_mov_b32 s62, 0")
    A.label("L_ln_ip")
    A(f"buffer_load_dword v31, off, {DBG}, 0 offset:{D_INIT} sc1")
    A("s_add_u32 s62, s62, 1")
    A("s_cmp_gt_u32 s62, 0x200000")
    A("s_cbranch_scc1 L_wbail")
    A("s_waitcnt vmcnt(0)")
    A("v_cmp_eq_u32 vcc, 0, v31")
    A("s_cbranch_vccnz L_ln_ip")
    A(f"s_cmp_ge_u32 s{W_TASK}, 128")
    A("s_cbranch_scc1 L_lnsig")
    A(f"s_lshr_b32 s30, s{W_TASK}, 4")
    A("s_lshl_b32 s30, s30, 7")
    A(f"s_add_u32 s30, s30, {F_LN}")
    A("v_mov_b32 v31, 1")
    A("s_mov_b64 exec, 1")
    A(f"buffer_atomic_add v31, off, {WSR}, s30")
    A("s_mov_b64 exec, -1")
    A.label("L_lnsig")
    A.forget()
    dstamp(A, 1, diag)
    A(f"s_mov_b32 s89, 0")
    A.label("L_g1_next")
    A(f"s_cmp_ge_u32 s{W_TASK}, {NT2}")
    A("s_cbranch_scc1 L_ao_role")
    A(f"s_cmp_ge_u32 s{W_TASK}, {T_M2}")
    A("s_cbranch_scc1 L_m2")
    t = W_TASK
    A(f"s_mov_b32 s{G_LDA}, 1024")
    A(f"s_mov_b32 s{G_NST}, 8")
    A(f"s_mov_b32 s{G_SZA}, {WS_SIZE}")
    A(f"s_mov_b32 s{G_SRDA}, s4"); A(f"s_mov_b32 s{G_SRDA+1}, s5"); A(f"s_mov_b32 s{G_SRDA+3}, 0x20000")
    A(f"s_mov_b32 s{G_SRDC}, s4"); A(f"s_mov_b32 s{G_SRDC+1}, s5"); A(f"s_mov_b32 s{G_SRDC+2}, {WS_SIZE}"); A(f"s_mov_b32 s{G_SRDC+3}, 0x20000")
    A(f"s_mov_b32 s{G_SRDB+3}, 0x20000")
    A(f"s_mov_b32 s{W_INC}, 1")
    A(f"s_cmp_ge_u32 s{t}, {T_Q}")
    A("s_cbranch_scc1 L_dec_q")
    A(f"s_cmp_ge_u32 s{t}, {T_H}")
    A("s_cbranch_scc1 L_dec_h")
    A(f"s_mov_b32 s{G_LDB}, 8192")
    A(f"s_mov_b32 s{G_SZB}, 4194304")
    A(f"s_mov_b32 s{G_LDC}, 8192")
    A(f"s_cmp_lt_u32 s{t}, {T_KV}")
    A("s_cbranch_scc1 L_kv_small")
    A(f"s_sub_u32 s{W_T}, s{t}, {T_KV - 32}")
    A(f"s_and_b32 s{G_T1}, s{W_T}, 15")
    A(f"s_lshl_b32 s{G_BOFF}, s{G_T1}, 9")
    A(f"s_lshl_b32 s{G_T2}, s{G_T1}, 14")
    A(f"s_bfe_u32 s{W_KIND}, s{W_T}, 0x10004")
    A(f"s_lshr_b32 s{W_T2}, s{W_T}, 5")
    A(f"s_lshl_b32 s{W_T}, s{W_T2}, 1")
    A(f"s_mov_b32 s{W_INC}, 4")
    A("s_branch L_kv_common")
    A.label("L_kv_small")
    A(f"s_and_b32 s{G_T1}, s{t}, 31")
    A(f"s_lshl_b32 s{G_BOFF}, s{G_T1}, 8")
    A(f"s_lshl_b32 s{G_T2}, s{G_T1}, 13")
    A(f"s_bfe_u32 s{W_KIND}, s{t}, 0x10005")
    A(f"s_lshr_b32 s{W_T}, s{t}, 6")
    A(f"s_mov_b32 s{W_T2}, 0")
    A.label("L_kv_common")
    A(f"s_lshl_b32 s{G_AOFF}, s{W_T}, 17")
    A(f"s_add_u32 s{G_AOFF}, s{G_AOFF}, {WS_XN}")
    A(f"s_lshl_b32 s{W_SIG}, s{W_T2}, 7")
    A(f"s_add_u32 s{W_SIG}, s{W_SIG}, {F_KV}")
    A(f"s_lshl_b32 s{G_COFF}, s{W_T}, 20")
    A(f"s_cmp_eq_u32 s{W_KIND}, 1")
    A("s_cbranch_scc1 L_dec_v")
    A(f"s_mov_b32 s{G_SRDB}, s18"); A(f"s_and_b32 s{G_SRDB+1}, s19, 0xffff")
    A(f"s_add_u32 s{G_COFF}, s{G_COFF}, s{G_BOFF}")
    A(f"s_add_u32 s{G_COFF}, s{G_COFF}, {WS_KX}")
    A("s_branch L_lnwait")
    A.label("L_dec_v")
    A(f"s_mov_b32 s{G_SRDB}, s20"); A(f"s_and_b32 s{G_SRDB+1}, s21, 0xffff")
    A(f"s_add_u32 s{G_COFF}, s{G_COFF}, s{G_T2}")
    A(f"s_add_u32 s{G_COFF}, s{G_COFF}, {WS_VT}")
    A("s_branch L_lnwait")
    A.label("L_dec_q")
    A(f"s_sub_u32 s{W_T}, s{t}, {T_Q}")
    A(f"s_and_b32 s{G_T1}, s{W_T}, 15")
    A(f"s_lshr_b32 s{W_T2}, s{W_T}, 4")
    A(f"s_mov_b32 s{G_LDB}, 8192")
    A(f"s_mov_b32 s{G_SZB}, 4194304")
    A(f"s_lshl_b32 s{G_BOFF}, s{G_T1}, 9")
    A(f"s_mov_b32 s{G_LDC}, 8192")
    A(f"s_lshl_b32 s{G_AOFF}, s{W_T2}, 18")
    A(f"s_add_u32 s{G_AOFF}, s{G_AOFF}, {WS_XN}")
    A(f"s_mov_b32 s{G_SRDB}, s16"); A(f"s_and_b32 s{G_SRDB+1}, s17, 0xffff")
    A(f"s_lshl_b32 s{G_COFF}, s{W_T2}, 21")
    A(f"s_add_u32 s{G_COFF}, s{G_COFF}, s{G_BOFF}")
    A(f"s_add_u32 s{G_COFF}, s{G_COFF}, {WS_QX}")
    A(f"s_lshl_b32 s{W_SIG}, s{W_T2}, 7")
    A(f"s_add_u32 s{W_SIG}, s{W_SIG}, {F_Q}")
    A(f"s_mov_b32 s{W_KIND}, 0")
    A("s_branch L_lnwait")
    A.label("L_dec_h")
    A(f"s_sub_u32 s{G_T1}, s{t}, {T_H}")
    A(f"s_mul_i32 s{W_T2}, s{G_T1}, 37")
    A(f"s_lshr_b32 s{W_T2}, s{W_T2}, 8")
    A(f"s_mul_i32 s{G_T2}, s{W_T2}, 7")
    A(f"s_sub_u32 s{G_T1}, s{G_T1}, s{G_T2}")
    A(f"s_lshl_b32 s{G_AOFF}, s{W_T2}, 18")
    A(f"s_add_u32 s{G_AOFF}, s{G_AOFF}, {WS_XN}")
    A(f"s_mov_b32 s{G_LDB}, 3584")
    A(f"s_mov_b32 s{G_SZB}, {512*1792*2}")
    A(f"s_lshl_b32 s{G_BOFF}, s{G_T1}, 9")
    A(f"s_mov_b32 s{G_AUX}, s{G_BOFF}")
    A(f"s_mov_b32 s{G_SRDB}, s22"); A(f"s_and_b32 s{G_SRDB+1}, s23, 0xffff")
    A(f"s_mov_b32 s{G_LDC}, 3584")
    A(f"s_mul_i32 s{G_COFF}, s{W_T2}, {256*3584}")
    A(f"s_add_u32 s{G_COFF}, s{G_COFF}, s{G_BOFF}")
    A(f"s_add_u32 s{G_COFF}, s{G_COFF}, {WS_HB}")
    A(f"s_lshl_b32 s{W_SIG}, s{W_T2}, 7")
    A(f"s_add_u32 s{W_SIG}, s{W_SIG}, {F_H}")
    A(f"s_mov_b32 s{W_KIND}, 2")
    A.label("L_lnwait")
    A(f"s_cmp_lt_u32 s{t}, {HOLD_FROM}")
    A("s_cbranch_scc1 L_nohold")
    A(f"s_mov_b32 s30, {F_KV}")
    wait_ws_ge(A, "hold", 30, HOLD_CNT)
    A.label("L_nohold")
    A.forget()
    A(f"s_lshl_b32 s30, s{W_T2}, 7")
    A(f"s_add_u32 s30, s30, {F_LN}")
    wait_ws_ge(A, "lnw", 30, LNT)
    A(f"s_cmp_eq_u32 s{W_KIND}, 2")
    A("s_cbranch_scc1 L_task_h")
    A(f"s_cmp_lt_u32 s{t}, {T_KV}")
    A("s_cbranch_scc1 L_small")
    A(f"s_cmp_eq_u32 s{W_KIND}, 1")
    A("s_cbranch_scc1 L_task_v")
    A("s_branch L_task_k")
    A.label("L_small")
    A(f"s_cmp_eq_u32 s{W_KIND}, 1")
    A("s_cbranch_scc1 L_task_vs")
    A("s_branch L_task_ks")
    def run(tag, wT, epi, MI=4, halfB=False):
        A.label(f"L_task_{tag}")
        A.forget()
        if diag: A("s_lshl_b32 s92, s89, 2")
        dstamp(A, 96, diag, 92)
        if halfB and DIAG3[0]: dstamp(A, 200, diag)
        gemm_task_addr(A, MI, halfB)
        gemm_start(A, sc1A=True, MI=MI)
        gemm_main(A, tag, wT, sc1A=True, MI=MI)
        dstamp(A, 97, diag, 92)
        if halfB and DIAG3[0]: dstamp(A, 201, diag)
        epi()
        A.label(f"L_eskip_{tag}")
        A.forget()
        dstamp(A, 98, diag, 92)
        signal_ws(A, f"sg{tag}", W_SIG, inc=W_INC)
        dstamp(A, 80, diag, 89)
        if halfB and DIAG3[0]: dstamp(A, 202, diag)
        A("s_add_u32 s89, s89, 1")
        A("s_branch L_fetch")
    run("ks", True, lambda: epi_rowmajor(A, MI=2, skip="L_eskip_ks"), MI=2, halfB=True)
    run("vs", False, lambda: epi_vt(A, MI=2, skip="L_eskip_vs"), MI=2, halfB=True)
    run("k", True, lambda: epi_rowmajor(A))
    run("v", False, lambda: epi_vt(A))
    run("h", True, lambda: epi_rowmajor(A, gelu=True))
    A.label("L_m2")
    A.forget()
    A(f"s_sub_u32 s{W_T}, s{W_TASK}, {T_M2}")
    A(f"s_lshr_b32 s{W_T2}, s{W_T}, 3")
    A(f"s_lshl_b32 s{W_T2}, s{W_T2}, 7")
    A(f"s_add_u32 s{W_SIG}, s{W_T2}, {F_Y}")
    A(f"s_add_u32 s{W_T2}, s{W_T2}, {F_H}")
    wait_ws_ge(A, "hw", W_T2, 7)
    A(f"s_mov_b32 s{W_INC}, 1")
    A(f"s_mov_b32 s{G_LDA}, 3584")
    A(f"s_mov_b32 s{G_NST}, 7")
    A(f"s_mov_b32 s{G_SZA}, {WS_SIZE}")
    A(f"s_mov_b32 s{G_SRDA}, s4"); A(f"s_mov_b32 s{G_SRDA+1}, s5"); A(f"s_mov_b32 s{G_SRDA+3}, 0x20000")
    A(f"s_mov_b32 s{G_SRDC}, s4"); A(f"s_mov_b32 s{G_SRDC+1}, s5"); A(f"s_mov_b32 s{G_SRDC+2}, {WS_SIZE}"); A(f"s_mov_b32 s{G_SRDC+3}, 0x20000")
    A(f"s_mov_b32 s{G_SRDB}, s{P_W2}"); A(f"s_and_b32 s{G_SRDB+1}, s{P_W2+1}, 0xffff"); A(f"s_mov_b32 s{G_SRDB+3}, 0x20000")
    A(f"s_mov_b32 s{G_LDB}, 1024")
    A(f"s_mov_b32 s{G_SZB}, {1792*512*2}")
    A(f"s_mov_b32 s{G_LDC}, 2048")
    A(f"s_and_b32 s{G_T0}, s{W_T}, 3")
    A(f"s_bfe_u32 s{G_T1}, s{W_T}, 0x10002")
    A(f"s_lshr_b32 s{G_T2}, s{W_T}, 3")
    A(f"s_mul_i32 s{G_AOFF}, s{G_T2}, {256*3584}")
    A(f"s_mul_i32 s{G_AUX}, s{G_T0}, 896")
    A(f"s_add_u32 s{G_AOFF}, s{G_AOFF}, s{G_AUX}")
    A(f"s_add_u32 s{G_AOFF}, s{G_AOFF}, {WS_HB}")
    A(f"s_mul_i32 s{G_BOFF}, s{G_T0}, {448*1024}")
    A(f"s_lshl_b32 s{G_AUX}, s{G_T1}, 9")
    A(f"s_add_u32 s{G_BOFF}, s{G_BOFF}, s{G_AUX}")
    A(f"s_lshl_b32 s{G_COFF}, s{G_T0}, 22")
    A(f"s_lshl_b32 s{G_AUX}, s{G_T2}, 19")
    A(f"s_add_u32 s{G_COFF}, s{G_COFF}, s{G_AUX}")
    A(f"s_lshl_b32 s{G_AUX}, s{G_T1}, 10")
    A(f"s_add_u32 s{G_COFF}, s{G_COFF}, s{G_AUX}")
    A(f"s_add_u32 s{G_COFF}, s{G_COFF}, {WS_Y}")
    run("m2", True, lambda: epi_f32(A))
    A.label("L_fetch")
    A.forget()
    fetch_ticket(A, "nxt", D_WTK, W_TASK)
    A("s_branch L_g1_next")

    A.label("L_ao_role")
    A.forget()
    spin(A, "ini", f"buffer_load_dword v31, off, {DBG}, 0 offset:{D_INIT} sc1", "v_cmp_eq_u32 vcc, 0, v31")
    fetch_ticket(A, "aot", D_AO, W_TASK)
    A(f"s_cmp_ge_u32 s{W_TASK}, {32*NPAR}")
    A("s_cbranch_scc1 L_end")
    A(f"s_and_b32 s{O_KC}, s{W_TASK}, 7")
    A(f"s_bfe_u32 s{O_NC}, s{W_TASK}, 0x20003")
    A(f"s_lshr_b32 s{O_SEG}, s{W_TASK}, 5")
    srd(A, 56, P_X, 2048 * 512 * 2); srd(A, 60, P_B2, 1024); srd(A, 64, P_OUT, 2048 * 512 * 2)
    dstamp(A, 10, diag)
    ao_prologue(A, P_WO)
    dstamp(A, 11, diag)
    A(f"s_sub_u32 s{W_T}, 63, s{O_SEG}")
    A(f"s_mul_i32 s{W_T2}, s{W_T}, {(65536 + NPAR - 1) // NPAR}")
    A(f"s_lshr_b32 s{W_T2}, s{W_T2}, 16")
    A(f"s_mul_i32 s{W_T2}, s{W_T2}, {NPAR}")
    A(f"s_add_u32 s{W_LAST}, s{W_T2}, s{O_SEG}")
    A(f"s_lshl_b32 s{W_T}, s{W_LAST}, 2")
    A(f"s_add_u32 s{W_T}, s{W_T}, s{O_NC}")
    A(f"s_lshl_b32 s{W_T}, s{W_T}, 3")
    A(f"s_add_u32 s{W_T}, s{W_T}, s{O_KC}")
    A(f"s_lshl_b32 s{W_T}, s{W_T}, 14")
    A(f"s_add_u32 s{W_T}, s{W_T}, {WS_PART}")
    for i in range(4): A(f"v_mov_b32 v{32+i}, -1")
    A("v_lshlrev_b32 v36, 4, v0")
    for i in range(4):
        A(f"s_add_u32 s{W_T2}, s{W_T}, {i*4096}")
        A(f"buffer_store_dwordx4 v[32:35], v36, {WSR}, s{W_T2} offen sc1")
    A.wait(vm=0)
    A(f"s_mov_b32 s{W_PREV}, s{O_SEG}")
    A(f"s_mov_b32 s{W_NP}, -1")
    A.label("L_ao_loop")
    A.forget()
    A(f"s_lshr_b32 s{W_T}, s{O_SEG}, 3")
    A(f"s_cmp_eq_u32 s{W_T}, s{W_NP}")
    A("s_cbranch_scc1 L_ao_rbok")
    A(f"s_mov_b32 s{W_NP}, s{W_T}")
    A(f"s_lshl_b32 s{W_T}, s{W_T}, 7")
    A(f"s_add_u32 s{W_T2}, s{W_T}, {F_Q}")
    wait_ws_ge(A, "aq", W_T2, 16)
    A(f"s_add_u32 s{W_T2}, s{W_T}, {F_KV}")
    wait_ws_ge(A, "ak", W_T2, KVT)
    A.label("L_ao_rbok")
    A.forget()
    ao_segment(A, prog_wait=lambda: prog_wait(A))
    A(f"s_cmp_eq_u32 s{O_SEG}, s{W_LAST}")
    A("s_cbranch_scc1 L_ao_nosig")
    A(f"s_lshl_b32 s{W_T}, s{O_SEG}, 2")
    A(f"s_add_u32 s{W_T}, s{W_T}, s{O_NC}")
    A(f"s_lshl_b32 s{W_T}, s{W_T}, 7")
    A(f"s_add_u32 s{W_SIG}, s{W_T}, {F_R}")
    signal_ws(A, "sgr", W_SIG)
    A.label("L_ao_nosig")
    A.forget()
    dstamp(A, 16, diag, O_SEG)
    A(f"s_add_u32 s{O_SEG}, s{O_SEG}, {NPAR}")
    A.label("L_ao_red")
    A.forget()
    A(f"s_add_u32 s{W_T}, s{W_PREV}, {NPAR}")
    A(f"s_cmp_ge_u32 s{W_T}, s{O_SEG}")
    A("s_cbranch_scc1 L_ao_rdone")
    red_flag_addrs(A, W_PREV)
    A(f"buffer_load_dword v31, v30, {WSR}, 0 offen sc1")
    A("s_waitcnt vmcnt(0)")
    A(f"v_cmp_gt_u32 vcc, v29, v31")
    A.forget()
    A("s_cbranch_vccnz L_ao_rdone")
    ao_reduce(A, W_PREV, "a", wait=False)
    A(f"s_add_u32 s{W_PREV}, s{W_PREV}, {NPAR}")
    A.settle()
    A("s_branch L_ao_red")
    A.label("L_ao_rdone")
    A.forget()
    A(f"s_cmp_lt_u32 s{O_SEG}, 64")
    A.settle()
    A("s_cbranch_scc1 L_ao_loop")
    A.label("L_ao_fin")
    A.forget()
    A(f"s_cmp_ge_u32 s{W_PREV}, s{W_LAST}")
    A("s_cbranch_scc1 L_ao_lastred")
    ao_reduce(A, W_PREV, "b", wait=True)
    A(f"s_add_u32 s{W_PREV}, s{W_PREV}, {NPAR}")
    A.settle()
    A("s_branch L_ao_fin")
    A.label("L_ao_lastred")
    A.forget()
    ao_reduce(A, W_PREV, "c", wait='data')
    A.label("L_ao_end")
    A("s_waitcnt vmcnt(0)")
    dstamp(A, 12, diag)
    A("s_endpgm")
    A.label("L_wbail")
    A("s_mov_b64 exec, 1")
    A("v_mov_b32 v31, 0xbeef")
    A(f"buffer_store_dword v31, off, {DBG}, 0 offset:56")
    A("s_waitcnt vmcnt(0)")
    A("s_endpgm")
    return A.text()

if __name__ == "__main__":
    kw = dict(d1=0, d2=0, g1=0, g2=0)
    for a in sys.argv[2:]:
        k, v = a.split('=')
        if k == 'PORD':
            globals()['PREF_ORDER'] = tuple({'q':16,'k':18,'v':20,'o':80}[ch] for ch in v); continue
        if k in ('HOLD_FROM', 'HOLD_CNT', 'PREF', 'WARM', 'WARM_CODE_KB', 'PF0'): globals()[k] = int(v)
        else: kw[k] = int(v)
    hdr = open('parallel_sum__memory_aug_recurrent_mem_tr__mixer_channel_mlp__prompt.s.ref').read().split('; Override launch')[0]
    txt = hdr + f"; @launch kernel={KNAME} grid=(256,1,1) block=(256,1,1) lds=163840\n"
    DESC = """; One persistent launch, one workgroup per CU (256 threads, 512 registers per lane, 160 KiB LDS). Roles are taken at run time:
"""
    txt += DESC
    txt += '.amdgcn_target "amdgcn-amd-amdhsa--gfx950"\n.text\n'
    txt += khead(KNAME) + main_kernel(**kw)
    txt += '.section .rodata,"a"\n.p2align 6\n' + kdesc(KNAME)
    open(sys.argv[1], "w").write(txt)
```

```python
from asmlib import *
from layout import *
import math, struct

L_WL   = 0
L_MEMB = 131072
L_KXB  = L_MEMB + 8192
L_X    = L_MEMB + 24576
L_OB   = L_X + 4096
L_CA   = L_OB + 2048
L_DUM  = L_CA + 1024
LDS_TOTAL = 163840
PSLOT = 262144

S_WS = 4; S_W = 8; S_DBG = 12
S_PW = 16
S_H = 26; S_WV = 27; S_STEP = 28; S_T0 = 29; S_T1 = 30; S_T2 = 31
S_C = 32
S_PAR = 34
S_PST0 = 35; S_PST1 = 36; S_PLD = 37; S_POI = 38; S_MSL = 39; S_MPO = 40
S_KXA = 41; S_KXB = 42; S_M0A = 43; S_M0B = 44; S_VT = 45; S_KM = 46; S_VM = 47
S_TO = 48
S_R0 = 8; S_R1 = 9; S_R2 = 10
S_EX = 50
S_TM = 52
S_TACC = 54
S_STAMP = 72

V_IDX, V_WL0, V_WL1, V_MEM, V_XW, V_XR, V_OW, V_PS, V_PL, V_MS, V_MW, V_KXG, V_VVT, V_KMS, V_VMS = range(1, 16)
V_T = 16
V_MK = 20
V_SB = 52
V_AQ = 68; V_AK = 76; V_AV = 84
V_XF = 92
V_S = 108
V_VX = 120

def wreg(X, c, f):
    idx = X * 12 + c * 4 + f
    return ar(8 * idx, 8) if idx < 32 else vr(128 + 8 * (idx - 32), 8)
def wreg_part(X, c, f, p):
    idx = X * 12 + c * 4 + f
    return ar(8 * idx + 2 * p, 2) if idx < 32 else vr(128 + 8 * (idx - 32) + 2 * p, 2)

def srd(A, s, ptr, size):
    A(f"s_mov_b32 s{s}, s{ptr}")
    A(f"s_and_b32 s{s+1}, s{ptr+1}, 0xffff")
    A(f"s_mov_b32 s{s+2}, {size}")
    A(f"s_mov_b32 s{s+3}, 0x20000")

WSR = f"s[{S_WS}:{S_WS+3}]"

def poll_with_shadow(A, poll, name, regs, loadfn, pre_ok, shadow):
    orig = A.wait
    state = {'done': False}
    def w(vm=None, lg=None):
        if not state['done']:
            state['done'] = True
            shadow()
        orig(vm, lg)
    A.wait = w
    try:
        poll(name, regs, loadfn, pre_ok)
    finally:
        A.wait = orig

def emit_chain(A, timing=False, nsteps=64, opt=(), d1=0, d2=0, hodelay=8, kxpos=(14, 22), g1=12, g2=12, dstamp=None, asplit=17, vbar=7, vtpos=(6, 11), kvpos=2):
    extra_delay = ["s_nop 0"] * d1
    extra_delay2 = ["s_nop 0"] * d2
    lane = 17; t0 = 18; t1 = 19
    def pst(k):
        if 'pro' in opt: A.raw(f"    s_memrealtime s[{72+2*k}:{73+2*k}]")
    pst(1)
    A(f"v_and_b32 v{lane}, 63, v0")
    DQ = V_MK
    DO = V_MK + 2
    TRA = V_MK + 6
    TRO = V_MK + 8
    TMP = V_SB
    a = V_MK + 12; b = V_MK + 13; c_ = V_MK + 14; d_ = V_MK + 15
    A(f"v_lshrrev_b32 v{a}, 4, v{lane}")
    A(f"v_bfe_u32 v{b}, v{lane}, 1, 3")
    A(f"v_xor_b32 v{c_}, v{b}, v{a}")
    A(f"v_and_b32 v{d_}, 1, v{lane}")
    A(f"v_lshl_or_b32 v{c_}, v{c_}, 1, v{d_}")
    A(f"v_lshlrev_b32 v{c_}, 4, v{c_}")
    A(f"v_lshl_or_b32 v{DQ}, v{a}, 13, v{c_}")
    A(f"v_xor_b32 v{DQ+1}, 128, v{DQ}")
    A(f"v_and_b32 v{c_}, 1, v{a}")
    A(f"v_xor_b32 v{c_}, v{b}, v{c_}")
    A(f"v_lshl_or_b32 v{c_}, v{c_}, 1, v{d_}")
    A(f"v_lshrrev_b32 v{b}, 2, v{c_}")
    A(f"v_lshlrev_b32 v{b}, 8, v{b}")
    A(f"v_and_b32 v{c_}, 3, v{c_}")
    A(f"v_lshl_or_b32 v{b}, v{c_}, 5, v{b}")
    A(f"v_lshl_or_b32 v{DO}, v{a}, 10, v{b}")
    A(f"v_xor_b32 v{DO+1}, 256, v{DO}")
    A(f"v_xor_b32 v{DO+2}, 512, v{DO}")
    A(f"v_xor_b32 v{DO+3}, 768, v{DO}")
    A(f"v_bfe_u32 v{b}, v{lane}, 4, 1")
    A(f"v_bfe_u32 v{c_}, v{lane}, 3, 1")
    A(f"v_lshl_or_b32 v{b}, v{c_}, 1, v{b}")
    A(f"v_bfe_u32 v{c_}, v{lane}, 2, 1")
    A(f"v_lshl_or_b32 v{b}, v{c_}, 2, v{b}")
    A(f"v_bfe_u32 v{c_}, v{lane}, 5, 1")
    A(f"v_lshl_or_b32 v{c_}, v{c_}, 4, v{b}")
    A(f"v_lshlrev_b32 v{c_}, 8, v{c_}")
    A(f"v_and_b32 v{d_}, 3, v{lane}")
    A(f"v_lshl_or_b32 v{c_}, v{d_}, 3, v{c_}")
    A(f"s_lshl_b32 s{S_T0}, s{S_WV}, 1")
    A(f"v_xor_b32 v{b}, s{S_T0}, v{b}")
    A(f"v_lshl_or_b32 v{TRA}, v{b}, 5, v{c_}")
    A(f"v_xor_b32 v{TRA+1}, 32, v{TRA}")
    A(f"v_bfe_u32 v{b}, v{lane}, 5, 1")
    A(f"v_lshlrev_b32 v{b}, 4, v{b}")
    A(f"v_bfe_u32 v{c_}, v{lane}, 4, 1")
    A(f"v_lshl_or_b32 v{b}, v{c_}, 2, v{b}")
    A(f"v_lshlrev_b32 v{t0}, 1, v{c_}")
    A(f"v_bfe_u32 v{c_}, v{lane}, 2, 1")
    A(f"v_or_b32 v{b}, v{b}, v{c_}")
    A(f"v_or_b32 v{t0}, v{t0}, v{c_}")
    A(f"v_bfe_u32 v{c_}, v{lane}, 3, 1")
    A(f"v_lshl_or_b32 v{b}, v{c_}, 3, v{b}")
    A(f"v_lshl_or_b32 v{t0}, v{c_}, 2, v{t0}")
    A(f"v_lshlrev_b32 v{b}, 8, v{b}")
    A(f"v_and_b32 v{c_}, 1, v{lane}")
    A(f"v_lshl_or_b32 v{b}, v{c_}, 4, v{b}")
    A(f"v_bfe_u32 v{c_}, v{lane}, 1, 1")
    A(f"v_or_b32 v{c_}, s{S_T0}, v{c_}")
    A(f"v_xor_b32 v{c_}, v{c_}, v{t0}")
    A(f"v_lshl_or_b32 v{TRO}, v{c_}, 5, v{b}")
    A(f"v_add_u32 v{TRO+1}, 8, v{TRO}")

    A(f"v_bfe_u32 v{t0}, v{lane}, 1, 1")
    A(f"v_lshlrev_b32 v{t0}, 1, v{t0}")
    A(f"v_lshrrev_b32 v{t1}, 4, v{lane}")
    A(f"v_add_u32 v{t0}, v{t0}, v{t1}")
    A(f"v_lshlrev_b32 v{t0}, 4, v{t0}")
    A(f"v_and_b32 v{t1}, 1, v{lane}")
    A(f"v_lshl_or_b32 v{t0}, v{t1}, 3, v{t0}")
    A(f"s_lshl_b32 s{S_T0}, s{S_H}, 8")
    A(f"s_lshl_b32 s{S_T1}, s{S_WV}, 6")
    A(f"s_add_u32 s{S_T0}, s{S_T0}, s{S_T1}")
    A(f"v_bfe_u32 v{t1}, v{lane}, 2, 2")
    A(f"v_lshl_or_b32 v{t0}, v{t1}, 13, v{t0}")
    A(f"v_add_u32 v{V_MS}, s{S_T0}, v{t0}")
    srd(A, S_W, S_PW + 8, 8192)
    A(f"v_lshrrev_b32 v{t0}, 4, v{lane}")
    A(f"v_and_b32 v{t0}, 1, v{t0}")
    A(f"v_lshlrev_b32 v{t0}, 10, v{t0}")
    A(f"v_and_b32 v{t1}, 3, v{lane}")
    A(f"v_lshl_or_b32 v{t0}, v{t1}, 1, v{t0}")
    A(f"s_lshl_b32 s{S_T0}, s{S_WV}, 11")
    A(f"s_lshl_b32 s{S_T1}, s{S_H}, 5")
    A(f"s_add_u32 s{S_T0}, s{S_T0}, s{S_T1}")
    M0R = V_S + 4
    MT = V_S
    for j in range(4):
        A(f"buffer_load_ushort v{MT+j}, v{t0}, s[{S_W}:{S_W+3}], s{S_T0} offen offset:{8*j}")
    P = V_XF
    for i in range(4): A(f"v_mov_b32 v{P+i}, -1")
    A(f"v_lshlrev_b32 v{t0}, 4, v0")
    A(f"s_lshl_b32 s{S_T0}, s{S_H}, 13")
    A(f"s_add_u32 s{S_T0}, s{S_T0}, {WS_PBUF}")
    for slot in range(3):
        for i in range(2):
            A(f"s_add_u32 s{S_T1}, s{S_T0}, {slot*PSLOT + i*4096}")
            A(f"buffer_store_dwordx4 v[{P}:{P+3}], v{t0}, {WSR}, s{S_T1} offen")
    A(f"v_cmp_gt_u32 vcc, 16, v0")
    A(f"s_and_saveexec_b64 s[{S_EX}:{S_EX+1}], vcc")
    A(f"s_cbranch_execz L_nomp")
    A(f"s_lshl_b32 s{S_T0}, s{S_H}, 8")
    A(f"s_add_u32 s{S_T0}, s{S_T0}, {WS_MBUF}")
    for sl in (1, 2):
        for cp in range(4):
            A(f"s_add_u32 s{S_T1}, s{S_T0}, {sl*32768 + cp*8192}")
            A(f"buffer_store_dwordx4 v[{P}:{P+3}], v{t0}, {WSR}, s{S_T1} offen")
    A.label("L_nomp")
    A(f"s_mov_b64 exec, s[{S_EX}:{S_EX+1}]")
    A.vm = []

    S_WR = 61
    if 'rot1' in opt:
        A(f"s_add_u32 s{S_WR}, s{S_WV}, s{S_H}")
        A(f"s_and_b32 s{S_WR}, s{S_WR}, 3")
    elif 'rot2' in opt:
        A(f"s_lshr_b32 s{S_WR}, s{S_H}, 2")
        A(f"s_add_u32 s{S_WR}, s{S_WR}, s{S_WV}")
        A(f"s_and_b32 s{S_WR}, s{S_WR}, 3")
    else:
        A(f"s_mov_b32 s{S_WR}, s{S_WV}")
    order = [(X, c) for X in range(4) for c in range(3)] + [(X, 3) for X in range(4)]
    slot_of = {}
    for i, (X, c) in enumerate(order[:12]): slot_of[(X, c)] = i % 5
    for X in range(4): slot_of[(X, 3)] = X
    def issue(X, c):
        srd(A, S_W, S_PW + 2 * X, 4194304)
        slot = slot_of[(X, c)]
        if X < 3:
            A(f"s_lshl_b32 s{S_T0}, s{S_WR}, 18")
            A(f"s_lshl_b32 s{S_T1}, s{S_H}, 8")
            A(f"s_add_u32 s{S_T0}, s{S_T0}, s{S_T1}")
            A(f"s_add_u32 s{S_T0}, s{S_T0}, {128*c*8192}")
            step = 4 * 8192
        else:
            A(f"s_lshl_b32 s{S_T0}, s{S_WR}, 15")
            A(f"s_lshl_b32 s{S_T1}, s{S_H}, 17")
            A(f"s_add_u32 s{S_T0}, s{S_T0}, s{S_T1}")
            A(f"s_add_u32 s{S_T0}, s{S_T0}, {(c >> 1) * 128 + (c & 1) * 16}")
            step = 4 * 1024
        A(f"s_lshl_b32 s{S_T1}, s{S_WR}, 13")
        A(f"s_add_u32 s{S_T1}, s{S_T1}, {slot*32768}")
        for i in range(8):
            D = DQ + (i & 1) if X < 3 else DO + (i & 3)
            A(f"s_mov_b32 m0, s{S_T1}")
            A(f"buffer_load_dwordx4 v{D}, s[{S_W}:{S_W+3}], s{S_T0} offen lds")
            if i < 7:
                A(f"s_add_u32 s{S_T0}, s{S_T0}, {step}")
                A(f"s_add_u32 s{S_T1}, s{S_T1}, 1024")
    pst(2)
    if 'diag' in opt:
        dstamp(A, 14, True)
    if 'diag' in opt and 'nostep' not in opt:
        A.raw("    s_getreg_b32 s98, hwreg(HW_REG_HW_ID)")
        A(f"s_lshl_b32 s98, s98, 8"); A(f"s_or_b32 s98, s98, s{S_H}")
        lb = A.newlabel("L_dh")
        A(f"s_cmp_lg_u32 s27, 0"); A(f"s_cbranch_scc1 {lb}")
        A(f"s_lshl_b32 s100, s2, 9"); A(f"s_add_u32 s100, s100, {WS_TIME + 4*15}")
        A("v_mov_b32 v30, s98"); A("s_mov_b64 exec, 1"); A("buffer_store_dword v30, off, s[4:7], s100"); A("s_mov_b64 exec, -1"); A.vm.pop(); A.label(lb)
    A(f"s_lshl_b32 s{S_T0}, s{S_WV}, 13")
    A(f"v_lshlrev_b32 v{t0}, 4, v{lane}")
    A(f"v_add_u32 v{V_WL0}, s{S_T0}, v{t0}")
    A(f"v_add_u32 v{V_WL1}, 0x10000, v{V_WL0}")
    issued = []
    for k in range(5):
        issue(*order[k]); issued.append(order[k])
    if 'nopf' not in opt:
        A.raw("    s_getpc_b64 s[56:57]")
        A.raw("L_pc0:")
        A.raw("    s_add_u32 s56, s56, L_step-L_pc0")
        A.raw("    s_addc_u32 s57, s57, 0")
        A(f"v_lshlrev_b32 v{V_AQ}, 4, v{lane}")
        A(f"s_lshl_b32 s{S_T0}, s{S_WV}, 11")
        A(f"v_add_u32 v{V_AQ}, s{S_T0}, v{V_AQ}")
        A(f"global_load_dwordx4 v[{V_AK}:{V_AK+3}], v{V_AQ}, s[56:57]")
        A(f"global_load_dwordx4 v[{V_AK+4}:{V_AK+7}], v{V_AQ}, s[56:57] offset:1024")
    A.raw(f"    s_waitcnt vmcnt({40 if 'nopf' in opt else 42})")
    _sv = A.vm; A.vm = []
    A(f"v_lshl_or_b32 v{M0R}, v{MT+1}, 16, v{MT}")
    A(f"v_lshl_or_b32 v{M0R+1}, v{MT+3}, 16, v{MT+2}")
    A(f"s_mov_b32 s{S_T0}, {WS_MBUF}")
    A(f"s_mov_b64 exec, 0xffffffff")
    A(f"buffer_store_dwordx2 v[{M0R}:{M0R+1}], v{V_MS}, {WSR}, s{S_T0} offen")
    A(f"s_mov_b64 exec, -1")
    A.vm = _sv
    follow = {0: order[5], 1: order[6], 2: order[7], 3: order[8], 4: order[9], 5: order[10], 6: order[11],
              7: (2, 3), 8: (3, 3), 10: (0, 3), 11: (1, 3)}
    def trreads(X, slot, f, dst_fn):
        t = f & 1; ksp = f >> 1
        base = slot * 32768
        TR = TRA if X < 3 else TRO
        breg = TR + t
        if base >= 32768:
            A(f"v_add_u32 v{t1}, {base}, v{TR+t}")
            breg = t1
        for tp in range(4):
            if X < 3: imm = (64 * ksp + 32 * (tp >> 1) + 8 * (tp & 1)) * 256
            else: imm = (64 * ksp + 32 * (tp >> 1) + 2 * (tp & 1)) * 256
            A(f"ds_read_b64_tr_b16 {dst_fn(tp)}, v{breg} offset:{imm}")
    extra_ops = [0]
    def consume_wait(ch):
        pos = issued.index(ch)
        n_after = len(issued) - 1 - pos
        A.wait(vm=8 * n_after)
        A("s_barrier")
    def relayout(X):
        consume_wait((X, 3))
        for f in range(4):
            trreads(X, X, f, lambda tp: vr(TMP + 8 * f + 2 * tp, 2))
        A.wait(lg=0)
        A("s_barrier")
        base = V_WL0 if X < 2 else V_WL1
        for f in range(4):
            for hh in range(2):
                A(f"ds_write_b128 v{base}, v[{TMP+8*f+4*hh}:{TMP+8*f+4*hh+3}] offset:{(X&1)*32768 + f*2048 + hh*1024}")
        A.wait(lg=0)
    for i, (X, c) in enumerate(order[:12]):
        consume_wait((X, c))
        if i == 0: pst(3)
        if i == 4: pst(4)
        if i == 8: pst(5)
        if i == 5:
            A(f"s_cmp_lg_u32 s{S_WV}, 0")
            A(f"s_cbranch_scc1 L_rdy_skip")
            A(f"v_mov_b32 v{t1}, 1")
            A(f"s_mov_b64 exec, 1")
            A(f"buffer_atomic_add v{t1}, off, s[{S_DBG}:{S_DBG+3}], 0 offset:36")
            A(f"s_mov_b64 exec, -1")
            A.vm.pop()
            A.label("L_rdy_skip")
        for f in range(4):
            trreads(X, slot_of[(X, c)], f, lambda tp: wreg_part(X, c, f, tp))
        A.wait(lg=0)
        A("s_barrier")
        if i in follow:
            issue(*follow[i]); issued.append(follow[i])
        if i == 10:
            A(f"buffer_load_dword v{V_AV}, off, s[{S_DBG}:{S_DBG+3}], 0 offset:36 sc1")
            A(f"buffer_load_dword v{V_AV+1}, off, s[{S_DBG}:{S_DBG+3}], 0 offset:{D_INIT} sc1")
            extra_ops[0] = 2
        if i == 11:
            relayout(2); relayout(3)
    pst(6)
    if 'diag' in opt: dstamp(A, 10, True); dstamp(A, 203, True) if 'nostep' in opt else None
    def S(x): A(x)
    S(f"v_bfe_u32 v{t0}, v{lane}, 1, 1")
    S(f"v_mov_b32 v{V_IDX}, 0x4444")
    S(f"v_mov_b32 v{t1}, 0xeeee")
    S(f"v_cmp_ne_u32 vcc, 0, v{t0}")
    S(f"v_cndmask_b32 v{V_IDX}, v{V_IDX}, v{t1}, vcc")
    S(f"s_lshl_b32 s{S_T0}, s{S_WV}, 13")
    S(f"v_lshlrev_b32 v{t0}, 4, v{lane}")
    S(f"v_add_u32 v{V_WL0}, s{S_T0}, v{t0}")
    S(f"v_add_u32 v{V_WL1}, 0x10000, v{V_WL0}")
    S(f"v_add_u32 v{V_MEM}, {L_MEMB}, v{t0}")
    S(f"s_lshl_b32 s{S_T0}, s{S_WV}, 11")
    S(f"v_add_u32 v{V_MW}, s{S_T0}, v{V_MEM}")
    S(f"s_lshl_b32 s{S_T1}, s{S_H}, 13")
    S(f"s_add_u32 s{S_T0}, s{S_T0}, s{S_T1}")
    S(f"v_add_u32 v{V_PL}, s{S_T0}, v{t0}")
    S(f"v_and_b32 v{t0}, 15, v{lane}")
    S(f"v_lshlrev_b32 v{t0}, 5, v{t0}")
    S(f"v_lshrrev_b32 v{t1}, 4, v{lane}")
    S(f"v_lshl_or_b32 v{t0}, v{t1}, 3, v{t0}")
    S(f"v_bfe_u32 v{t1}, v{lane}, 3, 1")
    S(f"v_lshlrev_b32 v{t1}, 7, v{t1}")
    S(f"v_xor_b32 v{t0}, v{t0}, v{t1}")
    S(f"s_lshl_b32 s{S_T0}, s{S_WV}, 10")
    S(f"s_add_u32 s{S_T0}, s{S_T0}, {L_X}")
    S(f"v_add_u32 v{V_XW}, s{S_T0}, v{t0}")
    S(f"v_lshrrev_b32 v{t0}, 4, v{lane}")
    S(f"v_lshlrev_b32 v{t0}, 3, v{t0}")
    S(f"v_bfe_u32 v{t1}, v{lane}, 2, 2")
    S(f"v_or_b32 v{t0}, v{t0}, v{t1}")
    S(f"v_lshlrev_b32 v{t0}, 5, v{t0}")
    S(f"v_and_b32 v{t1}, 3, v{lane}")
    S(f"v_lshl_or_b32 v{t0}, v{t1}, 3, v{t0}")
    S(f"v_bfe_u32 v{t1}, v{lane}, 4, 1")
    S(f"v_lshlrev_b32 v{t1}, 7, v{t1}")
    S(f"v_xor_b32 v{t0}, v{t0}, v{t1}")
    S(f"v_add_u32 v{V_XR}, {L_X}, v{t0}")
    S(f"v_xor_b32 v{V_KMS}, 128, v{t0}")
    S(f"v_add_u32 v{V_KMS}, {L_X}, v{V_KMS}")
    S(f"v_and_b32 v{t0}, 13, v{lane}")
    S(f"v_bfe_u32 v{t1}, v{lane}, 5, 1")
    S(f"v_lshl_or_b32 v{t0}, v{t1}, 1, v{t0}")
    S(f"v_lshlrev_b32 v{t0}, 4, v{t0}")
    S(f"v_bfe_u32 v{t1}, v{lane}, 4, 1")
    S(f"v_lshl_or_b32 v{t0}, v{t1}, 3, v{t0}")
    S(f"s_lshl_b32 s{S_T0}, s{S_WV}, 9")
    S(f"s_add_u32 s{S_T0}, s{S_T0}, {L_OB}")
    S(f"v_add_u32 v{V_OW}, s{S_T0}, v{t0}")
    S(f"v_mov_b32 v{t0}, {L_DUM}")
    S(f"v_and_b32 v{t1}, 2, v{lane}")
    S(f"v_cmp_ne_u32 vcc, 0, v{t1}")
    S(f"v_cndmask_b32 v{V_OW}, v{V_OW}, v{t0}, vcc")
    S(f"v_bfe_u32 v{t0}, v{lane}, 2, 2")
    S(f"v_lshlrev_b32 v{t0}, 13, v{t0}")
    S(f"v_lshrrev_b32 v{t1}, 4, v{lane}")
    S(f"v_lshl_or_b32 v{t0}, v{t1}, 11, v{t0}")
    S(f"v_and_b32 v{t1}, 3, v{lane}")
    S(f"v_lshl_or_b32 v{t0}, v{t1}, 4, v{t0}")
    S(f"s_lshl_b32 s{S_T0}, s{S_H}, 6")
    S(f"v_add_u32 v{V_PS}, s{S_T0}, v{t0}")
    S(f"v_and_b32 v{t0}, 15, v{lane}")
    S(f"v_lshlrev_b32 v{t0}, 13, v{t0}")
    S(f"v_lshrrev_b32 v{t1}, 4, v{lane}")
    S(f"v_lshl_or_b32 v{t0}, v{t1}, 4, v{t0}")
    S(f"s_lshl_b32 s{S_T0}, s{S_H}, 8")
    S(f"s_lshr_b32 s{S_T1}, s{S_WV}, 1")
    S(f"s_lshl_b32 s{S_T1}, s{S_T1}, 17")
    S(f"s_add_u32 s{S_T0}, s{S_T0}, s{S_T1}")
    S(f"s_and_b32 s{S_T1}, s{S_WV}, 1")
    S(f"s_lshl_b32 s{S_T1}, s{S_T1}, 7")
    S(f"s_add_u32 s{S_T0}, s{S_T0}, s{S_T1}")
    S(f"v_add_u32 v{V_KXG}, s{S_T0}, v{t0}")
    S(f"v_and_b32 v{t0}, 15, v{lane}")
    S(f"v_lshlrev_b32 v{t0}, 6, v{t0}")
    S(f"v_lshrrev_b32 v{t1}, 4, v{lane}")
    S(f"v_lshl_or_b32 v{t0}, v{t1}, 4, v{t0}")
    S(f"s_lshl_b32 s{S_T0}, s{S_H}, 13")
    S(f"s_lshl_b32 s{S_T1}, s{S_WV}, 11")
    S(f"s_add_u32 s{S_T0}, s{S_T0}, s{S_T1}")
    S(f"v_add_u32 v{V_VVT}, s{S_T0}, v{t0}")
    S(f"v_lshlrev_b32 v{t0}, 4, v{lane}")
    S(f"s_lshl_b32 s{S_T0}, s{S_H}, 12")
    S(f"s_lshl_b32 s{S_T1}, s{S_WV}, 10")
    S(f"s_add_u32 s{S_T0}, s{S_T0}, s{S_T1}")
    S(f"v_add_u32 v{V_VMS}, s{S_T0}, v{t0}")
    c = (128 ** -0.5) * math.log2(math.e)
    cbits = hex(struct.unpack('<I', struct.pack('<f', c))[0])
    S(f"s_mov_b32 s{S_C}, {cbits}")
    S(f"s_mov_b32 s{S_C+1}, {cbits}")

    CA = V_AK
    A(f"v_and_b32 v{a}, 15, v{lane}")
    A(f"v_mov_b32 v{b}, 0x3f80")
    A(f"v_mov_b32 v{c_}, 0x3f800000")
    A(f"v_cmp_gt_u32 vcc, 4, v{a}")
    A(f"v_cndmask_b32 v{b}, v{c_}, v{b}, vcc")
    A(f"v_cmp_gt_u32 vcc, 8, v{a}")
    A(f"v_cndmask_b32 v{b}, 0, v{b}, vcc")
    A(f"v_and_b32 v{a}, 3, v{a}")
    for i in range(4):
        A(f"v_cmp_eq_u32 vcc, {i}, v{a}")
        A(f"v_cndmask_b32 v{CA+i}, 0, v{b}, vcc")
    A(f"s_lshl_b32 s{S_M0A}, s{S_WV}, 11")
    A(f"s_add_u32 s{S_M0A}, s{S_M0A}, {L_KXB}")
    A(f"s_mov_b32 s{S_KXA}, {WS_KX}")
    def kx0():
        A(f"s_mov_b32 m0, s{S_M0A}")
        A(f"buffer_load_dwordx4 v{V_KXG}, {WSR}, s{S_KXA} offen sc1 lds")
        A(f"s_add_u32 s{S_T0}, s{S_M0A}, 1024")
        A(f"s_add_u32 s{S_T1}, s{S_KXA}, 64")
        A(f"s_mov_b32 m0, s{S_T0}")
        A(f"buffer_load_dwordx4 v{V_KXG}, {WSR}, s{S_T1} offen sc1 lds")
    if 'merged' not in opt: kx0()
    A.wait(vm=0)
    A.vm = []
    A(f"ds_write_b128 v{V_MEM}, v[{CA}:{CA+3}] offset:{L_CA-L_MEMB}")
    A.wait(lg=0)
    A("s_barrier")
    A(f"v_cmp_gt_u32 vcc, 32, v{V_AV}")
    A(f"s_cbranch_vccz L_rdy_done")
    A(f"s_mov_b32 s{S_TO}, 0")
    A(f"v_mov_b32 v{t0}, 36")
    A.label("L_rdy_poll")
    A(f"buffer_load_dword v{t1}, v{t0}, s[{S_DBG}:{S_DBG+3}], 0 offen sc1")
    A(f"s_add_u32 s{S_TO}, s{S_TO}, 1")
    A(f"s_cmp_gt_u32 s{S_TO}, 0x40000")
    A(f"s_cbranch_scc1 L_bail")
    A.wait(vm=0)
    A(f"v_cmp_gt_u32 vcc, 32, v{t1}")
    A(f"s_cbranch_vccnz L_rdy_poll")
    A.label("L_rdy_done")
    A.forget()
    if 'merged' in opt:
        A(f"v_cmp_ne_u32 vcc, 0, v{V_AV+1}")
        A(f"s_cbranch_vccnz L_ci_done")
        A(f"s_mov_b32 s{S_TO}, 0")
        A.label("L_ci_poll")
        A(f"buffer_load_dword v{t1}, off, s[{S_DBG}:{S_DBG+3}], 0 offset:{D_INIT} sc1")
        A(f"s_add_u32 s{S_TO}, s{S_TO}, 1")
        A(f"s_cmp_gt_u32 s{S_TO}, 0x100000")
        A(f"s_cbranch_scc1 L_bail")
        A.wait(vm=0)
        A(f"v_cmp_eq_u32 vcc, 0, v{t1}")
        A(f"s_cbranch_vccnz L_ci_poll")
        A.label("L_ci_done")
        A.forget()
    pst(7)
    if 'diag' in opt: dstamp(A, 11, True)
    for X in range(2):
        for f in range(4):
            trreads(X, X, f, lambda tp: vr(TMP + 8 * f + 2 * tp, 2))
        A.wait(lg=0)
        A("s_barrier")
        for f in range(4):
            for hh in range(2):
                A(f"ds_write_b128 v{V_WL0}, v[{TMP+8*f+4*hh}:{TMP+8*f+4*hh+3}] offset:{(X&1)*32768 + f*2048 + hh*1024}")
        A.wait(lg=0)
    if 'diag' in opt: dstamp(A, 204 if 'nostep' in opt else 12, True)
    if 'merged' in opt:
        A(f"s_mov_b32 s{S_T0}, {F_KV}")
        A(f"s_mov_b32 s{S_TO}, 0")
        A.label("L_ck_poll")
        A(f"buffer_load_dword v{t1}, off, {WSR}, s{S_T0} sc1")
        A(f"s_add_u32 s{S_TO}, s{S_TO}, 1")
        A(f"s_cmp_gt_u32 s{S_TO}, 0x100000")
        A(f"s_cbranch_scc1 L_bail")
        A.wait(vm=0)
        A(f"v_cmp_gt_u32 vcc, 128, v{t1}")
        A(f"s_cbranch_vccnz L_ck_poll")
        A.forget()
        if 'diag' in opt: dstamp(A, 13, True)
        kx0()


    A("s_waitcnt vmcnt(0)")
    A("s_barrier")
    pst(8)
    if 'diag' in opt: dstamp(A, 5, True)
    pst(9)
    if 'pro' in opt:
        A.raw("    s_waitcnt lgkmcnt(0)")
        A(f"s_lshl_b32 s{S_T0}, s{S_H}, 2")
        A(f"s_add_u32 s{S_T0}, s{S_T0}, s{S_WV}")
        A(f"s_lshl_b32 s{S_T0}, s{S_T0}, 7")
        A(f"s_add_u32 s{S_T0}, s{S_T0}, {WS_TIME}")
        A(f"s_mov_b64 exec, 1")
        for k in range(10):
            A(f"v_mov_b32 v{V_T+1}, s{72+2*k}")
            A(f"v_mov_b32 v{V_T}, {4*k}")
            A(f"buffer_store_dword v{V_T+1}, v{V_T}, {WSR}, s{S_T0} offen")
        A(f"s_mov_b64 exec, -1")
        A.wait(vm=0)
    S_MA = 16; S_MB = 18; S_MT = 20
    S_PUB = 22; S_MPZ = 23; S_KEEP = 24; S_B0 = 11; S_B1 = 25; S_B2 = 49; S_HC = 46
    A(f"s_mov_b32 s{S_STEP}, 0")
    A(f"s_mov_b32 s{S_PAR}, 0")
    A(f"s_mov_b32 s{S_VT}, {WS_VT - 32*8192}")
    A(f"s_and_b32 s{S_HC}, s{S_H}, 3")
    A(f"s_lshl_b32 s{S_HC}, s{S_HC}, 13")
    A(f"s_sub_u32 s{S_HC}, s{S_HC}, {L_MEMB}")
    A(f"s_mov_b32 s{S_B0}, {WS_MBUF}")
    A(f"s_mov_b32 s{S_B1}, {WS_MBUF + 32768}")
    A(f"s_mov_b32 s{S_B2}, {WS_MBUF + 65536}")
    A(f"s_mov_b32 s{S_VM}, {WS_KVM}")
    S_FLG = 53; S_FOFF = 52; S_POFF = 54; S_CHK = 55
    if 'merged' in opt:
        A(f"s_mov_b32 s{S_FOFF}, {F_KV}")
        A(f"s_lshl_b32 s{S_POFF}, s{S_H}, 7")
        A(f"s_add_u32 s{S_POFF}, s{S_POFF}, {F_PROG}")
    A(f"s_mov_b32 s{S_EX+1}, {WS_KVM + 64*32*4096}")
    A(f"s_mov_b32 s{S_R0}, {WS_PBUF}")
    A(f"s_mov_b32 s{S_R1}, {WS_PBUF + PSLOT}")
    A(f"s_mov_b32 s{S_R2}, {WS_PBUF + 2*PSLOT}")
    def zero(r, n): return [f"v_mov_b64 v[{r+i}:{r+i+1}], 0" for i in range(0, n, 2)]
    def step_scalars():
        o = []
        o.append(f"s_mov_b32 s{S_PLD}, s{S_R0}")
        o.append(f"s_mov_b32 s{S_POI}, s{S_R2}")
        o.append(f"s_lshl_b32 s{S_T1}, s{S_WV}, 16")
        o.append(f"s_add_u32 s{S_PST0}, s{S_PLD}, s{S_T1}")
        o.append(f"s_add_u32 s{S_PST1}, s{S_PST0}, 32768")
        o.append(f"s_add_u32 s{S_MSL}, s{S_B0}, s{S_HC}")
        o.append(f"s_add_u32 s{S_MPO}, s{S_MSL}, 1024")
        o.append(f"s_add_u32 s{S_VT}, s{S_VT}, {32*8192}")
        o.append(f"s_add_u32 s{S_KXA}, s{S_KXA}, {32*8192}")
        o.append(f"s_add_u32 s{S_KXB}, s{S_KXA}, 64")
        o.append(f"s_xor_b32 s{S_M0A}, s{S_M0A}, {L_KXB ^ (L_KXB + 8192)}")
        o.append(f"s_add_u32 s{S_M0B}, s{S_M0A}, 1024")
        o.append(f"v_add_u32 v0, s{S_PAR}, v{V_MEM}")
        return o
    for x in zero(V_AQ, 24): A(x)
    for x in step_scalars(): A(x)
    A(f"buffer_load_dwordx4 v[{V_S+4}:{V_S+7}], v{V_MW}, {WSR}, s{S_MSL} offen sc1")
    A(f"buffer_load_dwordx4 v[{V_S+8}:{V_S+11}], v{V_MW}, {WSR}, s{S_MPO} offen sc1")
    A(f"ds_write_b128 v{V_MW}, v[{V_S+4}:{V_S+7}]")
    A(f"ds_write_b128 v{V_MW}, v[{V_S+8}:{V_S+11}] offset:1024")
    A.wait(lg=0)
    A("s_barrier")
    def sbload(buf, X, f):
        base = V_WL0 if X < 2 else V_WL1
        r = V_SB + 8 * buf
        return [f"ds_read_b128 v[{r}:{r+3}], v{base} offset:{(X&1)*32768 + f*2048}",
                f"ds_read_b128 v[{r+4}:{r+7}], v{base} offset:{(X&1)*32768 + f*2048 + 1024}"]
    for s_ in sbload(0, 0, 0) + sbload(1, 0, 1): A(s_)
    if timing:
        for i in range(18): A(f"s_mov_b32 s{S_TACC+i}, 0")
    A.wait(lg=0)
    A.settle()
    A.forget()

    NST = 15
    def stamp(k):
        if timing: A.raw(f"    {'s_memrealtime' if ('abs' in opt and 'absm' not in opt) else 's_memtime'} s[{S_STAMP+2*k}:{S_STAMP+2*k+1}]")
    def stamp_acc():
        if timing and 'abs' in opt:
            A.raw("    s_waitcnt lgkmcnt(0)")
            lb = A.newlabel("L_abs")
            A(f"s_cmp_lg_u32 s{S_STEP}, 31")
            A(f"s_cbranch_scc1 {lb}")
            for k in range(NST):
                A(f"s_mov_b32 s{S_TACC+k}, s{S_STAMP+2*k}")
            A.label(lb)
            return
        if timing:
            A.raw("    s_waitcnt lgkmcnt(0)")
            A(f"s_sub_u32 s{S_T2}, s{S_STAMP}, s{S_TM}")
            A(f"s_add_u32 s{S_TACC}, s{S_TACC}, s{S_T2}")
            for k in range(1, NST):
                A(f"s_sub_u32 s{S_T2}, s{S_STAMP+2*k}, s{S_STAMP+2*(k-1)}")
                A(f"s_add_u32 s{S_TACC+k}, s{S_TACC+k}, s{S_T2}")
            A(f"s_mov_b32 s{S_TM}, s{S_STAMP+2*(NST-1)}")
    def M(ks): return vr(V_MK + 4 * ks, 4)
    def mload(ks, sc=""):
        return f"ds_read_b128 {M(ks)}, v{V_MEM} offset:{ks*1024}"
    def pack(acc, t, dst):
        return [f"v_pk_add_f32 v[{acc+4*t}:{acc+4*t+1}], v[{acc+4*t}:{acc+4*t+1}], v[{acc+4*t+2}:{acc+4*t+3}]",
                f"v_cvt_pk_bf16_f32 v{dst}, v{acc+4*t}, v{acc+4*t+1}"]

    if 'diag' in opt: dstamp(A, 6, True)
    pre_barrier = []
    sfx = ['']
    if 'rt' in opt:
        A.raw("    s_memtime s[56:57]")
        A.raw("    s_memrealtime s[58:59]")
        A.raw("    s_waitcnt lgkmcnt(0)")
        A("s_mov_b32 s64, 0"); A("s_mov_b32 s65, 0")
    if timing:
        A(f"s_memtime s[{S_TM}:{S_TM+1}]")
        A.wait(lg=0)
    A.label("L_step")
    if 'diag' in opt: dstamp(A, 16, True, S_STEP)
    if 'steps' in opt:
        A.raw("    s_memtime s[56:57]")
    stamp(0)
    morder = [6, 0, 1, 2, 7, 3, 4, 5]
    npre = 8
    for ks in morder: A(mload(ks))
    if 'merged' in opt:
        A(f"s_add_u32 s{S_T0}, s{S_STEP}, 2")
        A(f"s_and_b32 s{S_CHK}, s{S_T0}, 7")
        A(f"s_cmp_lg_u32 s{S_CHK}, 0")
        A(f"s_cbranch_scc1 L_noflag")
        A(f"buffer_load_dword v{V_S}, off, {WSR}, s{S_FOFF} sc1")
        A.vm.pop()
        A.label("L_noflag")
    if 'noload' not in opt and 'novt' not in opt and 'vtq' not in opt:
        A(f"buffer_load_dwordx4 v[{V_VX}:{V_VX+3}], v{V_VVT}, {WSR}, s{S_VT} offen sc1")
        A(f"buffer_load_dwordx4 v[{V_VX+4}:{V_VX+7}], v{V_VVT}, {WSR}, s{S_VT} offen offset:1024 sc1")
    kvst = f"buffer_store_dwordx4 v[{V_AV}:{V_AV+3}], v{V_VMS}, {WSR}, s{S_EX+1} offen" + ("" if 'nopub' in opt else " sc1")
    if 'kvq' not in opt: A(kvst)
    if 'merged' in opt:
        A(f"s_and_b32 s{S_T0}, s{S_STEP}, 3")
        A(f"s_or_b32 s{S_T0}, s{S_T0}, s{S_WV}")
        A(f"s_cmp_lg_u32 s{S_T0}, 0")
        A(f"s_cbranch_scc1 L_noprog")
        A(f"s_sub_u32 s{S_T0}, s{S_STEP}, 1")
        A(f"s_max_i32 s{S_T0}, s{S_T0}, 0")
        A(f"v_mov_b32 v{V_T+1}, s{S_T0}")
        A(f"s_mov_b64 exec, 1")
        A(f"buffer_store_dword v{V_T+1}, off, {WSR}, s{S_POFF} sc1")
        A(f"s_mov_b64 exec, -1")
        A.vm.pop()
        A.label("L_noprog")
    late_zero = zero(V_AV, 8)
    SL = [(0,0),(0,1),(1,0),(1,1),(0,2),(0,3),(1,2),(1,3),(2,0),(2,1),(2,2),(2,3)]
    RL = [(X, t, ks) for ks in range(6) for X in (0, 1) for t in (0, 1)]
    if 'qearly' in opt:
        RL = [(X, t, ks) for ks in range(4) for X in (0, 1) for t in (0, 1)] + [(0,0,4),(0,1,4),(0,0,5),(0,1,5),(1,0,4),(1,1,4),(1,0,5),(1,1,5)]
    ACC = {0: V_AQ, 1: V_AK, 2: V_AV}
    CHK = V_T + 1
    qk = []
    ri = 0
    for pos in range(32):
        if pos % 4 == 0:
            X, f = SL[pos // 4]; qk.append(('S', X, f & 1, 6 + (f >> 1), pos // 4))
        else:
            X, t, ks = RL[ri]; ri += 1; qk.append(('R', X, t, ks, None))
    def mf(e):
        kind, X, t, ks, si = e
        d = vr(ACC[X] + 4 * t, 4)
        bsrc = vr(V_SB + 8 * (si & 1), 8) if kind == 'S' else wreg(X, ks >> 1, (ks & 1) * 2 + t)
        return f"v_smfmac_f32_16x16x64_bf16 {d}, {M(ks)}, {bsrc}, v{V_IDX}"
    def qk_pass(loads):
        fill = {p: [] for p in range(32)}
        for p in range(0, 32, 4):
            si = p // 4
            fill[p] += sbload(si & 1, *SL[si + 2])
        first_use = {}
        for p, e in enumerate(qk):
            first_use.setdefault(e[3], p)
        if loads:
            rem = morder[npre:]
            for i, ks in enumerate(rem): fill[1 + 5 * i].append(mload(ks))
        for i, x in enumerate(late_zero): fill[9 + 4 * i].append(x)
        if 'vtq' in opt:
            fill[vtpos[0]] += [f"buffer_load_dwordx4 v[{V_VX}:{V_VX+3}], v{V_VVT}, {WSR}, s{S_VT} offen sc1"]
            fill[vtpos[1]] += [f"buffer_load_dwordx4 v[{V_VX+4}:{V_VX+7}], v{V_VVT}, {WSR}, s{S_VT} offen offset:1024 sc1"]
        if 'kvq' in opt:
            fill[kvpos] += [kvst]
            assert kvpos < 9
        if 'qearly' in opt:
            fill[29] += pack(V_AQ, 0, V_AQ + 2)[:1] + pack(V_AQ, 1, V_AQ + 6)[:1]
            fill[30] += pack(V_AQ, 0, V_AQ + 2)[1:] + pack(V_AQ, 1, V_AQ + 6)[1:]
            fill[31] += [f"ds_write2_b32 v{V_XW}, v{V_AQ+2}, v{V_AQ+6} offset0:0 offset1:128"]
        if 'noload' not in opt and 'nokx' not in opt:
            pa, pb = kxpos
            fill[pa - 1] += [f"s_mov_b32 m0, s{S_M0A}"]
            fill[pa] += [f"buffer_load_dwordx4 v{V_KXG}, {WSR}, s{S_KXA} offen sc1 lds"]
            fill[pb - 1] += [f"s_mov_b32 m0, s{S_M0B}"]
            fill[pb] += [f"buffer_load_dwordx4 v{V_KXG}, {WSR}, s{S_KXB} offen sc1 lds"]
        for p in range(32):
            A(mf(qk[p]))
            if p == 0 and loads: stamp(1)
            for x in fill[p]: A(x)
    qk_pass(True)
    A.label("L_v")
    stamp(2)
    seq = []
    seqR = [(0,0),(1,0),(0,1),(1,1),(0,2),(1,2),(0,3),(1,3),(0,4),(1,4),(0,5),(1,5)]
    ri = 0
    for pos in range(16):
        if pos % 4 == 0:
            f = pos // 4; seq.append(('S', 2, f & 1, 6 + (f >> 1), 8 + f))
        else:
            t, ks = seqR[ri]; ri += 1; seq.append(('R', 2, t, ks, None))
    fill = {p: [] for p in range(16)}
    fill[0] += sbload(0, *SL[10]); fill[4] += sbload(1, *SL[11])
    if 'qearly' in opt:
        fill[2] += pack(V_AK, 0, V_T)[:1] + pack(V_AK, 1, V_T + 1)[:1]
        fill[3] += pack(V_AK, 0, V_T)[1:] + pack(V_AK, 1, V_T + 1)[1:] + [f"ds_write2_b32 v{V_XW}, v{V_T}, v{V_T+1} offset0:1 offset1:129"]
    else:
        fill[1] += pack(V_AQ, 0, V_AQ + 2)[:1] + pack(V_AQ, 1, V_AQ + 6)[:1]
        fill[2] += pack(V_AQ, 0, V_AQ + 2)[1:] + pack(V_AQ, 1, V_AQ + 6)[1:] + [f"ds_write2_b32 v{V_XW}, v{V_AQ+2}, v{V_AQ+6} offset0:0 offset1:128"]
        fill[3] += pack(V_AK, 0, V_AK + 2)[:1] + pack(V_AK, 1, V_AK + 6)[:1]
        fill[4] += pack(V_AK, 0, V_AK + 2)[1:] + pack(V_AK, 1, V_AK + 6)[1:] + [f"ds_write2_b32 v{V_XW}, v{V_AK+2}, v{V_AK+6} offset0:1 offset1:129"]
        fill[5] += [f"v_mov_b32 v{V_T}, v{V_AK+2}", f"v_mov_b32 v{V_T+1}, v{V_AK+6}"]
    vb = vbar
    fill[vb] += ["@wait_writes", "s_barrier"]
    xf = []
    for ks in range(4):
        for hh in range(2):
            xf.append(f"ds_read_b64_tr_b16 v[{V_XF+4*ks+2*hh}:{V_XF+4*ks+2*hh+1}], v{V_XR if hh == 0 else V_KMS} offset:{ks*1024}")
    last = {}
    for p, e in enumerate(seq): last[e[3]] = p
    free_order = sorted(last, key=lambda k: last[k])
    kxr = {}
    kxr[(0, 0)] = vr(V_AQ, 4); kxr[(0, 1)] = vr(V_AQ + 4, 4); kxr[(0, 2)] = vr(V_AK, 4); kxr[(0, 3)] = vr(V_AK + 4, 4)
    for kk in range(4): kxr[(1, kk)] = M(free_order[kk])
    def kxload(T, kk): return f"ds_read_b128 {kxr[(T, kk)]}, v0 offset:{8192 + (T*4+kk)*1024}"
    fill[vb] += xf[0:2]; fill[vb+1] += xf[2:4]; fill[vb+2] += xf[4:6]; fill[vb+3] += xf[6:8]
    fill[11] += [kxload(0, 0), kxload(0, 1)]; fill[13] += [kxload(0, 2)]; fill[14] += [kxload(0, 3)]
    assert last[free_order[3]] <= 13
    if 'onesV' in opt:
        _on = V_MK + 4 * free_order[4]
        fill[12] += [f"v_mov_b32 v{_on}, 0x3f803f80", f"v_mov_b32 v{_on+1}, 0x3f803f80"]
        fill[15] += [f"v_mov_b32 v{_on+2}, 0x3f803f80", f"v_mov_b32 v{_on+3}, 0x3f803f80"]
    for p in range(16):
        A(mf(seq[p]))
        for x in fill[p]:
            if x == "s_barrier" and 'vdet' in opt: stamp(8)
            if x == "@wait_writes" and 'vdet' in opt: stamp(11)
            A(x)
            if x == "s_barrier" and 'vdet' in opt: stamp(9)
        if p == 11 and 'vdet' in opt: stamp(12)
    stamp(3)
    A.raw(f"    s_waitcnt vmcnt({(1 if 'noload' in opt else 3 if ('novt' in opt or 'nokx' in opt) else 5) + (1 if 'steps' in opt else 0)})")
    if 'merged' in opt:
        A(f"s_mov_b32 s{S_FLG}, 128")
        A(f"s_cmp_lg_u32 s{S_CHK}, 0")
        A(f"s_cbranch_scc1 L_norfl")
        A(f"v_readfirstlane_b32 s{S_FLG}, v{V_S}")
        A.label("L_norfl")
    S0, S1, S2 = V_S, V_S + 4, V_S + 8
    def tm(dst, a_, ks, first):
        cc = "0" if first else vr(dst, 4)
        return f"v_mfma_f32_16x16x32_bf16 {vr(dst,4)}, {a_}, {vr(V_XF+4*ks,4)}, {cc}"
    seqT = [(S0, None, k) for k in range(4)] + [(S1, 0, k) for k in range(4)] + [(S2, 1, k) for k in range(4)]
    fill = {p: [] for p in range(12)}
    ONr = V_MK + 4 * free_order[4]
    LD = V_MK + 4 * free_order[5]
    if 'kx2s' in opt:
        fill[0] += [kxload(1, 0)]; fill[1] += [kxload(1, 1)]; fill[2] += [kxload(1, 2)]; fill[3] += [kxload(1, 3)]
    else:
        fill[0] += [kxload(1, 0), kxload(1, 1)]; fill[1] += [kxload(1, 2), kxload(1, 3)]
    if 'onesV' not in opt:
        fill[7] += [f"v_mov_b32 v{ONr}, 0x3f803f80", f"v_mov_b32 v{ONr+1}, 0x3f803f80"]
        fill[8] += [f"v_mov_b32 v{ONr+2}, 0x3f803f80", f"v_mov_b32 v{ONr+3}, 0x3f803f80"]
    fill[2] += pack(V_AV, 0, V_AV + 2)[:1] + pack(V_AV, 1, V_AV + 6)[:1]
    fill[3] += pack(V_AV, 0, V_AV + 2)[1:] + pack(V_AV, 1, V_AV + 6)[1:]
    fill[4] += [f"v_mov_b32 v{V_AV+3}, 0", f"v_mov_b32 v{V_AV+7}, 0"]
    fill[5] += [f"v_min_u32 v{V_AV}, -2, v{V_T}", f"v_min_u32 v{V_AV+1}, -2, v{V_T+1}"]
    Tt = V_T + 1; Ls = V_T + 2; Mx = V_T + 3
    fill[9] += [f"v_max3_f32 v{Mx}, v{S0+2}, v{S0+3}, v{S1}"]
    fill[10] += [f"v_max3_f32 v{Mx}, v{Mx}, v{S1+1}, v{S1+2}"]
    fill[11] += [f"v_max_f32 v{Mx}, v{Mx}, v{S1+3}"]
    for p, (dst, T, kk) in enumerate(seqT):
        a_ = vr(V_XF + 4 * kk, 4) if T is None else kxr[(T, kk)]
        A(tm(dst, a_, kk, kk == 0))
        for x in fill[p]: A(x)
    stamp(4)
    A(f"s_cmp_eq_u32 s{S_STEP}, {nsteps-1}")
    A(f"s_cbranch_scc1 L_last")
    A(f"v_max3_f32 v{Mx}, v{Mx}, v{S2}, v{S2+1}")
    A(f"v_max3_f32 v{Tt}, v{Mx}, v{S2+2}, v{S2+3}")
    A(f"v_max3_f32 v{Mx}, v{Mx}, v{S2+2}, v{S2+3}")
    sbo = sbload(0, 3, 0) + sbload(1, 3, 1)
    A(sbo[0])
    A(f"v_permlane16_swap_b32 v{Mx}, v{Tt}")
    A(sbo[1])
    A(f"v_max_f32 v{Ls}, v{Mx}, v{Tt}")
    A(f"v_max_f32 v{Mx}, v{Mx}, v{Tt}")
    A(sbo[2])
    A(sbo[3])
    A(f"v_permlane32_swap_b32 v{Mx}, v{Ls}")
    A(f"v_max_f32 v{Mx}, v{Mx}, v{Ls}")
    A(f"v_mul_f32 v{Mx}, s{S_C}, v{Mx}")
    def pkf(r): return f"v_pk_fma_f32 v[{r}:{r+1}], v[{r}:{r+1}], s[{S_C}:{S_C+1}], v[{Mx-1}:{Mx}] op_sel:[0,0,1] op_sel_hi:[1,1,1] neg_lo:[0,0,1] neg_hi:[0,0,1]"
    for r in (S1, S1 + 2, S2, S2 + 2, S0 + 2): A(pkf(r))
    P12 = V_AQ; P0 = V_AQ + 4; OT = V_AK
    for r in range(S1, S1 + 4): A(f"v_exp_f32 v{r}, v{r}")
    A(f"v_exp_f32 v{S2}, v{S2}")
    A(f"v_exp_f32 v{S2+1}, v{S2+1}")
    A(f"v_cvt_pk_bf16_f32 v{P12}, v{S1}, v{S1+1}")
    A(f"v_exp_f32 v{S2+2}, v{S2+2}")
    A(f"v_cvt_pk_bf16_f32 v{P12+1}, v{S1+2}, v{S1+3}")
    A(f"v_exp_f32 v{S2+3}, v{S2+3}")
    A(f"v_cvt_pk_bf16_f32 v{P12+2}, v{S2}, v{S2+1}")
    A(f"v_exp_f32 v{S0+2}, v{S0+2}")
    A(f"v_cvt_pk_bf16_f32 v{P12+3}, v{S2+2}, v{S2+3}")
    A(f"v_exp_f32 v{S0+3}, v{S0+3}")
    A(f"v_mov_b32 v{P0+1}, 0")
    A(f"v_mfma_f32_16x16x32_bf16 {vr(LD,4)}, {vr(ONr,4)}, {vr(P12,4)}, 0")
    A(f"v_cvt_pk_bf16_f32 v{P0}, v{S0+2}, v{S0+3}")
    for t in range(2):
        A(f"v_mfma_f32_16x16x32_bf16 {vr(OT+4*t,4)}, {vr(V_VX+4*t,4)}, {vr(P12,4)}, 0")
    PO2 = V_S + 4
    for i in range(0, 4, 2): A(f"v_mov_b64 v[{PO2+i}:{PO2+i+1}], -1")
    A(f"v_mfma_f32_16x16x16_bf16 {vr(LD,4)}, {vr(ONr,2)}, {vr(P0,2)}, {vr(LD,4)}")
    for t in range(2):
        A(f"v_mfma_f32_16x16x16_bf16 {vr(OT+4*t,4)}, {vr(V_AV+4*t+2,2)}, {vr(P0,2)}, {vr(OT+4*t,4)}")
    A(f"v_min_u32 v{V_AV+3}, -2, v{V_AV+6}")
    A(f"v_min_u32 v{V_AV+2}, -2, v{V_AV+2}")
    A(f"v_rcp_f32 v{Ls}, v{LD}")
    for r in range(0, 8, 2):
        A(f"v_pk_mul_f32 v[{OT+r}:{OT+r+1}], v[{OT+r}:{OT+r+1}], v[{Ls}:{Ls+1}] op_sel_hi:[1,0]")
    for t in range(2):
        A(f"v_cvt_pk_bf16_f32 v{OT+4*t}, v{OT+4*t}, v{OT+4*t+1}")
        A(f"v_cvt_pk_bf16_f32 v{OT+4*t+1}, v{OT+4*t+2}, v{OT+4*t+3}")
        A(f"ds_write_b64 v{V_OW}, v[{OT+4*t}:{OT+4*t+1}] offset:{t*256}")
    A("@wait_writes")
    stamp(5)
    A("s_barrier")
    OF = V_VX
    A(f"ds_read_b128 {vr(OF,4)}, v{V_MEM} offset:{L_OB-L_MEMB}")
    A(f"ds_read_b128 {vr(OF+4,4)}, v{V_MEM} offset:{L_OB-L_MEMB+1024}")
    pst_ = [f"buffer_store_dwordx4 v[{PO2}:{PO2+3}], v{V_PL}, {WSR}, s{S_POI} offen",
            f"buffer_store_dwordx4 v[{PO2}:{PO2+3}], v{V_PL}, {WSR}, s{S_POI} offen offset:1024"]
    zz = zero(V_MK, 32)
    if 'zfirst' in opt:
        for x in zz + pst_: A(x)
    elif 'zmix' in opt:
        for x in zz[:8] + pst_[:1] + zz[8:] + pst_[1:]: A(x)
    else:
        for x in pst_ + zz: A(x)
    stamp(6)
    oseq = [('S',6,0,0),('R',0,0),('R',0,1),('R',1,0),('S',7,0,1),('R',1,1),('R',2,0),('R',2,1),
            ('S',6,1,2),('R',3,0),('R',3,1),('R',4,0),('S',7,1,3),('R',4,1),('R',5,0),('R',5,1)]
    PQ = V_AQ
    def ppack(tile):
        a0 = V_MK + 4 * tile
        return [f"v_pk_add_f32 v[{a0}:{a0+1}], v[{a0}:{a0+1}], v[{a0+2}:{a0+3}]",
                f"v_cvt_pk_bf16_f32 v{PQ+tile}, v{a0}, v{a0+1}"]
    fill = {p: [] for p in range(16)}
    fill[0] += sbload(0, 3, 2); fill[4] += sbload(1, 3, 3); fill[8] += sbload(0, 0, 0); fill[12] += sbload(1, 0, 1)
    CAR = V_S
    fill[1] += [f"ds_read_b128 {vr(CAR,4)}, v{V_MEM} offset:{L_CA-L_MEMB}"]
    if 'pearly' in opt:
        fill[5] += ppack(0); fill[8] += ppack(1); fill[10] += ppack(2); fill[12] += ppack(3)
        fill[13] += [f"buffer_store_dwordx4 v[{PQ}:{PQ+3}], v{V_PS}, {WSR}, s{S_PST0} offen"]
    elif 'plate' in opt:
        fill[6] += ppack(0); fill[9] += ppack(1); fill[11] += ppack(2); fill[14] += ppack(3)
        fill[15] += [f"buffer_store_dwordx4 v[{PQ}:{PQ+3}], v{V_PS}, {WSR}, s{S_PST0} offen"]
    else:
        fill[6] += ppack(0); fill[9] += ppack(1); fill[11] += ppack(2); fill[13] += ppack(3)
        fill[14] += [f"buffer_store_dwordx4 v[{PQ}:{PQ+3}], v{V_PS}, {WSR}, s{S_PST0} offen"]
    fill[15] += ppack(6)
    for p, e in enumerate(oseq):
        tile, ks = e[1], e[2]
        bsrc = vr(V_SB + 8 * (e[3] & 1), 8) if e[0] == 'S' else wreg(3, tile >> 1, ks * 2 + (tile & 1))
        A(f"v_smfmac_f32_16x16x64_bf16 {vr(V_MK+4*tile,4)}, {vr(OF+4*ks,4)}, {bsrc}, v{V_IDX}")
        for x in fill[p]: A(x)
    for tl in (7, 4, 5):
        for x in ppack(tl): A(x)
    A(f"buffer_store_dwordx4 v[{PQ+4}:{PQ+7}], v{V_PS}, {WSR}, s{S_PST1} offen")
    stamp(7)
    ta = V_T + 1; tb = V_T + 2
    def poll2(name, regs, loadfn, mid=None, cnt=None, st=None, gap=()):
        def check():
            A(f"v_max3_u32 v{ta}, v{regs}, v{regs+1}, v{regs+2}")
            A(f"v_max3_u32 v{tb}, v{regs+4}, v{regs+5}, v{regs+6}")
            A(f"v_max_u32 v{ta}, v{ta}, v{regs+3}")
            if mid: mid(0)
            A(f"v_max_u32 v{tb}, v{tb}, v{regs+7}")
            if mid: mid(1)
            A(f"v_cmp_eq_u32 s[{S_MA}:{S_MA+1}], -1, v{ta}")
            A(f"v_cmp_eq_u32 s[{S_MB}:{S_MB+1}], -1, v{tb}")
            A(f"s_or_b64 s[{S_MT}:{S_MT+1}], s[{S_MA}:{S_MA+1}], s[{S_MB}:{S_MB+1}]")
            A(f"s_cbranch_scc0 L_{name}ok")
        def round_():
            A(f"s_or_b32 s{S_MA}, s{S_MA}, 1")
            A(f"s_or_b32 s{S_MB}, s{S_MB}, 1")
            A.auto = False
            A(f"s_mov_b64 exec, s[{S_MA}:{S_MA+1}]")
            loadfn(0)
            A(f"s_mov_b64 exec, s[{S_MB}:{S_MB+1}]")
            loadfn(1)
            A(f"s_mov_b64 exec, -1")
            A.auto = True
        A(f"s_mov_b32 s{S_TO}, 0")
        if 'ack' in opt and 'ack2' not in opt:
            A(f"s_waitcnt vmcnt(0)")
            if st is not None: stamp(st)
            A.forget()
            check()
            round_()
        else:
            for x in gap: A(x)
            A.auto = False
            loadfn(0); loadfn(1)
            A.auto = True
            A(f"s_waitcnt vmcnt(2)")
            if st is not None: stamp(st)
            A.forget()
            check()
        A.label(f"L_{name}loop")
        round_()
        A(f"s_add_u32 s{S_TO}, s{S_TO}, 1")
        A(f"s_cmp_gt_u32 s{S_TO}, 0x40000")
        A(f"s_cbranch_scc1 L_bail")
        A(f"s_waitcnt vmcnt(2)")
        A.forget()
        check()
        A(f"s_branch L_{name}loop")
        A.label(f"L_{name}ok")
        A.forget()
        if cnt: cnt()
    PB = V_AK; RD = V_VX
    A(f"s_mov_b32 s{S_KEEP}, s{S_PLD}")
    A(f"s_mov_b32 s{S_EX}, s{S_POI}")
    A(f"s_mov_b32 s{S_EX+1}, s{S_VM}")
    A(f"s_mov_b32 s{S_PUB}, s{S_B1}")
    A(f"s_mov_b32 s{S_MPZ}, s{S_B2}")
    A(f"s_mov_b32 s{S_B2}, s{S_B0}")
    A(f"s_mov_b32 s{S_B0}, s{S_PUB}")
    A(f"s_mov_b32 s{S_B1}, s{S_MPZ}")
    A(f"s_xor_b32 s{S_PAR}, s{S_PAR}, 8192")
    A(f"s_add_u32 s{S_STEP}, s{S_STEP}, 1")
    A(f"s_add_u32 s{S_VM}, s{S_VM}, {32*4096}")
    A(f"s_mov_b32 s{S_T0}, s{S_R0}")
    A(f"s_mov_b32 s{S_R0}, s{S_R1}")
    A(f"s_mov_b32 s{S_R1}, s{S_R2}")
    A(f"s_mov_b32 s{S_R2}, s{S_T0}")
    def kvcheck():
        if 'merged' in opt:
            A(f"s_cmp_ge_u32 s{S_FLG}, 128")
            A(f"s_cbranch_scc0 L_kvslow")
            A.label("L_kvok")
            A(f"s_add_u32 s{S_T0}, s{S_STEP}, 2")
            A(f"s_lshr_b32 s{S_T0}, s{S_T0}, 3")
            A(f"s_min_u32 s{S_T0}, s{S_T0}, 7")
            A(f"s_lshl_b32 s{S_T0}, s{S_T0}, 7")
            A(f"s_add_u32 s{S_FOFF}, s{S_T0}, {F_KV}")
    if 'asplit' in opt:
        kvcheck()
        tail_work = step_scalars() + zero(V_AQ, 8)
        k = asplit
        for x in tail_work[:len(tail_work) - k]: A(x)
        A.raw("    s_waitcnt vmcnt(1)")
        for x in tail_work[len(tail_work) - k:]: A(x)
    else:
        for x in step_scalars(): A(x)
        kvcheck()
        for x in zero(V_AQ, 8): A(x)
        for x in extra_delay: A(x)
        if 'ack' in opt: A.raw(f"    s_waitcnt vmcnt({1 if 'a1' in opt else 0})")
    def h1load(q):
        A(f"buffer_load_dwordx4 v[{PB+4*q}:{PB+4*q+3}], v{V_PL}, {WSR}, s{S_KEEP} offen offset:{1024*q} sc1")
    if 'vdet' not in opt: stamp(8)
    h1load(0); h1load(1)
    def h1mid(i):
        if i == 0: A(f"v_mfma_f32_16x16x32_bf16 {vr(RD,4)}, {vr(CAR,4)}, {vr(PB,4)}, 0")
        else: A(f"v_mfma_f32_16x16x32_bf16 {vr(RD,4)}, {vr(CAR,4)}, {vr(PB+4,4)}, {vr(RD,4)}")
    poll2("h1", PB, h1load, mid=h1mid, st=(None if "vdet" in opt else 9), gap=["s_nop 0"] * g1)
    A("s_nop 2")
    if timing: A(f"s_add_u32 s{S_TACC+16}, s{S_TACC+16}, s{S_TO}")
    if 'rt' in opt: A(f"s_add_u32 s64, s64, s{S_TO}")
    stamp(10)
    for ror in (4, 8):
        for r in range(4):
            A(f"v_add_f32_dpp v{RD+r}, v{RD+r}, v{RD+r} row_ror:{ror} row_mask:0xf bank_mask:0xf")
    A(f"v_cvt_pk_bf16_f32 v{RD}, v{RD}, v{RD+1}")
    A(f"v_cvt_pk_bf16_f32 v{RD+1}, v{RD+2}, v{RD+3}")
    A(f"v_min_u32 v{RD}, -2, v{RD}")
    A(f"v_min_u32 v{RD+1}, -2, v{RD+1}")
    A(f"s_mov_b64 exec, 0xffffffff")
    A(f"buffer_store_dwordx2 v[{RD}:{RD+1}], v{V_MS}, {WSR}, s{S_PUB} offen")
    A(f"v_mov_b64 v[{RD+2}:{RD+3}], -1")
    A(f"buffer_store_dwordx2 v[{RD+2}:{RD+3}], v{V_MS}, {WSR}, s{S_MPZ} offen")
    A(f"s_mov_b64 exec, -1")
    for x in extra_delay2: A(x)
    if 'ack' in opt: A.raw(f"    s_waitcnt vmcnt({1 if 'a2' in opt else 0})")
    def stage_mem():
        ML = V_S + 4
        def h2load(q):
            so = S_MSL if q == 0 else S_MPO
            A(f"buffer_load_dwordx4 v[{ML+4*q}:{ML+4*q+3}], v{V_MW}, {WSR}, s{so} offen sc1")
        if 'vdet' not in opt: stamp(11)
        h2load(0); h2load(1)
        poll2("h2", ML, h2load, st=(None if "vdet" in opt else 12), gap=["s_nop 0"] * g2)
        if timing: A(f"s_add_u32 s{S_TACC+17}, s{S_TACC+17}, s{S_TO}")
        if 'rt' in opt: A(f"s_add_u32 s65, s65, s{S_TO}")
        stamp(13)
        A(f"ds_write_b128 v{V_MW}, v[{ML}:{ML+3}]")
        A(f"ds_write_b128 v{V_MW}, v[{ML+4}:{ML+7}] offset:1024")
    stage_mem()
    for x in zero(V_AK, 8): A(x)
    A("@wait_writes")
    if 'steps' in opt:
        A(f"s_lshl_b32 s58, s{S_H}, 2")
        A(f"s_add_u32 s58, s58, s{S_WV}")
        A(f"s_lshl_b32 s58, s58, 6")
        A(f"s_add_u32 s58, s58, s{S_STEP}")
        A(f"s_lshl_b32 s58, s58, 2")
        A(f"s_add_u32 s58, s58, {WS_TIME - 4}")
        A(f"v_mov_b32 v{V_T}, s56")
        A(f"v_mov_b32 v{V_T+1}, 0")
        A(f"s_mov_b64 exec, 1")
        A(f"buffer_store_dword v{V_T}, v{V_T+1}, {WSR}, s58 offen")
        A(f"s_mov_b64 exec, -1")
    stamp(14)
    stamp_acc()
    A("s_barrier")
    A.settle()
    A.forget()
    A("s_branch L_step")
    if 'merged' in opt:
        A.label("L_kvslow")
        A(f"s_mov_b32 s{S_TO}, 0")
        A.label("L_kvslow2")
        A(f"buffer_load_dword v{V_T+1}, off, {WSR}, s{S_FOFF} sc1")
        A(f"s_add_u32 s{S_TO}, s{S_TO}, 1")
        A(f"s_cmp_gt_u32 s{S_TO}, 0x100000")
        A(f"s_cbranch_scc1 L_bail")
        A("s_waitcnt vmcnt(0)")
        A(f"v_cmp_gt_u32 vcc, 128, v{V_T+1}")
        A(f"s_cbranch_vccnz L_kvslow2")
        A.forget()
        A("s_branch L_kvok")
    A.label("L_last")
    if 'diag' in opt: dstamp(A, 7, True)
    A.settle()
    A(f"v_min_u32 v{V_AV+3}, -2, v{V_AV+6}")
    A(f"v_min_u32 v{V_AV+2}, -2, v{V_AV+2}")
    A(f"buffer_store_dwordx4 v[{V_AV}:{V_AV+3}], v{V_VMS}, {WSR}, s{S_VM} offen sc1")
    if 'rt' in opt:
        A.raw("    s_memtime s[60:61]")
        A.raw("    s_memrealtime s[62:63]")
        A.raw("    s_waitcnt lgkmcnt(0)")
        A(f"s_sub_u32 s56, s60, s56")
        A(f"s_sub_u32 s58, s62, s58")
        A(f"s_lshl_b32 s{S_T0}, s{S_H}, 2")
        A(f"s_add_u32 s{S_T0}, s{S_T0}, s{S_WV}")
        A(f"s_lshl_b32 s{S_T0}, s{S_T0}, 7")
        A(f"s_add_u32 s{S_T0}, s{S_T0}, {WS_TIME}")
        A(f"s_mov_b64 exec, 1")
        for k, r in enumerate((56, 58, 64, 65)):
            A(f"v_mov_b32 v{V_MK+1}, s{r}")
            A(f"v_mov_b32 v{V_MK}, {4*k}")
            A(f"buffer_store_dword v{V_MK+1}, v{V_MK}, {WSR}, s{S_T0} offen")
        A(f"s_mov_b64 exec, -1")
    A.wait(vm=0)
    if 'merged' in opt:
        A("s_barrier")
        A(f"s_cmp_lg_u32 s{S_WV}, 0")
        A(f"s_cbranch_scc1 L_end")
        A(f"v_mov_b32 v{V_T+1}, 64")
        A(f"s_mov_b64 exec, 1")
        A(f"buffer_store_dword v{V_T+1}, off, {WSR}, s{S_POFF} sc1")
        A.wait(vm=0)
    if timing:
        A(f"s_lshl_b32 s{S_T0}, s{S_H}, 2")
        A(f"s_add_u32 s{S_T0}, s{S_T0}, s{S_WV}")
        A(f"s_lshl_b32 s{S_T0}, s{S_T0}, 7")
        A(f"s_add_u32 s{S_T0}, s{S_T0}, {WS_TIME}")
        A(f"s_mov_b64 exec, 1")
        for k in range(18):
            A(f"v_mov_b32 v{V_T+1}, s{S_TACC+k}")
            A(f"v_mov_b32 v{V_T}, {4*k}")
            A(f"buffer_store_dword v{V_T+1}, v{V_T}, {WSR}, s{S_T0} offen")
        A.wait(vm=0)
    A("s_branch L_end")
    A.label("L_bail")
    A(f"s_mov_b64 exec, 1")
    A(f"v_mov_b32 v{V_T}, 60")
    A(f"v_mov_b32 v{V_T+1}, 0xdead")
    A(f"buffer_store_dword v{V_T+1}, v{V_T}, s[{S_DBG}:{S_DBG+3}], 0 offen")
    A.wait(vm=0)
    A.label("L_end")
```

```python
import sys
from asmlib import *
from layout import *
import chain
from chain import *

def header(name, grid=256, lds=163840):
    return f"""; @launch kernel={name} grid=({grid},1,1) block=(256,1,1) lds={lds}
.amdgcn_target "amdgcn-amd-amdhsa--gfx950"
.text
.globl {name}
.p2align 8
.type {name},@function
{name}:
"""
def footer(name):
    return f"""    s_endpgm
.section .rodata,"a"
.p2align 6
.amdhsa_kernel {name}
  .amdhsa_next_free_vgpr 512
  .amdhsa_next_free_sgpr 102
  .amdhsa_accum_offset 256
  .amdhsa_group_segment_fixed_size 0
  .amdhsa_kernarg_size 120
  .amdhsa_user_sgpr_count 2
  .amdhsa_user_sgpr_kernarg_segment_ptr 1
  .amdhsa_system_sgpr_workgroup_id_x 1
.end_amdhsa_kernel
"""

def entry(A):
    A.raw("    s_memrealtime s[72:73]")
    A("s_cmp_ge_u32 s2, 256")
    A("s_cbranch_scc1 L_end")
    A(f"s_load_dwordx2 s[{S_PW}:{S_PW+1}], s[0:1], {KA_WQ}")
    A(f"s_load_dwordx2 s[{S_PW+2}:{S_PW+3}], s[0:1], {KA_WK}")
    A(f"s_load_dwordx2 s[{S_PW+4}:{S_PW+5}], s[0:1], {KA_WV}")
    A(f"s_load_dwordx2 s[{S_PW+6}:{S_PW+7}], s[0:1], {KA_WO}")
    A(f"s_load_dwordx2 s[{S_PW+8}:{S_PW+9}], s[0:1], {KA_MEM0}")
    A(f"s_load_dwordx2 s[52:53], s[0:1], {KA_DBG}")
    A(f"s_load_dwordx2 s[54:55], s[0:1], {KA_WS}")
    A(f"s_getreg_b32 s{S_T2}, hwreg(HW_REG_XCC_ID)")
    A(f"v_lshrrev_b32 v1, 6, v0")
    A(f"v_readfirstlane_b32 s{S_WV}, v1")
    A.wait(lg=0)
    srd(A, S_WS, 54, WS_SIZE)
    srd(A, S_DBG, 52, 256)
    A(f"s_and_b32 s{S_T2}, s{S_T2}, 15")
    A(f"s_cmp_lg_u32 s{S_T2}, 0")
    A("s_cbranch_scc1 L_end")
    A(f"s_cmp_lg_u32 s{S_WV}, 0")
    A("s_cbranch_scc1 L_tk_skip")
    A("v_mov_b32 v1, 0")
    A("v_mov_b32 v2, 1")
    A("s_mov_b64 exec, 1")
    A(f"buffer_atomic_add v2, v1, s[{S_DBG}:{S_DBG+3}], 0 offen sc0")
    A.wait(vm=0)
    A(f"v_mov_b32 v1, {L_X}")
    A("ds_write_b32 v1, v2")
    A.wait(lg=0)
    A("s_mov_b64 exec, -1")
    A.label("L_tk_skip")
    A("s_barrier")
    A(f"v_mov_b32 v1, {L_X}")
    A("ds_read_b32 v2, v1")
    A.wait(lg=0)
    A(f"v_readfirstlane_b32 s{S_H}, v2")
    A("s_barrier")
    A(f"s_cmp_ge_u32 s{S_H}, 32")
    A("s_cbranch_scc1 L_end")

if __name__ == "__main__":
    timing = 'timing' in sys.argv[2:]
    A = Asm()
    entry(A)
    d1 = d2 = 0; ns = 64; g1 = g2 = 12; t0_ = 7; ta_ = 3; asp = 17; vb = 7; kp = (14, 22); vtp = (6, 11); kvp = 2; pop = (3, 8)
    for a in sys.argv[2:]:
        if a.startswith('d1='): d1 = int(a[3:])
        if a.startswith('d2='): d2 = int(a[3:])
        if a.startswith('nsteps='): ns = int(a[7:])
        if a.startswith('g1='): g1 = int(a[3:])
        if a.startswith('g2='): g2 = int(a[3:])
        if a.startswith('asp='): asp = int(a[4:])
        if a.startswith('vbar='): vb = int(a[5:])
        if a.startswith('vtp='): vtp = tuple(int(x) for x in a[4:].split(','))
        if a.startswith('kvp='): kvp = int(a[4:])
        if a.startswith('poip='): pop = tuple(int(x) for x in a[5:].split(','))
        if a.startswith('kx='): kp = tuple(int(x) for x in a[3:].split(','))
        if a.startswith('touch0='): t0_ = int(a[7:])
        if a.startswith('tahead='): ta_ = int(a[7:])
    emit_chain(A, timing=timing, opt=tuple(sys.argv[2:]), d1=d1, d2=d2, nsteps=ns, g1=g1, g2=g2, asplit=asp, vbar=vb, kxpos=kp, vtpos=vtp, kvpos=kvp, poipos=pop)
    open(sys.argv[1], 'w').write(header("chain_kernel") + A.text() + footer("chain_kernel"))
    print("instructions:", A.count)
```

```python
from asmlib import *
from layout import *
import math, struct

L_WL   = 0
L_MEMB = 131072
L_KXB  = L_MEMB + 8192
L_X    = L_MEMB + 24576
L_OB   = L_X + 4096
L_CA   = L_OB + 2048
L_DUM  = L_CA + 1024
LDS_TOTAL = 163840
PSLOT = 262144

S_WS = 4; S_W = 8; S_DBG = 12
S_PW = 16
S_H = 26; S_WV = 27; S_STEP = 28; S_T0 = 29; S_T1 = 30; S_T2 = 31
S_C = 32
S_PAR = 34
S_PST0 = 35; S_PST1 = 36; S_PLD = 37; S_POI = 38; S_MSL = 39; S_MPO = 40
S_KXA = 41; S_KXB = 42; S_M0A = 43; S_M0B = 44; S_VT = 45; S_KM = 46; S_VM = 47
S_TO = 48
S_R0 = 8; S_R1 = 9; S_R2 = 10
S_EX = 50
S_TM = 52
S_TACC = 54
S_STAMP = 72

V_IDX, V_WL0, V_WL1, V_MEM, V_XW, V_XR, V_OW, V_PS, V_PL, V_MS, V_MW, V_KXG, V_VVT, V_KMS, V_VMS = range(1, 16)
V_T = 16
V_MK = 20
V_SB = 52
V_AQ = 68; V_AK = 76; V_AV = 84
V_XF = 92
V_S = 108
V_VX = 120

def wreg(X, c, f):
    idx = X * 12 + c * 4 + f
    return ar(8 * idx, 8) if idx < 32 else vr(128 + 8 * (idx - 32), 8)
def wreg_part(X, c, f, p):
    idx = X * 12 + c * 4 + f
    return ar(8 * idx + 2 * p, 2) if idx < 32 else vr(128 + 8 * (idx - 32) + 2 * p, 2)

def srd(A, s, ptr, size):
    A(f"s_mov_b32 s{s}, s{ptr}")
    A(f"s_and_b32 s{s+1}, s{ptr+1}, 0xffff")
    A(f"s_mov_b32 s{s+2}, {size}")
    A(f"s_mov_b32 s{s+3}, 0x20000")

WSR = f"s[{S_WS}:{S_WS+3}]"

def poll_with_shadow(A, poll, name, regs, loadfn, pre_ok, shadow):
    orig = A.wait
    state = {'done': False}
    def w(vm=None, lg=None):
        if not state['done']:
            state['done'] = True
            shadow()
        orig(vm, lg)
    A.wait = w
    try:
        poll(name, regs, loadfn, pre_ok)
    finally:
        A.wait = orig

def emit_chain(A, timing=False, nsteps=64, opt=(), d1=0, d2=0, hodelay=8, kxpos=(14, 22), g1=12, g2=12, dstamp=None, asplit=17, vbar=7, vtpos=(6, 11), kvpos=2, poipos=(3, 8)):
    extra_delay = ["s_nop 0"] * d1
    extra_delay2 = ["s_nop 0"] * d2
    lane = 17; t0 = 18; t1 = 19
    def pst(k):
        if 'pro' in opt: A.raw(f"    s_memrealtime s[{72+2*k}:{73+2*k}]")
    pst(1)
    A(f"v_and_b32 v{lane}, 63, v0")
    DQ = V_MK
    DO = V_MK + 2
    TRA = V_MK + 6
    TRO = V_MK + 8
    TMP = V_SB
    a = V_MK + 12; b = V_MK + 13; c_ = V_MK + 14; d_ = V_MK + 15
    A(f"v_lshrrev_b32 v{a}, 4, v{lane}")
    A(f"v_bfe_u32 v{b}, v{lane}, 1, 3")
    A(f"v_xor_b32 v{c_}, v{b}, v{a}")
    A(f"v_and_b32 v{d_}, 1, v{lane}")
    A(f"v_lshl_or_b32 v{c_}, v{c_}, 1, v{d_}")
    A(f"v_lshlrev_b32 v{c_}, 4, v{c_}")
    A(f"v_lshl_or_b32 v{DQ}, v{a}, 13, v{c_}")
    A(f"v_xor_b32 v{DQ+1}, 128, v{DQ}")
    A(f"v_and_b32 v{c_}, 1, v{a}")
    A(f"v_xor_b32 v{c_}, v{b}, v{c_}")
    A(f"v_lshl_or_b32 v{c_}, v{c_}, 1, v{d_}")
    A(f"v_lshrrev_b32 v{b}, 2, v{c_}")
    A(f"v_lshlrev_b32 v{b}, 8, v{b}")
    A(f"v_and_b32 v{c_}, 3, v{c_}")
    A(f"v_lshl_or_b32 v{b}, v{c_}, 5, v{b}")
    A(f"v_lshl_or_b32 v{DO}, v{a}, 10, v{b}")
    A(f"v_xor_b32 v{DO+1}, 256, v{DO}")
    A(f"v_xor_b32 v{DO+2}, 512, v{DO}")
    A(f"v_xor_b32 v{DO+3}, 768, v{DO}")
    A(f"v_bfe_u32 v{b}, v{lane}, 4, 1")
    A(f"v_bfe_u32 v{c_}, v{lane}, 3, 1")
    A(f"v_lshl_or_b32 v{b}, v{c_}, 1, v{b}")
    A(f"v_bfe_u32 v{c_}, v{lane}, 2, 1")
    A(f"v_lshl_or_b32 v{b}, v{c_}, 2, v{b}")
    A(f"v_bfe_u32 v{c_}, v{lane}, 5, 1")
    A(f"v_lshl_or_b32 v{c_}, v{c_}, 4, v{b}")
    A(f"v_lshlrev_b32 v{c_}, 8, v{c_}")
    A(f"v_and_b32 v{d_}, 3, v{lane}")
    A(f"v_lshl_or_b32 v{c_}, v{d_}, 3, v{c_}")
    A(f"s_lshl_b32 s{S_T0}, s{S_WV}, 1")
    A(f"v_xor_b32 v{b}, s{S_T0}, v{b}")
    A(f"v_lshl_or_b32 v{TRA}, v{b}, 5, v{c_}")
    A(f"v_xor_b32 v{TRA+1}, 32, v{TRA}")
    A(f"v_bfe_u32 v{b}, v{lane}, 5, 1")
    A(f"v_lshlrev_b32 v{b}, 4, v{b}")
    A(f"v_bfe_u32 v{c_}, v{lane}, 4, 1")
    A(f"v_lshl_or_b32 v{b}, v{c_}, 2, v{b}")
    A(f"v_lshlrev_b32 v{t0}, 1, v{c_}")
    A(f"v_bfe_u32 v{c_}, v{lane}, 2, 1")
    A(f"v_or_b32 v{b}, v{b}, v{c_}")
    A(f"v_or_b32 v{t0}, v{t0}, v{c_}")
    A(f"v_bfe_u32 v{c_}, v{lane}, 3, 1")
    A(f"v_lshl_or_b32 v{b}, v{c_}, 3, v{b}")
    A(f"v_lshl_or_b32 v{t0}, v{c_}, 2, v{t0}")
    A(f"v_lshlrev_b32 v{b}, 8, v{b}")
    A(f"v_and_b32 v{c_}, 1, v{lane}")
    A(f"v_lshl_or_b32 v{b}, v{c_}, 4, v{b}")
    A(f"v_bfe_u32 v{c_}, v{lane}, 1, 1")
    A(f"v_or_b32 v{c_}, s{S_T0}, v{c_}")
    A(f"v_xor_b32 v{c_}, v{c_}, v{t0}")
    A(f"v_lshl_or_b32 v{TRO}, v{c_}, 5, v{b}")
    A(f"v_add_u32 v{TRO+1}, 8, v{TRO}")

    A(f"v_bfe_u32 v{t0}, v{lane}, 1, 1")
    A(f"v_lshlrev_b32 v{t0}, 1, v{t0}")
    A(f"v_lshrrev_b32 v{t1}, 4, v{lane}")
    A(f"v_add_u32 v{t0}, v{t0}, v{t1}")
    A(f"v_lshlrev_b32 v{t0}, 4, v{t0}")
    A(f"v_and_b32 v{t1}, 1, v{lane}")
    A(f"v_lshl_or_b32 v{t0}, v{t1}, 3, v{t0}")
    A(f"s_lshl_b32 s{S_T0}, s{S_H}, 8")
    A(f"s_lshl_b32 s{S_T1}, s{S_WV}, 6")
    A(f"s_add_u32 s{S_T0}, s{S_T0}, s{S_T1}")
    A(f"v_bfe_u32 v{t1}, v{lane}, 2, 2")
    A(f"v_lshl_or_b32 v{t0}, v{t1}, 13, v{t0}")
    A(f"v_add_u32 v{V_MS}, s{S_T0}, v{t0}")
    srd(A, S_W, S_PW + 8, 8192)
    A(f"v_lshrrev_b32 v{t0}, 4, v{lane}")
    A(f"v_and_b32 v{t0}, 1, v{t0}")
    A(f"v_lshlrev_b32 v{t0}, 10, v{t0}")
    A(f"v_and_b32 v{t1}, 3, v{lane}")
    A(f"v_lshl_or_b32 v{t0}, v{t1}, 1, v{t0}")
    A(f"s_lshl_b32 s{S_T0}, s{S_WV}, 11")
    A(f"s_lshl_b32 s{S_T1}, s{S_H}, 5")
    A(f"s_add_u32 s{S_T0}, s{S_T0}, s{S_T1}")
    M0R = V_S + 4
    MT = V_S
    for j in range(4):
        A(f"buffer_load_ushort v{MT+j}, v{t0}, s[{S_W}:{S_W+3}], s{S_T0} offen offset:{8*j}")
    P = V_XF
    for i in range(4): A(f"v_mov_b32 v{P+i}, -1")
    A(f"v_lshlrev_b32 v{t0}, 4, v0")
    A(f"s_lshl_b32 s{S_T0}, s{S_H}, 13")
    A(f"s_add_u32 s{S_T0}, s{S_T0}, {WS_PBUF}")
    for slot in range(3):
        for i in range(2):
            A(f"s_add_u32 s{S_T1}, s{S_T0}, {slot*PSLOT + i*4096}")
            A(f"buffer_store_dwordx4 v[{P}:{P+3}], v{t0}, {WSR}, s{S_T1} offen")
    A(f"v_cmp_gt_u32 vcc, 16, v0")
    A(f"s_and_saveexec_b64 s[{S_EX}:{S_EX+1}], vcc")
    A(f"s_cbranch_execz L_nomp")
    A(f"s_lshl_b32 s{S_T0}, s{S_H}, 8")
    A(f"s_add_u32 s{S_T0}, s{S_T0}, {WS_MBUF}")
    for sl in (1, 2):
        for cp in range(4):
            A(f"s_add_u32 s{S_T1}, s{S_T0}, {sl*32768 + cp*8192}")
            A(f"buffer_store_dwordx4 v[{P}:{P+3}], v{t0}, {WSR}, s{S_T1} offen")
    A.label("L_nomp")
    A(f"s_mov_b64 exec, s[{S_EX}:{S_EX+1}]")
    A.vm = []

    S_WR = 61
    if 'rot1' in opt:
        A(f"s_add_u32 s{S_WR}, s{S_WV}, s{S_H}")
        A(f"s_and_b32 s{S_WR}, s{S_WR}, 3")
    elif 'rot2' in opt:
        A(f"s_lshr_b32 s{S_WR}, s{S_H}, 2")
        A(f"s_add_u32 s{S_WR}, s{S_WR}, s{S_WV}")
        A(f"s_and_b32 s{S_WR}, s{S_WR}, 3")
    else:
        A(f"s_mov_b32 s{S_WR}, s{S_WV}")
    order = [(X, c) for X in range(4) for c in range(3)] + [(X, 3) for X in range(4)]
    slot_of = {}
    for i, (X, c) in enumerate(order[:12]): slot_of[(X, c)] = i % 5
    for X in range(4): slot_of[(X, 3)] = X
    def issue(X, c):
        srd(A, S_W, S_PW + 2 * X, 4194304)
        slot = slot_of[(X, c)]
        if X < 3:
            A(f"s_lshl_b32 s{S_T0}, s{S_WR}, 18")
            A(f"s_lshl_b32 s{S_T1}, s{S_H}, 8")
            A(f"s_add_u32 s{S_T0}, s{S_T0}, s{S_T1}")
            A(f"s_add_u32 s{S_T0}, s{S_T0}, {128*c*8192}")
            step = 4 * 8192
        else:
            A(f"s_lshl_b32 s{S_T0}, s{S_WR}, 15")
            A(f"s_lshl_b32 s{S_T1}, s{S_H}, 17")
            A(f"s_add_u32 s{S_T0}, s{S_T0}, s{S_T1}")
            A(f"s_add_u32 s{S_T0}, s{S_T0}, {(c >> 1) * 128 + (c & 1) * 16}")
            step = 4 * 1024
        A(f"s_lshl_b32 s{S_T1}, s{S_WR}, 13")
        A(f"s_add_u32 s{S_T1}, s{S_T1}, {slot*32768}")
        for i in range(8):
            D = DQ + (i & 1) if X < 3 else DO + (i & 3)
            A(f"s_mov_b32 m0, s{S_T1}")
            A(f"buffer_load_dwordx4 v{D}, s[{S_W}:{S_W+3}], s{S_T0} offen lds")
            if i < 7:
                A(f"s_add_u32 s{S_T0}, s{S_T0}, {step}")
                A(f"s_add_u32 s{S_T1}, s{S_T1}, 1024")
    pst(2)
    if 'diag' in opt:
        dstamp(A, 14, True)
    if 'diag' in opt and 'nostep' not in opt:
        A.raw("    s_getreg_b32 s98, hwreg(HW_REG_HW_ID)")
        A(f"s_lshl_b32 s98, s98, 8"); A(f"s_or_b32 s98, s98, s{S_H}")
        lb = A.newlabel("L_dh")
        A(f"s_cmp_lg_u32 s27, 0"); A(f"s_cbranch_scc1 {lb}")
        A(f"s_lshl_b32 s100, s2, 9"); A(f"s_add_u32 s100, s100, {WS_TIME + 4*15}")
        A("v_mov_b32 v30, s98"); A("s_mov_b64 exec, 1"); A("buffer_store_dword v30, off, s[4:7], s100"); A("s_mov_b64 exec, -1"); A.vm.pop(); A.label(lb)
    A(f"s_lshl_b32 s{S_T0}, s{S_WV}, 13")
    A(f"v_lshlrev_b32 v{t0}, 4, v{lane}")
    A(f"v_add_u32 v{V_WL0}, s{S_T0}, v{t0}")
    A(f"v_add_u32 v{V_WL1}, 0x10000, v{V_WL0}")
    issued = []
    for k in range(5):
        issue(*order[k]); issued.append(order[k])
    if 'nopf' not in opt:
        A.raw("    s_getpc_b64 s[56:57]")
        A.raw("L_pc0:")
        A.raw("    s_add_u32 s56, s56, L_step-L_pc0")
        A.raw("    s_addc_u32 s57, s57, 0")
        A(f"v_lshlrev_b32 v{V_AQ}, 4, v{lane}")
        A(f"s_lshl_b32 s{S_T0}, s{S_WV}, 11")
        A(f"v_add_u32 v{V_AQ}, s{S_T0}, v{V_AQ}")
        A(f"global_load_dwordx4 v[{V_AK}:{V_AK+3}], v{V_AQ}, s[56:57]")
        A(f"global_load_dwordx4 v[{V_AK+4}:{V_AK+7}], v{V_AQ}, s[56:57] offset:1024")
    A.raw(f"    s_waitcnt vmcnt({40 if 'nopf' in opt else 42})")
    _sv = A.vm; A.vm = []
    A(f"v_lshl_or_b32 v{M0R}, v{MT+1}, 16, v{MT}")
    A(f"v_lshl_or_b32 v{M0R+1}, v{MT+3}, 16, v{MT+2}")
    A(f"s_mov_b32 s{S_T0}, {WS_MBUF}")
    A(f"s_mov_b64 exec, 0xffffffff")
    A(f"buffer_store_dwordx2 v[{M0R}:{M0R+1}], v{V_MS}, {WSR}, s{S_T0} offen")
    A(f"s_mov_b64 exec, -1")
    A.vm = _sv
    follow = {0: order[5], 1: order[6], 2: order[7], 3: order[8], 4: order[9], 5: order[10], 6: order[11],
              7: (2, 3), 8: (3, 3), 10: (0, 3), 11: (1, 3)}
    def trreads(X, slot, f, dst_fn):
        t = f & 1; ksp = f >> 1
        base = slot * 32768
        TR = TRA if X < 3 else TRO
        breg = TR + t
        if base >= 32768:
            A(f"v_add_u32 v{t1}, {base}, v{TR+t}")
            breg = t1
        for tp in range(4):
            if X < 3: imm = (64 * ksp + 32 * (tp >> 1) + 8 * (tp & 1)) * 256
            else: imm = (64 * ksp + 32 * (tp >> 1) + 2 * (tp & 1)) * 256
            A(f"ds_read_b64_tr_b16 {dst_fn(tp)}, v{breg} offset:{imm}")
    extra_ops = [0]
    def consume_wait(ch):
        pos = issued.index(ch)
        n_after = len(issued) - 1 - pos
        A.wait(vm=8 * n_after)
        A("s_barrier")
    def relayout(X):
        consume_wait((X, 3))
        for f in range(4):
            trreads(X, X, f, lambda tp: vr(TMP + 8 * f + 2 * tp, 2))
        A.wait(lg=0)
        A("s_barrier")
        base = V_WL0 if X < 2 else V_WL1
        for f in range(4):
            for hh in range(2):
                A(f"ds_write_b128 v{base}, v[{TMP+8*f+4*hh}:{TMP+8*f+4*hh+3}] offset:{(X&1)*32768 + f*2048 + hh*1024}")
        A.wait(lg=0)
    for i, (X, c) in enumerate(order[:12]):
        consume_wait((X, c))
        if i == 0: pst(3)
        if i == 4: pst(4)
        if i == 8: pst(5)
        if i == 5:
            A(f"s_cmp_lg_u32 s{S_WV}, 0")
            A(f"s_cbranch_scc1 L_rdy_skip")
            A(f"v_mov_b32 v{t1}, 1")
            A(f"s_mov_b64 exec, 1")
            A(f"buffer_atomic_add v{t1}, off, s[{S_DBG}:{S_DBG+3}], 0 offset:36")
            A(f"s_mov_b64 exec, -1")
            A.vm.pop()
            A.label("L_rdy_skip")
        for f in range(4):
            trreads(X, slot_of[(X, c)], f, lambda tp: wreg_part(X, c, f, tp))
        A.wait(lg=0)
        A("s_barrier")
        if i in follow:
            issue(*follow[i]); issued.append(follow[i])
        if i == 10:
            A(f"buffer_load_dword v{V_AV}, off, s[{S_DBG}:{S_DBG+3}], 0 offset:36 sc1")
            A(f"buffer_load_dword v{V_AV+1}, off, s[{S_DBG}:{S_DBG+3}], 0 offset:{D_INIT} sc1")
            extra_ops[0] = 2
        if i == 11:
            relayout(2); relayout(3)
    pst(6)
    if 'diag' in opt: dstamp(A, 10, True); dstamp(A, 203, True) if 'nostep' in opt else None
    def S(x): A(x)
    S(f"v_bfe_u32 v{t0}, v{lane}, 1, 1")
    S(f"v_mov_b32 v{V_IDX}, 0x4444")
    S(f"v_mov_b32 v{t1}, 0xeeee")
    S(f"v_cmp_ne_u32 vcc, 0, v{t0}")
    S(f"v_cndmask_b32 v{V_IDX}, v{V_IDX}, v{t1}, vcc")
    S(f"s_lshl_b32 s{S_T0}, s{S_WV}, 13")
    S(f"v_lshlrev_b32 v{t0}, 4, v{lane}")
    S(f"v_add_u32 v{V_WL0}, s{S_T0}, v{t0}")
    S(f"v_add_u32 v{V_WL1}, 0x10000, v{V_WL0}")
    S(f"v_add_u32 v{V_MEM}, {L_MEMB}, v{t0}")
    S(f"s_lshl_b32 s{S_T0}, s{S_WV}, 11")
    S(f"v_add_u32 v{V_MW}, s{S_T0}, v{V_MEM}")
    S(f"s_lshl_b32 s{S_T1}, s{S_H}, 13")
    S(f"s_add_u32 s{S_T0}, s{S_T0}, s{S_T1}")
    S(f"v_add_u32 v{V_PL}, s{S_T0}, v{t0}")
    S(f"v_and_b32 v{t0}, 15, v{lane}")
    S(f"v_lshlrev_b32 v{t0}, 5, v{t0}")
    S(f"v_lshrrev_b32 v{t1}, 4, v{lane}")
    S(f"v_lshl_or_b32 v{t0}, v{t1}, 3, v{t0}")
    S(f"v_bfe_u32 v{t1}, v{lane}, 3, 1")
    S(f"v_lshlrev_b32 v{t1}, 7, v{t1}")
    S(f"v_xor_b32 v{t0}, v{t0}, v{t1}")
    S(f"s_lshl_b32 s{S_T0}, s{S_WV}, 10")
    S(f"s_add_u32 s{S_T0}, s{S_T0}, {L_X}")
    S(f"v_add_u32 v{V_XW}, s{S_T0}, v{t0}")
    S(f"v_lshrrev_b32 v{t0}, 4, v{lane}")
    S(f"v_lshlrev_b32 v{t0}, 3, v{t0}")
    S(f"v_bfe_u32 v{t1}, v{lane}, 2, 2")
    S(f"v_or_b32 v{t0}, v{t0}, v{t1}")
    S(f"v_lshlrev_b32 v{t0}, 5, v{t0}")
    S(f"v_and_b32 v{t1}, 3, v{lane}")
    S(f"v_lshl_or_b32 v{t0}, v{t1}, 3, v{t0}")
    S(f"v_bfe_u32 v{t1}, v{lane}, 4, 1")
    S(f"v_lshlrev_b32 v{t1}, 7, v{t1}")
    S(f"v_xor_b32 v{t0}, v{t0}, v{t1}")
    S(f"v_add_u32 v{V_XR}, {L_X}, v{t0}")
    S(f"v_xor_b32 v{V_KMS}, 128, v{t0}")
    S(f"v_add_u32 v{V_KMS}, {L_X}, v{V_KMS}")
    S(f"v_and_b32 v{t0}, 13, v{lane}")
    S(f"v_bfe_u32 v{t1}, v{lane}, 5, 1")
    S(f"v_lshl_or_b32 v{t0}, v{t1}, 1, v{t0}")
    S(f"v_lshlrev_b32 v{t0}, 4, v{t0}")
    S(f"v_bfe_u32 v{t1}, v{lane}, 4, 1")
    S(f"v_lshl_or_b32 v{t0}, v{t1}, 3, v{t0}")
    S(f"s_lshl_b32 s{S_T0}, s{S_WV}, 9")
    S(f"s_add_u32 s{S_T0}, s{S_T0}, {L_OB}")
    S(f"v_add_u32 v{V_OW}, s{S_T0}, v{t0}")
    S(f"v_mov_b32 v{t0}, {L_DUM}")
    S(f"v_and_b32 v{t1}, 2, v{lane}")
    S(f"v_cmp_ne_u32 vcc, 0, v{t1}")
    S(f"v_cndmask_b32 v{V_OW}, v{V_OW}, v{t0}, vcc")
    S(f"v_bfe_u32 v{t0}, v{lane}, 2, 2")
    S(f"v_lshlrev_b32 v{t0}, 13, v{t0}")
    S(f"v_lshrrev_b32 v{t1}, 4, v{lane}")
    S(f"v_lshl_or_b32 v{t0}, v{t1}, 11, v{t0}")
    S(f"v_and_b32 v{t1}, 3, v{lane}")
    S(f"v_lshl_or_b32 v{t0}, v{t1}, 4, v{t0}")
    S(f"s_lshl_b32 s{S_T0}, s{S_H}, 6")
    S(f"v_add_u32 v{V_PS}, s{S_T0}, v{t0}")
    S(f"v_and_b32 v{t0}, 15, v{lane}")
    S(f"v_lshlrev_b32 v{t0}, 13, v{t0}")
    S(f"v_lshrrev_b32 v{t1}, 4, v{lane}")
    S(f"v_lshl_or_b32 v{t0}, v{t1}, 4, v{t0}")
    S(f"s_lshl_b32 s{S_T0}, s{S_H}, 8")
    S(f"s_lshr_b32 s{S_T1}, s{S_WV}, 1")
    S(f"s_lshl_b32 s{S_T1}, s{S_T1}, 17")
    S(f"s_add_u32 s{S_T0}, s{S_T0}, s{S_T1}")
    S(f"s_and_b32 s{S_T1}, s{S_WV}, 1")
    S(f"s_lshl_b32 s{S_T1}, s{S_T1}, 7")
    S(f"s_add_u32 s{S_T0}, s{S_T0}, s{S_T1}")
    S(f"v_add_u32 v{V_KXG}, s{S_T0}, v{t0}")
    S(f"v_and_b32 v{t0}, 15, v{lane}")
    S(f"v_lshlrev_b32 v{t0}, 6, v{t0}")
    S(f"v_lshrrev_b32 v{t1}, 4, v{lane}")
    S(f"v_lshl_or_b32 v{t0}, v{t1}, 4, v{t0}")
    S(f"s_lshl_b32 s{S_T0}, s{S_H}, 13")
    S(f"s_lshl_b32 s{S_T1}, s{S_WV}, 11")
    S(f"s_add_u32 s{S_T0}, s{S_T0}, s{S_T1}")
    S(f"v_add_u32 v{V_VVT}, s{S_T0}, v{t0}")
    S(f"v_lshlrev_b32 v{t0}, 4, v{lane}")
    S(f"s_lshl_b32 s{S_T0}, s{S_H}, 12")
    S(f"s_lshl_b32 s{S_T1}, s{S_WV}, 10")
    S(f"s_add_u32 s{S_T0}, s{S_T0}, s{S_T1}")
    S(f"v_add_u32 v{V_VMS}, s{S_T0}, v{t0}")
    c = (128 ** -0.5) * math.log2(math.e)
    cbits = hex(struct.unpack('<I', struct.pack('<f', c))[0])
    S(f"s_mov_b32 s{S_C}, {cbits}")
    S(f"s_mov_b32 s{S_C+1}, {cbits}")

    CA = V_AK
    A(f"v_and_b32 v{a}, 15, v{lane}")
    A(f"v_mov_b32 v{b}, 0x3f80")
    A(f"v_mov_b32 v{c_}, 0x3f800000")
    A(f"v_cmp_gt_u32 vcc, 4, v{a}")
    A(f"v_cndmask_b32 v{b}, v{c_}, v{b}, vcc")
    A(f"v_cmp_gt_u32 vcc, 8, v{a}")
    A(f"v_cndmask_b32 v{b}, 0, v{b}, vcc")
    A(f"v_and_b32 v{a}, 3, v{a}")
    for i in range(4):
        A(f"v_cmp_eq_u32 vcc, {i}, v{a}")
        A(f"v_cndmask_b32 v{CA+i}, 0, v{b}, vcc")
    A(f"s_lshl_b32 s{S_M0A}, s{S_WV}, 11")
    A(f"s_add_u32 s{S_M0A}, s{S_M0A}, {L_KXB}")
    A(f"s_mov_b32 s{S_KXA}, {WS_KX}")
    def kx0():
        A(f"s_mov_b32 m0, s{S_M0A}")
        A(f"buffer_load_dwordx4 v{V_KXG}, {WSR}, s{S_KXA} offen sc1 lds")
        A(f"s_add_u32 s{S_T0}, s{S_M0A}, 1024")
        A(f"s_add_u32 s{S_T1}, s{S_KXA}, 64")
        A(f"s_mov_b32 m0, s{S_T0}")
        A(f"buffer_load_dwordx4 v{V_KXG}, {WSR}, s{S_T1} offen sc1 lds")
    if 'merged' not in opt: kx0()
    A.wait(vm=0)
    A.vm = []
    A(f"ds_write_b128 v{V_MEM}, v[{CA}:{CA+3}] offset:{L_CA-L_MEMB}")
    A.wait(lg=0)
    A("s_barrier")
    A(f"v_cmp_gt_u32 vcc, 32, v{V_AV}")
    A(f"s_cbranch_vccz L_rdy_done")
    A(f"s_mov_b32 s{S_TO}, 0")
    A(f"v_mov_b32 v{t0}, 36")
    A.label("L_rdy_poll")
    A(f"buffer_load_dword v{t1}, v{t0}, s[{S_DBG}:{S_DBG+3}], 0 offen sc1")
    A(f"s_add_u32 s{S_TO}, s{S_TO}, 1")
    A(f"s_cmp_gt_u32 s{S_TO}, 0x40000")
    A(f"s_cbranch_scc1 L_bail")
    A.wait(vm=0)
    A(f"v_cmp_gt_u32 vcc, 32, v{t1}")
    A(f"s_cbranch_vccnz L_rdy_poll")
    A.label("L_rdy_done")
    A.forget()
    if 'merged' in opt:
        A(f"v_cmp_ne_u32 vcc, 0, v{V_AV+1}")
        A(f"s_cbranch_vccnz L_ci_done")
        A(f"s_mov_b32 s{S_TO}, 0")
        A.label("L_ci_poll")
        A(f"buffer_load_dword v{t1}, off, s[{S_DBG}:{S_DBG+3}], 0 offset:{D_INIT} sc1")
        A(f"s_add_u32 s{S_TO}, s{S_TO}, 1")
        A(f"s_cmp_gt_u32 s{S_TO}, 0x100000")
        A(f"s_cbranch_scc1 L_bail")
        A.wait(vm=0)
        A(f"v_cmp_eq_u32 vcc, 0, v{t1}")
        A(f"s_cbranch_vccnz L_ci_poll")
        A.label("L_ci_done")
        A.forget()
    pst(7)
    if 'diag' in opt: dstamp(A, 11, True)
    for X in range(2):
        for f in range(4):
            trreads(X, X, f, lambda tp: vr(TMP + 8 * f + 2 * tp, 2))
        A.wait(lg=0)
        A("s_barrier")
        for f in range(4):
            for hh in range(2):
                A(f"ds_write_b128 v{V_WL0}, v[{TMP+8*f+4*hh}:{TMP+8*f+4*hh+3}] offset:{(X&1)*32768 + f*2048 + hh*1024}")
        A.wait(lg=0)
    if 'diag' in opt: dstamp(A, 204 if 'nostep' in opt else 12, True)
    if 'merged' in opt:
        A(f"s_mov_b32 s{S_T0}, {F_KV}")
        A(f"s_mov_b32 s{S_TO}, 0")
        A.label("L_ck_poll")
        A(f"buffer_load_dword v{t1}, off, {WSR}, s{S_T0} sc1")
        A(f"s_add_u32 s{S_TO}, s{S_TO}, 1")
        A(f"s_cmp_gt_u32 s{S_TO}, 0x100000")
        A(f"s_cbranch_scc1 L_bail")
        A.wait(vm=0)
        A(f"v_cmp_gt_u32 vcc, 128, v{t1}")
        A(f"s_cbranch_vccnz L_ck_poll")
        A.forget()
        if 'diag' in opt: dstamp(A, 13, True)
        kx0()


    A("s_waitcnt vmcnt(0)")
    A("s_barrier")
    pst(8)
    if 'diag' in opt: dstamp(A, 5, True)
    pst(9)
    if 'pro' in opt:
        A.raw("    s_waitcnt lgkmcnt(0)")
        A(f"s_lshl_b32 s{S_T0}, s{S_H}, 2")
        A(f"s_add_u32 s{S_T0}, s{S_T0}, s{S_WV}")
        A(f"s_lshl_b32 s{S_T0}, s{S_T0}, 7")
        A(f"s_add_u32 s{S_T0}, s{S_T0}, {WS_TIME}")
        A(f"s_mov_b64 exec, 1")
        for k in range(10):
            A(f"v_mov_b32 v{V_T+1}, s{72+2*k}")
            A(f"v_mov_b32 v{V_T}, {4*k}")
            A(f"buffer_store_dword v{V_T+1}, v{V_T}, {WSR}, s{S_T0} offen")
        A(f"s_mov_b64 exec, -1")
        A.wait(vm=0)
    S_MA = 16; S_MB = 18; S_MT = 20
    S_PUB = 22; S_MPZ = 23; S_KEEP = 24; S_B0 = 11; S_B1 = 25; S_B2 = 49; S_HC = 46
    A(f"s_mov_b32 s{S_STEP}, 0")
    A(f"s_mov_b32 s{S_PAR}, 0")
    A(f"s_mov_b32 s{S_VT}, {WS_VT - 32*8192}")
    A(f"s_and_b32 s{S_HC}, s{S_H}, 3")
    A(f"s_lshl_b32 s{S_HC}, s{S_HC}, 13")
    A(f"s_sub_u32 s{S_HC}, s{S_HC}, {L_MEMB}")
    A(f"s_mov_b32 s{S_B0}, {WS_MBUF}")
    A(f"s_mov_b32 s{S_B1}, {WS_MBUF + 32768}")
    A(f"s_mov_b32 s{S_B2}, {WS_MBUF + 65536}")
    A(f"s_mov_b32 s{S_VM}, {WS_KVM}")
    S_FLG = 53; S_FOFF = 52; S_POFF = 54; S_CHK = 55
    if 'merged' in opt:
        A(f"s_mov_b32 s{S_FOFF}, {F_KV}")
        A(f"s_lshl_b32 s{S_POFF}, s{S_H}, 7")
        A(f"s_add_u32 s{S_POFF}, s{S_POFF}, {F_PROG}")
    A(f"s_mov_b32 s{S_EX+1}, {WS_KVM + 64*32*4096}")
    A(f"s_mov_b32 s{S_R0}, {WS_PBUF}")
    A(f"s_mov_b32 s{S_R1}, {WS_PBUF + PSLOT}")
    A(f"s_mov_b32 s{S_R2}, {WS_PBUF + 2*PSLOT}")
    def zero(r, n): return [f"v_mov_b64 v[{r+i}:{r+i+1}], 0" for i in range(0, n, 2)]
    def step_scalars():
        o = []
        o.append(f"s_mov_b32 s{S_PLD}, s{S_R0}")
        o.append(f"s_mov_b32 s{S_POI}, s{S_R2}")
        o.append(f"s_lshl_b32 s{S_T1}, s{S_WV}, 16")
        o.append(f"s_add_u32 s{S_PST0}, s{S_PLD}, s{S_T1}")
        o.append(f"s_add_u32 s{S_PST1}, s{S_PST0}, 32768")
        o.append(f"s_add_u32 s{S_MSL}, s{S_B0}, s{S_HC}")
        o.append(f"s_add_u32 s{S_MPO}, s{S_MSL}, 1024")
        o.append(f"s_add_u32 s{S_VT}, s{S_VT}, {32*8192}")
        o.append(f"s_add_u32 s{S_KXA}, s{S_KXA}, {32*8192}")
        o.append(f"s_add_u32 s{S_KXB}, s{S_KXA}, 64")
        o.append(f"s_xor_b32 s{S_M0A}, s{S_M0A}, {L_KXB ^ (L_KXB + 8192)}")
        o.append(f"s_add_u32 s{S_M0B}, s{S_M0A}, 1024")
        o.append(f"v_add_u32 v0, s{S_PAR}, v{V_MEM}")
        return o
    for x in zero(V_AQ, 24): A(x)
    for x in step_scalars(): A(x)
    A(f"buffer_load_dwordx4 v[{V_S+4}:{V_S+7}], v{V_MW}, {WSR}, s{S_MSL} offen sc1")
    A(f"buffer_load_dwordx4 v[{V_S+8}:{V_S+11}], v{V_MW}, {WSR}, s{S_MPO} offen sc1")
    A(f"ds_write_b128 v{V_MW}, v[{V_S+4}:{V_S+7}]")
    A(f"ds_write_b128 v{V_MW}, v[{V_S+8}:{V_S+11}] offset:1024")
    A.wait(lg=0)
    A("s_barrier")
    def sbload(buf, X, f):
        base = V_WL0 if X < 2 else V_WL1
        r = V_SB + 8 * buf
        return [f"ds_read_b128 v[{r}:{r+3}], v{base} offset:{(X&1)*32768 + f*2048}",
                f"ds_read_b128 v[{r+4}:{r+7}], v{base} offset:{(X&1)*32768 + f*2048 + 1024}"]
    for s_ in sbload(0, 0, 0) + sbload(1, 0, 1): A(s_)
    if timing:
        for i in range(18): A(f"s_mov_b32 s{S_TACC+i}, 0")
    A.wait(lg=0)
    A.settle()
    A.forget()

    NST = 15
    def stamp(k):
        if timing: A.raw(f"    {'s_memrealtime' if ('abs' in opt and 'absm' not in opt) else 's_memtime'} s[{S_STAMP+2*k}:{S_STAMP+2*k+1}]")
    def stamp_acc():
        if timing and 'abs' in opt:
            A.raw("    s_waitcnt lgkmcnt(0)")
            lb = A.newlabel("L_abs")
            A(f"s_cmp_lg_u32 s{S_STEP}, 31")
            A(f"s_cbranch_scc1 {lb}")
            for k in range(NST):
                A(f"s_mov_b32 s{S_TACC+k}, s{S_STAMP+2*k}")
            A.label(lb)
            return
        if timing:
            A.raw("    s_waitcnt lgkmcnt(0)")
            A(f"s_sub_u32 s{S_T2}, s{S_STAMP}, s{S_TM}")
            A(f"s_add_u32 s{S_TACC}, s{S_TACC}, s{S_T2}")
            for k in range(1, NST):
                A(f"s_sub_u32 s{S_T2}, s{S_STAMP+2*k}, s{S_STAMP+2*(k-1)}")
                A(f"s_add_u32 s{S_TACC+k}, s{S_TACC+k}, s{S_T2}")
            A(f"s_mov_b32 s{S_TM}, s{S_STAMP+2*(NST-1)}")
    def M(ks): return vr(V_MK + 4 * ks, 4)
    def mload(ks, sc=""):
        return f"ds_read_b128 {M(ks)}, v{V_MEM} offset:{ks*1024}"
    def pack(acc, t, dst):
        return [f"v_pk_add_f32 v[{acc+4*t}:{acc+4*t+1}], v[{acc+4*t}:{acc+4*t+1}], v[{acc+4*t+2}:{acc+4*t+3}]",
                f"v_cvt_pk_bf16_f32 v{dst}, v{acc+4*t}, v{acc+4*t+1}"]

    if 'diag' in opt: dstamp(A, 6, True)
    pre_barrier = []
    sfx = ['']
    if 'rt' in opt:
        A.raw("    s_memtime s[56:57]")
        A.raw("    s_memrealtime s[58:59]")
        A.raw("    s_waitcnt lgkmcnt(0)")
        A("s_mov_b32 s64, 0"); A("s_mov_b32 s65, 0")
    if timing:
        A(f"s_memtime s[{S_TM}:{S_TM+1}]")
        A.wait(lg=0)
    A.label("L_step")
    if 'diag' in opt: dstamp(A, 16, True, S_STEP)
    if 'steps' in opt:
        A.raw("    s_memtime s[56:57]")
    stamp(0)
    morder = [6, 0, 1, 2, 7, 3, 4, 5]
    npre = 8
    for ks in morder: A(mload(ks))
    if 'merged' in opt:
        A(f"s_add_u32 s{S_T0}, s{S_STEP}, 2")
        A(f"s_and_b32 s{S_CHK}, s{S_T0}, 7")
        A(f"s_cmp_lg_u32 s{S_CHK}, 0")
        A(f"s_cbranch_scc1 L_noflag")
        A(f"buffer_load_dword v{V_S}, off, {WSR}, s{S_FOFF} sc1")
        A.vm.pop()
        A.label("L_noflag")
    if 'noload' not in opt and 'novt' not in opt and 'vtq' not in opt:
        A(f"buffer_load_dwordx4 v[{V_VX}:{V_VX+3}], v{V_VVT}, {WSR}, s{S_VT} offen sc1")
        A(f"buffer_load_dwordx4 v[{V_VX+4}:{V_VX+7}], v{V_VVT}, {WSR}, s{S_VT} offen offset:1024 sc1")
    kvst = f"buffer_store_dwordx4 v[{V_AV}:{V_AV+3}], v{V_VMS}, {WSR}, s{S_EX+1} offen" + ("" if 'nopub' in opt else " sc1")
    if 'kvq' not in opt: A(kvst)
    if 'merged' in opt:
        A(f"s_and_b32 s{S_T0}, s{S_STEP}, 3")
        A(f"s_or_b32 s{S_T0}, s{S_T0}, s{S_WV}")
        A(f"s_cmp_lg_u32 s{S_T0}, 0")
        A(f"s_cbranch_scc1 L_noprog")
        A(f"s_sub_u32 s{S_T0}, s{S_STEP}, 1")
        A(f"s_max_i32 s{S_T0}, s{S_T0}, 0")
        A(f"v_mov_b32 v{V_T+1}, s{S_T0}")
        A(f"s_mov_b64 exec, 1")
        A(f"buffer_store_dword v{V_T+1}, off, {WSR}, s{S_POFF} sc1")
        A(f"s_mov_b64 exec, -1")
        A.vm.pop()
        A.label("L_noprog")
    late_zero = zero(V_AV, 8)
    SL = [(0,0),(0,1),(1,0),(1,1),(0,2),(0,3),(1,2),(1,3),(2,0),(2,1),(2,2),(2,3)]
    RL = [(X, t, ks) for ks in range(6) for X in (0, 1) for t in (0, 1)]
    if 'qearly' in opt:
        RL = [(X, t, ks) for ks in range(4) for X in (0, 1) for t in (0, 1)] + [(0,0,4),(0,1,4),(0,0,5),(0,1,5),(1,0,4),(1,1,4),(1,0,5),(1,1,5)]
    ACC = {0: V_AQ, 1: V_AK, 2: V_AV}
    CHK = V_T + 1
    qk = []
    ri = 0
    for pos in range(32):
        if pos % 4 == 0:
            X, f = SL[pos // 4]; qk.append(('S', X, f & 1, 6 + (f >> 1), pos // 4))
        else:
            X, t, ks = RL[ri]; ri += 1; qk.append(('R', X, t, ks, None))
    def mf(e):
        kind, X, t, ks, si = e
        d = vr(ACC[X] + 4 * t, 4)
        bsrc = vr(V_SB + 8 * (si & 1), 8) if kind == 'S' else wreg(X, ks >> 1, (ks & 1) * 2 + t)
        return f"v_smfmac_f32_16x16x64_bf16 {d}, {M(ks)}, {bsrc}, v{V_IDX}"
    def qk_pass(loads):
        fill = {p: [] for p in range(32)}
        for p in range(0, 32, 4):
            si = p // 4
            fill[p] += sbload(si & 1, *SL[si + 2])
        first_use = {}
        for p, e in enumerate(qk):
            first_use.setdefault(e[3], p)
        if loads:
            rem = morder[npre:]
            for i, ks in enumerate(rem): fill[1 + 5 * i].append(mload(ks))
        for i, x in enumerate(late_zero): fill[9 + 4 * i].append(x)
        if 'vtq' in opt:
            fill[vtpos[0]] += [f"buffer_load_dwordx4 v[{V_VX}:{V_VX+3}], v{V_VVT}, {WSR}, s{S_VT} offen sc1"]
            fill[vtpos[1]] += [f"buffer_load_dwordx4 v[{V_VX+4}:{V_VX+7}], v{V_VVT}, {WSR}, s{S_VT} offen offset:1024 sc1"]
        if 'poiQ' in opt:
            PX = V_XF
            fill[1] += [f"v_mov_b64 v[{PX}:{PX+1}], -1", f"v_mov_b64 v[{PX+2}:{PX+3}], -1"]
            fill[poipos[0]] += [f"buffer_store_dwordx4 v[{PX}:{PX+3}], v{V_PL}, {WSR}, s{S_POI} offen"]
            fill[poipos[1]] += [f"buffer_store_dwordx4 v[{PX}:{PX+3}], v{V_PL}, {WSR}, s{S_POI} offen offset:1024"]
        if 'kvq' in opt:
            fill[kvpos] += [kvst]
            assert kvpos < 9
        if 'qearly' in opt:
            fill[29] += pack(V_AQ, 0, V_AQ + 2)[:1] + pack(V_AQ, 1, V_AQ + 6)[:1]
            fill[30] += pack(V_AQ, 0, V_AQ + 2)[1:] + pack(V_AQ, 1, V_AQ + 6)[1:]
            fill[31] += [f"ds_write2_b32 v{V_XW}, v{V_AQ+2}, v{V_AQ+6} offset0:0 offset1:128"]
        if 'noload' not in opt and 'nokx' not in opt:
            pa, pb = kxpos
            fill[pa - 1] += [f"s_mov_b32 m0, s{S_M0A}"]
            fill[pa] += [f"buffer_load_dwordx4 v{V_KXG}, {WSR}, s{S_KXA} offen sc1 lds"]
            fill[pb - 1] += [f"s_mov_b32 m0, s{S_M0B}"]
            fill[pb] += [f"buffer_load_dwordx4 v{V_KXG}, {WSR}, s{S_KXB} offen sc1 lds"]
        for p in range(32):
            A(mf(qk[p]))
            if p == 0 and loads: stamp(1)
            for x in fill[p]: A(x)
    qk_pass(True)
    A.label("L_v")
    stamp(2)
    seq = []
    seqR = [(0,0),(1,0),(0,1),(1,1),(0,2),(1,2),(0,3),(1,3),(0,4),(1,4),(0,5),(1,5)]
    ri = 0
    for pos in range(16):
        if pos % 4 == 0:
            f = pos // 4; seq.append(('S', 2, f & 1, 6 + (f >> 1), 8 + f))
        else:
            t, ks = seqR[ri]; ri += 1; seq.append(('R', 2, t, ks, None))
    fill = {p: [] for p in range(16)}
    fill[0] += sbload(0, *SL[10]); fill[4] += sbload(1, *SL[11])
    if 'qearly' in opt:
        fill[2] += pack(V_AK, 0, V_T)[:1] + pack(V_AK, 1, V_T + 1)[:1]
        fill[3] += pack(V_AK, 0, V_T)[1:] + pack(V_AK, 1, V_T + 1)[1:] + [f"ds_write2_b32 v{V_XW}, v{V_T}, v{V_T+1} offset0:1 offset1:129"]
    else:
        fill[1] += pack(V_AQ, 0, V_AQ + 2)[:1] + pack(V_AQ, 1, V_AQ + 6)[:1]
        fill[2] += pack(V_AQ, 0, V_AQ + 2)[1:] + pack(V_AQ, 1, V_AQ + 6)[1:] + [f"ds_write2_b32 v{V_XW}, v{V_AQ+2}, v{V_AQ+6} offset0:0 offset1:128"]
        fill[3] += pack(V_AK, 0, V_AK + 2)[:1] + pack(V_AK, 1, V_AK + 6)[:1]
        fill[4] += pack(V_AK, 0, V_AK + 2)[1:] + pack(V_AK, 1, V_AK + 6)[1:] + [f"ds_write2_b32 v{V_XW}, v{V_AK+2}, v{V_AK+6} offset0:1 offset1:129"]
        fill[5] += [f"v_mov_b32 v{V_T}, v{V_AK+2}", f"v_mov_b32 v{V_T+1}, v{V_AK+6}"]
    vb = vbar
    fill[vb] += ["@wait_writes", "s_barrier"]
    xf = []
    for ks in range(4):
        for hh in range(2):
            xf.append(f"ds_read_b64_tr_b16 v[{V_XF+4*ks+2*hh}:{V_XF+4*ks+2*hh+1}], v{V_XR if hh == 0 else V_KMS} offset:{ks*1024}")
    last = {}
    for p, e in enumerate(seq): last[e[3]] = p
    free_order = sorted(last, key=lambda k: last[k])
    kxr = {}
    kxr[(0, 0)] = vr(V_AQ, 4); kxr[(0, 1)] = vr(V_AQ + 4, 4); kxr[(0, 2)] = vr(V_AK, 4); kxr[(0, 3)] = vr(V_AK + 4, 4)
    for kk in range(4): kxr[(1, kk)] = M(free_order[kk])
    def kxload(T, kk): return f"ds_read_b128 {kxr[(T, kk)]}, v0 offset:{8192 + (T*4+kk)*1024}"
    fill[vb] += xf[0:2]; fill[vb+1] += xf[2:4]; fill[vb+2] += xf[4:6]; fill[vb+3] += xf[6:8]
    fill[11] += [kxload(0, 0), kxload(0, 1)]; fill[13] += [kxload(0, 2)]; fill[14] += [kxload(0, 3)]
    assert last[free_order[3]] <= 13
    if 'onesV' in opt:
        _on = V_MK + 4 * free_order[4]
        fill[12] += [f"v_mov_b32 v{_on}, 0x3f803f80", f"v_mov_b32 v{_on+1}, 0x3f803f80"]
        fill[15] += [f"v_mov_b32 v{_on+2}, 0x3f803f80", f"v_mov_b32 v{_on+3}, 0x3f803f80"]
    for p in range(16):
        A(mf(seq[p]))
        for x in fill[p]:
            if x == "s_barrier" and 'vdet' in opt: stamp(8)
            if x == "@wait_writes" and 'vdet' in opt: stamp(11)
            A(x)
            if x == "s_barrier" and 'vdet' in opt: stamp(9)
        if p == 11 and 'vdet' in opt: stamp(12)
    stamp(3)
    A.raw(f"    s_waitcnt vmcnt({(1 if 'noload' in opt else 3 if ('novt' in opt or 'nokx' in opt) else 5) + (1 if 'steps' in opt else 0) + (2 if 'poiQ' in opt else 0)})")
    if 'merged' in opt:
        A(f"s_mov_b32 s{S_FLG}, 128")
        A(f"s_cmp_lg_u32 s{S_CHK}, 0")
        A(f"s_cbranch_scc1 L_norfl")
        A(f"v_readfirstlane_b32 s{S_FLG}, v{V_S}")
        A.label("L_norfl")
    S0, S1, S2 = V_S, V_S + 4, V_S + 8
    def tm(dst, a_, ks, first):
        cc = "0" if first else vr(dst, 4)
        return f"v_mfma_f32_16x16x32_bf16 {vr(dst,4)}, {a_}, {vr(V_XF+4*ks,4)}, {cc}"
    seqT = [(S0, None, k) for k in range(4)] + [(S1, 0, k) for k in range(4)] + [(S2, 1, k) for k in range(4)]
    fill = {p: [] for p in range(12)}
    ONr = V_MK + 4 * free_order[4]
    LD = V_MK + 4 * free_order[5]
    if 'kx2s' in opt:
        fill[0] += [kxload(1, 0)]; fill[1] += [kxload(1, 1)]; fill[2] += [kxload(1, 2)]; fill[3] += [kxload(1, 3)]
    else:
        fill[0] += [kxload(1, 0), kxload(1, 1)]; fill[1] += [kxload(1, 2), kxload(1, 3)]
    if 'onesV' not in opt:
        fill[7] += [f"v_mov_b32 v{ONr}, 0x3f803f80", f"v_mov_b32 v{ONr+1}, 0x3f803f80"]
        fill[8] += [f"v_mov_b32 v{ONr+2}, 0x3f803f80", f"v_mov_b32 v{ONr+3}, 0x3f803f80"]
    fill[2] += pack(V_AV, 0, V_AV + 2)[:1] + pack(V_AV, 1, V_AV + 6)[:1]
    fill[3] += pack(V_AV, 0, V_AV + 2)[1:] + pack(V_AV, 1, V_AV + 6)[1:]
    fill[4] += [f"v_mov_b32 v{V_AV+3}, 0", f"v_mov_b32 v{V_AV+7}, 0"]
    fill[5] += [f"v_min_u32 v{V_AV}, -2, v{V_T}", f"v_min_u32 v{V_AV+1}, -2, v{V_T+1}"]
    Tt = V_T + 1; Ls = V_T + 2; Mx = V_T + 3
    if 'sbT' in opt:
        _sb = sbload(0, 3, 0) + sbload(1, 3, 1)
        fill[6] += _sb[0:2]; fill[7] += _sb[2:4]
    fill[9] += [f"v_max3_f32 v{Mx}, v{S0+2}, v{S0+3}, v{S1}"]
    fill[10] += [f"v_max3_f32 v{Mx}, v{Mx}, v{S1+1}, v{S1+2}"]
    fill[11] += [f"v_max_f32 v{Mx}, v{Mx}, v{S1+3}"]
    for p, (dst, T, kk) in enumerate(seqT):
        a_ = vr(V_XF + 4 * kk, 4) if T is None else kxr[(T, kk)]
        A(tm(dst, a_, kk, kk == 0))
        for x in fill[p]: A(x)
    stamp(4)
    A(f"s_cmp_eq_u32 s{S_STEP}, {nsteps-1}")
    A(f"s_cbranch_scc1 L_last")
    A(f"v_max3_f32 v{Mx}, v{Mx}, v{S2}, v{S2+1}")
    A(f"v_max3_f32 v{Tt}, v{Mx}, v{S2+2}, v{S2+3}")
    A(f"v_max3_f32 v{Mx}, v{Mx}, v{S2+2}, v{S2+3}")
    sbo = sbload(0, 3, 0) + sbload(1, 3, 1)
    if 'sbT' in opt: sbo = ["s_nop 0"] * 0 + [None] * 4
    _A = A
    class _Skip:
        def __call__(self, x):
            if x is not None: _A(x)
    AS = _Skip()
    AS(sbo[0])
    A(f"v_permlane16_swap_b32 v{Mx}, v{Tt}")
    AS(sbo[1])
    A(f"v_max_f32 v{Ls}, v{Mx}, v{Tt}")
    A(f"v_max_f32 v{Mx}, v{Mx}, v{Tt}")
    AS(sbo[2])
    AS(sbo[3])
    A(f"v_permlane32_swap_b32 v{Mx}, v{Ls}")
    A(f"v_max_f32 v{Mx}, v{Mx}, v{Ls}")
    A(f"v_mul_f32 v{Mx}, s{S_C}, v{Mx}")
    def pkf(r): return f"v_pk_fma_f32 v[{r}:{r+1}], v[{r}:{r+1}], s[{S_C}:{S_C+1}], v[{Mx-1}:{Mx}] op_sel:[0,0,1] op_sel_hi:[1,1,1] neg_lo:[0,0,1] neg_hi:[0,0,1]"
    for r in (S1, S1 + 2, S2, S2 + 2, S0 + 2): A(pkf(r))
    P12 = V_AQ; P0 = V_AQ + 4; OT = V_AK
    for r in range(S1, S1 + 4): A(f"v_exp_f32 v{r}, v{r}")
    A(f"v_exp_f32 v{S2}, v{S2}")
    A(f"v_exp_f32 v{S2+1}, v{S2+1}")
    A(f"v_cvt_pk_bf16_f32 v{P12}, v{S1}, v{S1+1}")
    A(f"v_exp_f32 v{S2+2}, v{S2+2}")
    A(f"v_cvt_pk_bf16_f32 v{P12+1}, v{S1+2}, v{S1+3}")
    A(f"v_exp_f32 v{S2+3}, v{S2+3}")
    A(f"v_cvt_pk_bf16_f32 v{P12+2}, v{S2}, v{S2+1}")
    A(f"v_exp_f32 v{S0+2}, v{S0+2}")
    A(f"v_cvt_pk_bf16_f32 v{P12+3}, v{S2+2}, v{S2+3}")
    A(f"v_exp_f32 v{S0+3}, v{S0+3}")
    A(f"v_mov_b32 v{P0+1}, 0")
    A(f"v_mfma_f32_16x16x32_bf16 {vr(LD,4)}, {vr(ONr,4)}, {vr(P12,4)}, 0")
    A(f"v_cvt_pk_bf16_f32 v{P0}, v{S0+2}, v{S0+3}")
    for t in range(2):
        A(f"v_mfma_f32_16x16x32_bf16 {vr(OT+4*t,4)}, {vr(V_VX+4*t,4)}, {vr(P12,4)}, 0")
    PO2 = V_S + 4
    for i in range(0, 4, 2): A(f"v_mov_b64 v[{PO2+i}:{PO2+i+1}], -1")
    A(f"v_mfma_f32_16x16x16_bf16 {vr(LD,4)}, {vr(ONr,2)}, {vr(P0,2)}, {vr(LD,4)}")
    for t in range(2):
        A(f"v_mfma_f32_16x16x16_bf16 {vr(OT+4*t,4)}, {vr(V_AV+4*t+2,2)}, {vr(P0,2)}, {vr(OT+4*t,4)}")
    A(f"v_min_u32 v{V_AV+3}, -2, v{V_AV+6}")
    A(f"v_min_u32 v{V_AV+2}, -2, v{V_AV+2}")
    A(f"v_rcp_f32 v{Ls}, v{LD}")
    for r in range(0, 8, 2):
        A(f"v_pk_mul_f32 v[{OT+r}:{OT+r+1}], v[{OT+r}:{OT+r+1}], v[{Ls}:{Ls+1}] op_sel_hi:[1,0]")
    for t in range(2):
        A(f"v_cvt_pk_bf16_f32 v{OT+4*t}, v{OT+4*t}, v{OT+4*t+1}")
        A(f"v_cvt_pk_bf16_f32 v{OT+4*t+1}, v{OT+4*t+2}, v{OT+4*t+3}")
        A(f"ds_write_b64 v{V_OW}, v[{OT+4*t}:{OT+4*t+1}] offset:{t*256}")
    A("@wait_writes")
    stamp(5)
    A("s_barrier")
    OF = V_VX
    A(f"ds_read_b128 {vr(OF,4)}, v{V_MEM} offset:{L_OB-L_MEMB}")
    A(f"ds_read_b128 {vr(OF+4,4)}, v{V_MEM} offset:{L_OB-L_MEMB+1024}")
    pst_ = [f"buffer_store_dwordx4 v[{PO2}:{PO2+3}], v{V_PL}, {WSR}, s{S_POI} offen",
            f"buffer_store_dwordx4 v[{PO2}:{PO2+3}], v{V_PL}, {WSR}, s{S_POI} offen offset:1024"]
    zz = zero(V_MK, 32)
    if 'poiQ' in opt or 'poiO' in opt:
        for x in zz: A(x)
    elif 'zfirst' in opt:
        for x in zz + pst_: A(x)
    elif 'zmix' in opt:
        for x in zz[:8] + pst_[:1] + zz[8:] + pst_[1:]: A(x)
    else:
        for x in pst_ + zz: A(x)
    stamp(6)
    oseq = [('S',6,0,0),('R',0,0),('R',0,1),('R',1,0),('S',7,0,1),('R',1,1),('R',2,0),('R',2,1),
            ('S',6,1,2),('R',3,0),('R',3,1),('R',4,0),('S',7,1,3),('R',4,1),('R',5,0),('R',5,1)]
    if 'oord2' in opt:
        oseq = [('S',6,0,0),('R',0,0),('R',0,1),('R',1,0),('S',7,0,1),('R',1,1),('R',2,0),('R',2,1),
                ('S',6,1,2),('R',3,0),('R',3,1),('R',4,0),('S',7,1,3),('R',5,0),('R',4,1),('R',5,1)]
    PQ = V_AQ
    def ppack(tile):
        a0 = V_MK + 4 * tile
        return [f"v_pk_add_f32 v[{a0}:{a0+1}], v[{a0}:{a0+1}], v[{a0+2}:{a0+3}]",
                f"v_cvt_pk_bf16_f32 v{PQ+tile}, v{a0}, v{a0+1}"]
    fill = {p: [] for p in range(16)}
    fill[0] += sbload(0, 3, 2); fill[4] += sbload(1, 3, 3)
    if 'sbh' not in opt:
        fill[8] += sbload(0, 0, 0); fill[12] += sbload(1, 0, 1)
    CAR = V_S
    fill[1] += [f"ds_read_b128 {vr(CAR,4)}, v{V_MEM} offset:{L_CA-L_MEMB}"]
    if 'poiO' in opt:
        fill[2] += [pst_[0]]; fill[7] += [pst_[1]]
    if 'pearly' in opt:
        fill[5] += ppack(0); fill[8] += ppack(1); fill[10] += ppack(2); fill[12] += ppack(3)
        fill[13] += [f"buffer_store_dwordx4 v[{PQ}:{PQ+3}], v{V_PS}, {WSR}, s{S_PST0} offen"]
    elif 'plate' in opt:
        fill[6] += ppack(0); fill[9] += ppack(1); fill[11] += ppack(2); fill[14] += ppack(3)
        fill[15] += [f"buffer_store_dwordx4 v[{PQ}:{PQ+3}], v{V_PS}, {WSR}, s{S_PST0} offen"]
    else:
        fill[6] += ppack(0); fill[9] += ppack(1); fill[11] += ppack(2); fill[13] += ppack(3)
        fill[14] += [f"buffer_store_dwordx4 v[{PQ}:{PQ+3}], v{V_PS}, {WSR}, s{S_PST0} offen"]
    fill[15] += ppack(6)
    for p, e in enumerate(oseq):
        tile, ks = e[1], e[2]
        bsrc = vr(V_SB + 8 * (e[3] & 1), 8) if e[0] == 'S' else wreg(3, tile >> 1, ks * 2 + (tile & 1))
        A(f"v_smfmac_f32_16x16x64_bf16 {vr(V_MK+4*tile,4)}, {vr(OF+4*ks,4)}, {bsrc}, v{V_IDX}")
        for x in fill[p]: A(x)
    for tl in ((4, 7, 5) if 'tail2' in opt else (7, 4, 5)):
        for x in ppack(tl): A(x)
    A(f"buffer_store_dwordx4 v[{PQ+4}:{PQ+7}], v{V_PS}, {WSR}, s{S_PST1} offen")
    stamp(7)
    ta = V_T + 1; tb = V_T + 2
    def poll2(name, regs, loadfn, mid=None, cnt=None, st=None, gap=()):
        def check():
            A(f"v_max3_u32 v{ta}, v{regs}, v{regs+1}, v{regs+2}")
            A(f"v_max3_u32 v{tb}, v{regs+4}, v{regs+5}, v{regs+6}")
            A(f"v_max_u32 v{ta}, v{ta}, v{regs+3}")
            if mid: mid(0)
            A(f"v_max_u32 v{tb}, v{tb}, v{regs+7}")
            if mid: mid(1)
            A(f"v_cmp_eq_u32 s[{S_MA}:{S_MA+1}], -1, v{ta}")
            A(f"v_cmp_eq_u32 s[{S_MB}:{S_MB+1}], -1, v{tb}")
            A(f"s_or_b64 s[{S_MT}:{S_MT+1}], s[{S_MA}:{S_MA+1}], s[{S_MB}:{S_MB+1}]")
            A(f"s_cbranch_scc0 L_{name}ok")
        def round_():
            A(f"s_or_b32 s{S_MA}, s{S_MA}, 1")
            A(f"s_or_b32 s{S_MB}, s{S_MB}, 1")
            A.auto = False
            A(f"s_mov_b64 exec, s[{S_MA}:{S_MA+1}]")
            loadfn(0)
            A(f"s_mov_b64 exec, s[{S_MB}:{S_MB+1}]")
            loadfn(1)
            A(f"s_mov_b64 exec, -1")
            A.auto = True
        A(f"s_mov_b32 s{S_TO}, 0")
        if 'ack' in opt and 'ack2' not in opt:
            A(f"s_waitcnt vmcnt(0)")
            if st is not None: stamp(st)
            A.forget()
            check()
            round_()
        else:
            for x in gap: A(x)
            A.auto = False
            loadfn(0); loadfn(1)
            A.auto = True
            A(f"s_waitcnt vmcnt(2)")
            if st is not None: stamp(st)
            A.forget()
            check()
        A.label(f"L_{name}loop")
        round_()
        A(f"s_add_u32 s{S_TO}, s{S_TO}, 1")
        A(f"s_cmp_gt_u32 s{S_TO}, 0x40000")
        A(f"s_cbranch_scc1 L_bail")
        A(f"s_waitcnt vmcnt(2)")
        A.forget()
        check()
        A(f"s_branch L_{name}loop")
        A.label(f"L_{name}ok")
        A.forget()
        if cnt: cnt()
    PB = V_AK; RD = V_VX
    if 'afirst' in opt: A.raw("    s_waitcnt vmcnt(1)")
    A(f"s_mov_b32 s{S_KEEP}, s{S_PLD}")
    A(f"s_mov_b32 s{S_EX}, s{S_POI}")
    A(f"s_mov_b32 s{S_EX+1}, s{S_VM}")
    A(f"s_mov_b32 s{S_PUB}, s{S_B1}")
    A(f"s_mov_b32 s{S_MPZ}, s{S_B2}")
    A(f"s_mov_b32 s{S_B2}, s{S_B0}")
    A(f"s_mov_b32 s{S_B0}, s{S_PUB}")
    A(f"s_mov_b32 s{S_B1}, s{S_MPZ}")
    A(f"s_xor_b32 s{S_PAR}, s{S_PAR}, 8192")
    A(f"s_add_u32 s{S_STEP}, s{S_STEP}, 1")
    A(f"s_add_u32 s{S_VM}, s{S_VM}, {32*4096}")
    A(f"s_mov_b32 s{S_T0}, s{S_R0}")
    A(f"s_mov_b32 s{S_R0}, s{S_R1}")
    A(f"s_mov_b32 s{S_R1}, s{S_R2}")
    A(f"s_mov_b32 s{S_R2}, s{S_T0}")
    def kvcheck():
        if 'merged' in opt:
            A(f"s_cmp_ge_u32 s{S_FLG}, 128")
            A(f"s_cbranch_scc0 L_kvslow")
            A.label("L_kvok")
            A(f"s_add_u32 s{S_T0}, s{S_STEP}, 2")
            A(f"s_lshr_b32 s{S_T0}, s{S_T0}, 3")
            A(f"s_min_u32 s{S_T0}, s{S_T0}, 7")
            A(f"s_lshl_b32 s{S_T0}, s{S_T0}, 7")
            A(f"s_add_u32 s{S_FOFF}, s{S_T0}, {F_KV}")
    if 'asplit' in opt:
        kvcheck()
        tail_work = step_scalars() + zero(V_AQ, 8)
        k = asplit
        for x in tail_work[:len(tail_work) - k]: A(x)
        A.raw("    s_waitcnt vmcnt(1)")
        for x in tail_work[len(tail_work) - k:]: A(x)
    else:
        for x in step_scalars(): A(x)
        kvcheck()
        for x in zero(V_AQ, 8): A(x)
        for x in extra_delay: A(x)
        if 'sbh' in opt:
            for x in sbload(0, 0, 0) + sbload(1, 0, 1): A(x)
        if 'ack' in opt and 'afirst' not in opt: A.raw(f"    s_waitcnt vmcnt({1 if 'a1' in opt else 0})")
    def h1load(q):
        A(f"buffer_load_dwordx4 v[{PB+4*q}:{PB+4*q+3}], v{V_PL}, {WSR}, s{S_KEEP} offen offset:{1024*q} sc1")
    if 'vdet' not in opt: stamp(8)
    h1load(0); h1load(1)
    def h1mid(i):
        if i == 0: A(f"v_mfma_f32_16x16x32_bf16 {vr(RD,4)}, {vr(CAR,4)}, {vr(PB,4)}, 0")
        else: A(f"v_mfma_f32_16x16x32_bf16 {vr(RD,4)}, {vr(CAR,4)}, {vr(PB+4,4)}, {vr(RD,4)}")
    poll2("h1", PB, h1load, mid=h1mid, st=(None if "vdet" in opt else 9), gap=["s_nop 0"] * g1)
    A("s_nop 2")
    if timing: A(f"s_add_u32 s{S_TACC+16}, s{S_TACC+16}, s{S_TO}")
    if 'rt' in opt: A(f"s_add_u32 s64, s64, s{S_TO}")
    stamp(10)
    for ror in (4, 8):
        for r in range(4):
            A(f"v_add_f32_dpp v{RD+r}, v{RD+r}, v{RD+r} row_ror:{ror} row_mask:0xf bank_mask:0xf")
    A(f"v_cvt_pk_bf16_f32 v{RD}, v{RD}, v{RD+1}")
    A(f"v_cvt_pk_bf16_f32 v{RD+1}, v{RD+2}, v{RD+3}")
    A(f"v_min_u32 v{RD}, -2, v{RD}")
    A(f"v_min_u32 v{RD+1}, -2, v{RD+1}")
    A(f"s_mov_b64 exec, 0xffffffff")
    A(f"buffer_store_dwordx2 v[{RD}:{RD+1}], v{V_MS}, {WSR}, s{S_PUB} offen")
    A(f"v_mov_b64 v[{RD+2}:{RD+3}], -1")
    A(f"buffer_store_dwordx2 v[{RD+2}:{RD+3}], v{V_MS}, {WSR}, s{S_MPZ} offen")
    A(f"s_mov_b64 exec, -1")
    for x in extra_delay2: A(x)
    if 'ack' in opt: A.raw(f"    s_waitcnt vmcnt({1 if 'a2' in opt else 0})")
    def stage_mem():
        ML = V_S + 4
        def h2load(q):
            so = S_MSL if q == 0 else S_MPO
            A(f"buffer_load_dwordx4 v[{ML+4*q}:{ML+4*q+3}], v{V_MW}, {WSR}, s{so} offen sc1")
        if 'vdet' not in opt: stamp(11)
        h2load(0); h2load(1)
        poll2("h2", ML, h2load, st=(None if "vdet" in opt else 12), gap=["s_nop 0"] * g2)
        if timing: A(f"s_add_u32 s{S_TACC+17}, s{S_TACC+17}, s{S_TO}")
        if 'rt' in opt: A(f"s_add_u32 s65, s65, s{S_TO}")
        stamp(13)
        A(f"ds_write_b128 v{V_MW}, v[{ML}:{ML+3}]")
        A(f"ds_write_b128 v{V_MW}, v[{ML+4}:{ML+7}] offset:1024")
    stage_mem()
    for x in zero(V_AK, 8): A(x)
    A("@wait_writes")
    if 'steps' in opt:
        A(f"s_lshl_b32 s58, s{S_H}, 2")
        A(f"s_add_u32 s58, s58, s{S_WV}")
        A(f"s_lshl_b32 s58, s58, 6")
        A(f"s_add_u32 s58, s58, s{S_STEP}")
        A(f"s_lshl_b32 s58, s58, 2")
        A(f"s_add_u32 s58, s58, {WS_TIME - 4}")
        A(f"v_mov_b32 v{V_T}, s56")
        A(f"v_mov_b32 v{V_T+1}, 0")
        A(f"s_mov_b64 exec, 1")
        A(f"buffer_store_dword v{V_T}, v{V_T+1}, {WSR}, s58 offen")
        A(f"s_mov_b64 exec, -1")
    stamp(14)
    stamp_acc()
    A("s_barrier")
    A.settle()
    A.forget()
    A("s_branch L_step")
    if 'merged' in opt:
        A.label("L_kvslow")
        A(f"s_mov_b32 s{S_TO}, 0")
        A.label("L_kvslow2")
        A(f"buffer_load_dword v{V_T+1}, off, {WSR}, s{S_FOFF} sc1")
        A(f"s_add_u32 s{S_TO}, s{S_TO}, 1")
        A(f"s_cmp_gt_u32 s{S_TO}, 0x100000")
        A(f"s_cbranch_scc1 L_bail")
        A("s_waitcnt vmcnt(0)")
        A(f"v_cmp_gt_u32 vcc, 128, v{V_T+1}")
        A(f"s_cbranch_vccnz L_kvslow2")
        A.forget()
        A("s_branch L_kvok")
    A.label("L_last")
    if 'diag' in opt: dstamp(A, 7, True)
    A.settle()
    A(f"v_min_u32 v{V_AV+3}, -2, v{V_AV+6}")
    A(f"v_min_u32 v{V_AV+2}, -2, v{V_AV+2}")
    A(f"buffer_store_dwordx4 v[{V_AV}:{V_AV+3}], v{V_VMS}, {WSR}, s{S_VM} offen sc1")
    if 'rt' in opt:
        A.raw("    s_memtime s[60:61]")
        A.raw("    s_memrealtime s[62:63]")
        A.raw("    s_waitcnt lgkmcnt(0)")
        A(f"s_sub_u32 s56, s60, s56")
        A(f"s_sub_u32 s58, s62, s58")
        A(f"s_lshl_b32 s{S_T0}, s{S_H}, 2")
        A(f"s_add_u32 s{S_T0}, s{S_T0}, s{S_WV}")
        A(f"s_lshl_b32 s{S_T0}, s{S_T0}, 7")
        A(f"s_add_u32 s{S_T0}, s{S_T0}, {WS_TIME}")
        A(f"s_mov_b64 exec, 1")
        for k, r in enumerate((56, 58, 64, 65)):
            A(f"v_mov_b32 v{V_MK+1}, s{r}")
            A(f"v_mov_b32 v{V_MK}, {4*k}")
            A(f"buffer_store_dword v{V_MK+1}, v{V_MK}, {WSR}, s{S_T0} offen")
        A(f"s_mov_b64 exec, -1")
    A.wait(vm=0)
    if 'merged' in opt:
        A("s_barrier")
        A(f"s_cmp_lg_u32 s{S_WV}, 0")
        A(f"s_cbranch_scc1 L_end")
        A(f"v_mov_b32 v{V_T+1}, 64")
        A(f"s_mov_b64 exec, 1")
        A(f"buffer_store_dword v{V_T+1}, off, {WSR}, s{S_POFF} sc1")
        A.wait(vm=0)
    if timing:
        A(f"s_lshl_b32 s{S_T0}, s{S_H}, 2")
        A(f"s_add_u32 s{S_T0}, s{S_T0}, s{S_WV}")
        A(f"s_lshl_b32 s{S_T0}, s{S_T0}, 7")
        A(f"s_add_u32 s{S_T0}, s{S_T0}, {WS_TIME}")
        A(f"s_mov_b64 exec, 1")
        for k in range(18):
            A(f"v_mov_b32 v{V_T+1}, s{S_TACC+k}")
            A(f"v_mov_b32 v{V_T}, {4*k}")
            A(f"buffer_store_dword v{V_T+1}, v{V_T}, {WSR}, s{S_T0} offen")
        A.wait(vm=0)
    A("s_branch L_end")
    A.label("L_bail")
    A(f"s_mov_b64 exec, 1")
    A(f"v_mov_b32 v{V_T}, 60")
    A(f"v_mov_b32 v{V_T+1}, 0xdead")
    A(f"buffer_store_dword v{V_T+1}, v{V_T}, s[{S_DBG}:{S_DBG+3}], 0 offen")
    A.wait(vm=0)
    A.label("L_end")
```

```python
import sys
from asmlib import *
from layout import *
from gemm import *
from ln import *
import ao
from ao import *
import chain
from chain import srd, emit_chain, S_PW, S_WS, S_DBG, S_H, S_WV, S_T2, L_X
from gen_gemm_test import khead, kdesc

DIAG3 = [False]
KNAME = "parallel_sum__memory_aug_recurrent_mem_tr__mixer_channel_mlp__prompt_kernel"
T_KV = 128
T_H = T_KV + 224
T_Q = T_H + 56
T_M2 = T_Q + 128
NT2 = T_M2 + 64
KVT = 128
NYP = 4
HOLD_FROM = 600; HOLD_CNT = 128
PREF = 1
PREF_ORDER = (18, 20, 80)
PF0 = 128
WARM = 0
TOUCH = 0
WARM_CODE_KB = 32
P_X = 72; P_B2 = 74; P_OUT = 76; P_W2 = 78; P_WO = 80
W_TASK = 28; W_NEXT = 29; W_TO = 82; W_T = 83; W_T2 = 84; W_SIG = 85; W_PAR = 86; W_PREV = 87; W_NP = 88; W_INC = 90; W_KIND = 91; W_INI = 93; W_LAST = 96
INIT_TICKET = 64
LNT = 16
WSR = "s[4:7]"; DBG = "s[12:15]"
LDS_BC = 163840 - 16

def spin(A, name, load, cmp_fail, limit=0x200000):
    A(f"s_cmp_lg_u32 s{G_WV}, 0")
    A(f"s_cbranch_scc1 L_{name}_j")
    A(f"s_mov_b32 s{W_TO}, 0")
    A.label(f"L_{name}_p")
    A(load)
    A(f"s_add_u32 s{W_TO}, s{W_TO}, 1")
    A(f"s_cmp_gt_u32 s{W_TO}, {limit}")
    A(f"s_cbranch_scc1 L_wbail")
    A("s_waitcnt vmcnt(0)")
    A(cmp_fail)
    A(f"s_cbranch_vccz L_{name}_j")
    A("s_sleep 2")
    A(f"s_branch L_{name}_p")
    A.label(f"L_{name}_j")
    A.forget()
    A("s_barrier")

def wait_ws_ge(A, name, soff, val):
    spin(A, name, f"buffer_load_dword v31, off, {WSR}, s{soff} sc1", f"v_cmp_gt_u32 vcc, {val}, v31")

def signal_ws(A, name, soff, inc=None):
    A("s_waitcnt vmcnt(0)")
    A.forget()
    A("s_barrier")
    A(f"s_cmp_lg_u32 s{G_WV}, 0")
    A(f"s_cbranch_scc1 L_{name}_s")
    A(f"s_cmp_lg_u32 s{W_INI}, 0")
    A(f"s_cbranch_scc1 L_{name}_i")
    A(f"s_mov_b32 s{W_TO}, 0")
    A.label(f"L_{name}_ip")
    A(f"buffer_load_dword v31, off, {DBG}, 0 offset:{D_INIT} sc1")
    A(f"s_add_u32 s{W_TO}, s{W_TO}, 1")
    A(f"s_cmp_gt_u32 s{W_TO}, 0x200000")
    A("s_cbranch_scc1 L_wbail")
    A("s_waitcnt vmcnt(0)")
    A("v_cmp_eq_u32 vcc, 0, v31")
    A(f"s_cbranch_vccnz L_{name}_ip")
    A(f"s_mov_b32 s{W_INI}, 1")
    A.label(f"L_{name}_i")
    A("v_mov_b32 v31, 1" if inc is None else f"v_mov_b32 v31, s{inc}")
    A("s_mov_b64 exec, 1")
    A(f"buffer_atomic_add v31, off, {WSR}, s{soff}")
    A("s_mov_b64 exec, -1")
    A.label(f"L_{name}_s")
    A.forget()

def fetch_ticket(A, name, dbg_off, dst, soff=None, touch=False):
    A(f"s_cmp_lg_u32 s{G_WV}, 0")
    A(f"s_cbranch_scc1 L_{name}_t")
    A("v_mov_b32 v31, 1")
    A("s_mov_b64 exec, 1")
    A(f"buffer_atomic_add v31, off, {DBG}, {0 if soff is None else 's%d' % soff} offset:{dbg_off} sc0")
    if touch:
        A("s_mov_b64 exec, -1")
        A("v_and_b32 v70, 63, v0")
        A("v_lshlrev_b32 v70, 21, v70")
        nt = 0
        for ptr in (S_PW, S_PW + 2, S_PW + 4, S_PW + 6, 56):
            srd(A, 8, ptr, 4194304 if ptr != 56 else 2097152)
            A(f"buffer_load_dword v{71+nt}, v70, s[8:11], 0 offen"); nt += 1
        A(f"buffer_load_dword v{71+nt}, v70, {WSR}, 0 offen"); nt += 1
        A("s_mov_b64 exec, 1")
        A.raw(f"    s_waitcnt vmcnt({nt})")
    else:
        A("s_waitcnt vmcnt(0)")
    A(f"v_mov_b32 v30, {LDS_BC}")
    A("ds_write_b32 v30, v31")
    A("s_waitcnt lgkmcnt(0)")
    A("s_mov_b64 exec, -1")
    A.label(f"L_{name}_t")
    A.forget()
    A("s_barrier")
    A(f"v_mov_b32 v30, {LDS_BC}")
    A("ds_read_b32 v31, v30")
    A.wait(lg=0)
    A(f"v_readfirstlane_b32 s{dst}, v31")
    A("s_barrier")

def prog_wait(A):
    saved = [set(x) for x in A.vm]; savedl = [set(x) for x in A.lgkm]
    A(f"s_cmp_lg_u32 s{G_WV}, 0")
    A("s_cbranch_scc1 L_ap_j")
    A(f"s_lshl_b32 s{W_T2}, s{O_KC}, 9")
    A(f"s_add_u32 s{W_T2}, s{W_T2}, {F_PROG}")
    A(f"v_and_b32 v30, 3, v{OV_L}")
    A("v_lshlrev_b32 v30, 7, v30")
    A(f"s_mov_b32 s{W_TO}, 0")
    A.label("L_ap_p")
    A.auto = False
    A(f"buffer_load_dword v31, v30, {WSR}, s{W_T2} offen sc1")
    A.auto = True
    A(f"s_add_u32 s{W_TO}, s{W_TO}, 1")
    A(f"s_cmp_gt_u32 s{W_TO}, 0x400000")
    A("s_cbranch_scc1 L_wbail")
    A("s_waitcnt vmcnt(0)")
    A(f"v_cmp_ge_u32 vcc, s{O_SEG}, v31")
    A("s_cbranch_vccz L_ap_j")
    A("s_sleep 2")
    A("s_branch L_ap_p")
    A.label("L_ap_j")
    A.vm = saved; A.lgkm = savedl
    A("s_barrier")

def red_flag_addrs(A, seg_sreg):
    A(f"s_lshl_b32 s{W_T}, s{seg_sreg}, 2")
    A(f"s_add_u32 s{W_T}, s{W_T}, s{O_NC}")
    A(f"s_lshl_b32 s{W_T}, s{W_T}, 7")
    A(f"s_add_u32 s{W_T}, s{W_T}, {F_R}")
    A(f"s_lshr_b32 s{W_T2}, s{seg_sreg}, 3")
    A(f"s_lshl_b32 s{W_T2}, s{W_T2}, 7")
    A(f"s_add_u32 s{W_T2}, s{W_T2}, {F_Y}")
    A(f"v_and_b32 v28, 1, v{OV_L}")
    A("v_cmp_eq_u32 vcc, 0, v28")
    A(f"v_mov_b32 v30, s{W_T2}")
    A(f"v_mov_b32 v29, s{W_T}")
    A("v_cndmask_b32 v30, v30, v29, vcc")
    A("v_mov_b32 v29, 8")
    A("v_mov_b32 v28, 8")
    A("v_cndmask_b32 v29, v29, v28, vcc")

def ao_reduce(A, seg_sreg, tag, wait=True):
    t0 = OV_T; t1 = OV_T + 1
    if wait:
        red_flag_addrs(A, seg_sreg)
        if wait == 'data': A("v_mov_b32 v28, 0"); A(f"v_and_b32 v27, 1, v{OV_L}"); A("v_cmp_eq_u32 vcc, 0, v27"); A("v_cndmask_b32 v29, v29, v28, vcc")
        A(f"s_mov_b32 s{W_TO}, 0")
        A.label(f"L_rw{tag}")
        A(f"buffer_load_dword v31, v30, {WSR}, 0 offen sc1")
        A(f"s_add_u32 s{W_TO}, s{W_TO}, 1")
        A(f"s_cmp_gt_u32 s{W_TO}, 0x400000")
        A("s_cbranch_scc1 L_wbail")
        A("s_waitcnt vmcnt(0)")
        A("v_cmp_gt_u32 vcc, v29, v31")
        A.forget()
        A(f"s_cbranch_vccnz L_rw{tag}")
    A(f"s_lshl_b32 s{W_T}, s{seg_sreg}, 2")
    A(f"s_add_u32 s{W_T}, s{W_T}, s{O_NC}")
    A(f"s_lshl_b32 s{W_T}, s{W_T}, 17")
    A(f"s_add_u32 s{W_T}, s{W_T}, {WS_PART}")
    A(f"s_lshl_b32 s{O_T0}, s{O_KC}, 2")
    A(f"s_add_u32 s{O_T0}, s{O_T0}, s{O_WV}")
    A(f"s_lshl_b32 s{O_T1}, s{O_T0}, 9")
    A(f"s_add_u32 s{W_T}, s{W_T}, s{O_T1}")
    A(f"v_lshlrev_b32 v{t0}, 3, v{OV_L}")
    R = OV_Q
    def ploads():
        for kc in range(8):
            A(f"s_add_u32 s{O_T1}, s{W_T}, {kc*16384}")
            A(f"buffer_load_dwordx2 v[{R+2*kc}:{R+2*kc+1}], v{t0}, {WSR}, s{O_T1} offen sc1")
    if wait == 'data':
        A(f"s_mov_b32 s{W_TO}, 0")
        A.label(f"L_rd{tag}")
        ploads()
        A(f"s_add_u32 s{W_TO}, s{W_TO}, 1")
        A(f"s_cmp_gt_u32 s{W_TO}, 0x400000")
        A("s_cbranch_scc1 L_wbail")
        A.wait(vm=0)
        A(f"v_max3_u32 v{t1}, v{R}, v{R+1}, v{R+2}")
        for i in range(3, 15, 2): A(f"v_max3_u32 v{t1}, v{t1}, v{R+i}, v{R+i+1}")
        A(f"v_max_u32 v{t1}, v{t1}, v{R+15}")
        A(f"v_cmp_eq_u32 vcc, -1, v{t1}")
        A(f"s_cbranch_vccnz L_rd{tag}")
        A.forget()
    else:
        ploads()
    A(f"s_lshl_b32 s{O_T1}, s{seg_sreg}, 5")
    A(f"s_add_u32 s{O_T0}, s{O_T0}, s{O_T1}")
    A(f"s_lshl_b32 s{O_T1}, s{O_T0}, 11")
    A(f"s_lshl_b32 s{O_T2}, s{O_NC}, 9")
    A(f"s_add_u32 s{O_T1}, s{O_T1}, s{O_T2}")
    A(f"s_add_u32 s{O_T1}, s{O_T1}, {WS_Y}")
    for pl in range(NYP):
        A(f"buffer_load_dwordx2 v[{R+16+2*pl}:{R+17+2*pl}], v{t0}, {WSR}, s{O_T1} offen sc1")
        if pl < NYP - 1: A(f"s_add_u32 s{O_T1}, s{O_T1}, {4*MB}")
    A(f"v_lshlrev_b32 v{t1}, 2, v{OV_L}")
    A(f"s_lshl_b32 s{O_T1}, s{O_T0}, 10")
    A(f"s_lshl_b32 s{O_T2}, s{O_NC}, 8")
    A(f"s_add_u32 s{O_T1}, s{O_T1}, s{O_T2}")
    A(f"buffer_load_dword v{R+24}, v{t1}, s[56:59], s{O_T1} offen")
    A(f"buffer_load_dword v{R+25}, v{t1}, s[60:63], s{O_T2} offen")
    A(f"v_pk_add_f32 v[{R}:{R+1}], v[{R}:{R+1}], v[{R+2}:{R+3}]")
    for k in range(2, 8 + NYP):
        A(f"v_pk_add_f32 v[{R}:{R+1}], v[{R}:{R+1}], v[{R+2*k}:{R+2*k+1}]")
    for src in (R + 24, R + 25):
        A(f"v_lshlrev_b32 v{R+26}, 16, v{src}")
        A(f"v_and_b32 v{R+27}, 0xffff0000, v{src}")
        A(f"v_pk_add_f32 v[{R}:{R+1}], v[{R}:{R+1}], v[{R+26}:{R+27}]")
    A(f"v_cvt_pk_bf16_f32 v{R}, v{R}, v{R+1}")
    A(f"buffer_store_dword v{R}, v{t1}, s[64:67], s{O_T1} offen")

DBGMAP = {0: 2, 14: 3, 13: 5, 6: 6, 7: 7, 12: 8, 1: 10, 200: 1, 201: 11, 202: 12, 203: 13, 204: 4}
def dstamp(A, idx, diag, sreg_idx=None, cyc=False):
    if not diag: return
    if DIAG3[0]:
        if idx not in DBGMAP or sreg_idx is not None or cyc: return
        lb = A.newlabel("L_ds")
        A.raw("    s_memrealtime s[98:99]")
        A.raw("    s_waitcnt lgkmcnt(0)")
        A(f"s_cmp_lg_u32 s27, 0")
        A(f"s_cbranch_scc1 {lb}")
        A("v_mov_b32 v30, s98")
        A("s_mov_b64 exec, 1")
        if idx == 0:
            A("v_not_b32 v30, v30")
        A(f"buffer_atomic_umax v30, off, s[12:15], 0 offset:{4*DBGMAP[idx]}")
        A("s_mov_b64 exec, -1")
        A.vm.pop()
        A.label(lb)
        return
    lb = A.newlabel("L_ds")
    A.raw("    s_memtime s[98:99]" if cyc else "    s_memrealtime s[98:99]")
    A.raw("    s_waitcnt lgkmcnt(0)")
    A(f"s_cmp_lg_u32 s27, 0")
    A(f"s_cbranch_scc1 {lb}")
    A(f"s_lshl_b32 s100, s2, 9")
    if sreg_idx is not None:
        A(f"s_lshl_b32 s101, s{sreg_idx}, 2")
        A(f"s_add_u32 s100, s100, s101")
    A(f"s_add_u32 s100, s100, {WS_TIME + 4*idx}")
    A("v_mov_b32 v30, s98")
    A("s_mov_b64 exec, 1")
    A(f"buffer_store_dword v30, off, s[4:7], s100")
    A("s_mov_b64 exec, -1")
    A.vm.pop()
    A.label(lb)

def main_kernel(d1, d2, g1, g2, NPAR=6, diag=0):
    DIAG3[0] = (diag == 3)
    A = Asm()
    A("s_cmp_ge_u32 s2, 256")
    A("s_cbranch_scc1 L_end")
    A(f"s_load_dwordx2 s[{S_PW}:{S_PW+1}], s[0:1], {KA_WQ}")
    A(f"s_load_dwordx2 s[{S_PW+2}:{S_PW+3}], s[0:1], {KA_WK}")
    A(f"s_load_dwordx2 s[{S_PW+4}:{S_PW+5}], s[0:1], {KA_WV}")
    A(f"s_load_dwordx2 s[{S_PW+6}:{S_PW+7}], s[0:1], {KA_WO}")
    A(f"s_load_dwordx2 s[{S_PW+8}:{S_PW+9}], s[0:1], {KA_MEM0}")
    A(f"s_load_dwordx2 s[52:53], s[0:1], {KA_DBG}")
    A(f"s_load_dwordx2 s[54:55], s[0:1], {KA_WS}")
    A(f"s_load_dwordx2 s[56:57], s[0:1], {KA_X}")
    A(f"s_getreg_b32 s{S_T2}, hwreg(HW_REG_XCC_ID)")
    A(f"v_lshrrev_b32 v1, 6, v0")
    A(f"v_readfirstlane_b32 s{S_WV}, v1")
    A.wait(lg=0)
    srd(A, S_WS, 54, WS_SIZE)
    srd(A, S_DBG, 52, 256)
    A(f"s_and_b32 s60, s{S_T2}, 15")
    dstamp(A, 0, diag)
    if WARM:
        A.raw("    s_getpc_b64 s[62:63]")
        A.raw("L_pcw:")
        A.raw(f"    s_mov_b32 s61, L_worker-L_pcw")
        A("s_cmp_eq_u32 s60, 0")
        A("s_cselect_b32 s61, 0, s61")
        A.raw("    s_add_u32 s62, s62, s61")
        A.raw("    s_addc_u32 s63, s63, 0")
        A("v_lshlrev_b32 v70, 4, v0")
        for i in range(WARM_CODE_KB // 4):
            if i: A.raw("    s_add_u32 s62, s62, 4096"); A.raw("    s_addc_u32 s63, s63, 0")
            A.auto = False
            A(f"global_load_dwordx4 v[80:83], v70, s[62:63]")
            A.auto = True
        A.vm = []
    A("s_cmp_lg_u32 s2, 0")
    A("s_cbranch_scc1 L_noinit")
    for i in range(4): A(f"v_mov_b32 v{60+i}, 0")
    A("v_lshlrev_b32 v64, 4, v0")
    for i in range(FLAG_BYTES // 4096):
        A(f"s_mov_b32 s61, {WS_FLAG + i*4096}")
        A(f"buffer_store_dwordx4 v[60:63], v64, {WSR}, s61 offen sc1")
    A.label("L_noinit")
    A.forget()
    A(f"s_cmp_eq_u32 s60, 0")
    A(f"s_cselect_b32 s29, {D_CTK}, {D_WTK}")
    fetch_ticket(A, "tk", 0, S_H, soff=29, touch=bool(TOUCH))
    A("s_cmp_lg_u32 s2, 0")
    A("s_cbranch_scc1 L_noinit2")
    A("s_waitcnt vmcnt(0)")
    A("s_barrier")
    A(f"s_cmp_lg_u32 s{S_WV}, 0")
    A("s_cbranch_scc1 L_noinit2")
    A("v_mov_b32 v64, 1")
    A("s_mov_b64 exec, 1")
    A(f"buffer_store_dword v64, off, {DBG}, 0 offset:{D_INIT} sc1")
    A("s_mov_b64 exec, -1")
    A.label("L_noinit2")
    A.forget()
    A(f"s_cmp_lg_u32 s60, 0")
    A("s_cbranch_scc1 L_worker")
    A(f"s_cmp_ge_u32 s{S_H}, 32")
    A("s_cbranch_scc1 L_xs")
    emit_chain(A, d1=d1, d2=d2, g1=g1, g2=g2, opt=('merged', 'ack', 'pearly', 'qearly', 'onesV', 'vtq', 'kvq') + (('diag',) if diag else ()) + (('nostep',) if diag in (2, 3) else ()), dstamp=dstamp, kxpos=(22, 27), vbar=7, vtpos=(10, 15), kvpos=5)
    A("s_endpgm")

    A.label("L_xs")
    fetch_ticket(A, "xtk", D_WTK, S_H)
    A.label("L_worker")
    A.forget()
    A(f"s_mov_b32 s{W_TASK}, s{S_H}")
    A(f"s_mov_b32 s{P_WO}, s{S_PW+6}"); A(f"s_mov_b32 s{P_WO+1}, s{S_PW+7}")
    A(f"s_mov_b32 s{P_X}, s56"); A(f"s_mov_b32 s{P_X+1}, s57")
    A(f"s_load_dwordx2 s[22:23], s[0:1], {KA_W1}")
    A(f"s_load_dwordx2 s[24:25], s[0:1], {KA_B1}")
    A(f"s_load_dwordx2 s[{P_B2}:{P_B2+1}], s[0:1], {KA_B2}")
    A(f"s_load_dwordx2 s[{P_OUT}:{P_OUT+1}], s[0:1], {KA_OUT}")
    A(f"s_load_dwordx2 s[{P_W2}:{P_W2+1}], s[0:1], {KA_W2}")
    A.wait(lg=0)
    srd(A, G_SRDX, 24, 1792 * 2)
    gemm_setup_lane(A)
    A(f"s_mov_b32 s{W_INI}, 1")
    if PREF:
        NPF = 224 - PF0
        A(f"s_cmp_lt_u32 s{W_TASK}, {PF0}")
        A("s_cbranch_scc1 L_nopref")
        A(f"s_cmp_ge_u32 s{W_TASK}, 224")
        A("s_cbranch_scc1 L_nopref")
        A(f"s_sub_u32 s30, s{W_TASK}, {PF0}")
        A("s_lshl_b32 s30, s30, 13")
        A(f"s_lshl_b32 s31, s{G_WV}, 11")
        A("s_add_u32 s30, s30, s31")
        A(f"v_lshlrev_b32 v32, 4, v{GV_LANE}")
        n = 0
        for ptr in PREF_ORDER:
            srd(A, 8, ptr, 4194304)
            for rep in range((512 + NPF - 1) // NPF):
                A(f"s_add_u32 s31, s30, {rep * NPF * 8192}")
                for q in range(2):
                    r = 36 + 4 * (n % 16); n += 1
                    A.auto = False
                    A(f"buffer_load_dwordx4 v[{r}:{r+3}], v32, s[8:11], s31 offen offset:{q*1024}")
                    A.auto = True
            if len(A.vm) > 40: A.wait(vm=16)
        A.wait(vm=0)
        A.label("L_nopref")
        A.forget()
    assert (64 - TAIL_SEG) * 32 * 4096 == 96 * 8192
    A(f"s_cmp_lt_u32 s{W_TASK}, 128")
    A("s_cbranch_scc1 L_nokvp")
    A(f"s_cmp_ge_u32 s{W_TASK}, 224")
    A("s_cbranch_scc1 L_nokvp")
    for i in range(4): A(f"v_mov_b32 v{32+i}, -1")
    A("v_lshlrev_b32 v36, 4, v0")
    A(f"s_sub_u32 s30, s{W_TASK}, 128")
    A("s_lshl_b32 s30, s30, 13")
    A(f"s_add_u32 s30, s30, {WS_KVM + TAIL_SEG*32*4096}")
    A(f"buffer_store_dwordx4 v[32:35], v36, {WSR}, s30 offen sc1")
    A("s_add_u32 s30, s30, 4096")
    A(f"buffer_store_dwordx4 v[32:35], v36, {WSR}, s30 offen sc1")
    A.label("L_nokvp")
    A.forget()
    A(f"s_cmp_ge_u32 s{W_TASK}, 128")
    A("s_cbranch_scc1 L_noln")
    srd(A, 8, P_X, 2048 * 512 * 2)
    A(f"s_lshl_b32 s30, s{W_TASK}, 4")
    A(f"s_lshl_b32 s31, s{G_WV}, 2")
    A("s_add_u32 s30, s30, s31")
    emit_ln_rows(A, 8, 4, 30, 4, GV_LANE, SO=94)
    A("s_waitcnt vmcnt(0)")
    A.forget()
    A("s_barrier")
    A.label("L_noln")
    A(f"s_cmp_lg_u32 s{G_WV}, 0")
    A("s_cbranch_scc1 L_lnsig")
    A(f"s_mov_b32 s62, 0")
    A.label("L_ln_ip")
    A(f"buffer_load_dword v31, off, {DBG}, 0 offset:{D_INIT} sc1")
    A("s_add_u32 s62, s62, 1")
    A("s_cmp_gt_u32 s62, 0x200000")
    A("s_cbranch_scc1 L_wbail")
    A("s_waitcnt vmcnt(0)")
    A("v_cmp_eq_u32 vcc, 0, v31")
    A("s_cbranch_vccnz L_ln_ip")
    A(f"s_cmp_ge_u32 s{W_TASK}, 128")
    A("s_cbranch_scc1 L_lnsig")
    A(f"s_lshr_b32 s30, s{W_TASK}, 4")
    A("s_lshl_b32 s30, s30, 7")
    A(f"s_add_u32 s30, s30, {F_LN}")
    A("v_mov_b32 v31, 1")
    A("s_mov_b64 exec, 1")
    A(f"buffer_atomic_add v31, off, {WSR}, s30")
    A("s_mov_b64 exec, -1")
    A.label("L_lnsig")
    A.forget()
    dstamp(A, 1, diag)
    A(f"s_mov_b32 s89, 0")
    A.label("L_g1_next")
    A(f"s_cmp_ge_u32 s{W_TASK}, {NT2}")
    A("s_cbranch_scc1 L_ao_role")
    A(f"s_cmp_ge_u32 s{W_TASK}, {T_M2}")
    A("s_cbranch_scc1 L_m2")
    t = W_TASK
    A(f"s_mov_b32 s{G_LDA}, 1024")
    A(f"s_mov_b32 s{G_NST}, 8")
    A(f"s_mov_b32 s{G_SZA}, {WS_SIZE}")
    A(f"s_mov_b32 s{G_SRDA}, s4"); A(f"s_mov_b32 s{G_SRDA+1}, s5"); A(f"s_mov_b32 s{G_SRDA+3}, 0x20000")
    A(f"s_mov_b32 s{G_SRDC}, s4"); A(f"s_mov_b32 s{G_SRDC+1}, s5"); A(f"s_mov_b32 s{G_SRDC+2}, {WS_SIZE}"); A(f"s_mov_b32 s{G_SRDC+3}, 0x20000")
    A(f"s_mov_b32 s{G_SRDB+3}, 0x20000")
    A(f"s_mov_b32 s{W_INC}, 1")
    A(f"s_cmp_ge_u32 s{t}, {T_Q}")
    A("s_cbranch_scc1 L_dec_q")
    A(f"s_cmp_ge_u32 s{t}, {T_H}")
    A("s_cbranch_scc1 L_dec_h")
    A(f"s_mov_b32 s{G_LDB}, 8192")
    A(f"s_mov_b32 s{G_SZB}, 4194304")
    A(f"s_mov_b32 s{G_LDC}, 8192")
    A(f"s_cmp_lt_u32 s{t}, {T_KV}")
    A("s_cbranch_scc1 L_kv_small")
    A(f"s_sub_u32 s{W_T}, s{t}, {T_KV - 32}")
    A(f"s_and_b32 s{G_T1}, s{W_T}, 15")
    A(f"s_lshl_b32 s{G_BOFF}, s{G_T1}, 9")
    A(f"s_lshl_b32 s{G_T2}, s{G_T1}, 14")
    A(f"s_bfe_u32 s{W_KIND}, s{W_T}, 0x10004")
    A(f"s_lshr_b32 s{W_T2}, s{W_T}, 5")
    A(f"s_lshl_b32 s{W_T}, s{W_T2}, 1")
    A(f"s_mov_b32 s{W_INC}, 4")
    A("s_branch L_kv_common")
    A.label("L_kv_small")
    A(f"s_and_b32 s{G_T1}, s{t}, 31")
    A(f"s_lshl_b32 s{G_BOFF}, s{G_T1}, 8")
    A(f"s_lshl_b32 s{G_T2}, s{G_T1}, 13")
    A(f"s_bfe_u32 s{W_KIND}, s{t}, 0x10005")
    A(f"s_lshr_b32 s{W_T}, s{t}, 6")
    A(f"s_mov_b32 s{W_T2}, 0")
    A.label("L_kv_common")
    A(f"s_lshl_b32 s{G_AOFF}, s{W_T}, 17")
    A(f"s_add_u32 s{G_AOFF}, s{G_AOFF}, {WS_XN}")
    A(f"s_lshl_b32 s{W_SIG}, s{W_T2}, 7")
    A(f"s_add_u32 s{W_SIG}, s{W_SIG}, {F_KV}")
    A(f"s_lshl_b32 s{G_COFF}, s{W_T}, 20")
    A(f"s_cmp_eq_u32 s{W_KIND}, 1")
    A("s_cbranch_scc1 L_dec_v")
    A(f"s_mov_b32 s{G_SRDB}, s18"); A(f"s_and_b32 s{G_SRDB+1}, s19, 0xffff")
    A(f"s_add_u32 s{G_COFF}, s{G_COFF}, s{G_BOFF}")
    A(f"s_add_u32 s{G_COFF}, s{G_COFF}, {WS_KX}")
    A("s_branch L_lnwait")
    A.label("L_dec_v")
    A(f"s_mov_b32 s{G_SRDB}, s20"); A(f"s_and_b32 s{G_SRDB+1}, s21, 0xffff")
    A(f"s_add_u32 s{G_COFF}, s{G_COFF}, s{G_T2}")
    A(f"s_add_u32 s{G_COFF}, s{G_COFF}, {WS_VT}")
    A("s_branch L_lnwait")
    A.label("L_dec_q")
    A(f"s_sub_u32 s{W_T}, s{t}, {T_Q}")
    A(f"s_and_b32 s{G_T1}, s{W_T}, 15")
    A(f"s_lshr_b32 s{W_T2}, s{W_T}, 4")
    A(f"s_mov_b32 s{G_LDB}, 8192")
    A(f"s_mov_b32 s{G_SZB}, 4194304")
    A(f"s_lshl_b32 s{G_BOFF}, s{G_T1}, 9")
    A(f"s_mov_b32 s{G_LDC}, 8192")
    A(f"s_lshl_b32 s{G_AOFF}, s{W_T2}, 18")
    A(f"s_add_u32 s{G_AOFF}, s{G_AOFF}, {WS_XN}")
    A(f"s_mov_b32 s{G_SRDB}, s16"); A(f"s_and_b32 s{G_SRDB+1}, s17, 0xffff")
    A(f"s_lshl_b32 s{G_COFF}, s{W_T2}, 21")
    A(f"s_add_u32 s{G_COFF}, s{G_COFF}, s{G_BOFF}")
    A(f"s_add_u32 s{G_COFF}, s{G_COFF}, {WS_QX}")
    A(f"s_lshl_b32 s{W_SIG}, s{W_T2}, 7")
    A(f"s_add_u32 s{W_SIG}, s{W_SIG}, {F_Q}")
    A(f"s_mov_b32 s{W_KIND}, 0")
    A("s_branch L_lnwait")
    A.label("L_dec_h")
    A(f"s_sub_u32 s{G_T1}, s{t}, {T_H}")
    A(f"s_mul_i32 s{W_T2}, s{G_T1}, 37")
    A(f"s_lshr_b32 s{W_T2}, s{W_T2}, 8")
    A(f"s_mul_i32 s{G_T2}, s{W_T2}, 7")
    A(f"s_sub_u32 s{G_T1}, s{G_T1}, s{G_T2}")
    A(f"s_lshl_b32 s{G_AOFF}, s{W_T2}, 18")
    A(f"s_add_u32 s{G_AOFF}, s{G_AOFF}, {WS_XN}")
    A(f"s_mov_b32 s{G_LDB}, 3584")
    A(f"s_mov_b32 s{G_SZB}, {512*1792*2}")
    A(f"s_lshl_b32 s{G_BOFF}, s{G_T1}, 9")
    A(f"s_mov_b32 s{G_AUX}, s{G_BOFF}")
    A(f"s_mov_b32 s{G_SRDB}, s22"); A(f"s_and_b32 s{G_SRDB+1}, s23, 0xffff")
    A(f"s_mov_b32 s{G_LDC}, 3584")
    A(f"s_mul_i32 s{G_COFF}, s{W_T2}, {256*3584}")
    A(f"s_add_u32 s{G_COFF}, s{G_COFF}, s{G_BOFF}")
    A(f"s_add_u32 s{G_COFF}, s{G_COFF}, {WS_HB}")
    A(f"s_lshl_b32 s{W_SIG}, s{W_T2}, 7")
    A(f"s_add_u32 s{W_SIG}, s{W_SIG}, {F_H}")
    A(f"s_mov_b32 s{W_KIND}, 2")
    A.label("L_lnwait")
    A(f"s_cmp_lt_u32 s{t}, {HOLD_FROM}")
    A("s_cbranch_scc1 L_nohold")
    A(f"s_mov_b32 s30, {F_KV}")
    wait_ws_ge(A, "hold", 30, HOLD_CNT)
    A.label("L_nohold")
    A.forget()
    A(f"s_lshl_b32 s30, s{W_T2}, 7")
    A(f"s_add_u32 s30, s30, {F_LN}")
    wait_ws_ge(A, "lnw", 30, LNT)
    A(f"s_cmp_eq_u32 s{W_KIND}, 2")
    A("s_cbranch_scc1 L_task_h")
    A(f"s_cmp_lt_u32 s{t}, {T_KV}")
    A("s_cbranch_scc1 L_small")
    A(f"s_cmp_eq_u32 s{W_KIND}, 1")
    A("s_cbranch_scc1 L_task_v")
    A("s_branch L_task_k")
    A.label("L_small")
    A(f"s_cmp_eq_u32 s{W_KIND}, 1")
    A("s_cbranch_scc1 L_task_vs")
    A("s_branch L_task_ks")
    def run(tag, wT, epi, MI=4, halfB=False):
        A.label(f"L_task_{tag}")
        A.forget()
        if diag: A("s_lshl_b32 s92, s89, 2")
        dstamp(A, 96, diag, 92)
        if halfB and DIAG3[0]: dstamp(A, 200, diag)
        gemm_task_addr(A, MI, halfB)
        gemm_start(A, sc1A=True, MI=MI)
        gemm_main(A, tag, wT, sc1A=True, MI=MI)
        dstamp(A, 97, diag, 92)
        if halfB and DIAG3[0]: dstamp(A, 201, diag)
        epi()
        A.label(f"L_eskip_{tag}")
        A.forget()
        dstamp(A, 98, diag, 92)
        signal_ws(A, f"sg{tag}", W_SIG, inc=W_INC)
        dstamp(A, 80, diag, 89)
        if halfB and DIAG3[0]: dstamp(A, 202, diag)
        A("s_add_u32 s89, s89, 1")
        A("s_branch L_fetch")
    run("ks", True, lambda: epi_rowmajor(A, MI=2, skip="L_eskip_ks"), MI=2, halfB=True)
    run("vs", False, lambda: epi_vt(A, MI=2, skip="L_eskip_vs"), MI=2, halfB=True)
    run("k", True, lambda: epi_rowmajor(A))
    run("v", False, lambda: epi_vt(A))
    run("h", True, lambda: epi_rowmajor(A, gelu=True))
    A.label("L_m2")
    A.forget()
    A(f"s_sub_u32 s{W_T}, s{W_TASK}, {T_M2}")
    A(f"s_lshr_b32 s{W_T2}, s{W_T}, 3")
    A(f"s_lshl_b32 s{W_T2}, s{W_T2}, 7")
    A(f"s_add_u32 s{W_SIG}, s{W_T2}, {F_Y}")
    A(f"s_add_u32 s{W_T2}, s{W_T2}, {F_H}")
    wait_ws_ge(A, "hw", W_T2, 7)
    A(f"s_mov_b32 s{W_INC}, 1")
    A(f"s_mov_b32 s{G_LDA}, 3584")
    A(f"s_mov_b32 s{G_NST}, 7")
    A(f"s_mov_b32 s{G_SZA}, {WS_SIZE}")
    A(f"s_mov_b32 s{G_SRDA}, s4"); A(f"s_mov_b32 s{G_SRDA+1}, s5"); A(f"s_mov_b32 s{G_SRDA+3}, 0x20000")
    A(f"s_mov_b32 s{G_SRDC}, s4"); A(f"s_mov_b32 s{G_SRDC+1}, s5"); A(f"s_mov_b32 s{G_SRDC+2}, {WS_SIZE}"); A(f"s_mov_b32 s{G_SRDC+3}, 0x20000")
    A(f"s_mov_b32 s{G_SRDB}, s{P_W2}"); A(f"s_and_b32 s{G_SRDB+1}, s{P_W2+1}, 0xffff"); A(f"s_mov_b32 s{G_SRDB+3}, 0x20000")
    A(f"s_mov_b32 s{G_LDB}, 1024")
    A(f"s_mov_b32 s{G_SZB}, {1792*512*2}")
    A(f"s_mov_b32 s{G_LDC}, 2048")
    A(f"s_and_b32 s{G_T0}, s{W_T}, 3")
    A(f"s_bfe_u32 s{G_T1}, s{W_T}, 0x10002")
    A(f"s_lshr_b32 s{G_T2}, s{W_T}, 3")
    A(f"s_mul_i32 s{G_AOFF}, s{G_T2}, {256*3584}")
    A(f"s_mul_i32 s{G_AUX}, s{G_T0}, 896")
    A(f"s_add_u32 s{G_AOFF}, s{G_AOFF}, s{G_AUX}")
    A(f"s_add_u32 s{G_AOFF}, s{G_AOFF}, {WS_HB}")
    A(f"s_mul_i32 s{G_BOFF}, s{G_T0}, {448*1024}")
    A(f"s_lshl_b32 s{G_AUX}, s{G_T1}, 9")
    A(f"s_add_u32 s{G_BOFF}, s{G_BOFF}, s{G_AUX}")
    A(f"s_lshl_b32 s{G_COFF}, s{G_T0}, 22")
    A(f"s_lshl_b32 s{G_AUX}, s{G_T2}, 19")
    A(f"s_add_u32 s{G_COFF}, s{G_COFF}, s{G_AUX}")
    A(f"s_lshl_b32 s{G_AUX}, s{G_T1}, 10")
    A(f"s_add_u32 s{G_COFF}, s{G_COFF}, s{G_AUX}")
    A(f"s_add_u32 s{G_COFF}, s{G_COFF}, {WS_Y}")
    run("m2", True, lambda: epi_f32(A))
    A.label("L_fetch")
    A.forget()
    fetch_ticket(A, "nxt", D_WTK, W_TASK)
    A("s_branch L_g1_next")

    A.label("L_ao_role")
    A.forget()
    spin(A, "ini", f"buffer_load_dword v31, off, {DBG}, 0 offset:{D_INIT} sc1", "v_cmp_eq_u32 vcc, 0, v31")
    fetch_ticket(A, "aot", D_AO, W_TASK)
    A(f"s_cmp_ge_u32 s{W_TASK}, {32*NPAR}")
    A("s_cbranch_scc1 L_end")
    A(f"s_and_b32 s{O_KC}, s{W_TASK}, 7")
    A(f"s_bfe_u32 s{O_NC}, s{W_TASK}, 0x20003")
    A(f"s_lshr_b32 s{O_SEG}, s{W_TASK}, 5")
    srd(A, 56, P_X, 2048 * 512 * 2); srd(A, 60, P_B2, 1024); srd(A, 64, P_OUT, 2048 * 512 * 2)
    dstamp(A, 10, diag)
    ao_prologue(A, P_WO)
    dstamp(A, 11, diag)
    A(f"s_sub_u32 s{W_T}, 63, s{O_SEG}")
    A(f"s_mul_i32 s{W_T2}, s{W_T}, {(65536 + NPAR - 1) // NPAR}")
    A(f"s_lshr_b32 s{W_T2}, s{W_T2}, 16")
    A(f"s_mul_i32 s{W_T2}, s{W_T2}, {NPAR}")
    A(f"s_add_u32 s{W_LAST}, s{W_T2}, s{O_SEG}")
    A(f"s_lshl_b32 s{W_T}, s{W_LAST}, 2")
    A(f"s_add_u32 s{W_T}, s{W_T}, s{O_NC}")
    A(f"s_lshl_b32 s{W_T}, s{W_T}, 3")
    A(f"s_add_u32 s{W_T}, s{W_T}, s{O_KC}")
    A(f"s_lshl_b32 s{W_T}, s{W_T}, 14")
    A(f"s_add_u32 s{W_T}, s{W_T}, {WS_PART}")
    for i in range(4): A(f"v_mov_b32 v{32+i}, -1")
    A("v_lshlrev_b32 v36, 4, v0")
    for i in range(4):
        A(f"s_add_u32 s{W_T2}, s{W_T}, {i*4096}")
        A(f"buffer_store_dwordx4 v[32:35], v36, {WSR}, s{W_T2} offen sc1")
    A.wait(vm=0)
    A(f"s_mov_b32 s{W_PREV}, s{O_SEG}")
    A(f"s_mov_b32 s{W_NP}, -1")
    A.label("L_ao_loop")
    A.forget()
    A(f"s_lshr_b32 s{W_T}, s{O_SEG}, 3")
    A(f"s_cmp_eq_u32 s{W_T}, s{W_NP}")
    A("s_cbranch_scc1 L_ao_rbok")
    A(f"s_mov_b32 s{W_NP}, s{W_T}")
    A(f"s_lshl_b32 s{W_T}, s{W_T}, 7")
    A(f"s_add_u32 s{W_T2}, s{W_T}, {F_Q}")
    wait_ws_ge(A, "aq", W_T2, 16)
    A(f"s_add_u32 s{W_T2}, s{W_T}, {F_KV}")
    wait_ws_ge(A, "ak", W_T2, KVT)
    A.label("L_ao_rbok")
    A.forget()
    ao_segment(A, prog_wait=lambda: prog_wait(A))
    A(f"s_cmp_eq_u32 s{O_SEG}, s{W_LAST}")
    A("s_cbranch_scc1 L_ao_nosig")
    A(f"s_lshl_b32 s{W_T}, s{O_SEG}, 2")
    A(f"s_add_u32 s{W_T}, s{W_T}, s{O_NC}")
    A(f"s_lshl_b32 s{W_T}, s{W_T}, 7")
    A(f"s_add_u32 s{W_SIG}, s{W_T}, {F_R}")
    signal_ws(A, "sgr", W_SIG)
    A.label("L_ao_nosig")
    A.forget()
    dstamp(A, 16, diag, O_SEG)
    A(f"s_add_u32 s{O_SEG}, s{O_SEG}, {NPAR}")
    A.label("L_ao_red")
    A.forget()
    A(f"s_add_u32 s{W_T}, s{W_PREV}, {NPAR}")
    A(f"s_cmp_ge_u32 s{W_T}, s{O_SEG}")
    A("s_cbranch_scc1 L_ao_rdone")
    red_flag_addrs(A, W_PREV)
    A(f"buffer_load_dword v31, v30, {WSR}, 0 offen sc1")
    A("s_waitcnt vmcnt(0)")
    A(f"v_cmp_gt_u32 vcc, v29, v31")
    A.forget()
    A("s_cbranch_vccnz L_ao_rdone")
    ao_reduce(A, W_PREV, "a", wait=False)
    A(f"s_add_u32 s{W_PREV}, s{W_PREV}, {NPAR}")
    A.settle()
    A("s_branch L_ao_red")
    A.label("L_ao_rdone")
    A.forget()
    A(f"s_cmp_lt_u32 s{O_SEG}, 64")
    A.settle()
    A("s_cbranch_scc1 L_ao_loop")
    A.label("L_ao_fin")
    A.forget()
    A(f"s_cmp_ge_u32 s{W_PREV}, s{W_LAST}")
    A("s_cbranch_scc1 L_ao_lastred")
    ao_reduce(A, W_PREV, "b", wait=True)
    A(f"s_add_u32 s{W_PREV}, s{W_PREV}, {NPAR}")
    A.settle()
    A("s_branch L_ao_fin")
    A.label("L_ao_lastred")
    A.forget()
    ao_reduce(A, W_PREV, "c", wait='data')
    A.label("L_ao_end")
    A("s_waitcnt vmcnt(0)")
    dstamp(A, 12, diag)
    A("s_endpgm")
    A.label("L_wbail")
    A("s_mov_b64 exec, 1")
    A("v_mov_b32 v31, 0xbeef")
    A(f"buffer_store_dword v31, off, {DBG}, 0 offset:56")
    A("s_waitcnt vmcnt(0)")
    A("s_endpgm")
    return A.text()

if __name__ == "__main__":
    kw = dict(d1=0, d2=0, g1=0, g2=0)
    for a in sys.argv[2:]:
        k, v = a.split('=')
        if k == 'PORD':
            globals()['PREF_ORDER'] = tuple({'q':16,'k':18,'v':20,'o':80}[ch] for ch in v); continue
        if k in ('HOLD_FROM', 'HOLD_CNT', 'PREF', 'WARM', 'WARM_CODE_KB', 'PF0', 'TOUCH'): globals()[k] = int(v)
        else: kw[k] = int(v)
    hdr = open('parallel_sum__memory_aug_recurrent_mem_tr__mixer_channel_mlp__prompt.s.ref').read().split('; Override launch')[0]
    txt = hdr + f"; @launch kernel={KNAME} grid=(256,1,1) block=(256,1,1) lds=163840\n"
    DESC = """; One persistent launch, one workgroup per CU (256 threads, 512 registers per lane, 160 KiB LDS). Roles are taken at run time:
"""
    txt += DESC
    txt += '.amdgcn_target "amdgcn-amd-amdhsa--gfx950"\n.text\n'
    txt += khead(KNAME) + main_kernel(**kw)
    txt += '.section .rodata,"a"\n.p2align 6\n' + kdesc(KNAME)
    open(sys.argv[1], "w").write(txt)
```
